```python
import torch

def _softmax(x, axis=-1):
    return torch.softmax(x, dim=axis)
def _gelu(x):
    return torch.nn.functional.gelu(x, approximate="tanh")
def _silu(x):
    return torch.nn.functional.silu(x)
def _sigmoid(x):
    return torch.sigmoid(x)
def _layernorm(x, axis=-1, eps=1e-5):
    m = x.mean(dim=axis, keepdim=True)
    v = x.var(dim=axis, keepdim=True, unbiased=False)
    return (x - m) / torch.sqrt(v + eps)
def _scatter_add(tgt, idx, src, axis=0):
    return tgt.clone().index_add_(axis, idx, src)
def _segment_sum(src, seg, n):
    out = torch.zeros((n,) + src.shape[1:], dtype=src.dtype)
    return out.index_add_(0, seg, src)
def _pad(x, pw):
    flat = tuple(v for pair in reversed(pw) for v in pair)
    return torch.nn.functional.pad(x, flat)

kernel_name = 'gated_mix__ssm_conv_h3__dense_activation_gelu__prompt'

def setup_inputs():

    _w = (lambda a: (lambda t: t.to(torch.bfloat16) if t.is_floating_point() else t)(torch.as_tensor(a)))
    def _A_setup():
        B, S, D = 1, 2048, 512
        ks = 4
        return {
            "q": _w((lambda *s: torch.randn(*s, dtype=torch.bfloat16) * 0.05)(B, S, D)),
            "k": _w((lambda *s: torch.randn(*s, dtype=torch.bfloat16) * 0.2)(B, S, D)),
            "v": _w((lambda *s: torch.randn(*s, dtype=torch.bfloat16) * 0.2)(B, S, D)),
            "shift_k": _w((lambda *s: torch.randn(*s, dtype=torch.bfloat16) * 0.2)(D, ks) * 0.5),
            "ssm_k": _w((lambda *s: torch.randn(*s, dtype=torch.bfloat16) * 0.8)(D, S) * (1.0 / S ** 0.5)),
            "ssm_D": _w((lambda *s: torch.randn(*s, dtype=torch.bfloat16) * 0.2)(D)),
        }
    _A_in = _A_setup()

    def _B_setup():
        B, S, D, F = 1, 2048, 512, 1376
        return {
            "x": _w((lambda *s: torch.randn(*s, dtype=torch.bfloat16) * 0.05)(B, S, D)),
            "w1": _w((lambda *s: torch.randn(*s, dtype=torch.bfloat16) * 3.2)(D, F) * (D ** -0.5)),
            "b1": _w((lambda *s: torch.randn(*s, dtype=torch.bfloat16) * 3.2)(F) * 0.01),
            "w2": _w((lambda *s: torch.randn(*s, dtype=torch.bfloat16) * 0.05)(F, D) * (F ** -0.5)),
            "b2": _w((lambda *s: torch.randn(*s, dtype=torch.bfloat16) * 0.1)(D) * 0.01),
        }
    _B_in = _B_setup()

    return {
        "A_q": _A_in["q"],
        "A_k": _A_in["k"],
        "A_v": _A_in["v"],
        "A_shift_k": _A_in["shift_k"],
        "A_ssm_k": _A_in["ssm_k"],
        "A_ssm_D": _A_in["ssm_D"],
        "B_x": _B_in["x"],
        "B_w1": _B_in["w1"],
        "B_b1": _B_in["b1"],
        "B_w2": _B_in["w2"],
        "B_b2": _B_in["b2"],
        "gate_w": _w((lambda *s: torch.randn(*s, dtype=torch.bfloat16) * 0.05)(512) * 16.0),
    }

def reference(A_q, A_k, A_v, A_shift_k, A_ssm_k, A_ssm_D, B_x, B_w1, B_b1, B_w2, B_b2, gate_w):
    def _A_ref(q, k, v, shift_k, ssm_k, ssm_D):
        B, S, D = q.shape
        ks = shift_k.shape[-1]
        k_pad = _pad(k, ((0, 0), (ks - 1, 0), (0, 0)))
        k_shift = torch.zeros_like(k)
        for t in range(ks):
            k_shift = k_shift + k_pad[:, t:t + S, :] * shift_k[:, ks - 1 - t][None, None, :]
        kv = k_shift * v
        L = 2 * S
        kv_pad = _pad(kv, ((0, 0), (0, S), (0, 0)))
        kf_pad = _pad(ssm_k, ((0, 0), (0, S)))
        kv_f = (lambda x, axes=(-2,-1): torch.fft.rfft2(x.float(), dim=axes))(kv_pad[:, None, :, :], axes=(1, 2))
        kf_f = (lambda x, axes=(-2,-1): torch.fft.rfft2(x.float(), dim=axes))(kf_pad[:, None, :], axes=(1, 2))
        kf_f = (lambda x, *d: x.permute(*d))(kf_f, 1, 2, 0)
        y_f = kv_f * kf_f[None, :, :, :]
        y = (lambda x, s, axes=(-2,-1): torch.fft.irfft2(x, s=s, dim=axes).to(torch.bfloat16))(y_f, (1, L), axes=(1, 2))[:, 0, :S, :]
        y = y + kv * ssm_D[None, None, :]
        return q * y

    def _B_ref(x, w1, b1, w2, b2):
        h = torch.einsum("bsd,df->bsf", x, w1) + b1
        h = _gelu(h)
        return torch.einsum("bsf,fd->bsd", h, w2) + b2

    x = A_q
    g = _sigmoid((x * gate_w).sum(-1, keepdims=True))
    a = _A_ref(x, A_k, A_v, A_shift_k, A_ssm_k, A_ssm_D)
    b = _B_ref(x, B_w1, B_b1, B_w2, B_b2)
    return g * a + (1 - g) * b
```

```python
import re

TRANS = ("v_exp_f32", "v_log_f32", "v_rcp_f32", "v_rsq_f32", "v_sqrt_f32", "v_sin_f32", "v_cos_f32")
_reg_re = re.compile(r"(?<![\w.])([vas])(?:(\d+)|\[(\d+):(\d+)\])(?![\w])")

def regs_of(op):
    out = set()
    for m in _reg_re.finditer(op):
        k = m.group(1)
        if m.group(2) is not None: out.add((k, int(m.group(2))))
        else:
            for i in range(int(m.group(3)), int(m.group(4)) + 1): out.add((k, i))
    if re.search(r"(?<![\w])vcc(?![\w])", op): out |= {("s", 106), ("s", 107)}
    if re.search(r"(?<![\w])vcc_lo(?![\w])", op): out.add(("s", 106))
    if re.search(r"(?<![\w])vcc_hi(?![\w])", op): out.add(("s", 107))
    if re.search(r"(?<![\w])m0(?![\w])", op): out.add(("s", 124))
    if re.search(r"(?<![\w])exec(?![\w])", op): out |= {("s", 126), ("s", 127)}
    return out

class I:
    __slots__ = ("text", "tag", "mn", "cls", "dst", "src", "ops", "passes", "srcc", "ab", "data")
    def __init__(self, text, tag=None):
        self.text = text.strip(); self.tag = tag
        t = self.text.split(";")[0].strip()
        parts = t.split(None, 1)
        self.mn = parts[0] if parts else ""
        rest = parts[1] if len(parts) > 1 else ""
        ops = [o.strip() for o in re.split(r",(?![^\[]*\])", rest)] if rest else []
        self.ops = ops
        mn = self.mn
        self.dst = set(); self.src = set(); self.passes = 0; self.srcc = set(); self.ab = set(); self.data = set()
        if mn.endswith(":") or mn.startswith("."): self.cls = "label"; return
        if mn.startswith("v_mfma"):
            self.cls = "mfma"
            self.dst = regs_of(ops[0]); self.ab = regs_of(ops[1]) | regs_of(ops[2]); self.srcc = regs_of(ops[3])
            self.src = self.ab | self.srcc
            self.passes = 8 if "32x32x16" in mn else (4 if "16x16x32" in mn else 16)
        elif mn.startswith("v_"):
            self.cls = "valu"
            nd = 1
            if mn.startswith(("v_add_co", "v_sub_co", "v_addc_co", "v_subb_co", "v_mad_u64", "v_div_scale")): nd = 2
            for o in ops[:nd]: self.dst |= regs_of(o)
            for o in ops[nd:]: self.src |= regs_of(o)
            if mn.startswith(("v_fmac", "v_dot2c", "v_pk_fmac", "v_writelane")) or "_dpp" in mn and mn.startswith("v_mov"): self.src |= self.dst
            if "swap" in mn:
                self.dst |= regs_of(ops[1]); self.src |= self.dst
            if mn.startswith("v_cmpx"): self.dst |= {("s", 126), ("s", 127)}
        elif mn.startswith("ds_"):
            self.cls = "ds"
            if mn.startswith(("ds_read", "ds_bpermute", "ds_permute", "ds_swizzle")) or "_rtn" in mn:
                self.dst = regs_of(ops[0])
                for o in ops[1:]: self.src |= regs_of(o)
            else:
                for o in ops: self.src |= regs_of(o)
        elif mn.startswith(("buffer_", "global_")):
            self.cls = "vmem"
            islds = re.search(r"\blds\b", t) is not None or "load_lds" in mn
            if "load" in mn and not islds:
                self.dst = regs_of(ops[0])
                for o in ops[1:]: self.src |= regs_of(o)
            else:
                for o in ops: self.src |= regs_of(o)
                if islds: self.src.add(("s", 124))
                if "store" in mn and ("x3" in mn or "x4" in mn):
                    self.data = regs_of(ops[0] if mn.startswith("buffer") else ops[1])
        elif mn.startswith(("s_load", "s_buffer_load", "s_memtime", "s_memrealtime")):
            self.cls = "smem"
            self.dst = regs_of(ops[0])
            for o in ops[1:]: self.src |= regs_of(o)
        elif mn.startswith("s_"):
            self.cls = "salu"
            if mn.startswith(("s_cmp", "s_cbranch", "s_branch", "s_nop", "s_waitcnt", "s_barrier", "s_endpgm", "s_setprio", "s_sleep", "s_bitcmp")):
                for o in ops: self.src |= regs_of(o)
            else:
                self.dst = regs_of(ops[0])
                for o in ops[1:]: self.src |= regs_of(o)
                if "saveexec" in mn: self.dst |= {("s", 126), ("s", 127)}
        else:
            raise ValueError("unknown instr: " + text)
    def states(self):
        if self.cls == "label": return 0
        if self.mn == "s_nop": return int(self.ops[0], 0) + 1
        return 1

def need(p, c):
    n = 0
    vs = lambda s: {r for r in s if r[0] != "s"}
    ss = lambda s: {r for r in s if r[0] == "s"}
    if p.cls == "valu":
        pv = vs(p.dst); psg = ss(p.dst)
        if c.cls == "mfma" and pv & c.src: n = max(n, 2)
        if c.cls == "mfma" and ("s", 126) in psg: n = max(n, 4)
        if c.cls == "valu":
            if p.mn.startswith(TRANS) and pv & c.src: n = max(n, 1)
            if ("dpp" in c.text or "permlane" in c.mn) and pv & c.src: n = max(n, 2)
            if c.mn.startswith(("v_readlane", "v_readfirstlane")) and pv & c.src: n = max(n, 1)
            if psg & c.src: n = max(n, 4 if c.mn.startswith(("v_readlane", "v_writelane")) else 2)
            if ("op_sel" in p.text and not p.mn.startswith("v_pk") or "sdwa" in p.text) and pv & (c.src | c.dst): n = max(n, 1)
            if ("s", 126) in psg and ("dpp" in c.text): n = max(n, 5)
            if ("s", 126) in psg and c.mn.startswith(("v_readlane", "v_readfirstlane", "v_writelane", "v_permlane")): n = max(n, 4)
        if c.cls == "vmem" and psg & c.src: n = max(n, 5)
        if c.cls in ("salu", "smem") and psg & c.src: n = max(n, 1)
    if p.cls == "mfma":
        big = {4: 8, 8: 12, 16: 20}[p.passes]
        if c.cls == "mfma":
            if p.dst & c.ab: n = max(n, big)
            if p.dst & c.srcc and not (p.dst == c.srcc and p.mn == c.mn): n = max(n, big - 2)
            if p.dst & c.dst and not (p.dst & c.srcc): n = max(n, big)
        elif c.cls in ("valu", "ds", "vmem"):
            if p.dst & (c.src | c.dst): n = max(n, big)
            if c.cls == "valu" and p.srcc & c.dst: n = max(n, {4: 3, 8: 7, 16: 15}[p.passes])
    if p.cls == "salu" and ("s", 124) in p.dst and c.cls == "vmem" and ("s", 124) in c.src: n = max(n, 1)
    if p.cls == "vmem" and p.data and p.data & c.dst and c.cls != "vmem": n = max(n, 2 if c.cls in ("valu", "mfma") else 1)
    return n

class Prog:
    def __init__(self):
        self.items = []
    def __call__(self, text, tag=None):
        for line in text.split("\n"):
            if line.strip(): self.items.append(I(line, tag))
    def wvm(self, tag): self.items.append(("wvm", tag))
    def wlg(self, tag): self.items.append(("wlg", tag))
    def w0(self, vm=True, lg=True): self.items.append(("w0", vm, lg))
    def forget(self): self.items.append(("forget",))
    def ext(self, other): self.items.extend(other.items if isinstance(other, Prog) else other)

def interleave(main, side, start=0, every=1, per=1):
    m = main.items if isinstance(main, Prog) else main
    s = list(side.items if isinstance(side, Prog) else side)
    out = []
    for i, it in enumerate(m):
        out.append(it)
        if i >= start and (i - start) % every == every - 1:
            for _ in range(per):
                if s: out.append(s.pop(0))
    out.extend(s)
    return out

def resolve(items):
    out = []; hist = []
    vm = []; lg = []
    smem_out = False
    def emit(ins):
        if ins.cls == "label":
            out.append(ins.text); return
        dist = 0; req = 0
        for p in reversed(hist):
            r = need(p, ins) - dist
            if r > req: req = r
            dist += p.states()
            if dist >= 20: break
        while req > 0:
            k = min(req, 16)
            nop = I(f"s_nop {k-1}"); out.append("    " + nop.text); hist.append(nop); req -= k
        out.append("    " + ins.text); hist.append(ins)
        if len(hist) > 64: del hist[:32]
    for it in items:
        if isinstance(it, tuple):
            if it[0] == "wvm":
                idx = [i for i, t in enumerate(vm) if t == it[1]]
                if idx:
                    n = len(vm) - 1 - idx[-1]
                    n = min(n, 63)
                    emit(I(f"s_waitcnt vmcnt({n})")); vm = vm[len(vm) - n:] if n else []
            elif it[0] == "wlg":
                idx = [i for i, t in enumerate(lg) if t == it[1]]
                if idx:
                    n = 0 if smem_out else min(len(lg) - 1 - idx[-1], 15)
                    emit(I(f"s_waitcnt lgkmcnt({n})")); lg = lg[len(lg) - n:] if n else []
                    if n == 0: smem_out = False
            elif it[0] == "w0":
                s = []
                if it[1]: s.append("vmcnt(0)"); vm = []
                if it[2]: s.append("lgkmcnt(0)"); lg = []; smem_out = False
                emit(I("s_waitcnt " + " ".join(s)))
            continue
        if it.cls == "vmem":
            assert len(vm) < 63, "too many outstanding vmem ops: " + it.text
            vm.append(it.tag)
        elif it.cls == "ds": lg.append(it.tag)
        elif it.cls == "smem": lg.append(it.tag); smem_out = True
        emit(it)
    return out
```

```python
import sys
sys.path.insert(0, "dev")
from asmlib import *
NAME = "gated_mix__ssm_conv_h3__dense_activation_gelu__prompt"

WS_KVT = 0
WS_Y = 2 << 20
WS_H = 4 << 20
WS_F = 12 << 20
F1 = WS_F; F2 = WS_F + 4096; F3 = WS_F + 8192; ECOL = WS_F + 12288; EROW = WS_F + 16384
WS_SIZE = 16 << 20
TAGK = 0x9E3779B9
OOB = 0x80000000
XR = 0; WR = 81920; KST = 143360; VST = 152720; GWT = 161280; GWZ = 162304
QT = KST; GT = 151552; OT = 152576
HC = WR; U = 115200; EX = 0; RED = 0
LDS_BYTES = 163840
Q, K, V, SSM, W1, W2, WS, OUT, GW, B1 = "s[4:7]", "s[8:11]", "s[12:15]", "s[16:19]", "s[20:23]", "s[24:27]", "s[28:31]", "s[32:35]", "s[36:39]", "s[96:99]"
sW, sMT1, sC1, sMT2, sNT, sFT0, sN3, sTC, sTR = "s40", "s41", "s42", "s43", "s44", "s45", "s46", "s47", "s48"
sXB, sXL, sWB, sWL, sD0, sD1 = "s49", "s50", "s51", "s52", "s53", "s54"
t0, t1, t2, t3 = "s56", "s57", "s58", "s59"
sCNT = "s60"; sMASK = "s[62:63]"

def srd(p, base, ptr, size):
    p(f"s_mov_b32 s{base}, s{ptr}"); p(f"s_and_b32 s{base+1}, s{ptr+1}, 0xffff")
    p(f"s_mov_b32 s{base+2}, {size}"); p(f"s_mov_b32 s{base+3}, 0x20000")

def unpack(p, lo, hi, src):
    p(f"v_lshlrev_b32 v{lo}, 16, v{src}"); p(f"v_and_b32 v{hi}, 0xffff0000, v{src}")

def flag_store(p, tag_s, soff_s, vtmp, vzero):
    p(f"v_mov_b32 v{vtmp}, {tag_s}")
    p("s_mov_b64 exec, 1")
    p(f"buffer_store_dword v{vtmp}, v{vzero}, {WS}, {soff_s} offen sc1", tag="flag")
    p("s_mov_b64 exec, -1")

def flag_wait(p, name, tag_s, soff_s, vaddr, vtmp, mask):
    p(f"s_mov_b32 {sCNT}, 0")
    p(f"L_{name}:")
    p(f"buffer_load_dword v{vtmp}, v{vaddr}, {WS}, {soff_s} offen sc1", tag="poll")
    p.w0(vm=True, lg=False)
    p(f"v_cmp_ne_u32 vcc, {tag_s}, v{vtmp}")
    p(f"s_and_b64 vcc, vcc, {mask}")
    p(f"s_cbranch_scc0 L_{name}_ok")
    p(f"s_add_u32 {sCNT}, {sCNT}, 1")
    p(f"s_cmp_lt_u32 {sCNT}, 0x4000")
    p("s_sleep 2")
    p(f"s_cbranch_scc1 L_{name}")
    p(f"L_{name}_ok:")

def gen(stop=99, stamps=False):
    p = Prog()
    def stamp(i):
        if stamps:
            p(f"s_memtime s[94:95]"); p.w0(vm=False, lg=True); p(f"v_writelane_b32 v255, s94, {i}")
    p("s_cmp_ge_u32 s2, 256"); p("s_cbranch_scc1 L_end")
    p("s_load_dwordx16 s[64:79], s[0:1], 0"); p("s_load_dwordx8 s[80:87], s[0:1], 64")
    p("s_load_dwordx4 s[88:91], s[0:1], 96"); p("s_load_dwordx2 s[92:93], s[0:1], 112")
    if stamps: p("v_mov_b32 v255, 0")
    p("v_and_b32 v1, 63, v0"); p("v_lshrrev_b32 v2, 6, v0")
    p(f"v_readfirstlane_b32 {sW}, v2")
    p(f"s_and_b32 {t0}, s2, 7"); p(f"s_lshr_b32 {t1}, s2, 3")
    p(f"s_lshr_b32 {t2}, {t0}, 1"); p(f"s_and_b32 {t0}, {t0}, 1")
    p(f"s_lshl_b32 {t2}, {t2}, 2"); p(f"s_lshr_b32 {t3}, {t1}, 3"); p(f"s_add_u32 {sMT1}, {t2}, {t3}")
    p(f"s_and_b32 {t2}, {t1}, 7")
    p(f"s_lshl_b32 {t3}, {t0}, 3"); p(f"s_add_u32 {sC1}, {t3}, {t2}")
    p(f"s_lshr_b32 {t3}, {t2}, 2"); p(f"s_lshl_b32 {sMT2}, {sMT1}, 1"); p(f"s_add_u32 {sMT2}, {sMT2}, {t3}")
    p(f"s_and_b32 {t3}, {t2}, 3"); p(f"s_lshl_b32 {sNT}, {t0}, 2"); p(f"s_add_u32 {sNT}, {sNT}, {t3}")
    p(f"s_sub_u32 {t3}, 6, {t0}")
    p(f"s_cmp_lt_u32 {t2}, {t3}"); p(f"s_cselect_b32 {sN3}, 1, 0")
    p(f"s_min_u32 {t3}, {t2}, {t3}"); p(f"s_mul_i32 {sFT0}, {t0}, 22"); p(f"s_add_u32 {sFT0}, {sFT0}, {t3}")
    p(f"s_lshl_b32 {t2}, {t2}, 1"); p(f"s_add_u32 {sFT0}, {sFT0}, {t2}")
    p("v_lshrrev_b32 v3, 3, v1"); p("v_and_b32 v4, 7, v1"); p("v_lshrrev_b32 v5, 4, v1")
    vKV, vXE, vXO, vW = 6, 7, 8, 9
    p(f"v_lshlrev_b32 v{vKV}, 10, v3"); p(f"v_lshl_add_u32 v{vKV}, v4, 4, v{vKV}")
    p(f"v_xor_b32 v{vXE}, v4, v5"); p(f"v_lshlrev_b32 v{vXE}, 4, v{vXE}"); p(f"v_lshl_add_u32 v{vXE}, v3, 10, v{vXE}")
    p(f"v_xor_b32 v{vXO}, 64, v{vXE}")
    p(f"s_movk_i32 {t0}, 2752")
    p(f"s_cmp_eq_u32 {sN3}, 1"); p(f"s_cselect_b32 {t1}, 12, 8")
    p(f"v_mov_b32 v15, {OOB}")
    for i in range(3):
        p(f"v_add_u32 v12, {64*i}, v1"); p("v_mul_u32_u24 v13, 171, v12"); p("v_lshrrev_b32 v13, 11, v13")
        p("v_mul_u32_u24 v14, 12, v13"); p("v_sub_u32 v14, v12, v14")
        p(f"v_mul_lo_u32 v13, v13, {t0}"); p(f"v_lshl_add_u32 v13, v14, 4, v13")
        p(f"v_cmp_gt_u32 vcc, {t1}, v14"); p(f"v_cndmask_b32 v{vW+i}, v15, v13, vcc")
    vZ = 12; vL16 = 13; vL4 = 14
    p(f"v_mov_b32 v{vZ}, 0"); p(f"v_lshlrev_b32 v{vL16}, 4, v1"); p(f"v_and_b32 v{vL4}, 31, v1"); p(f"v_lshlrev_b32 v{vL4}, 2, v{vL4}")
    vOOB = 15
    p.w0(vm=False, lg=True)
    stamp(0)
    srd(p, 4, 64, 2097152); srd(p, 8, 66, 2097152); srd(p, 12, 68, 2097152); srd(p, 16, 72, 2097152)
    srd(p, 20, 78, 512*2752); srd(p, 24, 82, 1376*1024); srd(p, 28, 92, WS_SIZE); srd(p, 32, 88, 2097152)
    srd(p, 36, 86, 1024); srd(p, 96, 80, 2752)
    p(f"s_lshl_b32 {t0}, {sNT}, 7"); p(f"s_lshl_b32 {t1}, {sMT2}, 2"); p(f"s_add_u32 {t0}, {t0}, {t1}")
    p(f"s_load_dword {sD0}, s[74:75], {t0}", tag="ssmD")
    p(f"s_lshl_b32 {t2}, {sMT2}, 16"); p(f"s_lshl_b32 {t3}, {sNT}, 7"); p(f"s_add_u32 {t2}, {t2}, {t3}")
    p(f"s_cmp_lg_u32 {sW}, 0"); p("s_cbranch_scc1 L_nohalo")
    p(f"s_sub_u32 {t3}, {t2}, 8192"); p(f"v_add_u32 v16, {t3}, v{vKV}")
    p(f"s_mov_b32 m0, {KST}")
    p(f"buffer_load_dwordx4 v16, {K}, 0 offen nt lds", tag="kv")
    p("L_nohalo:")
    p(f"s_lshl_b32 {t0}, {sNT}, 8"); p(f"s_add_u32 {t0}, {t0}, {ECOL}")
    p(f"buffer_load_dword v17, v{vZ}, {WS}, {t0} offen sc1", tag="ep")
    p(f"s_lshl_b32 {t0}, {sMT1}, 8"); p(f"s_add_u32 {t0}, {t0}, {EROW}")
    p(f"buffer_load_dword v18, v{vZ}, {WS}, {t0} offen sc1", tag="ep")
    p(f"s_lshl_b32 {t0}, {sNT}, 9"); p(f"s_lshl_b32 {t1}, {sW}, 7"); p(f"s_add_u32 {t0}, {t0}, {t1}")
    p(f"v_lshl_add_u32 v19, v3, 4, {t0}")
    p(f"global_load_dwordx4 v[20:23], v19, s[70:71]", tag="kv")
    p(f"s_lshl_b32 {t0}, {sW}, 13"); p(f"s_add_u32 {t2}, {t2}, {t0}")
    p(f"s_mul_i32 {t1}, {sW}, 1040")
    for (srdn, base) in ((K, KST + 1040), (V, VST)):
        for hb in range(2):
            p(f"s_add_u32 m0, {t1}, {base + hb*4160}")
            p(f"s_add_u32 {t0}, {t2}, {hb*32768}")
            p(f"buffer_load_dwordx4 v{vKV}, {srdn}, {t0} offen nt lds", tag="kv")
    p(f"s_mov_b32 m0, {GWT}"); p(f"buffer_load_dwordx4 v{vL16}, {GW}, 0 offen lds", tag="kv")
    p(f"s_mov_b32 m0, {GWZ}"); p(f"buffer_load_dwordx4 v{vOOB}, {GW}, 0 offen lds", tag="kv")
    p(f"v_lshrrev_b32 v2, 5, v1")
    p(f"v_lshlrev_b32 v19, 3, v2"); p(f"s_lshl_b32 {t0}, {sFT0}, 6")
    for t in range(3):
        for q in range(4):
            r = 24 + (t*4+q)*2
            p(f"buffer_load_dwordx2 v[{r}:{r+1}], v19, {B1}, {t0} offen offset:{t*64+q*16}", tag="b1")
    p(f"s_lshl_b32 {sXB}, {sMT1}, 17"); p(f"s_lshl_b32 {t0}, {sW}, 15"); p(f"s_add_u32 {sXB}, {sXB}, {t0}")
    p(f"s_mul_i32 {sXL}, {sW}, 20480")
    p(f"s_mul_i32 {sWB}, {sW}, {16*2752}"); p(f"s_lshl_b32 {t0}, {sFT0}, 6"); p(f"s_add_u32 {sWB}, {sWB}, {t0}")
    p(f"s_mul_i32 {sWL}, {sW}, 3072"); p(f"s_add_u32 {sWL}, {sWL}, {WR}")
    def chunk_dma(c):
        d = Prog(); slot = c % 5
        for i in range(4):
            d(f"s_add_u32 m0, {sXL}, {XR + slot*4096 + i*1024}")
            d(f"s_add_u32 {t0}, {sXB}, {8192*i + 128*c}")
            d(f"buffer_load_dwordx4 v{vXE if i%2==0 else vXO}, {Q}, {t0} offen lds", tag=f"c{c}")
        d(f"s_add_u32 {t0}, {sWB}, {64*c*2752}")
        for i in range(3):
            d(f"s_add_u32 m0, {sWL}, {slot*12288 + i*1024}")
            d(f"buffer_load_dwordx4 v{vW+i}, {W1}, {t0} offen lds", tag=f"c{c}")
        return d
    for c in range(5): p.ext(chunk_dma(c))
    p.wvm("kv")
    p(f"v_readfirstlane_b32 {sTC}, v17"); p(f"v_readfirstlane_b32 {sTR}, v18")
    p(f"s_add_u32 {sTC}, {sTC}, {TAGK}"); p(f"s_add_u32 {sTR}, {sTR}, {TAGK}")
    p.wlg("ssmD")
    p(f"s_and_b32 {sD1}, {sD0}, 0xffff0000"); p(f"s_lshl_b32 {sD0}, {sD0}, 16")
    p("s_barrier")
    stamp(1)
    p(f"s_lshl_b32 {t0}, {sW}, 5"); p(f"s_add_u32 {t0}, {t0}, {KST}")
    p(f"v_mul_u32_u24 v16, 1040, v4"); p(f"v_lshl_add_u32 v16, v3, 2, v16"); p(f"v_add_u32 v16, {t0}, v16")
    KR, VR, KF, VF, CF, KS = 100, 112, 120, 144, 160, 168
    for i in range(11):
        off = 640 + 128*i if i < 3 else 1040 + 128*(i-3)
        p(f"ds_read_b32 v{KR+i}, v16 offset:{off}", tag="pk")
    for i in range(8):
        p(f"ds_read_b32 v{VR+i}, v16 offset:{VST-KST+128*i}", tag="pv")
    unpack(p, CF+0, CF+2, 20); unpack(p, CF+4, CF+6, 21); unpack(p, CF+1, CF+3, 22); unpack(p, CF+5, CF+7, 23)
    p.wlg("pk")
    for i in range(11): unpack(p, KF+2*i, KF+2*i+1, KR+i)
    p.wlg("pv")
    for i in range(8): unpack(p, VF+2*i, VF+2*i+1, VR+i)
    pr = lambda r: f"v[{r}:{r+1}]"
    for i in range(8): p(f"v_pk_mul_f32 {pr(KS+2*i)}, {pr(KF+2*(i+3))}, {pr(CF)}")
    for j in range(1, 4):
        for i in range(8): p(f"v_pk_fma_f32 {pr(KS+2*i)}, {pr(KF+2*(i+3-j))}, {pr(CF+2*j)}, {pr(KS+2*i)}")
    for i in range(8): p(f"v_pk_mul_f32 {pr(KS+2*i)}, {pr(KS+2*i)}, {pr(VF+2*i)}")
    for ch in range(2):
        for i in range(4): p(f"v_cvt_pk_bf16_f32 v{KR+4*ch+i}, v{KS+4*i+ch}, v{KS+4*i+2+ch}")
    p(f"v_lshlrev_b32 v16, 13, v3"); p(f"v_lshl_add_u32 v16, v4, 4, v16")
    p(f"s_lshl_b32 {t0}, {sNT}, 18"); p(f"s_lshl_b32 {t1}, {sW}, 16"); p(f"s_add_u32 {t0}, {t0}, {t1}")
    p(f"s_lshl_b32 {t1}, {sMT2}, 7"); p(f"s_add_u32 {t0}, {t0}, {t1}"); p(f"s_add_u32 {t1}, {t0}, 4096")
    p(f"buffer_store_dwordx4 v[{KR}:{KR+3}], v16, {WS}, {t0} offen sc1", tag="kvst")
    p(f"buffer_store_dwordx4 v[{KR+4}:{KR+7}], v16, {WS}, {t1} offen sc1", tag="kvst")
    ACC = 48
    GA = 96
    p.wvm("b1")
    for t in range(3):
        for q in range(4):
            r = 24 + (t*4+q)*2; a = ACC + t*16 + q*4
            unpack(p, a, a+1, r); unpack(p, a+2, a+3, r+1)
    for i in range(4): p(f"v_mov_b32 v{GA+i}, 0")
    vXA, vWA, vGA = 20, 24, 25
    p("v_and_b32 v16, 31, v1"); p("v_lshrrev_b32 v17, 1, v16"); p("v_and_b32 v17, 7, v17"); p("v_xor_b32 v17, v17, v2")
    p("v_lshlrev_b32 v17, 4, v17"); p(f"v_lshl_add_u32 v17, v16, 7, v17"); p(f"v_add_u32 v{vXA}, {sXL}, v17")
    for jj in range(1, 4): p(f"v_xor_b32 v{vXA+jj}, {32*jj}, v{vXA}")
    p("v_bfe_u32 v16, v1, 2, 2"); p("v_lshl_add_u32 v17, v2, 3, v16"); p("v_mul_u32_u24 v17, 192, v17")
    p("v_and_b32 v18, 1, v5"); p("v_lshl_add_u32 v17, v18, 5, v17"); p("v_and_b32 v19, 3, v1"); p("v_lshl_add_u32 v17, v19, 3, v17")
    p(f"v_add_u32 v{vWA}, {WR}, v17")
    p("v_xor_b32 v17, v5, v1"); p("v_and_b32 v17, 1, v17"); p("v_lshlrev_b32 v17, 10, v17")
    p(f"v_lshl_add_u32 v17, v2, 4, v17"); p(f"v_add_u32 v{vGA}, {GWT}, v17")
    XF, WF, GF = 100, 108, 132
    for c in range(8):
        slot = c % 5
        p.wvm(f"c{c}")
        if c == 1:
            p.wvm("kvst")
            p(f"s_lshl_b32 {t0}, {sNT}, 9"); p(f"s_lshl_b32 {t1}, {sW}, 7"); p(f"s_add_u32 {t0}, {t0}, {t1}")
            p(f"s_lshl_b32 {t1}, {sMT2}, 2"); p(f"s_add_u32 {t0}, {t0}, {t1}"); p(f"s_add_u32 {t0}, {t0}, {F1}")
            flag_store(p, sTC, t0, 16, vZ)
        p("s_barrier")
        if c >= 1 and c + 4 < 8: p.ext(chunk_dma(c + 4))
        if c == 0:
            p(f"s_lshl_b32 {t0}, {sMT2}, 16"); p(f"s_lshl_b32 {t1}, {sNT}, 7"); p(f"s_add_u32 {t0}, {t0}, {t1}")
            p(f"s_lshl_b32 {t1}, {sW}, 14"); p(f"s_add_u32 {t0}, {t0}, {t1}"); p(f"s_lshl_b32 {t1}, {sW}, 11")
            p(f"s_add_u32 m0, {t1}, {QT}"); p(f"buffer_load_dwordx4 v{vXE}, {Q}, {t0} offen lds", tag="qt")
            p(f"s_add_u32 m0, {t1}, {QT+1024}"); p(f"s_add_u32 {t0}, {t0}, 8192")
            p(f"buffer_load_dwordx4 v{vXO}, {Q}, {t0} offen lds", tag="qt")
        def reads(jj):
            b = jj & 1
            p(f"ds_read_b128 v[{XF+4*b}:{XF+4*b+3}], v{vXA+jj} offset:{slot*4096}", tag=f"r{c}_{jj}")
            p(f"ds_read_b128 v[{GF+4*b}:{GF+4*b+3}], v{vGA} offset:{32*(4*c+jj)}", tag=f"r{c}_{jj}")
            for t in range(3):
                for h in range(2):
                    r = WF + 12*b + 4*t + 2*h
                    p(f"ds_read_b64_tr_b16 v[{r}:{r+1}], v{vWA} offset:{slot*12288 + (16*jj+4*h)*192 + t*64}", tag=f"r{c}_{jj}")
        reads(0)
        for jj in range(4):
            if jj < 3: reads(jj + 1)
            p.wlg(f"r{c}_{jj}")
            b = jj & 1
            for t in range(3):
                p(f"v_mfma_f32_32x32x16_bf16 v[{ACC+16*t}:{ACC+16*t+15}], v[{WF+12*b+4*t}:{WF+12*b+4*t+3}], v[{XF+4*b}:{XF+4*b+3}], v[{ACC+16*t}:{ACC+16*t+15}]")
            p(f"v_mfma_f32_16x16x32_bf16 v[{GA}:{GA+3}], v[{GF+4*b}:{GF+4*b+3}], v[{XF+4*b}:{XF+4*b+3}], v[{GA}:{GA+3}]")
    stamp(2)
    C0 = -2.0 * 0.7978845608028654 * 1.4426950408889634
    C1 = C0 * 0.044715
    import struct
    fb = lambda x: "0x%08x" % struct.unpack("<I", struct.pack("<f", x))[0]
    p(f"s_mov_b32 s100, {fb(C1)}"); p(f"v_mov_b32 v26, {fb(C0)}"); p(f"v_mov_b32 v27, {fb(C0)}")
    p(f"s_mov_b32 s101, {fb(C1)}")
    T = 100; HP = 140
    p(f"s_lshr_b32 {t0}, {sW}, 1"); p(f"s_lshl_b32 {t1}, {sMT1}, 1"); p(f"s_add_u32 {t0}, {t0}, {t1}")
    p(f"s_mul_i32 {t2}, {t0}, 43"); p(f"s_add_u32 {t2}, {t2}, {sFT0}"); p(f"s_lshl_b32 {t2}, {t2}, 12")
    p(f"s_and_b32 {t1}, {sW}, 1"); p(f"s_lshl_b32 {t3}, {t1}, 11"); p(f"s_add_u32 {t2}, {t2}, {t3}"); p(f"s_add_u32 {t2}, {t2}, {WS_H}")
    p(f"s_lshl_b32 {t0}, {t0}, 7"); p(f"s_lshl_b32 {t1}, {t1}, 2"); p(f"s_add_u32 {t0}, {t0}, {t1}")
    p(f"s_lshl_b32 {t1}, {sC1}, 3"); p(f"s_add_u32 {t0}, {t0}, {t1}"); p(f"s_add_u32 s61, {t0}, {F2}")
    p(f"s_cmp_eq_u32 {sN3}, 1"); p(f"s_cselect_b64 vcc, -1, 0"); p(f"v_cndmask_b32 v28, v{vOOB}, v{vL16}, vcc")
    for t in range(3):
        a = ACC + 16*t
        for i in range(8): p(f"v_pk_mul_f32 {pr(T+2*i)}, {pr(a+2*i)}, {pr(a+2*i)}")
        for i in range(8): p(f"v_pk_fma_f32 {pr(T+2*i)}, {pr(T+2*i)}, s[100:101], v[26:27]")
        for i in range(8): p(f"v_pk_mul_f32 {pr(T+2*i)}, {pr(T+2*i)}, {pr(a+2*i)}")
        for i in range(16): p(f"v_exp_f32 v{T+i}, v{T+i}")
        for i in range(8): p(f"v_pk_add_f32 {pr(T+2*i)}, {pr(T+2*i)}, 1.0 op_sel_hi:[1,0]")
        for i in range(16): p(f"v_rcp_f32 v{T+i}, v{T+i}")
        for i in range(8): p(f"v_pk_mul_f32 {pr(T+2*i)}, {pr(T+2*i)}, {pr(a+2*i)}")
        for i in range(8): p(f"v_cvt_pk_bf16_f32 v{HP+8*t+i}, v{T+2*i}, v{T+2*i+1}")
        if t: p(f"s_add_u32 {t2}, {t2}, 4096")
        for ks in range(2):
            r = HP + 8*t + 4*ks
            p(f"buffer_store_dwordx4 v[{r}:{r+3}], v{28 if t == 2 else vL16}, {WS}, {t2} offen offset:{1024*ks} sc1", tag="hst")
    p("v_and_b32 v16, 16, v1"); p("v_cmp_ne_u32 vcc, 0, v16"); p(f"v_cndmask_b32 v16, v{GA}, v{GA+1}, vcc")
    p("v_cvt_pk_bf16_f32 v16, v16, v16"); p("v_and_b32 v16, 0xffff0000, v16")
    p(f"v_mul_f32 v16, {fb(-1.4426950408889634)}, v16"); p("v_exp_f32 v16, v16"); p("v_add_f32 v16, 1.0, v16"); p("v_rcp_f32 v16, v16")
    p("v_cvt_pk_bf16_f32 v16, v16, v16"); p("v_and_b32 v16, 0xffff0000, v16")
    p("v_sub_f32 v17, 1.0, v16"); p("v_cvt_pk_bf16_f32 v17, v17, v17"); p("v_and_b32 v17, 0xffff0000, v17")
    p(f"s_lshl_b32 {t0}, {sW}, 8"); p(f"s_add_u32 {t0}, {t0}, {GT}"); p(f"v_lshl_add_u32 v18, v{vL4}, 1, {t0}")
    p("ds_write_b64 v18, v[16:17]", tag="gw")
    p.wvm("hst")
    flag_store(p, sTR, "s61", 16, vZ)
    stamp(3)
    vW2, vB2 = 20, 21
    p("v_and_b32 v16, 1, v5"); p("v_lshlrev_b32 v16, 2, v16"); p("v_xor_b32 v16, v16, v4"); p("v_lshlrev_b32 v16, 4, v16")
    p(f"v_lshl_add_u32 v{vW2}, v3, 10, v16")
    p("v_bfe_u32 v16, v1, 2, 2"); p("v_lshl_add_u32 v17, v2, 2, v16"); p("v_lshlrev_b32 v17, 7, v17")
    p("v_and_b32 v18, 1, v5"); p("v_lshl_add_u32 v17, v18, 5, v17"); p("v_and_b32 v19, 3, v1"); p("v_lshl_add_u32 v17, v19, 3, v17")
    p("v_and_b32 v16, 2, v16"); p("v_lshlrev_b32 v16, 5, v16"); p("v_xor_b32 v17, v17, v16")
    p(f"s_and_b32 {t0}, {sW}, 1"); p(f"s_lshl_b32 {t0}, {t0}, 6"); p(f"v_xor_b32 v17, {t0}, v17")
    p(f"v_add_u32 v{vB2}, {sXL}, v17"); p(f"v_xor_b32 v{vB2+1}, 64, v{vB2}")
    p(f"s_mul_i32 {sWB}, {sW}, {11*32768}"); p(f"s_lshl_b32 {t0}, {sNT}, 7"); p(f"s_add_u32 {sWB}, {sWB}, {t0}")
    def w2_dma(tau):
        d = Prog()
        for i in range(4):
            d(f"s_add_u32 m0, {sXL}, {XR + (tau%5)*4096 + i*1024}"); d(f"s_add_u32 {t0}, {sWB}, {tau*32768 + i*8192}")
            d(f"buffer_load_dwordx4 v{vW2}, {W2}, {t0} offen lds", tag=f"w2_{tau}")
        return d
    def w2_read(tau):
        d = Prog()
        d.wvm(f"w2_{tau}")
        for td in range(2):
            for ks in range(2):
                for j in range(2):
                    a = tau*16 + td*8 + ks*4 + 2*j
                    d(f"ds_read_b64_tr_b16 a[{a}:{a+1}], v{vB2+td} offset:{XR + (tau%5)*4096 + (16*ks+8*j)*128}", tag=f"w2r_{tau}")
        return d
    for tau in range(5): p.ext(w2_dma(tau))
    for tau in range(11):
        p.ext(w2_read(tau))
        if tau + 5 < 11:
            p.wlg(f"w2r_{tau}")
            p.ext(w2_dma(tau + 5))
    p.w0(vm=False, lg=True)
    p("s_barrier")
    stamp(4)
    p(f"s_lshl_b32 {t0}, {sNT}, 6"); p(f"s_lshl_b32 {t1}, {sMT2}, 1"); p(f"s_add_u32 {t0}, {t0}, {t1}")
    p(f"s_lshr_b32 {t1}, {sW}, 1"); p(f"s_add_u32 {t0}, {t0}, {t1}"); p(f"s_lshl_b32 {t2}, {t0}, 12")
    p(f"s_and_b32 {t3}, {sW}, 1"); p(f"s_lshl_b32 {t3}, {t3}, 11"); p(f"s_add_u32 {t2}, {t2}, {t3}")
    p(f"v_add_u32 v16, {t2}, v{vL16}")
    p("v_add_u32 v17, -4, v16"); p("v_max_i32 v17, 0, v17"); p("v_add_u32 v18, -8, v16"); p("v_max_i32 v18, 0, v18")
    P_, Q_, R_ = 100, 108, 116
    for r in range(2):
        p(f"buffer_load_dwordx4 v[{P_+4*r}:{P_+4*r+3}], v16, {SSM}, 0 offen offset:{1024*r} nt", tag="ssm")
        if r == 0:
            p(f"buffer_load_dwordx4 v[{Q_}:{Q_+3}], v17, {SSM}, 0 offen nt", tag="ssm")
            p(f"buffer_load_dwordx4 v[{R_}:{R_+3}], v18, {SSM}, 0 offen nt", tag="ssm")
        else:
            p(f"buffer_load_dwordx4 v[{Q_+4}:{Q_+7}], v16, {SSM}, 0 offen offset:1020 nt", tag="ssm")
            p(f"buffer_load_dwordx4 v[{R_+4}:{R_+7}], v16, {SSM}, 0 offen offset:1016 nt", tag="ssm")
    for i in range(4): p(f"v_mov_b32 v{124+i}, 0")
    p("v_mul_u32_u24 v19, 4160, v4"); p("v_and_b32 v29, 1, v3"); p("v_lshl_add_u32 v19, v29, 4, v19")
    p(f"v_add_u32 v19, {HC}, v19"); p("ds_write_b128 v19, v[124:127]", tag="z")
    p("v_mul_u32_u24 v19, 4608, v2"); p(f"v_lshl_add_u32 v19, v{vL4}, 2, v19"); p(f"v_add_u32 v19, {U}, v19")
    p("ds_write_b128 v19, v[124:127]", tag="z")
    p(f"s_lshl_b32 {t0}, {sNT}, 9"); p(f"s_lshr_b32 {t1}, {sMT2}, 3"); p(f"s_lshl_b32 {t1}, {t1}, 7"); p(f"s_add_u32 {t0}, {t0}, {t1}")
    p(f"s_add_u32 {t0}, {t0}, {F1}")
    flag_wait(p, "f1", sTC, t0, vL4, 19, "-1")
    for r in range(2):
        p(f"buffer_load_dwordx4 v[{128+4*r}:{131+4*r}], v16, {WS}, 0 offen offset:{1024*r} sc1", tag="kvt")
    p(f"v_add_u32 v19, {t3}, v{vL16}"); p("v_cmp_eq_u32 vcc, 0, v19")
    p(f"v_cndmask_b32 v{Q_}, v{Q_}, v{vZ}, vcc")
    for i in range(1, 4): p(f"v_cndmask_b32 v{Q_+i}, v{Q_+i}, v{P_+i-1}, vcc")
    for i in range(2): p(f"v_cndmask_b32 v{R_+i}, v{R_+i}, v{vZ}, vcc")
    for i in range(2, 4): p(f"v_cndmask_b32 v{R_+i}, v{R_+i}, v{P_+i-2}, vcc")
    C1_, C3_ = 136, 144
    for i in range(8):
        p(f"v_alignbit_b32 v{C1_+i}, v{P_+i}, v{Q_+i}, 16"); p(f"v_alignbit_b32 v{C3_+i}, v{Q_+i}, v{R_+i}, 16")
    p(f"s_lshr_b32 {t1}, {sW}, 1"); p(f"s_mul_i32 {t0}, {t1}, 16640"); p(f"s_add_u32 {t0}, {t0}, {HC+32}")
    p(f"v_add_u32 v29, {t0}, v19")
    for c, src in enumerate((P_, C1_, Q_, C3_)):
        for r in range(2):
            p(f"ds_write_b128 v29, v[{src+4*r}:{src+4*r+3}] offset:{c*4160 + r*1024}", tag="z")
    p(f"s_mul_i32 {t0}, {t1}, 4608"); p(f"s_add_u32 {t0}, {t0}, {U+512}"); p(f"v_add_u32 v29, {t0}, v19")
    p.wvm("kvt")
    for r in range(2): p(f"ds_write_b128 v29, v[{128+4*r}:{131+4*r}] offset:{r*1024}", tag="z")
    p(f"s_or_b32 {t0}, {sMT2}, {sW}"); p(f"s_cmp_lg_u32 {t0}, 0"); p("s_cbranch_scc1 L_noec")
    p(f"s_lshl_b32 {t0}, {sNT}, 8"); p(f"s_add_u32 {t0}, {t0}, {ECOL}")
    flag_store(p, sTC, t0, 30, vZ)
    p("L_noec:")
    vCA, vCB = 23, 24
    p("v_bfe_u32 v16, v1, 2, 2"); p("v_mul_u32_u24 v16, 4160, v16"); p("v_and_b32 v17, 3, v1"); p("v_lshl_add_u32 v16, v17, 3, v16")
    p("v_lshlrev_b32 v17, 4, v5"); p("v_sub_u32 v16, v16, v17")
    p(f"s_mul_i32 {t0}, {t1}, 16640"); p(f"s_and_b32 {t2}, {sW}, 1"); p(f"s_lshl_b32 {t2}, {t2}, 8"); p(f"s_add_u32 {t0}, {t0}, {t2}")
    p(f"s_add_u32 {t0}, {t0}, {HC + 32 + 32 - 8}"); p(f"v_add_u32 v{vCA}, {t0}, v16")
    p("v_and_b32 v16, 15, v1"); p("v_lshlrev_b32 v16, 5, v16"); p("v_lshl_add_u32 v16, v5, 4, v16")
    p(f"s_mul_i32 {t0}, {t1}, 4608"); p(f"s_sub_u32 {t0}, {t0}, {t2}"); p(f"s_add_u32 {t0}, {t0}, {U + 512 - 32 - 192}")
    p(f"v_add_u32 v{vCB}, {t0}, v16")
    p.w0(vm=False, lg=True)
    p("s_barrier")
    stamp(5)
    CACC = 48
    CAf = [100, 164]; CBf = [132, 196]
    def conv_reads(ii):
        d = Prog(); b = ii & 1
        for a in range(8):
            for j in range(2):
                r = CAf[b] + 4*a + 2*j
                d(f"ds_read_b64_tr_b16 v[{r}:{r+1}], v{vCA} offset:{512*a + 64*ii + (8 if j == 0 else 0)}", tag=f"cv{ii}")
            r = CBf[b] + 4*a
            d(f"ds_read_b128 v[{r}:{r+3}], v{vCB} offset:{512*a + 64*(3-ii)}", tag=f"cv{ii}")
        return d
    p.ext(conv_reads(0))
    for ii in range(4):
        b = ii & 1
        p.wlg(f"cv{ii}")
        m = Prog()
        for a in range(8):
            for bb in range(8 - a):
                t = a + bb
                cc = "0" if (ii == 0 and a == 0) else f"v[{CACC+4*t}:{CACC+4*t+3}]"
                m(f"v_mfma_f32_16x16x32_bf16 v[{CACC+4*t}:{CACC+4*t+3}], v[{CAf[b]+4*a}:{CAf[b]+4*a+3}], v[{CBf[b]+4*bb}:{CBf[b]+4*bb+3}], {cc}")
        if ii < 3: p.ext(interleave(m, conv_reads(ii + 1), start=0, every=1, per=1))
        else: p.ext(m)
    stamp(6)
    p("v_and_b32 v16, 15, v1"); p("v_and_b32 v17, 1, v5"); p("v_and_b32 v18, 2, v5"); p("v_lshl_or_b32 v17, v18, 2, v17")
    p("v_xor_b32 v16, v16, v17"); p("v_lshl_add_u32 v16, v5, 4, v16"); p("v_lshlrev_b32 v16, 4, v16")
    p(f"s_lshl_b32 {t0}, {sW}, 13"); p(f"s_add_u32 {t0}, {t0}, {EX}"); p(f"v_add_u32 v16, {t0}, v16")
    for t in range(8): p(f"ds_write_b128 v16, v[{CACC+4*t}:{CACC+4*t+3}] offset:{1024*t}", tag="ex")
    p("v_lshrrev_b32 v16, 2, v1"); p("v_and_b32 v19, 3, v1"); p("v_and_b32 v17, 1, v19"); p("v_and_b32 v18, 2, v19"); p("v_lshl_or_b32 v17, v18, 2, v17")
    p("v_xor_b32 v16, v16, v17"); p("v_lshl_add_u32 v16, v19, 4, v16"); p("v_lshlrev_b32 v16, 4, v16")
    p(f"s_lshl_b32 {t0}, {sW}, 11"); p(f"s_add_u32 {t0}, {t0}, {EX}"); p(f"v_add_u32 v16, {t0}, v16")
    p(f"s_lshl_b32 {t0}, {sW}, 10"); p(f"s_add_u32 {t0}, {t0}, {U+512}"); p(f"v_lshl_add_u32 v17, v1, 3, {t0}")
    p.w0(vm=False, lg=True)
    p("s_barrier")
    E = 100; KVr = 132; KVf = 140
    for tt in range(2):
        for wv in range(4):
            r = E + (tt*4+wv)*4
            p(f"ds_read_b128 v[{r}:{r+3}], v16 offset:{wv*8192 + tt*1024}", tag="exr")
        for ch in range(2):
            r = KVr + (tt*2+ch)*2
            p(f"ds_read_b64 v[{r}:{r+1}], v17 offset:{ch*4608 + tt*512}", tag="exr")
    p.wlg("exr")
    p(f"s_lshl_b32 {t0}, {sNT}, 5"); p(f"s_add_u32 {t0}, {t0}, {sMT2}"); p(f"s_lshl_b32 {t0}, {t0}, 13")
    p(f"s_lshl_b32 {t1}, {sW}, 11"); p(f"s_add_u32 {t0}, {t0}, {t1}"); p(f"s_add_u32 {t0}, {t0}, {WS_Y}")
    for tt in range(2):
        for ch in range(2):
            e = E + (tt*4+2*ch)*4; r = KVr + (tt*2+ch)*2; f = KVf + (tt*2+ch)*4
            unpack(p, f, f+1, r); unpack(p, f+2, f+3, r+1)
            for i in range(2): p(f"v_pk_add_f32 {pr(e+2*i)}, {pr(e+2*i)}, {pr(e+4+2*i)}")
            for i in range(4): p(f"v_fma_f32 v{e+i}, v{f+i}, {sD0 if ch == 0 else sD1}, v{e+i}")
        o = 160 + 4*tt
        for i in range(4): p(f"v_cvt_pk_bf16_f32 v{o+i}, v{E+tt*16+i}, v{E+tt*16+8+i}")
        p(f"buffer_store_dwordx4 v[{o}:{o+3}], v{vL16}, {WS}, {t0} offen offset:{1024*tt} sc1", tag="yst")
    p(f"s_lshl_b32 {t0}, {sNT}, 9"); p(f"s_lshl_b32 {t1}, {sW}, 7"); p(f"s_add_u32 {t0}, {t0}, {t1}")
    p(f"s_lshl_b32 {t1}, {sMT2}, 2"); p(f"s_add_u32 {t0}, {t0}, {t1}"); p(f"s_add_u32 {t0}, {t0}, {F3}")
    p.wvm("yst")
    flag_store(p, sTC, t0, 16, vZ)
    stamp(7)
    A2 = 32
    HF = 96
    NH = 9
    p(f"s_lshl_b32 {t0}, {sNT}, 7"); p(f"s_and_b32 {t1}, {sW}, 1"); p(f"s_lshl_b32 {t1}, {t1}, 6"); p(f"s_add_u32 {t0}, {t0}, {t1}")
    p(f"v_lshl_add_u32 v16, v2, 3, {t0}")
    for q in range(4): p(f"global_load_dwordx2 v[{240+2*q}:{241+2*q}], v16, s[84:85] offset:{16*q}", tag="b2")
    p(f"s_lshl_b32 {t0}, {sMT2}, 7"); p(f"s_add_u32 {t0}, {t0}, {F2}")
    flag_wait(p, "f2", sTR, t0, vL4, 19, "-1")
    p(f"s_or_b32 {t0}, {sC1}, {sW}"); p(f"s_cmp_lg_u32 {t0}, 0"); p("s_cbranch_scc1 L_noer")
    p(f"s_lshl_b32 {t0}, {sMT1}, 8"); p(f"s_add_u32 {t0}, {t0}, {EROW}")
    flag_store(p, sTR, t0, 30, vZ)
    p("L_noer:")
    stamp(8)
    for q in range(4):
        unpack(p, A2+4*q, A2+4*q+1, 240+2*q); unpack(p, A2+4*q+2, A2+4*q+3, 241+2*q)
    vH = 20
    p(f"s_lshr_b32 {t0}, {sW}, 1"); p(f"s_lshl_b32 {t0}, {t0}, 11"); p(f"v_add_u32 v{vH}, {t0}, v{vL16}"); p(f"v_xor_b32 v{vH+1}, 2048, v{vH}")
    p(f"s_cmp_eq_u32 {sW}, 3"); p("s_cselect_b64 vcc, -1, 0")
    p(f"v_cndmask_b32 v{vH+2}, v{vH}, v{vOOB}, vcc"); p(f"v_cndmask_b32 v{vH+3}, v{vH+1}, v{vOOB}, vcc")
    p(f"s_mul_i32 {t2}, {sMT2}, 43"); p(f"s_mul_i32 {t0}, {sW}, 11"); p(f"s_add_u32 {t2}, {t2}, {t0}"); p(f"s_lshl_b32 {t2}, {t2}, 12")
    p(f"s_add_u32 {t2}, {t2}, {WS_H}")
    def h_load(tau):
        d = Prog()
        d(f"s_add_u32 {t0}, {t2}, {tau*4096}")
        for ts in range(2):
            for ks in range(2):
                r = HF + (tau % NH)*16 + ts*8 + ks*4
                d(f"buffer_load_dwordx4 v[{r}:{r+3}], v{vH + ts + (2 if tau == 10 else 0)}, {WS}, {t0} offen offset:{ks*1024} sc1", tag=f"h{tau}")
        return d
    for tau in range(NH): p.ext(h_load(tau))
    for tau in range(11):
        p.wvm(f"h{tau}")
        for ks in range(2):
            for ts in range(2):
                for td in range(2):
                    a = A2 + (td + 2*ts)*16
                    cc = "0" if (tau == 0 and ks == 0 and (td or ts)) else f"v[{a}:{a+15}]"
                    wa = tau*16 + td*8 + ks*4; hr = HF + (tau % NH)*16 + ts*8 + ks*4
                    p(f"v_mfma_f32_32x32x16_bf16 v[{a}:{a+15}], a[{wa}:{wa+3}], v[{hr}:{hr+3}], {cc}")
        if tau + NH < 11: p.ext(h_load(tau + NH))
    stamp(9)
    p(f"s_lshl_b32 {t0}, {sNT}, 9"); p(f"s_lshr_b32 {t1}, {sMT2}, 3"); p(f"s_lshl_b32 {t1}, {t1}, 7"); p(f"s_add_u32 {t0}, {t0}, {t1}")
    p(f"s_add_u32 {t0}, {t0}, {F3}")
    flag_wait(p, "f3", sTC, t0, vL4, 19, "-1")
    YR = 100
    p(f"v_lshl_add_u32 v16, v2, 14, v{vL4}")
    p(f"s_lshl_b32 {t0}, {sNT}, 18"); p(f"s_and_b32 {t1}, {sW}, 1"); p(f"s_lshl_b32 {t1}, {t1}, 17"); p(f"s_add_u32 {t0}, {t0}, {t1}")
    p(f"s_lshl_b32 {t1}, {sMT2}, 8"); p(f"s_add_u32 {t0}, {t0}, {t1}"); p(f"s_lshr_b32 {t1}, {sW}, 1"); p(f"s_lshl_b32 {t1}, {t1}, 7")
    p(f"s_add_u32 {t0}, {t0}, {t1}"); p(f"s_add_u32 {t2}, {t0}, {WS_Y}")
    for q in range(4):
        for e in range(2):
            p(f"s_add_u32 {t0}, {t2}, {(4*q+e)*8192}")
            p(f"buffer_load_dword v{YR+2*q+e}, v16, {WS}, {t0} offen sc1", tag="y")
    p("s_barrier")
    for idx in range(1, 4):
        p(f"s_xor_b32 {t0}, {sW}, {idx}"); p(f"s_mul_i32 {t0}, {t0}, 12288"); p(f"s_add_u32 {t0}, {t0}, {RED + (idx-1)*4096}")
        p(f"v_add_u32 v17, {t0}, v{vL16}")
        for q in range(4):
            a = A2 + idx*16 + 4*q
            p(f"ds_write_b128 v17, v[{a}:{a+3}] offset:{1024*q}", tag="red")
    QR = 110; GR = 118
    p(f"s_lshr_b32 {t0}, {sW}, 1"); p(f"s_lshl_b32 {t0}, {t0}, 5"); p("v_and_b32 v17, 31, v1"); p(f"v_add_u32 v17, {t0}, v17")
    p("v_bfe_u32 v18, v17, 1, 3"); p(f"s_and_b32 {t1}, {sW}, 1"); p(f"s_lshl_b32 {t1}, {t1}, 2"); p(f"v_xor_b32 v18, {t1}, v18")
    p("v_lshlrev_b32 v18, 4, v18"); p("v_lshl_add_u32 v18, v17, 7, v18"); p("v_lshl_add_u32 v18, v2, 3, v18"); p(f"v_add_u32 v18, {QT}, v18")
    for q in range(4):
        if q: p(f"v_xor_b32 v19, {16*q}, v18")
        p(f"ds_read_b64 v[{QR+2*q}:{QR+2*q+1}], v{19 if q else 18}", tag="red")
    p(f"s_and_b32 {t0}, {sMT2}, 1"); p(f"s_lshl_b32 {t0}, {t0}, 9"); p(f"s_add_u32 {t0}, {t0}, {GT}"); p(f"v_lshl_add_u32 v17, v17, 3, {t0}")
    p(f"ds_read_b64 v[{GR}:{GR+1}], v17", tag="red")
    p(f"s_mul_i32 {t0}, {sW}, 12288"); p(f"s_add_u32 {t0}, {t0}, {RED}"); p(f"v_add_u32 v17, {t0}, v{vL16}")
    p.w0(vm=False, lg=True)
    p("s_barrier")
    PR = 128
    for i in range(12): p(f"ds_read_b128 v[{PR+4*i}:{PR+4*i+3}], v17 offset:{1024*i}", tag="rr")
    QF = 180; ZF = 196
    for q in range(4):
        unpack(p, QF+4*q, QF+4*q+1, QR+2*q); unpack(p, QF+4*q+2, QF+4*q+3, QR+2*q+1)
    p.wvm("y")
    for i in range(8): unpack(p, ZF+2*i, ZF+2*i+1, YR+i)
    for i in range(8): p(f"v_pk_mul_f32 {pr(QF+2*i)}, {pr(QF+2*i)}, {pr(ZF+2*i)}")
    for i in range(16): p(f"v_mul_f32 v{QF+i}, v{GR}, v{QF+i}")
    p.wlg("rr")
    for s in range(3):
        for i in range(8): p(f"v_pk_add_f32 {pr(A2+2*i)}, {pr(A2+2*i)}, {pr(PR+16*s+2*i)}")
    for i in range(16): p(f"v_fma_f32 v{QF+i}, v{GR+1}, v{A2+i}, v{QF+i}")
    for i in range(8): p(f"v_cvt_pk_bf16_f32 v{ZF+i}, v{QF+2*i}, v{QF+2*i+1}")
    p(f"s_lshl_b32 {t0}, {sW}, 11"); p(f"s_add_u32 {t0}, {t0}, {OT}")
    p(f"v_lshl_add_u32 v17, v{vL4}, 4, {t0}"); p("v_lshl_add_u32 v17, v2, 3, v17")
    for q in range(4): p(f"ds_write_b64 v17, v[{ZF+2*q}:{ZF+2*q+1}] offset:{16*q}", tag="ow")
    p(f"v_add_u32 v17, {t0}, v{vL16}")
    for i in range(2): p(f"ds_read_b128 v[{PR+4*i}:{PR+4*i+3}], v17 offset:{1024*i}", tag="or")
    p("v_lshrrev_b32 v16, 2, v1"); p("v_and_b32 v18, 3, v1"); p("v_lshlrev_b32 v16, 10, v16"); p("v_lshl_add_u32 v16, v18, 4, v16")
    p(f"s_lshl_b32 {t0}, {sMT2}, 16"); p(f"s_lshr_b32 {t1}, {sW}, 1"); p(f"s_lshl_b32 {t1}, {t1}, 15"); p(f"s_add_u32 {t0}, {t0}, {t1}")
    p(f"s_lshl_b32 {t1}, {sNT}, 7"); p(f"s_add_u32 {t0}, {t0}, {t1}"); p(f"s_and_b32 {t1}, {sW}, 1"); p(f"s_lshl_b32 {t1}, {t1}, 6"); p(f"s_add_u32 {t0}, {t0}, {t1}")
    p(f"s_add_u32 {t1}, {t0}, 16384")
    p.wlg("or")
    p(f"buffer_store_dwordx4 v[{PR}:{PR+3}], v16, {OUT}, {t0} offen", tag="out")
    p(f"buffer_store_dwordx4 v[{PR+4}:{PR+7}], v16, {OUT}, {t1} offen", tag="out")
    if stamps:
        p.w0(vm=True, lg=True)
        stamp(10)
        p("s_memrealtime s[94:95]"); p.w0(vm=False, lg=True); p("v_writelane_b32 v255, s94, 11")
        p(f"s_lshl_b32 {t0}, s2, 2"); p(f"s_add_u32 {t0}, {t0}, {sW}"); p(f"s_lshl_b32 {t0}, {t0}, 8"); p(f"s_add_u32 {t0}, {t0}, {14<<20}")
        p("v_lshlrev_b32 v16, 2, v1")
        p(f"buffer_store_dword v255, v16, {WS}, {t0} offen")
    p("L_end:"); p("s_endpgm")
    body = resolve(p.items)
    hdr = [f"; @launch grid=(256,1,1) block=(256,1,1) lds={LDS_BYTES}",
           '.amdgcn_target "amdgcn-amd-amdhsa--gfx950"', ".text", f".globl {NAME}_kernel", ".p2align 8",
           f".type {NAME}_kernel,@function", f"{NAME}_kernel:"]
    ftr = ['.section .rodata,"a"', ".p2align 6", f".amdhsa_kernel {NAME}_kernel",
           "  .amdhsa_next_free_vgpr 512", "  .amdhsa_next_free_sgpr 102", "  .amdhsa_accum_offset 256",
           "  .amdhsa_group_segment_fixed_size 0", "  .amdhsa_kernarg_size 120", "  .amdhsa_user_sgpr_count 2",
           "  .amdhsa_user_sgpr_kernarg_segment_ptr 1", "  .amdhsa_system_sgpr_workgroup_id_x 1",
           "  .amdhsa_float_denorm_mode_32 3", ".end_amdhsa_kernel"]
    return "\n".join(hdr + body + ftr) + "\n"

if __name__ == "__main__":
    out = sys.argv[1]
    open(out, "w").write(gen(stamps=("stamps" in sys.argv)))
```

```python
import re

TRANS = ("v_exp_f32", "v_log_f32", "v_rcp_f32", "v_rsq_f32", "v_sqrt_f32", "v_sin_f32", "v_cos_f32")
_reg_re = re.compile(r"(?<![\w.])([vas])(?:(\d+)|\[(\d+):(\d+)\])(?![\w])")

def regs_of(op):
    out = set()
    for m in _reg_re.finditer(op):
        k = m.group(1)
        if m.group(2) is not None: out.add((k, int(m.group(2))))
        else:
            for i in range(int(m.group(3)), int(m.group(4)) + 1): out.add((k, i))
    if re.search(r"(?<![\w])vcc(?![\w])", op): out |= {("s", 106), ("s", 107)}
    if re.search(r"(?<![\w])vcc_lo(?![\w])", op): out.add(("s", 106))
    if re.search(r"(?<![\w])vcc_hi(?![\w])", op): out.add(("s", 107))
    if re.search(r"(?<![\w])m0(?![\w])", op): out.add(("s", 124))
    if re.search(r"(?<![\w])exec(?![\w])", op): out |= {("s", 126), ("s", 127)}
    return out

class I:
    __slots__ = ("text", "tag", "mn", "cls", "dst", "src", "ops", "passes", "srcc", "ab", "data")
    def __init__(self, text, tag=None):
        self.text = text.strip(); self.tag = tag
        t = self.text.split(";")[0].strip()
        parts = t.split(None, 1)
        self.mn = parts[0] if parts else ""
        rest = parts[1] if len(parts) > 1 else ""
        ops = [o.strip() for o in re.split(r",(?![^\[]*\])", rest)] if rest else []
        self.ops = ops
        mn = self.mn
        self.dst = set(); self.src = set(); self.passes = 0; self.srcc = set(); self.ab = set(); self.data = set()
        if mn.endswith(":") or mn.startswith("."): self.cls = "label"; return
        if mn.startswith("v_mfma"):
            self.cls = "mfma"
            self.dst = regs_of(ops[0]); self.ab = regs_of(ops[1]) | regs_of(ops[2]); self.srcc = regs_of(ops[3])
            self.src = self.ab | self.srcc
            self.passes = 8 if "32x32x16" in mn else (4 if "16x16x32" in mn else 16)
        elif mn.startswith("v_"):
            self.cls = "valu"
            nd = 1
            if mn.startswith(("v_add_co", "v_sub_co", "v_addc_co", "v_subb_co", "v_mad_u64", "v_div_scale")): nd = 2
            for o in ops[:nd]: self.dst |= regs_of(o)
            for o in ops[nd:]: self.src |= regs_of(o)
            if mn.startswith(("v_fmac", "v_dot2c", "v_pk_fmac", "v_writelane")) or "_dpp" in mn and mn.startswith("v_mov"): self.src |= self.dst
            if "swap" in mn:
                self.dst |= regs_of(ops[1]); self.src |= self.dst
            if mn.startswith("v_cmpx"): self.dst |= {("s", 126), ("s", 127)}
        elif mn.startswith("ds_"):
            self.cls = "ds"
            if mn.startswith(("ds_read", "ds_bpermute", "ds_permute", "ds_swizzle")) or "_rtn" in mn:
                self.dst = regs_of(ops[0])
                for o in ops[1:]: self.src |= regs_of(o)
            else:
                for o in ops: self.src |= regs_of(o)
        elif mn.startswith(("buffer_", "global_")):
            self.cls = "vmem"
            islds = re.search(r"\blds\b", t) is not None or "load_lds" in mn
            if "load" in mn and not islds:
                self.dst = regs_of(ops[0])
                for o in ops[1:]: self.src |= regs_of(o)
            else:
                for o in ops: self.src |= regs_of(o)
                if islds: self.src.add(("s", 124))
                if "store" in mn and ("x3" in mn or "x4" in mn):
                    self.data = regs_of(ops[0] if mn.startswith("buffer") else ops[1])
        elif mn.startswith(("s_load", "s_buffer_load", "s_memtime", "s_memrealtime")):
            self.cls = "smem"
            self.dst = regs_of(ops[0])
            for o in ops[1:]: self.src |= regs_of(o)
        elif mn.startswith("s_"):
            self.cls = "salu"
            if mn.startswith(("s_cmp", "s_cbranch", "s_branch", "s_nop", "s_waitcnt", "s_barrier", "s_endpgm", "s_setprio", "s_sleep", "s_bitcmp")):
                for o in ops: self.src |= regs_of(o)
            else:
                self.dst = regs_of(ops[0])
                for o in ops[1:]: self.src |= regs_of(o)
                if "saveexec" in mn: self.dst |= {("s", 126), ("s", 127)}
        else:
            raise ValueError("unknown instr: " + text)
    def states(self):
        if self.cls == "label": return 0
        if self.mn == "s_nop": return int(self.ops[0], 0) + 1
        return 1

def need(p, c):
    n = 0
    vs = lambda s: {r for r in s if r[0] != "s"}
    ss = lambda s: {r for r in s if r[0] == "s"}
    if p.cls == "valu":
        pv = vs(p.dst); psg = ss(p.dst)
        if c.cls == "mfma" and pv & c.src: n = max(n, 2)
        if c.cls == "mfma" and ("s", 126) in psg: n = max(n, 4)
        if c.cls == "valu":
            if p.mn.startswith(TRANS) and pv & c.src: n = max(n, 1)
            if ("dpp" in c.text or "permlane" in c.mn) and pv & c.src: n = max(n, 2)
            if c.mn.startswith(("v_readlane", "v_readfirstlane")) and pv & c.src: n = max(n, 1)
            if psg & c.src: n = max(n, 4 if c.mn.startswith(("v_readlane", "v_writelane")) else 2)
            if ("op_sel" in p.text and not p.mn.startswith("v_pk") or "sdwa" in p.text) and pv & (c.src | c.dst): n = max(n, 1)
            if ("s", 126) in psg and ("dpp" in c.text): n = max(n, 5)
            if ("s", 126) in psg and c.mn.startswith(("v_readlane", "v_readfirstlane", "v_writelane", "v_permlane")): n = max(n, 4)
        if c.cls == "vmem" and psg & c.src: n = max(n, 5)
        if c.cls in ("salu", "smem") and psg & c.src: n = max(n, 1)
    if p.cls == "mfma":
        big = {4: 8, 8: 12, 16: 20}[p.passes]
        if c.cls == "mfma":
            if p.dst & c.ab: n = max(n, big)
            if p.dst & c.srcc and not (p.dst == c.srcc and p.mn == c.mn): n = max(n, big - 2)
            if p.dst & c.dst and not (p.dst & c.srcc): n = max(n, big)
        elif c.cls in ("valu", "ds", "vmem"):
            if p.dst & (c.src | c.dst): n = max(n, big)
            if c.cls == "valu" and p.srcc & c.dst: n = max(n, {4: 3, 8: 7, 16: 15}[p.passes])
    if p.cls == "salu" and ("s", 124) in p.dst and c.cls == "vmem" and ("s", 124) in c.src: n = max(n, 1)
    if p.cls == "vmem" and p.data and p.data & c.dst and c.cls != "vmem": n = max(n, 2 if c.cls in ("valu", "mfma") else 1)
    return n

class Prog:
    def __init__(self):
        self.items = []
    def __call__(self, text, tag=None):
        for line in text.split("\n"):
            if line.strip(): self.items.append(I(line, tag))
    def wvm(self, tag): self.items.append(("wvm", tag))
    def wlg(self, tag): self.items.append(("wlg", tag))
    def w0(self, vm=True, lg=True): self.items.append(("w0", vm, lg))
    def forget(self): self.items.append(("forget",))
    def ext(self, other): self.items.extend(other.items if isinstance(other, Prog) else other)

def interleave(main, side, start=0, every=1, per=1):
    m = main.items if isinstance(main, Prog) else main
    s = list(side.items if isinstance(side, Prog) else side)
    out = []
    for i, it in enumerate(m):
        out.append(it)
        if i >= start and (i - start) % every == every - 1:
            for _ in range(per):
                if s: out.append(s.pop(0))
    out.extend(s)
    return out

def resolve(items):
    out = []; hist = []
    vm = []; lg = []
    smem_out = False
    def emit(ins):
        if ins.cls == "label":
            out.append(ins.text); return
        dist = 0; req = 0
        for p in reversed(hist):
            r = need(p, ins) - dist
            if r > req: req = r
            dist += p.states()
            if dist >= 20: break
        while req > 0:
            k = min(req, 16)
            nop = I(f"s_nop {k-1}"); out.append("    " + nop.text); hist.append(nop); req -= k
        out.append("    " + ins.text); hist.append(ins)
        if len(hist) > 64: del hist[:32]
    for it in items:
        if isinstance(it, tuple):
            if it[0] == "wvm":
                idx = [i for i, t in enumerate(vm) if t == it[1]]
                if idx:
                    n = len(vm) - 1 - idx[-1]
                    n = min(n, 63)
                    emit(I(f"s_waitcnt vmcnt({n})")); vm = vm[len(vm) - n:] if n else []
            elif it[0] == "wlg":
                idx = [i for i, t in enumerate(lg) if t == it[1]]
                if idx:
                    n = 0 if smem_out else min(len(lg) - 1 - idx[-1], 15)
                    emit(I(f"s_waitcnt lgkmcnt({n})")); lg = lg[len(lg) - n:] if n else []
                    if n == 0: smem_out = False
            elif it[0] == "raw":
                out.append(it[1]); hist.append(I("s_nop 0"))
            elif it[0] == "w0":
                s = []
                if it[1]: s.append("vmcnt(0)"); vm = []
                if it[2]: s.append("lgkmcnt(0)"); lg = []; smem_out = False
                emit(I("s_waitcnt " + " ".join(s)))
            continue
        if it.cls == "vmem":
            assert len(vm) < 63, "too many outstanding vmem ops: " + it.text
            vm.append(it.tag)
        elif it.cls == "ds": lg.append(it.tag)
        elif it.cls == "smem": lg.append(it.tag); smem_out = True
        emit(it)
    return out

def groups_of(prog, n=1):
    it = prog.items if isinstance(prog, Prog) else prog
    return [it[i:i+n] for i in range(0, len(it), n)]

def weave(slots, *streams):
    extra = [[] for _ in slots]
    for groups, a, b in streams:
        n = len(groups); span = b - a + 1
        for i, g in enumerate(groups):
            extra[a + (i * span) // n].extend(g)
    out = []
    for s, e in zip(slots, extra):
        out.extend(s); out.extend(e)
    return out
```

```python
import sys, struct
sys.path.insert(0, "dev")
from asmlib import *
NAME = "gated_mix__ssm_conv_h3__dense_activation_gelu__prompt"

WS_KVT = 0; WS_Y = 2 << 20; WS_H = 4 << 20; WS_F = 10 << 20
F1 = WS_F; F2 = WS_F + 4096; F3 = WS_F + 8192; EPO = WS_F + 12288; WS_G = WS_F + 16384
WS_SIZE = 16 << 20
TAGK = 0x9E3779B9
OOB = 0x80000000
XR = 0; WR = 81920; KST = 143360; VST = 152720; GWT = 161280; GWZ = 162304; B1T = 163328; B2T = 163520
U = 118784; HC = 128000; CP = 8256; CHP = 4128
QT = WR; OT = WR + 8192; EX = 0; RED = 32768
LDS_BYTES = 163840
Q, K, V, SSM, W1, W2, WS, OUT, SP = "s[4:7]", "s[8:11]", "s[12:15]", "s[16:19]", "s[20:23]", "s[24:27]", "s[28:31]", "s[32:35]", "s[36:39]"
sW, sMT1, sC1, sMT2, sNT, sFT0, sLIM, sTC, sR1 = "s40", "s41", "s42", "s43", "s44", "s45", "s46", "s47", "s48"
sXB, sXL, sWB, sWL, sD0, sD1 = "s49", "s50", "s51", "s52", "s53", "s54"
sW2B = "s55"
t0, t1, t2, t3 = "s56", "s57", "s58", "s59"
sCNT = "s60"; sF2W = "s61"; td = "s62"; sHB = "s63"
sF13W = "s88"; sF13R = "s89"; sKVS = "s90"; sHS = "s91"; sW1_ = "s92"; sWh = "s93"
sXC = "s36"; sWC = "s37"; sRW = "s38"; sRH = "s39"
sDOFF = "s98"; sRAW = "s99"; DBG = "s[96:97]"
fb = lambda x: "0x%08x" % struct.unpack("<I", struct.pack("<f", x))[0]
pr = lambda r: f"v[{r}:{r+1}]"
q4 = lambda r, k="v": f"{k}[{r}:{r+3}]"

def srd(p, base, ptr, size):
    p(f"s_mov_b32 s{base}, s{ptr}"); p(f"s_and_b32 s{base+1}, s{ptr+1}, 0xffff")
    p(f"s_mov_b32 s{base+2}, {size}"); p(f"s_mov_b32 s{base+3}, 0x20000")
def unpack(p, lo, hi, src):
    p(f"v_lshlrev_b32 v{lo}, 16, v{src}"); p(f"v_and_b32 v{hi}, 0xffff0000, v{src}")

vKV, vW, vZ, vL16, vL4, vOOB, vTC = 6, 9, 12, 13, 14, 15, 17
vX = 244
vW2 = 248

def flag_store(p, soff_s):
    p("s_mov_b64 exec, 1")
    p(f"buffer_store_dword v{vTC}, v{vZ}, {WS}, {soff_s} offen sc1", tag="flag")
    p("s_mov_b64 exec, -1")
def poll_issue(p, name, soff_s, vtmp):
    p(f"buffer_load_dword v{vtmp}, v{vL4}, {WS}, {soff_s} offen sc1", tag=name)
def poll_check(p, name, ld, cmp, mask):
    p.wvm(name)
    p(f"s_mov_b32 {sCNT}, 0")
    p(f"L_{name}:")
    p(cmp)
    p(f"s_and_b64 vcc, vcc, {mask}")
    p(f"s_cbranch_scc0 L_{name}_ok")
    p.items.append(("raw", "    " + ld))
    p(f"s_add_u32 {sCNT}, {sCNT}, 1")
    p(f"s_cmp_lt_u32 {sCNT}, 0x8000")
    p.items.append(("raw", "    s_waitcnt vmcnt(0)"))
    p(f"s_cbranch_scc1 L_{name}")
    p(f"L_{name}_ok:")
def flag_check(p, name, soff_s, vtmp, mask):
    poll_check(p, name, f"buffer_load_dword v{vtmp}, v{vL4}, {WS}, {soff_s} offen sc1", f"v_cmp_ne_u32 vcc, {sTC}, v{vtmp}", mask)

def gen(stamps=False, P=None):
    P = P or {}
    p = Prog()
    nst = [0]
    def stamp(pp=None):
        if stamps:
            i = nst[0]; nst[0] += 1
            (pp or p)(f"s_memtime s[{64+2*i}:{65+2*i}]", tag="stamp")
    flat = lambda gs: [x for g in gs for x in g]
    if stamps: p("s_memtime s[100:101]")
    p("s_cmp_ge_u32 s2, 256"); p("s_cbranch_scc1 L_end")
    p("s_load_dwordx16 s[64:79], s[0:1], 0"); p("s_load_dwordx8 s[80:87], s[0:1], 64")
    p("s_load_dwordx4 s[92:95], s[0:1], 96"); p("s_load_dwordx2 s[28:29], s[0:1], 112")
    p("v_and_b32 v1, 63, v0"); p("v_lshrrev_b32 v2, 6, v0")
    p(f"v_readfirstlane_b32 {sW}, v2")
    p(f"s_and_b32 {t0}, s2, 7"); p(f"s_lshr_b32 {t1}, s2, 3")
    p(f"s_lshr_b32 {t3}, {t1}, 3")
    p(f"s_and_b32 {sNT}, {t1}, 7")
    p(f"s_lshl_b32 {sMT2}, {t0}, 2"); p(f"s_add_u32 {sMT2}, {sMT2}, {t3}")
    p(f"s_lshr_b32 {t2}, {t0}, 1"); p(f"s_lshl_b32 {sMT1}, {t2}, 2"); p(f"s_add_u32 {sMT1}, {sMT1}, {t3}")
    p(f"s_lshl_b32 {sR1}, {t3}, 1"); p(f"s_add_u32 {sR1}, {sR1}, {sNT}"); p(f"s_add_u32 {sR1}, {sR1}, {t2}"); p(f"s_and_b32 {sR1}, {sR1}, 7")
    p(f"s_mul_i32 {sW2B}, {sNT}, 11"); p(f"s_lshr_b32 {sW2B}, {sW2B}, 3"); p(f"s_mul_i32 {t3}, {t3}, 3"); p(f"s_add_u32 {sW2B}, {sW2B}, {t3}")
    p(f"s_add_u32 {sW2B}, {sW2B}, {t0}")
    for _ in range(2):
        p(f"s_sub_u32 {t3}, {sW2B}, 11"); p(f"s_cmp_ge_u32 {sW2B}, 11"); p(f"s_cselect_b32 {sW2B}, {t3}, {sW2B}")
    p(f"s_and_b32 {t0}, {t0}, 1"); p(f"s_lshl_b32 {t0}, {t0}, 3"); p(f"s_add_u32 {sC1}, {t0}, {sNT}")
    p(f"s_and_b32 {t3}, {sC1}, 3")
    p(f"s_lshr_b32 {t0}, {sC1}, 2"); p(f"s_mul_i32 {sFT0}, {t0}, 11"); p(f"s_mul_i32 {t0}, {t3}, 3"); p(f"s_add_u32 {sFT0}, {sFT0}, {t0}")
    p(f"s_cmp_eq_u32 {t3}, 3"); p(f"s_cselect_b32 {sLIM}, 8, 12"); p(f"s_cmp_eq_u32 {sC1}, 15"); p(f"s_cselect_b32 {sLIM}, 4, {sLIM}")
    p("v_lshrrev_b32 v3, 3, v1"); p("v_and_b32 v4, 7, v1"); p("v_lshrrev_b32 v5, 4, v1"); p("v_lshrrev_b32 v2, 5, v1")
    p(f"v_lshlrev_b32 v{vKV}, 10, v3"); p(f"v_lshl_add_u32 v{vKV}, v4, 4, v{vKV}")
    p(f"v_xor_b32 v{vX}, v4, v5"); p(f"v_lshlrev_b32 v{vX}, 4, v{vX}"); p(f"v_lshl_add_u32 v{vX}, v3, 10, v{vX}")
    p(f"v_xor_b32 v{vX+1}, {64+8192}, v{vX}"); p(f"v_add_u32 v{vX+2}, 16384, v{vX}"); p(f"v_add_u32 v{vX+3}, 16384, v{vX+1}")
    p(f"v_mov_b32 v{vOOB}, {OOB}")
    for i in range(3):
        p(f"v_add_u32 v12, {64*i}, v1"); p("v_mul_u32_u24 v13, 171, v12"); p("v_lshrrev_b32 v13, 11, v13")
        p("v_mul_u32_u24 v14, 12, v13"); p("v_sub_u32 v14, v12, v14")
        p(f"v_mul_u32_u24 v13, 2752, v13"); p(f"v_lshl_add_u32 v13, v14, 4, v13")
        p(f"v_cmp_gt_u32 vcc, {sLIM}, v14"); p(f"v_cndmask_b32 v{vW+i}, v{vOOB}, v13, vcc")
    p(f"v_mov_b32 v{vZ}, 0"); p(f"v_lshlrev_b32 v{vL16}, 4, v1"); p(f"v_and_b32 v{vL4}, 31, v1"); p(f"v_lshlrev_b32 v{vL4}, 2, v{vL4}")
    p(f"s_lshl_b32 {sXB}, {sMT1}, 17"); p(f"s_lshl_b32 {t0}, {sW}, 15"); p(f"s_add_u32 {sXB}, {sXB}, {t0}")
    p(f"s_mul_i32 {sXL}, {sW}, 20480")
    p(f"s_mul_i32 {sWB}, {sW}, {16*2752}"); p(f"s_lshl_b32 {t0}, {sFT0}, 6"); p(f"s_add_u32 {sWB}, {sWB}, {t0}")
    p(f"s_mul_i32 {sWL}, {sW}, 3072"); p(f"s_add_u32 {sWL}, {sWL}, {WR}")
    p(f"s_lshl_b32 {t2}, {sMT2}, 16"); p(f"s_lshl_b32 {t3}, {sNT}, 7"); p(f"s_add_u32 {t2}, {t2}, {t3}")
    p(f"s_mov_b32 s30, {WS_SIZE}"); p("s_mov_b32 s31, 0x20000"); p("s_mov_b32 s39, 0x20000")
    p.w0(vm=False, lg=True)
    p("s_and_b32 s29, s29, 0xffff")
    p(f"s_or_b32 {t0}, s2, {sW}"); p(f"s_cmp_lg_u32 {t0}, 0"); p("s_cbranch_scc1 L_noep")
    p(f"s_mov_b32 {t0}, {EPO}")
    p(f"buffer_load_dword v{vTC}, v{vZ}, {WS}, {t0} offen sc1", tag="sp")
    p("L_noep:")
    p(f"s_cmp_eq_u32 {sW}, 1"); p("s_cbranch_scc1 L_sp1"); p(f"s_cmp_eq_u32 {sW}, 2"); p("s_cbranch_scc1 L_sp2")
    p(f"s_cmp_eq_u32 {sW}, 3"); p("s_cbranch_scc1 L_sp3")
    p("s_mov_b32 s36, s66"); p("s_and_b32 s37, s67, 0xffff"); p("s_mov_b32 s38, 2097152")
    p(f"s_sub_u32 {t0}, {t2}, 8192"); p(f"v_add_u32 v16, {t0}, v{vKV}"); p(f"s_mov_b32 m0, {KST}")
    p("s_mov_b32 exec_lo, 0"); p("s_mov_b32 exec_hi, 0xffffff00"); p("s_branch L_spd")
    p("L_sp1:")
    p("s_mov_b32 s36, s86"); p("s_and_b32 s37, s87, 0xffff"); p("s_mov_b32 s38, 1024")
    p(f"s_lshl_b32 {t0}, {sR1}, 7"); p(f"v_add_u32 v16, {t0}, v{vL16}"); p("v_and_b32 v16, 1023, v16"); p(f"s_mov_b32 m0, {GWT}"); p("s_branch L_spd")
    p("L_sp2:")
    p("s_mov_b32 s36, s80"); p("s_and_b32 s37, s81, 0xffff"); p("s_mov_b32 s38, 2752")
    p(f"s_lshl_b32 {t0}, {sFT0}, 6"); p(f"v_add_u32 v16, {t0}, v{vL16}"); p(f"s_mov_b32 m0, {B1T}"); p("s_mov_b64 exec, 0xfff"); p("s_branch L_spd")
    p("L_sp3:")
    p("s_mov_b32 s36, s84"); p("s_and_b32 s37, s85, 0xffff"); p("s_mov_b32 s38, 1024")
    p(f"v_add_u32 v16, {t3}, v{vL16}"); p(f"s_mov_b32 m0, {B2T}"); p("s_mov_b64 exec, 0xff")
    p("L_spd:")
    p("s_nop 0")
    p(f"buffer_load_dwordx4 v16, {SP}, 0 offen lds", tag="sp")
    p("s_mov_b64 exec, -1")
    srd(p, 4, 64, 2097152); srd(p, 20, 78, 512*2752)
    def chunk_dma(c):
        g = []; slot = c % 5
        for i in range(4):
            d = Prog()
            if i == 0:
                if c: d(f"s_add_u32 {sR1}, {sR1}, 1"); d(f"s_and_b32 {sR1}, {sR1}, 7")
                d(f"s_lshl_b32 {sXC}, {sR1}, 7"); d(f"s_add_u32 {sXC}, {sXC}, {sXB}")
                d(f"s_mul_i32 {sWC}, {sR1}, {64*2752}"); d(f"s_add_u32 {sWC}, {sWC}, {sWB}")
            d(f"s_add_u32 m0, {sXL}, {XR + slot*4096 + i*1024}")
            d(f"buffer_load_dwordx4 v{vX+i}, {Q}, {sXC} offen lds", tag=f"c{c}")
            g.append(d.items)
        for i in range(3):
            d = Prog()
            d(f"s_add_u32 m0, {sWL}, {slot*12288 + i*1024}")
            d(f"buffer_load_dwordx4 v{vW+i}, {W1}, {sWC} offen lds", tag=f"c{c}")
            g.append(d.items)
        return [g[0], g[4], g[1], g[5], g[2], g[6], g[3]]
    p.ext(flat(chunk_dma(0)))
    srd(p, 8, 66, 2097152); srd(p, 12, 68, 2097152)
    p(f"s_lshl_b32 {t0}, {sNT}, 9"); p(f"s_lshl_b32 {t1}, {sW}, 7"); p(f"s_add_u32 {t0}, {t0}, {t1}")
    p(f"v_lshl_add_u32 v19, v3, 4, {t0}")
    p(f"global_load_dwordx4 v[20:23], v19, s[70:71]", tag="kv")
    p(f"s_lshl_b32 {t1}, {sMT2}, 2"); p(f"s_add_u32 {sF13W}, {t0}, {t1}"); p(f"s_add_u32 {sF13W}, {sF13W}, {F1}")
    p(f"s_lshl_b32 {t0}, {sW}, 13"); p(f"s_add_u32 {t3}, {t2}, {t0}")
    p(f"s_mul_i32 {t1}, {sW}, 1040")
    for (srdn, base) in ((K, KST + 1040), (V, VST)):
        for hb in range(2):
            p(f"s_add_u32 m0, {t1}, {base + hb*4160}"); p(f"s_add_u32 {t0}, {t3}, {hb*32768}")
            p(f"buffer_load_dwordx4 v{vKV}, {srdn}, {t0} offen nt lds", tag="kv")
    m = Prog()
    srd(m, 16, 72, 2097152); srd(m, 24, 82, 1376*1024); srd(m, 32, 92, 2097152)
    m("s_mov_b64 s[96:97], s[94:95]")
    m(f"s_and_b32 {sW1_}, {sW}, 1"); m(f"s_lshr_b32 {sWh}, {sW}, 1")
    m(f"s_lshl_b32 {t0}, {sNT}, 7"); m(f"s_lshl_b32 {t1}, {sMT2}, 2"); m(f"s_add_u32 {t0}, {t0}, {t1}")
    m(f"s_load_dword {sD0}, s[74:75], {t0}", tag="ssmD")
    m(f"s_lshl_b32 {t0}, {sNT}, 9"); m(f"s_lshr_b32 {t1}, {sMT2}, 3"); m(f"s_lshl_b32 {t1}, {t1}, 7"); m(f"s_add_u32 {t0}, {t0}, {t1}")
    m(f"s_add_u32 {sF13R}, {t0}, {F1}")
    m(f"s_lshl_b32 {t0}, {sNT}, 18"); m(f"s_lshl_b32 {t1}, {sW}, 16"); m(f"s_add_u32 {t0}, {t0}, {t1}")
    m(f"s_lshl_b32 {t1}, {sMT2}, 7"); m(f"s_add_u32 {sKVS}, {t0}, {t1}")
    m(f"s_mov_b32 {sRW}, {sW2B}"); m(f"s_mov_b32 {sRH}, {sW2B}")
    m(f"s_mul_i32 {sW2B}, {sW}, {11*32768}"); m(f"s_lshl_b32 {t0}, {sNT}, 7"); m(f"s_add_u32 {sW2B}, {sW2B}, {t0}")
    m(f"s_lshl_b32 {t1}, {sMT1}, 1"); m(f"s_add_u32 {t0}, {sWh}, {t1}")
    m(f"s_mul_i32 {sHS}, {t0}, 44"); m(f"s_add_u32 {sHS}, {sHS}, {sFT0}"); m(f"s_lshl_b32 {sHS}, {sHS}, 12")
    m(f"s_lshl_b32 {t1}, {sW1_}, 11"); m(f"s_add_u32 {sHS}, {sHS}, {t1}"); m(f"s_add_u32 {sHS}, {sHS}, {WS_H}")
    m(f"s_lshl_b32 {t0}, {t0}, 7"); m(f"s_lshl_b32 {t1}, {sW1_}, 2"); m(f"s_add_u32 {t0}, {t0}, {t1}")
    m(f"s_lshl_b32 {t1}, {sC1}, 3"); m(f"s_add_u32 {t0}, {t0}, {t1}"); m(f"s_add_u32 {sF2W}, {t0}, {F2}")
    m(f"s_mul_i32 {sHB}, {sMT2}, 44"); m(f"s_mul_i32 {t0}, {sW}, 11"); m(f"s_add_u32 {sHB}, {sHB}, {t0}"); m(f"s_lshl_b32 {sHB}, {sHB}, 12")
    m(f"s_add_u32 {sHB}, {sHB}, {WS_H}")
    vXA, vWA, vGA, vPA = 24, 28, 29, 30
    m("v_and_b32 v16, 31, v1"); m("v_bfe_u32 v19, v16, 1, 3"); m("v_xor_b32 v19, v19, v2")
    m("v_lshlrev_b32 v19, 4, v19"); m(f"v_lshl_add_u32 v19, v16, 7, v19"); m(f"v_add_u32 v{vXA}, {sXL}, v19")
    for jj in range(1, 4): m(f"v_xor_b32 v{vXA+jj}, {32*jj}, v{vXA}")
    m("v_bfe_u32 v16, v1, 2, 2"); m("v_lshl_add_u32 v19, v2, 3, v16"); m("v_mul_u32_u24 v19, 192, v19")
    m("v_and_b32 v16, 1, v5"); m("v_lshl_add_u32 v19, v16, 5, v19"); m("v_and_b32 v16, 3, v1"); m("v_lshl_add_u32 v19, v16, 3, v19")
    m(f"v_add_u32 v{vWA}, {WR}, v19")
    m("v_xor_b32 v19, v5, v1"); m("v_and_b32 v19, 1, v19"); m("v_lshlrev_b32 v19, 10, v19")
    m(f"v_lshl_add_u32 v19, v2, 4, v19"); m(f"v_add_u32 v{vGA}, {GWT}, v19")
    m(f"s_lshl_b32 {t0}, {sW}, 5"); m(f"s_add_u32 {t0}, {t0}, {KST}")
    m(f"v_mul_u32_u24 v{vPA}, 1040, v4"); m(f"v_lshl_add_u32 v{vPA}, v3, 2, v{vPA}"); m(f"v_add_u32 v{vPA}, {t0}, v{vPA}")
    ACC = 32; GA = 80; ZR = 240
    for i in range(4): m(f"v_mov_b32 v{ZR+i}, 0")
    m(f"v_add_u32 v16, {GWZ}, v{vL16}"); m(f"ds_write_b128 v16, {q4(ZR)}", tag="gz")
    m(f"v_lshlrev_b32 v16, 3, v2"); m(f"v_add_u32 v16, {B1T}, v16")
    p.ext(weave(chunk_dma(1), (groups_of(m), 0, 6)))
    stamp()
    p.wvm("sp"); p.w0(vm=False, lg=True)
    p(f"s_and_b32 {sD1}, {sD0}, 0xffff0000"); p(f"s_lshl_b32 {sD0}, {sD0}, 16")
    p("s_barrier")
    m = Prog()
    BT = 84
    for t in range(3):
        for q in range(4):
            m(f"ds_read_b64 {pr(BT+(t*4+q)*2)}, v16 offset:{t*64+q*16}", tag="b1r")
    m.wlg("b1r")
    for t in range(3):
        for q in range(4):
            r = BT + (t*4+q)*2; a = ACC + t*16 + q*4
            unpack(m, a, a+1, r); unpack(m, a+2, a+3, r+1)
    p.ext(weave(chunk_dma(2), (groups_of(m), 0, 6)))
    p.wvm("kv")
    p(f"s_or_b32 {t0}, s2, {sW}"); p(f"s_cmp_lg_u32 {t0}, 0"); p("s_cbranch_scc1 L_notag")
    p(f"v_add_u32 v{vTC}, {TAGK}, v{vTC}"); p(f"v_or_b32 v{vTC}, 1, v{vTC}"); p(f"s_mov_b32 {t0}, {EPO}")
    p("s_mov_b64 exec, 1")
    p.items.append(("raw", f"    global_store_dword v{vZ}, v{vTC}, {DBG} sc1"))
    p.items.append(("raw", f"    buffer_store_dword v{vTC}, v{vZ}, {WS}, {t0} offen sc1"))
    p("s_mov_b64 exec, -1")
    p("L_notag:")
    p("s_barrier")
    stamp()
    FR = 84
    def g1_reads(ks):
        c, jj = divmod(ks, 4); slot = c % 5; b = FR + 20*(ks % 3)
        o = [I(f"ds_read_b128 {q4(b)}, v{vXA+jj} offset:{slot*4096}", f"r{ks}")]
        for t in range(3):
            for h in range(2):
                r = b + 8 + 4*t + 2*h
                o.append(I(f"ds_read_b64_tr_b16 {pr(r)}, v{vWA} offset:{slot*12288 + (16*jj+4*h)*192 + t*64}", f"r{ks}"))
        o.append(I(f"ds_read_b128 {q4(b+4)}, v{vGA} offset:{32*ks}", f"r{ks}"))
        return o
    KR, VR, KF, VF, CF, KS = 144, 156, 164, 188, 204, 212
    pre_r = Prog()
    for i in range(11):
        off = 640 + 128*i if i < 3 else 1040 + 128*(i-3)
        pre_r(f"ds_read_b32 v{KR+i}, v{vPA} offset:{off}", tag="pk")
    for i in range(8): pre_r(f"ds_read_b32 v{VR+i}, v{vPA} offset:{VST-KST+128*i}", tag="pk")
    pc = Prog()
    unpack(pc, CF+0, CF+2, 20); unpack(pc, CF+4, CF+6, 21); unpack(pc, CF+1, CF+3, 22); unpack(pc, CF+5, CF+7, 23)
    pc.wlg("pk")
    for i in range(11): unpack(pc, KF+2*i, KF+2*i+1, KR+i)
    for i in range(8): unpack(pc, VF+2*i, VF+2*i+1, VR+i)
    for i in range(8): pc(f"v_pk_mul_f32 {pr(KS+2*i)}, {pr(KF+2*(i+3))}, {pr(CF)}")
    for j in range(1, 4):
        for i in range(8): pc(f"v_pk_fma_f32 {pr(KS+2*i)}, {pr(KF+2*(i+3-j))}, {pr(CF+2*j)}, {pr(KS+2*i)}")
    for i in range(8): pc(f"v_pk_mul_f32 {pr(KS+2*i)}, {pr(KS+2*i)}, {pr(VF+2*i)}")
    for ch in range(2):
        for i in range(4): pc(f"v_cvt_pk_bf16_f32 v{KR+4*ch+i}, v{KS+4*i+ch}, v{KS+4*i+2+ch}")
    pc(f"v_lshlrev_b32 v16, 13, v3"); pc(f"v_lshl_add_u32 v16, v4, 4, v16")
    pc(f"s_add_u32 {t1}, {sKVS}, 4096")
    pc(f"buffer_store_dwordx4 {q4(KR)}, v16, {WS}, {sKVS} offen sc1", tag="kvst")
    pc(f"buffer_store_dwordx4 {q4(KR+4)}, v16, {WS}, {t1} offen sc1", tag="kvst")
    pc(f"global_load_dword v{vTC}, v{vZ}, {DBG} sc1", tag="tg")
    vB2, vCA, vCB, vTW, vTR_, vUW, vH = 20, 22, 23, 7, 8, 18, 252
    ma = Prog()
    ma("v_and_b32 v16, 1, v5"); ma("v_lshlrev_b32 v16, 2, v16"); ma("v_xor_b32 v16, v16, v4"); ma("v_lshlrev_b32 v16, 4, v16")
    ma(f"v_lshl_add_u32 v{vW2}, v3, 10, v16")
    for i in range(1, 4): ma(f"v_add_u32 v{vW2+i}, {8192*i}, v{vW2}")
    ma("v_bfe_u32 v16, v1, 2, 2"); ma("v_lshl_add_u32 v19, v2, 2, v16"); ma("v_lshlrev_b32 v19, 7, v19")
    ma("v_and_b32 v31, 1, v5"); ma("v_lshl_add_u32 v19, v31, 5, v19"); ma("v_and_b32 v31, 3, v1"); ma("v_lshl_add_u32 v19, v31, 3, v19")
    ma("v_and_b32 v16, 2, v16"); ma("v_lshlrev_b32 v16, 5, v16"); ma("v_xor_b32 v19, v19, v16")
    ma(f"s_lshl_b32 {t0}, {sW1_}, 6"); ma(f"v_xor_b32 v19, {t0}, v19")
    ma(f"v_add_u32 v{vB2}, {sXL}, v19"); ma(f"v_xor_b32 v{vB2+1}, 64, v{vB2}")
    ma("v_bfe_u32 v16, v1, 2, 2"); ma(f"v_mul_u32_u24 v16, {CP}, v16"); ma("v_lshl_add_u32 v16, v5, 4, v16"); ma("v_lshlrev_b32 v31, 3, v31"); ma("v_sub_u32 v16, v31, v16")
    ma(f"s_mul_i32 {t0}, {sWh}, {CHP}"); ma(f"s_lshl_b32 {t1}, {sW1_}, 8"); ma(f"s_add_u32 {t0}, {t0}, {t1}")
    ma(f"s_add_u32 {t0}, {t0}, {HC + 3*CP + 56}"); ma(f"v_add_u32 v{vCA}, {t0}, v16")
    ma("v_and_b32 v16, 15, v1"); ma("v_lshlrev_b32 v16, 5, v16"); ma("v_lshl_add_u32 v16, v5, 4, v16")
    ma(f"s_mul_i32 {t0}, {sWh}, 4608"); ma(f"s_sub_u32 {t1}, {t0}, {t1}"); ma(f"s_add_u32 {t1}, {t1}, {U + 512 - 32 - 192}")
    ma(f"v_add_u32 v{vCB}, {t1}, v16")
    ma(f"s_lshl_b32 {t1}, {sW1_}, 11"); ma(f"s_add_u32 {t0}, {t0}, {t1}"); ma(f"s_add_u32 {t0}, {t0}, {U+512}"); ma(f"v_add_u32 v{vUW}, {t0}, v{vL16}")
    ma(f"s_lshl_b32 {t0}, {sWh}, 11"); ma(f"v_add_u32 v{vH}, {t0}, v{vL16}"); ma(f"v_xor_b32 v{vH+1}, 2048, v{vH}")
    def w2_dma(tau):
        g = []
        for i in range(4):
            d = Prog()
            if i == 0:
                if tau: d(f"s_add_u32 {sRW}, {sRW}, 1"); d(f"s_cmp_eq_u32 {sRW}, 11"); d(f"s_cselect_b32 {sRW}, 0, {sRW}")
                d(f"s_lshl_b32 {td}, {sRW}, 15"); d(f"s_add_u32 {td}, {td}, {sW2B}")
            d(f"s_add_u32 m0, {sXL}, {XR + ((tau+3)%5)*4096 + i*1024}")
            d(f"buffer_load_dwordx4 v{vW2+i}, {W2}, {td} offen lds", tag=f"w2_{tau}")
            g.append(d.items)
        return g
    def w2_read(tau):
        d = Prog()
        d.wvm(f"w2_{tau}")
        for tdd in range(2):
            for ks in range(2):
                for j in range(2):
                    a = tau*16 + tdd*8 + ks*4 + 2*j
                    d(f"ds_read_b64_tr_b16 a[{a}:{a+1}], v{vB2+tdd} offset:{XR + ((tau+3)%5)*4096 + (16*ks+8*j)*128}", tag=f"w2r_{tau}")
        return d.items
    rw = Prog()
    rw(f"s_lshl_b32 {t0}, {sNT}, 6"); rw(f"s_lshl_b32 {t1}, {sMT2}, 1"); rw(f"s_add_u32 {t0}, {t0}, {t1}"); rw(f"s_add_u32 {t0}, {t0}, {sWh}")
    rw(f"s_lshl_b32 {sDOFF}, {t0}, 12"); rw(f"s_lshl_b32 {t1}, {sW1_}, 11"); rw(f"s_add_u32 {sDOFF}, {sDOFF}, {t1}")
    rw(f"s_mul_i32 {sRAW}, {sWh}, {CHP}"); rw(f"s_add_u32 {sRAW}, {sRAW}, {t1}"); rw(f"s_add_u32 {sRAW}, {sRAW}, {HC+32}")
    rw(f"s_add_u32 m0, {sRAW}, {3*CP}"); rw(f"buffer_load_dwordx4 v{vL16}, {SSM}, {sDOFF} offen nt lds", tag="raw")
    rw(f"buffer_load_dwordx4 v{vL16}, {SSM}, {sDOFF} offen offset:1024 nt lds", tag="raw")
    rw(f"v_add_u32 v{vTW}, {sRAW}, v{vL16}")
    rw("v_and_b32 v16, 1, v1"); rw("v_bfe_u32 v19, v1, 1, 1"); rw(f"v_mul_u32_u24 v19, {CHP}, v19"); rw("v_lshl_add_u32 v19, v16, 4, v19")
    rw(f"v_add_u32 v19, {HC+3*CP}, v19"); rw(f"ds_write_b128 v19, {q4(ZR)}", tag="rz")
    fl1 = Prog()
    poll_check(fl1, "tg", f"global_load_dword v{vTC}, v{vZ}, {DBG} sc1", f"v_cmp_eq_u32 vcc, 0, v{vTC}", "-1")
    fl1(f"v_readfirstlane_b32 {sTC}, v{vTC}")
    flag_store(fl1, sF13W)
    po1 = Prog(); poll_issue(po1, "f1", sF13R, 31)
    R0 = 144; C = 160
    tb = Prog()
    for r in range(2):
        tb(f"ds_read_b64 {pr(R0+8*r)}, v{vTW} offset:{3*CP + 1024*r - 8}", tag="rw"); tb(f"ds_read_b128 {q4(R0+8*r+2)}, v{vTW} offset:{3*CP + 1024*r}", tag="rw")
    tb(f"v_mul_u32_u24 v19, {CHP}, v4"); tb("v_and_b32 v16, 1, v3"); tb("v_lshl_add_u32 v19, v16, 4, v19")
    tb(f"v_add_u32 v19, {HC}, v19"); tb(f"ds_write_b128 v19, {q4(ZR)}", tag="z")
    tb("v_mul_u32_u24 v19, 4608, v2"); tb(f"v_lshl_add_u32 v19, v{vL4}, 2, v19"); tb(f"v_add_u32 v19, {U}, v19")
    tb(f"ds_write_b128 v19, {q4(ZR)}", tag="z")
    tb.wlg("rw")
    for r in range(2):
        R = R0 + 8*r; c = C + 12*r
        for i in range(4):
            tb(f"v_alignbit_b32 v{c+i}, v{R+2+i}, v{R+1+i}, 16"); tb(f"v_mov_b32 v{c+4+i}, v{R+1+i}"); tb(f"v_alignbit_b32 v{c+8+i}, v{R+1+i}, v{R+i}, 16")
        for cc in range(3): tb(f"ds_write_b128 v{vTW}, {q4(c+4*cc)} offset:{(2-cc)*CP + r*1024}", tag="z")
    qd = []
    d = Prog(); d(f"s_lshl_b32 {t0}, {sW}, 14"); d(f"s_add_u32 {t0}, {t0}, {t2}"); d(f"s_lshl_b32 {t1}, {sW}, 11")
    d(f"s_add_u32 m0, {t1}, {QT}"); d(f"buffer_load_dwordx4 v{vX}, {Q}, {t0} offen lds", tag="qt"); qd.append(d.items)
    d = Prog(); d(f"s_add_u32 m0, {t1}, {QT+1024}"); d(f"buffer_load_dwordx4 v{vX+1}, {Q}, {t0} offen lds", tag="qt"); qd.append(d.items)
    p.ext(g1_reads(0)); p.ext(pre_r); p.ext(g1_reads(1))
    slots = []
    for ks in range(32):
        b = FR + 20*(ks % 3)
        pre = [("wlg", f"r{ks}")]
        nx = ks + 2
        if nx < 32 and nx % 4 == 0:
            pre = pre + [("wvm", f"c{nx//4}"), I("s_barrier")]
        rd = g1_reads(nx) if nx < 32 else []
        mf = [I(f"v_mfma_f32_32x32x16_bf16 v[{ACC+16*t}:{ACC+16*t+15}], {q4(b+8+4*t)}, {q4(b)}, v[{ACC+16*t}:{ACC+16*t+15}]") for t in range(3)]
        mf.append(I(f"v_mfma_f32_16x16x32_bf16 {q4(GA)}, {q4(b+4)}, {q4(b)}, {q4(GA) if ks else 0}"))
        slots += [pre + [mf[0]] + rd[0:3], [mf[1]] + rd[3:6], [mf[2]] + rd[6:8], [mf[3]]]
    S = lambda ks, i=0: 4*ks + i
    st_mid = Prog(); stamp(st_mid)
    streams = [
        (chunk_dma(3), S(0), S(1, 3)),
        (chunk_dma(4), S(2), S(5, 3)),
        (groups_of(pc), S(0), S(5, 3)),
        (chunk_dma(5), S(6), S(9, 3)),
        ([rw.items], S(9, 3), S(9, 3)),
        (chunk_dma(6), S(10), S(13, 3)),
        (groups_of(ma), S(10), S(17, 3)),
        (chunk_dma(7), S(14), S(17, 3)),
        ([st_mid.items], S(16), S(16)),
        ([fl1.items], S(18), S(18)),
        (w2_dma(0), S(18, 1), S(19, 3)),
        (w2_dma(1), S(20), S(23, 3)),
        (groups_of(tb), S(22), S(29, 3)),
        (w2_dma(2), S(24), S(26, 3)),
        (w2_dma(3), S(27, 1), S(29, 3)),
        (qd, S(30), S(30, 3)),
        ([po1.items], S(31), S(31)),
        (w2_dma(4), S(31, 1), S(31, 3)),
    ]
    p.ext(weave(slots, *streams))
    stamp()
    C0 = -2.0 * 0.7978845608028654 * 1.4426950408889634
    C1 = C0 * 0.044715
    T = 84; HP = 100
    g = Prog()
    g(f"s_mov_b32 s94, {fb(C1)}"); g(f"v_mov_b32 v24, {fb(C0)}"); g(f"v_mov_b32 v25, {fb(C0)}"); g(f"s_mov_b32 s95, {fb(C1)}")
    g(f"s_cmp_gt_u32 {sLIM}, 8"); g(f"s_cselect_b64 vcc, -1, 0"); g(f"v_cndmask_b32 v27, v{vOOB}, v{vL16}, vcc")
    for t in range(3):
        a = ACC + 16*t
        for i in range(8): g(f"v_pk_mul_f32 {pr(T+2*i)}, {pr(a+2*i)}, {pr(a+2*i)}")
        for i in range(8): g(f"v_pk_fma_f32 {pr(T+2*i)}, {pr(T+2*i)}, s[94:95], v[24:25]")
        for i in range(8): g(f"v_pk_mul_f32 {pr(T+2*i)}, {pr(T+2*i)}, {pr(a+2*i)}")
        for i in range(16): g(f"v_exp_f32 v{T+i}, v{T+i}")
        for i in range(8): g(f"v_pk_add_f32 {pr(T+2*i)}, {pr(T+2*i)}, 1.0 op_sel_hi:[1,0]")
        for i in range(16): g(f"v_rcp_f32 v{T+i}, v{T+i}")
        for i in range(8): g(f"v_pk_mul_f32 {pr(T+2*i)}, {pr(T+2*i)}, {pr(a+2*i)}")
        for i in range(8): g(f"v_cvt_pk_bf16_f32 v{HP+8*t+i}, v{T+2*i}, v{T+2*i+1}")
        if t: g(f"s_add_u32 {sHS}, {sHS}, 4096")
        for ks in range(2):
            g(f"buffer_store_dwordx4 {q4(HP+8*t+4*ks)}, v{27 if t == 2 else vL16}, {WS}, {sHS} offen offset:{1024*ks} sc1", tag="hst")
    gs = groups_of(g, 4)
    ga = Prog()
    ga("v_and_b32 v16, 16, v1"); ga("v_cmp_ne_u32 vcc, 0, v16"); ga(f"v_cndmask_b32 v28, v{GA}, v{GA+1}, vcc")
    ga("v_cvt_pk_bf16_f32 v28, v28, v28"); ga("v_and_b32 v28, 0xffff0000, v28")
    ga(f"v_mul_f32 v28, {fb(-1.4426950408889634)}, v28"); ga("v_exp_f32 v28, v28"); ga("v_add_f32 v28, 1.0, v28"); ga("v_rcp_f32 v28, v28")
    ga("v_cvt_pk_bf16_f32 v28, v28, v28"); ga("v_and_b32 v28, 0xffff0000, v28")
    ga("v_sub_f32 v29, 1.0, v28"); ga("v_cvt_pk_bf16_f32 v29, v29, v29"); ga("v_and_b32 v29, 0xffff0000, v29")
    ga(f"s_cmp_eq_u32 {sC1}, 0"); ga("s_cselect_b32 vcc_lo, -1, 0"); ga("s_mov_b32 vcc_hi, 0")
    ga(f"v_lshlrev_b32 v16, 1, v{vL4}"); ga(f"v_cndmask_b32 v16, v{vOOB}, v16, vcc")
    ga(f"s_lshl_b32 {t0}, {sMT1}, 10"); ga(f"s_lshl_b32 {t1}, {sW}, 8"); ga(f"s_add_u32 {t0}, {t0}, {t1}"); ga(f"s_add_u32 {t0}, {t0}, {WS_G}")
    ga(f"buffer_store_dwordx2 v[28:29], v16, {WS}, {t0} offen sc1", tag="hst")
    k1 = Prog()
    flag_check(k1, "f1", sF13R, 31, "-1")
    for r in range(2): k1(f"buffer_load_dwordx4 {q4(232+4*r)}, v{vL16}, {WS}, {sDOFF} offen offset:{1024*r} sc1", tag="kvt")
    def w2_rd_dma(tau):
        o = [w2_read(tau)]
        if tau + 5 < 11:
            gd = w2_dma(tau + 5)
            gd[0] = [("wlg", f"w2r_{tau}")] + gd[0]
            o += gd
        return o
    n = len(gs)
    pk1 = P.get("ck1", 30)
    p.ext(weave(gs, ([ga.items], 6, 6), ([k1.items], pk1, pk1), (w2_rd_dma(0) + w2_rd_dma(1) + w2_rd_dma(2) + w2_rd_dma(3), 3, n - 1)))
    stamp()
    p.wvm("kvt")
    for r in range(2): p(f"ds_write_b128 v{vUW}, {q4(232+4*r)} offset:{r*1024}", tag="z")
    p.w0(vm=False, lg=True)
    p("s_barrier")
    stamp()
    CACC = 32; CAf = [64, 128]; CBf = [96, 160]
    def conv_reads(ii):
        o = []; b = ii & 1
        for a in range(8):
            o.append(I(f"ds_read_b128 {q4(CBf[b]+4*a)}, v{vCB} offset:{512*a + 64*(3-ii)}", f"cv{ii}_{a}"))
            for j in range(2):
                o.append(I(f"ds_read_b64_tr_b16 {pr(CAf[b]+4*a+2*j)}, v{vCA} offset:{512*a + 64*ii + (8 if j == 0 else 0)}", f"cv{ii}_{a}"))
        return o
    p.ext(conv_reads(0))
    slots = []
    seen = set()
    for ii in range(4):
        b = ii & 1
        rd = conv_reads(ii + 1) if ii < 3 else []
        pairs = sorted([(a, bb) for a in range(8) for bb in range(8 - a)], key=lambda x: (max(x), x))
        for k, (a, bb) in enumerate(pairs):
            t = a + bb
            cc = q4(CACC+4*t) if t in seen else "0"
            seen.add(t)
            s = [("wlg", f"cv{ii}_{max(a, bb)}")]
            s.append(I(f"v_mfma_f32_16x16x32_bf16 {q4(CACC+4*t)}, {q4(CAf[b]+4*a)}, {q4(CBf[b]+4*bb)}, {cc}"))
            kk = k - (8 if ii == 0 else 0)
            if 0 <= kk < len(rd): s.append(rd[kk])
            slots.append(s)
    HREG = [("v", 192), ("v", 208), ("v", 224), ("a", 176), ("a", 192), ("a", 208), ("a", 224), ("a", 240), ("v", 144), ("v", 160), ("v", 176)]
    def h_load(tau):
        o = []
        kind, base = HREG[tau]
        for ts in range(2):
            for ks in range(2):
                d = Prog()
                if ts == 0 and ks == 0:
                    if tau: d(f"s_add_u32 {sRH}, {sRH}, 1"); d(f"s_cmp_eq_u32 {sRH}, 11"); d(f"s_cselect_b32 {sRH}, 0, {sRH}")
                    d(f"s_lshl_b32 {t3}, {sRH}, 12"); d(f"s_add_u32 {t3}, {t3}, {sHB}")
                d(f"buffer_load_dwordx4 {q4(base+ts*8+ks*4, kind)}, v{vH + ts}, {WS}, {t3} offen offset:{ks*1024} sc1", tag=f"h{tau}")
                o.append(d.items)
        return o
    vEW, vER, vEK = 24, 25, 26
    GR = 28
    ha = Prog()
    ha(f"s_lshl_b32 {t2}, {sMT2}, 7"); ha(f"s_add_u32 {t2}, {t2}, {F2}")
    ha(f"s_lshl_b32 {t0}, {sW}, 3"); ha(f"s_lshl_b64 s[94:95], 0xff, {t0}"); ha("s_or_b32 s94, s94, 3")
    ha("v_and_b32 v16, 15, v1"); ha("v_and_b32 v19, 1, v5"); ha("v_and_b32 v27, 2, v5"); ha("v_lshl_or_b32 v19, v27, 2, v19")
    ha("v_xor_b32 v16, v16, v19"); ha("v_lshl_add_u32 v16, v5, 4, v16"); ha("v_lshlrev_b32 v16, 4, v16")
    ha(f"s_lshl_b32 {t0}, {sW}, 13"); ha(f"v_add_u32 v{vEW}, {t0}, v16")
    ha("v_lshrrev_b32 v16, 2, v1"); ha("v_and_b32 v30, 3, v1"); ha("v_and_b32 v19, 1, v30"); ha("v_and_b32 v27, 2, v30"); ha("v_lshl_or_b32 v19, v27, 2, v19")
    ha("v_xor_b32 v16, v16, v19"); ha("v_lshl_add_u32 v16, v30, 4, v16"); ha("v_lshlrev_b32 v16, 4, v16")
    ha(f"s_lshl_b32 {t0}, {sW}, 11"); ha(f"v_add_u32 v{vER}, {t0}, v16")
    ha(f"s_lshl_b32 {t0}, {sW}, 10"); ha(f"s_add_u32 {t0}, {t0}, {U+512}"); ha(f"v_lshl_add_u32 v{vEK}, v1, 3, {t0}")
    sYS = sKVS
    ha(f"s_lshl_b32 {t0}, {sNT}, 5"); ha(f"s_add_u32 {t0}, {t0}, {sMT2}"); ha(f"s_lshl_b32 {t0}, {t0}, 13")
    ha(f"s_lshl_b32 {t1}, {sW}, 11"); ha(f"s_add_u32 {t0}, {t0}, {t1}"); ha(f"s_add_u32 {sYS}, {t0}, {WS_Y}")
    ha(f"s_lshl_b32 {sHS}, {sMT2}, 9"); ha(f"s_lshl_b32 {t1}, {sWh}, 8"); ha(f"s_add_u32 {sHS}, {sHS}, {t1}"); ha(f"s_add_u32 {sHS}, {sHS}, {WS_G}")
    ha(f"v_lshlrev_b32 v27, 1, v{vL4}")
    fl2 = Prog(); fl2.wvm("hst"); flag_store(fl2, sF2W)
    po2 = Prog(); poll_issue(po2, "f2", t2, 31)
    ck2 = Prog(); flag_check(ck2, "f2", t2, 31, "s[94:95]")
    ck2(f"buffer_load_dwordx2 {pr(GR)}, v27, {WS}, {sHS} offen sc1", tag="g")
    pf2, pp2, pc2 = P.get("fl2", 30), P.get("po2", 80), P.get("ck2", 110)
    hl = [x for tau in range(8) for x in h_load(tau)]
    nh_in = P.get("nh_in", 8)
    streams = [
        (w2_rd_dma(4) + w2_rd_dma(5), 0, 28),
        (groups_of(ha), 32, 70),
        ([fl2.items], pf2, pf2),
        ([w2_read(t) for t in range(6, 11)], 44, 100),
        ([po2.items], pp2, pp2),
        ([ck2.items], pc2, pc2),
        (hl[:nh_in], pc2 + 1, 143),
    ]
    p.ext(weave(slots, *streams))
    stamp()
    e = Prog()
    for t in range(8): e(f"ds_write_b128 v{vEW}, {q4(CACC+4*t)} offset:{EX + 1024*t}", tag="ex")
    e.w0(vm=False, lg=True)
    e("s_barrier")
    E = 64; KVr = 96; KVf = 104
    for tt in range(2):
        for wv in range(4):
            e(f"ds_read_b128 {q4(E+(tt*4+wv)*4)}, v{vER} offset:{EX + wv*8192 + tt*1024}", tag=f"exr{tt}")
        for ch in range(2):
            e(f"ds_read_b64 {pr(KVr+(tt*2+ch)*2)}, v{vEK} offset:{ch*4608 + tt*512}", tag=f"exr{tt}")
    for tt in range(2):
        e.wlg(f"exr{tt}")
        for ch in range(2):
            ee = E + (tt*4+2*ch)*4; r = KVr + (tt*2+ch)*2; f = KVf + (tt*2+ch)*4
            unpack(e, f, f+1, r); unpack(e, f+2, f+3, r+1)
            for i in range(2): e(f"v_pk_add_f32 {pr(ee+2*i)}, {pr(ee+2*i)}, {pr(ee+4+2*i)}")
            for i in range(4): e(f"v_fma_f32 v{ee+i}, v{f+i}, {sD0 if ch == 0 else sD1}, v{ee+i}")
        o = 120 + 4*tt
        for i in range(4): e(f"v_cvt_pk_bf16_f32 v{o+i}, v{E+tt*16+i}, v{E+tt*16+8+i}")
        e(f"buffer_store_dwordx4 {q4(o)}, v{vL16}, {WS}, {sYS} offen offset:{1024*tt} sc1", tag="yst")
    p.w0(vm=False, lg=True)
    p("s_barrier")
    eg = groups_of(e, 6)
    nh_ex = P.get("nh_ex", 8)
    p.ext(weave(eg, (hl[nh_in:nh_in+nh_ex], 0, len(eg) - 1)))
    stamp()
    A2 = 32
    QR = 128; BR = 136; QF = 96
    ep = Prog()
    ep(f"s_lshl_b32 {t0}, {sW1_}, 6"); ep(f"s_add_u32 {t0}, {t0}, {B2T}"); ep(f"v_lshl_add_u32 v16, v2, 3, {t0}")
    for q in range(4): ep(f"ds_read_b64 {pr(BR+2*q)}, v16 offset:{16*q}", tag="b2r")
    ep.wlg("b2r")
    for q in range(4):
        unpack(ep, A2+4*q, A2+4*q+1, BR+2*q); unpack(ep, A2+4*q+2, A2+4*q+3, BR+2*q+1)
    rest = hl[nh_in+nh_ex:] + h_load(8) + h_load(9) + h_load(10)
    p.ext(weave(groups_of(ep, 6), (rest[:4], 0, 3)))
    rest = rest[4:]
    slots = []
    for tau in range(11):
        kind, base = HREG[tau]
        k = 0
        for ks in range(2):
            for ts in range(2):
                for tdd in range(2):
                    a = A2 + (tdd + 2*ts)*16
                    cc = "0" if (tau == 0 and ks == 0 and (tdd or ts)) else f"v[{a}:{a+15}]"
                    wa = tau*16 + tdd*8 + ks*4
                    s = [("wvm", f"h{tau}")] if k == 0 else []
                    s.append(I(f"v_mfma_f32_32x32x16_bf16 v[{a}:{a+15}], {q4(wa, 'a')}, {q4(base+ts*8+ks*4, kind)}, {cc}"))
                    slots.append(s); k += 1
    eq = Prog()
    eq(f"s_lshl_b32 {t0}, {sWh}, 5"); eq("v_and_b32 v16, 31, v1"); eq(f"v_add_u32 v16, {t0}, v16")
    eq("v_bfe_u32 v19, v16, 1, 3"); eq(f"s_lshl_b32 {t1}, {sW1_}, 2"); eq(f"v_xor_b32 v19, {t1}, v19")
    eq("v_lshlrev_b32 v19, 4, v19"); eq("v_lshl_add_u32 v19, v16, 7, v19"); eq("v_lshl_add_u32 v19, v2, 3, v19"); eq(f"v_add_u32 v19, {QT}, v19")
    for q in range(4):
        if q: eq(f"v_xor_b32 v20, {16*q}, v19")
        eq(f"ds_read_b64 {pr(QR+2*q)}, v{20 if q else 19}", tag="qr")
    eq.wlg("qr")
    for q in range(4):
        unpack(eq, QF+4*q, QF+4*q+1, QR+2*q); unpack(eq, QF+4*q+2, QF+4*q+3, QR+2*q+1)
    eq.wvm("g")
    for i in range(16): eq(f"v_mul_f32 v{QF+i}, v{GR}, v{QF+i}")
    vRD = 20
    for idx in range(1, 4):
        eq(f"s_xor_b32 {t0}, {sW}, {idx}"); eq(f"s_mul_i32 {t0}, {t0}, 12288"); eq(f"s_add_u32 {t0}, {t0}, {RED + (idx-1)*4096}")
        eq(f"v_add_u32 v{vRD+idx-1}, {t0}, v{vL16}")
    eq(f"s_mul_i32 {t0}, {sW}, 12288"); eq(f"s_add_u32 {t0}, {t0}, {RED}"); eq(f"v_add_u32 v23, {t0}, v{vL16}")
    eq(f"s_lshl_b32 {t0}, {sW}, 11"); eq(f"s_add_u32 {t0}, {t0}, {OT}")
    eq(f"v_lshl_add_u32 v24, v{vL4}, 4, {t0}"); eq("v_lshl_add_u32 v24, v2, 3, v24"); eq(f"v_add_u32 v25, {t0}, v{vL16}")
    eq("v_lshrrev_b32 v30, 2, v1"); eq("v_and_b32 v16, 3, v1"); eq("v_lshlrev_b32 v30, 10, v30"); eq("v_lshl_add_u32 v30, v16, 4, v30")
    sO = "s98"; sY = "s99"
    eq(f"s_lshl_b32 {sO}, {sMT2}, 16"); eq(f"s_lshl_b32 {t1}, {sWh}, 15"); eq(f"s_add_u32 {sO}, {sO}, {t1}")
    eq(f"s_lshl_b32 {t1}, {sNT}, 7"); eq(f"s_add_u32 {sO}, {sO}, {t1}"); eq(f"s_lshl_b32 {t1}, {sW1_}, 6"); eq(f"s_add_u32 {sO}, {sO}, {t1}")
    eq(f"v_lshl_add_u32 v16, v2, 14, v{vL4}")
    eq(f"s_lshl_b32 {sY}, {sNT}, 18"); eq(f"s_lshl_b32 {t1}, {sW1_}, 17"); eq(f"s_add_u32 {sY}, {sY}, {t1}")
    eq(f"s_lshl_b32 {t1}, {sMT2}, 8"); eq(f"s_add_u32 {sY}, {sY}, {t1}"); eq(f"s_lshl_b32 {t1}, {sWh}, 7")
    eq(f"s_add_u32 {sY}, {sY}, {t1}"); eq(f"s_add_u32 {sY}, {sY}, {WS_Y}")
    fl3 = Prog(); fl3.wvm("yst"); fl3(f"s_add_u32 {sF13W}, {sF13W}, 8192"); flag_store(fl3, sF13W)
    po3 = Prog(); po3(f"s_add_u32 {sF13R}, {sF13R}, 8192"); poll_issue(po3, "f3", sF13R, 31)
    YR = 112
    ck3 = Prog(); flag_check(ck3, "f3", sF13R, 31, "-1")
    for q in range(4):
        for e_ in range(2):
            ck3(f"s_add_u32 {t0}, {sY}, {(4*q+e_)*8192}")
            ck3(f"buffer_load_dword v{YR+2*q+e_}, v16, {WS}, {t0} offen sc1", tag="y")
    pf3, pp3 = P.get("fl3", 33), P.get("po3", 66)
    streams = [(rest, 0, P.get("hend", 47)), (groups_of(eq, 2), 0, 60), ([fl3.items], pf3, pf3), ([po3.items], pp3, pp3)]
    p.ext(weave(slots, *streams))
    stamp()
    p.ext(ck3)
    for idx in range(1, 4):
        for q in range(4):
            p(f"ds_write_b128 v{vRD+idx-1}, {q4(A2+idx*16+4*q)} offset:{1024*q}", tag="red")
    p.w0(vm=False, lg=True)
    p("s_barrier")
    PR = 144; ZF = 192
    for i in range(12): p(f"ds_read_b128 {q4(PR+4*i)}, v23 offset:{1024*i}", tag=f"rr{i//4}")
    p.wvm("y")
    for i in range(8): unpack(p, ZF+2*i, ZF+2*i+1, YR+i)
    for i in range(8): p(f"v_pk_mul_f32 {pr(QF+2*i)}, {pr(QF+2*i)}, {pr(ZF+2*i)}")
    for s in range(3):
        p.wlg(f"rr{s}")
        for i in range(8): p(f"v_pk_add_f32 {pr(A2+2*i)}, {pr(A2+2*i)}, {pr(PR+16*s+2*i)}")
    for i in range(16): p(f"v_fma_f32 v{QF+i}, v{GR+1}, v{A2+i}, v{QF+i}")
    for i in range(8): p(f"v_cvt_pk_bf16_f32 v{ZF+i}, v{QF+2*i}, v{QF+2*i+1}")
    for q in range(4): p(f"ds_write_b64 v24, {pr(ZF+2*q)} offset:{16*q}", tag="ow")
    for i in range(2): p(f"ds_read_b128 {q4(PR+4*i)}, v25 offset:{1024*i}", tag=f"or{i}")
    p(f"s_add_u32 {t1}, {sO}, 16384")
    p.wlg("or0")
    p(f"buffer_store_dwordx4 {q4(PR)}, v30, {OUT}, {sO} offen", tag="out")
    p.wlg("or1")
    p(f"buffer_store_dwordx4 {q4(PR+4)}, v30, {OUT}, {t1} offen", tag="out")
    stamp()
    if stamps:
        p.w0(vm=True, lg=True)
        stamp()
        p("s_memrealtime s[94:95]"); p.w0(vm=False, lg=True)
        p("v_mov_b32 v255, 0")
        p("v_writelane_b32 v255, s100, 0")
        for i in range(nst[0]): p(f"v_writelane_b32 v255, s{64+2*i}, {i+1}")
        p(f"v_writelane_b32 v255, s94, {nst[0]+1}")
        p(f"s_lshl_b32 {t0}, s2, 2"); p(f"s_add_u32 {t0}, {t0}, {sW}"); p(f"s_lshl_b32 {t0}, {t0}, 8"); p(f"s_add_u32 {t0}, {t0}, {14<<20}")
        p("v_lshlrev_b32 v16, 2, v1")
        p(f"buffer_store_dword v255, v16, {WS}, {t0} offen")
        print("stamps:", nst[0] + 1, file=sys.stderr)
    p("L_end:"); p("s_endpgm")
    body = resolve(p.items)
    hdr = [f"; @launch grid=(256,1,1) block=(256,1,1) lds={LDS_BYTES}",
           '.amdgcn_target "amdgcn-amd-amdhsa--gfx950"', ".text", f".globl {NAME}_kernel", ".p2align 8",
           f".type {NAME}_kernel,@function", f"{NAME}_kernel:"]
    ftr = ['.section .rodata,"a"', ".p2align 6", f".amdhsa_kernel {NAME}_kernel",
           "  .amdhsa_next_free_vgpr 512", "  .amdhsa_next_free_sgpr 102", "  .amdhsa_accum_offset 256",
           "  .amdhsa_group_segment_fixed_size 0", "  .amdhsa_kernarg_size 120", "  .amdhsa_user_sgpr_count 2",
           "  .amdhsa_user_sgpr_kernarg_segment_ptr 1", "  .amdhsa_system_sgpr_workgroup_id_x 1",
           "  .amdhsa_float_denorm_mode_32 3", ".end_amdhsa_kernel"]
    return "\n".join(hdr + body + ftr) + "\n"

if __name__ == "__main__":
    open(sys.argv[1], "w").write(gen(stamps=("stamps" in sys.argv)))
```

```python
import re

TRANS = ("v_exp_f32", "v_log_f32", "v_rcp_f32", "v_rsq_f32", "v_sqrt_f32", "v_sin_f32", "v_cos_f32")
_reg_re = re.compile(r"(?<![\w.])([vas])(?:(\d+)|\[(\d+):(\d+)\])(?![\w])")

def regs_of(op):
    out = set()
    for m in _reg_re.finditer(op):
        k = m.group(1)
        if m.group(2) is not None: out.add((k, int(m.group(2))))
        else:
            for i in range(int(m.group(3)), int(m.group(4)) + 1): out.add((k, i))
    if re.search(r"(?<![\w])vcc(?![\w])", op): out |= {("s", 106), ("s", 107)}
    if re.search(r"(?<![\w])vcc_lo(?![\w])", op): out.add(("s", 106))
    if re.search(r"(?<![\w])vcc_hi(?![\w])", op): out.add(("s", 107))
    if re.search(r"(?<![\w])m0(?![\w])", op): out.add(("s", 124))
    if re.search(r"(?<![\w])exec(?![\w])", op): out |= {("s", 126), ("s", 127)}
    return out

class I:
    __slots__ = ("text", "tag", "mn", "cls", "dst", "src", "ops", "passes", "srcc", "ab", "data")
    def __init__(self, text, tag=None):
        self.text = text.strip(); self.tag = tag
        t = self.text.split(";")[0].strip()
        parts = t.split(None, 1)
        self.mn = parts[0] if parts else ""
        rest = parts[1] if len(parts) > 1 else ""
        ops = [o.strip() for o in re.split(r",(?![^\[]*\])", rest)] if rest else []
        self.ops = ops
        mn = self.mn
        self.dst = set(); self.src = set(); self.passes = 0; self.srcc = set(); self.ab = set(); self.data = set()
        if mn.endswith(":") or mn.startswith("."): self.cls = "label"; return
        if mn.startswith("v_mfma"):
            self.cls = "mfma"
            self.dst = regs_of(ops[0]); self.ab = regs_of(ops[1]) | regs_of(ops[2]); self.srcc = regs_of(ops[3])
            self.src = self.ab | self.srcc
            self.passes = 8 if "32x32x16" in mn else (4 if "16x16x32" in mn else 16)
        elif mn.startswith("v_"):
            self.cls = "valu"
            nd = 1
            if mn.startswith(("v_add_co", "v_sub_co", "v_addc_co", "v_subb_co", "v_mad_u64", "v_div_scale")): nd = 2
            for o in ops[:nd]: self.dst |= regs_of(o)
            for o in ops[nd:]: self.src |= regs_of(o)
            if mn.startswith(("v_fmac", "v_dot2c", "v_pk_fmac", "v_writelane")) or "_dpp" in mn and mn.startswith("v_mov"): self.src |= self.dst
            if "swap" in mn:
                self.dst |= regs_of(ops[1]); self.src |= self.dst
            if mn.startswith("v_cmpx"): self.dst |= {("s", 126), ("s", 127)}
        elif mn.startswith("ds_"):
            self.cls = "ds"
            if mn.startswith(("ds_read", "ds_bpermute", "ds_permute", "ds_swizzle")) or "_rtn" in mn:
                self.dst = regs_of(ops[0])
                for o in ops[1:]: self.src |= regs_of(o)
            else:
                for o in ops: self.src |= regs_of(o)
        elif mn.startswith(("buffer_", "global_")):
            self.cls = "vmem"
            islds = re.search(r"\blds\b", t) is not None or "load_lds" in mn
            if "load" in mn and not islds:
                self.dst = regs_of(ops[0])
                for o in ops[1:]: self.src |= regs_of(o)
            else:
                for o in ops: self.src |= regs_of(o)
                if islds: self.src.add(("s", 124))
                if "store" in mn and ("x3" in mn or "x4" in mn):
                    self.data = regs_of(ops[0] if mn.startswith("buffer") else ops[1])
        elif mn.startswith(("s_load", "s_buffer_load", "s_memtime", "s_memrealtime")):
            self.cls = "smem"
            self.dst = regs_of(ops[0])
            for o in ops[1:]: self.src |= regs_of(o)
        elif mn.startswith("s_"):
            self.cls = "salu"
            if mn.startswith(("s_cmp", "s_cbranch", "s_branch", "s_nop", "s_waitcnt", "s_barrier", "s_endpgm", "s_setprio", "s_sleep", "s_bitcmp")):
                for o in ops: self.src |= regs_of(o)
            else:
                self.dst = regs_of(ops[0])
                for o in ops[1:]: self.src |= regs_of(o)
                if "saveexec" in mn: self.dst |= {("s", 126), ("s", 127)}
        else:
            raise ValueError("unknown instr: " + text)
    def states(self):
        if self.cls == "label": return 0
        if self.mn == "s_nop": return int(self.ops[0], 0) + 1
        return 1

def need(p, c):
    n = 0
    vs = lambda s: {r for r in s if r[0] != "s"}
    ss = lambda s: {r for r in s if r[0] == "s"}
    if p.cls == "valu":
        pv = vs(p.dst); psg = ss(p.dst)
        if c.cls == "mfma" and pv & c.src: n = max(n, 2)
        if c.cls == "mfma" and ("s", 126) in psg: n = max(n, 4)
        if c.cls == "valu":
            if p.mn.startswith(TRANS) and pv & c.src: n = max(n, 1)
            if ("dpp" in c.text or "permlane" in c.mn) and pv & c.src: n = max(n, 2)
            if c.mn.startswith(("v_readlane", "v_readfirstlane")) and pv & c.src: n = max(n, 1)
            if psg & c.src: n = max(n, 4 if c.mn.startswith(("v_readlane", "v_writelane")) else 2)
            if ("op_sel" in p.text and not p.mn.startswith("v_pk") or "sdwa" in p.text) and pv & (c.src | c.dst): n = max(n, 1)
            if ("s", 126) in psg and ("dpp" in c.text): n = max(n, 5)
            if ("s", 126) in psg and c.mn.startswith(("v_readlane", "v_readfirstlane", "v_writelane", "v_permlane")): n = max(n, 4)
        if c.cls == "vmem" and psg & c.src: n = max(n, 5)
        if c.cls in ("salu", "smem") and psg & c.src: n = max(n, 1)
    if p.cls == "mfma":
        big = {4: 8, 8: 12, 16: 20}[p.passes]
        if c.cls == "mfma":
            if p.dst & c.ab: n = max(n, big)
            if p.dst & c.srcc and not (p.dst == c.srcc and p.mn == c.mn): n = max(n, big - 2)
            if p.dst & c.dst and not (p.dst & c.srcc): n = max(n, big)
        elif c.cls in ("valu", "ds", "vmem"):
            if p.dst & (c.src | c.dst): n = max(n, big)
            if c.cls == "valu" and p.srcc & c.dst: n = max(n, {4: 3, 8: 7, 16: 15}[p.passes])
    if p.cls == "salu" and ("s", 124) in p.dst and c.cls == "vmem" and ("s", 124) in c.src: n = max(n, 1)
    if p.cls == "vmem" and p.data and p.data & c.dst and c.cls != "vmem": n = max(n, 2 if c.cls in ("valu", "mfma") else 1)
    return n

class Prog:
    def __init__(self):
        self.items = []
    def __call__(self, text, tag=None):
        for line in text.split("\n"):
            if line.strip(): self.items.append(I(line, tag))
    def wvm(self, tag): self.items.append(("wvm", tag))
    def wlg(self, tag): self.items.append(("wlg", tag))
    def w0(self, vm=True, lg=True): self.items.append(("w0", vm, lg))
    def forget(self): self.items.append(("forget",))
    def ext(self, other): self.items.extend(other.items if isinstance(other, Prog) else other)

def interleave(main, side, start=0, every=1, per=1):
    m = main.items if isinstance(main, Prog) else main
    s = list(side.items if isinstance(side, Prog) else side)
    out = []
    for i, it in enumerate(m):
        out.append(it)
        if i >= start and (i - start) % every == every - 1:
            for _ in range(per):
                if s: out.append(s.pop(0))
    out.extend(s)
    return out

def resolve(items, state=None, tail=None):
    top = tail is None
    if top: tail = []
    out = []
    st = state or dict(hist=[], vm=[], lg=[], smem=False)
    forks = {}
    def emit(ins):
        hist = st["hist"]
        if ins.cls == "label":
            out.append(ins.text); return
        dist = 0; req = 0
        for p in reversed(hist):
            r = need(p, ins) - dist
            if r > req: req = r
            dist += p.states()
            if dist >= 20: break
        while req > 0:
            k = min(req, 16)
            nop = I(f"s_nop {k-1}"); out.append("    " + nop.text); hist.append(nop); req -= k
        out.append("    " + ins.text); hist.append(ins)
        if len(hist) > 64: del hist[:32]
    for it in items:
        if isinstance(it, tuple):
            if it[0] == "wvm":
                vm = st["vm"]
                idx = [i for i, t in enumerate(vm) if t == it[1]]
                if idx:
                    n = min(len(vm) - 1 - idx[-1], 63)
                    emit(I(f"s_waitcnt vmcnt({n})")); st["vm"] = vm[len(vm) - n:] if n else []
            elif it[0] == "wmax":
                if len(st["vm"]) > it[1]:
                    emit(I(f"s_waitcnt vmcnt({it[1]})")); st["vm"] = st["vm"][len(st["vm"]) - it[1]:]
            elif it[0] == "wlg":
                lg = st["lg"]
                idx = [i for i, t in enumerate(lg) if t == it[1]]
                if idx:
                    n = 0 if st["smem"] else min(len(lg) - 1 - idx[-1], 15)
                    emit(I(f"s_waitcnt lgkmcnt({n})")); st["lg"] = lg[len(lg) - n:] if n else []
                    if n == 0: st["smem"] = False
            elif it[0] == "raw":
                ins = I(it[1]); ins.tag = None
                emit(ins)
            elif it[0] == "w0":
                w = []
                if it[1]: w.append("vmcnt(0)"); st["vm"] = []
                if it[2]: w.append("lgkmcnt(0)"); st["lg"] = []; st["smem"] = False
                emit(I("s_waitcnt " + " ".join(w)))
            elif it[0] == "fork":
                alt = dict(hist=list(st["hist"]), vm=list(st["vm"]), lg=list(st["lg"]), smem=st["smem"])
                body = resolve(it[2], alt, tail)
                tail.extend([it[1] + ":"] + body + ["    s_nop 15", "    s_nop 3", f"    s_branch {it[3]}"])
                forks[it[3]] = alt
            elif it[0] == "join":
                alt = forks[it[1]]
                assert alt["vm"] == st["vm"], (alt["vm"], st["vm"])
                assert not alt["lg"], alt["lg"]
                out.append(it[1] + ":")
            continue
        if it.cls == "vmem":
            assert len(st["vm"]) < 63, "too many outstanding vmem ops: " + it.text
            st["vm"].append(it.tag)
        elif it.cls == "ds": st["lg"].append(it.tag)
        elif it.cls == "smem": st["lg"].append(it.tag); st["smem"] = True
        emit(it)
    if top: out.extend(tail)
    return out

def groups_of(prog, n=1):
    it = prog.items if isinstance(prog, Prog) else prog
    return [it[i:i+n] for i in range(0, len(it), n)]

def weave(slots, *streams):
    extra = [[] for _ in slots]
    for groups, a, b in streams:
        n = len(groups); span = b - a + 1
        for i, g in enumerate(groups):
            extra[a + (i * span) // n].extend(g)
    out = []
    for s, e in zip(slots, extra):
        out.extend(s); out.extend(e)
    return out
```

```python
import sys, struct
sys.path.insert(0, "dev")
from asmlib import *
NAME = "gated_mix__ssm_conv_h3__dense_activation_gelu__prompt"

WS_KVT = 0; WS_Y = 2 << 20; WS_H = 4 << 20; WS_F = 10 << 20
F1 = WS_F; F2 = WS_F + 4096; F3 = WS_F + 8192; EPO = WS_F + 12288; WS_G = WS_F + 16384
WS_SIZE = 16 << 20
TAGK = 0x9E3779B9
OOB = 0x80000000
XR = 0; WR = 81920; KST = 143360; VST = 152720; GWT = 161280; GWZ = 162304; B1T = 163328; B2T = 163520
U = 118784; HC = 128000; CP = 8256; CHP = 4128
QT = WR; OT = WR + 8192; EX = 0; RED = 32768
LDS_BYTES = 163840
XS, K, V, SSM, W1, W2, WS, OUT, SP, HS, Q = ("s[4:7]", "s[8:11]", "s[12:15]", "s[16:19]", "s[20:23]", "s[24:27]", "s[28:31]",
                                             "s[32:35]", "s[36:39]", "s[36:39]", "s[88:91]")
sW, sMT1, sC1, sMT2, sNT, sFT0, sLIM, sTC = "s40", "s41", "s42", "s43", "s44", "s45", "s46", "s47"
sXC, sWC, sXL, sWL, sRW, sRH, sD0, sD1 = "s48", "s49", "s50", "s51", "s52", "s53", "s54", "s55"
t0, t1, t2, t3 = "s56", "s57", "s58", "s59"
sCNT, sF2W, sF2R, sT2 = "s60", "s61", "s62", "s63"
sW1_, sWh, DBG, sDOFF, sRAW, sF13W, sF13R, sKVS = "s92", "s93", "s[96:97]", "s98", "s99", "s100", "s101", "s3"
sHS, sYS, sGS, sKL = "s84", "s85", "s86", "s87"
fb = lambda x: "0x%08x" % struct.unpack("<I", struct.pack("<f", x))[0]
pr = lambda r: f"v[{r}:{r+1}]"
q4 = lambda r, k="v": f"{k}[{r}:{r+3}]"
vL16, vL4, vZ, vTC, vPOLL, vX, vW, vKV, vPA, vKS = 1, 2, 3, 4, 5, 6, 10, 13, 14, 15
vXA, vWA, vGA, vB1, vH2, vW2, vB2, vTW, vUW, vCA, vCB, vH, vEW, vER, vEK, vZ1, vZ2, vZ0 = 16, 20, 21, 22, 23, 24, 28, 30, 31, 32, 33, 34, 36, 37, 38, 39, 40, 41
vC0 = 42; ZR = 44
uL, uHI, u3, u7, u4, uA, uB, uC, uOOB = 232, 233, 234, 235, 236, 237, 238, 239, 240

def srd(p, base, ptr, size):
    p(f"s_mov_b32 s{base}, s{ptr}"); p(f"s_and_b32 s{base+1}, s{ptr+1}, 0xffff")
    p(f"s_mov_b32 s{base+2}, {size}"); p(f"s_mov_b32 s{base+3}, 0x20000")
def srd_off(base, ptr, off_s, size, sub=False):
    p = Prog()
    p(f"s_add_u32 s{base}, s{ptr}, {off_s}"); p(f"s_addc_u32 s{base+1}, s{ptr+1}, 0"); p(f"s_and_b32 s{base+1}, s{base+1}, 0xffff")
    p(f"s_sub_u32 s{base+2}, {size}, {off_s}" if sub else f"s_mov_b32 s{base+2}, {size}"); p(f"s_mov_b32 s{base+3}, 0x20000")
    return p.items
def unpack(p, lo, hi, src):
    p(f"v_lshlrev_b32 v{lo}, 16, v{src}"); p(f"v_and_b32 v{hi}, 0xffff0000, v{src}")
def flag_store(p, soff_s):
    p("s_mov_b64 exec, 1")
    p(f"buffer_store_dword v{vTC}, v{vZ}, {WS}, {soff_s} offen sc1", tag="flag")
    p("s_mov_b64 exec, -1")
def poll_issue(p, name, soff_s):
    p(f"buffer_load_dword v{vPOLL}, v{vL4}, {WS}, {soff_s} offen sc1", tag=name)
SLEEP = 0
def poll_check(p, name, ld, cmp, mask, lab):
    p.wvm(name)
    p(f"s_mov_b32 {sCNT}, 0")
    p(f"L_{lab}:")
    p(cmp)
    p(f"s_and_b64 vcc, vcc, {mask}")
    p(f"s_cbranch_scc0 L_{lab}_ok")
    p.items.append(("raw", ld))
    p(f"s_add_u32 {sCNT}, {sCNT}, 1")
    p(f"s_cmp_lt_u32 {sCNT}, 0x8000")
    p.items.append(("raw", "s_waitcnt vmcnt(0)"))
    if SLEEP: p(f"s_sleep {SLEEP}")
    p(f"s_cbranch_scc1 L_{lab}")
    p(f"L_{lab}_ok:")
def flag_check(p, name, soff_s, mask, lab=None):
    poll_check(p, name, f"buffer_load_dword v{vPOLL}, v{vL4}, {WS}, {soff_s} offen sc1", f"v_cmp_ne_u32 vcc, {sTC}, v{vPOLL}", mask, lab or name)

DEF = dict(LA=9, kvpos="pro2", ck1=30, fl2=30, po2=80, ck2=110, nh_in=8, nh_ex=8, fl3=33, po3=66, hend=47, pf=1, w2in=5, w2span=4)

def gen(stamps=False, **kw):
    P = dict(DEF); P.update(kw)
    global SLEEP; SLEEP = P.get('sleep', 0)
    p = Prog()
    nst = [0]
    def stamp(pp=None):
        if stamps:
            i = nst[0]; nst[0] += 1
            (pp or p)(f"s_memtime s[{64+2*i}:{65+2*i}]", tag="stamp")
    def cnt(pp, i):
        if stamps: pp(f"v_writelane_b32 v0, {sCNT}, {32+i}")
    flat = lambda gs: [x for g in gs for x in g]
    p("s_cmp_ge_u32 s2, 256"); p("s_cbranch_scc1 L_end")
    p("s_load_dwordx16 s[64:79], s[0:1], 0"); p("s_load_dwordx8 s[80:87], s[0:1], 64")
    p("s_load_dwordx4 s[92:95], s[0:1], 96"); p("s_load_dwordx2 s[28:29], s[0:1], 112")
    if stamps: p("s_memtime s[8:9]"); p("s_memrealtime s[10:11]")
    if P["pf"]:
        p("s_getpc_b64 s[60:61]"); p(f"s_and_b32 {t0}, s2, 0xf8"); p(f"v_and_b32 v{uA}, 7, v0"); p(f"v_or_b32 v{uA}, {t0}, v{uA}"); p(f"v_lshlrev_b32 v{uA}, 7, v{uA}"); p(f"v_min_u32 v{uA}, L_codeend-L_codestart-256, v{uA}")
        p(f"global_load_dword v{vPOLL}, v{uA}, s[60:61]", tag="pf")
    p(f"v_and_b32 v{uL}, 63, v0"); p(f"v_lshrrev_b32 v{uA}, 6, v0")
    p(f"v_readfirstlane_b32 {sW}, v{uA}")
    p(f"s_and_b32 {t0}, s2, 7"); p(f"s_lshr_b32 {t1}, s2, 3")
    p(f"s_lshr_b32 {t3}, {t1}, 3")
    p(f"s_and_b32 {sNT}, {t1}, 7")
    p(f"s_lshl_b32 {sMT2}, {t0}, 2"); p(f"s_add_u32 {sMT2}, {sMT2}, {t3}")
    p(f"s_lshr_b32 {t2}, {t0}, 1"); p(f"s_lshl_b32 {sMT1}, {t2}, 2"); p(f"s_add_u32 {sMT1}, {sMT1}, {t3}")
    p(f"s_lshl_b32 {sXC}, {t3}, 1"); p(f"s_add_u32 {sXC}, {sXC}, {sNT}"); p(f"s_add_u32 {sXC}, {sXC}, {t2}"); p(f"s_and_b32 {sXC}, {sXC}, 7")
    p(f"s_lshl_b32 {sXC}, {sXC}, 7"); p(f"s_mul_i32 {sWC}, {sXC}, 1376")
    p(f"s_mul_i32 {sRW}, {sNT}, 11"); p(f"s_lshr_b32 {sRW}, {sRW}, 3"); p(f"s_mul_i32 {t3}, {t3}, 3"); p(f"s_add_u32 {sRW}, {sRW}, {t3}")
    p(f"s_add_u32 {sRW}, {sRW}, {t0}")
    p(f"s_and_b32 {t0}, {t0}, 1"); p(f"s_lshl_b32 {t0}, {t0}, 3"); p(f"s_add_u32 {sC1}, {t0}, {sNT}")
    p(f"s_and_b32 {t3}, {sC1}, 3")
    p(f"s_lshr_b32 {t0}, {sC1}, 2"); p(f"s_mul_i32 {sFT0}, {t0}, 11"); p(f"s_mul_i32 {t0}, {t3}, 3"); p(f"s_add_u32 {sFT0}, {sFT0}, {t0}")
    p(f"s_cmp_eq_u32 {t3}, 3"); p(f"s_cselect_b32 {sLIM}, 8, 12"); p(f"s_cmp_eq_u32 {sC1}, 15"); p(f"s_cselect_b32 {sLIM}, 4, {sLIM}")
    p(f"v_lshrrev_b32 v{u3}, 3, v{uL}"); p(f"v_and_b32 v{u7}, 7, v{uL}"); p(f"v_lshrrev_b32 v{u4}, 4, v{uL}"); p(f"v_lshrrev_b32 v{uHI}, 5, v{uL}")
    p(f"v_lshlrev_b32 v{vKV}, 10, v{u3}"); p(f"v_lshl_add_u32 v{vKV}, v{u7}, 4, v{vKV}")
    p(f"v_xor_b32 v{vX}, v{u7}, v{u4}"); p(f"v_lshlrev_b32 v{vX}, 4, v{vX}"); p(f"v_lshl_add_u32 v{vX}, v{u3}, 10, v{vX}")
    p(f"v_xor_b32 v{vX+1}, 64, v{vX}"); p(f"v_add_u32 v{vX+1}, 7168, v{vX+1}"); p(f"v_add_u32 v{vX+2}, 14336, v{vX}"); p(f"v_add_u32 v{vX+3}, 14336, v{vX+1}")
    p(f"v_mov_b32 v{uOOB}, {OOB}")
    for i in range(3):
        p(f"v_add_u32 v{uA}, {64*i}, v{uL}"); p(f"v_mul_u32_u24 v{uB}, 171, v{uA}"); p(f"v_lshrrev_b32 v{uB}, 11, v{uB}")
        p(f"v_mul_u32_u24 v{uC}, 12, v{uB}"); p(f"v_sub_u32 v{uC}, v{uA}, v{uC}")
        p(f"v_mul_u32_u24 v{uB}, 2752, v{uB}"); p(f"v_lshl_add_u32 v{uB}, v{uC}, 4, v{uB}")
        if i: p(f"v_subrev_u32 v{uB}, {1024*i}, v{uB}")
        p(f"v_cmp_gt_u32 vcc, {sLIM}, v{uC}"); p(f"v_cndmask_b32 v{vW+i}, v{uOOB}, v{uB}, vcc")
    p(f"v_mov_b32 v{vZ}, 0"); p(f"v_lshlrev_b32 v{vL16}, 4, v{uL}")
    p(f"s_lshl_b32 {t2}, {sMT1}, 17"); p(f"s_lshl_b32 {t0}, {sW}, 15"); p(f"s_add_u32 {t2}, {t2}, {t0}")
    p(f"s_mul_i32 {sXL}, {sW}, 20480")
    p(f"s_mul_i32 {t3}, {sW}, {16*2752}"); p(f"s_lshl_b32 {t0}, {sFT0}, 6"); p(f"s_add_u32 {t3}, {t3}, {t0}")
    p(f"s_mul_i32 {sWL}, {sW}, 3072"); p(f"s_add_u32 {sWL}, {sWL}, {WR}")
    p(f"s_lshl_b32 {sT2}, {sMT2}, 16"); p(f"s_lshl_b32 {t1}, {sNT}, 7"); p(f"s_add_u32 {sT2}, {sT2}, {t1}")
    p(f"s_mov_b32 s30, {WS_SIZE}"); p("s_mov_b32 s31, 0x20000"); p("s_mov_b32 s39, 0x20000")
    p.w0(vm=False, lg=True)
    if stamps:
        p("v_mov_b32 v0, 0"); p("v_writelane_b32 v0, s8, 0"); p("v_writelane_b32 v0, s10, 40")
    p.ext(srd_off(4, 64, t2, 32768)); p.ext(srd_off(20, 78, t3, 512*2752, sub=True))
    def chunk_dma(c):
        g = []; slot = c % 5
        for i in range(4):
            d = Prog()
            if i == 0:
                if c: d(f"s_add_u32 {sXC}, {sXC}, 128"); d(f"s_and_b32 {sXC}, {sXC}, 1023"); d(f"s_mul_i32 {sWC}, {sXC}, 1376")
                d(f"s_add_u32 m0, {sXL}, {XR + slot*4096}")
            d(f"buffer_load_dwordx4 v{vX+i}, {XS}, {sXC} offen offset:{1024*i} lds", tag=f"c{c}")
            g.append(d.items)
        for i in range(3):
            d = Prog()
            if i == 0: d(f"s_add_u32 m0, {sWL}, {slot*12288}")
            d(f"buffer_load_dwordx4 v{vW+i}, {W1}, {sWC} offen offset:{1024*i} lds", tag=f"c{c}")
            g.append(d.items)
        return g
    p("s_and_b32 s29, s29, 0xffff")
    p(f"s_or_b32 {t2}, s2, {sW}"); p(f"s_cmp_lg_u32 {t2}, 0"); p("s_cbranch_scc1 L_noep")
    p(f"s_mov_b32 {t2}, {EPO}")
    p.items.append(("raw", f"buffer_load_dword v{vTC}, v{vZ}, {WS}, {t2} offen sc1"))
    p("L_noep:")
    p(f"s_cmp_eq_u32 {sW}, 1"); p("s_cbranch_scc1 L_sp1"); p(f"s_cmp_eq_u32 {sW}, 2"); p("s_cbranch_scc1 L_sp2")
    p(f"s_cmp_eq_u32 {sW}, 3"); p("s_cbranch_scc1 L_sp3")
    p("s_mov_b32 s36, s66"); p("s_and_b32 s37, s67, 0xffff"); p("s_mov_b32 s38, 2097152")
    p(f"s_sub_u32 {t0}, {sT2}, 8192"); p(f"v_add_u32 v{uA}, {t0}, v{vKV}"); p(f"s_mov_b32 m0, {KST}")
    p("s_mov_b32 exec_lo, 0"); p("s_mov_b32 exec_hi, 0xffffff00"); p("s_branch L_spd")
    p("L_sp1:")
    p("s_mov_b32 s36, s86"); p("s_and_b32 s37, s87, 0xffff"); p("s_mov_b32 s38, 1024")
    p(f"v_add_u32 v{uA}, {sXC}, v{vL16}"); p(f"v_and_b32 v{uA}, 1023, v{uA}"); p(f"s_mov_b32 m0, {GWT}"); p("s_branch L_spd")
    p("L_sp2:")
    p("s_mov_b32 s36, s80"); p("s_and_b32 s37, s81, 0xffff"); p("s_mov_b32 s38, 2752")
    p(f"v_add_u32 v{uA}, {t0}, v{vL16}"); p(f"s_mov_b32 m0, {B1T}"); p("s_mov_b64 exec, 0xfff"); p("s_branch L_spd")
    p("L_sp3:")
    p("s_mov_b32 s36, s84"); p("s_and_b32 s37, s85, 0xffff"); p("s_mov_b32 s38, 1024")
    p(f"v_add_u32 v{uA}, {t1}, v{vL16}"); p(f"s_mov_b32 m0, {B2T}"); p("s_mov_b64 exec, 0xff")
    p("L_spd:")
    p("s_nop 0")
    p(f"buffer_load_dwordx4 v{uA}, {SP}, 0 offen lds", tag="sp")
    p("s_mov_b64 exec, -1")
    SH = 244
    def kv_groups():
        g = []
        d = Prog(); d(f"global_load_dwordx4 {q4(SH)}, v{vKS}, s[70:71]", tag="kv"); g.append(d.items)
        for (srdn, base) in ((K, KST + 1040), (V, VST)):
            for hb in range(2):
                d = Prog()
                d(f"s_add_u32 m0, {sKL}, {base + hb*4160}"); d(f"s_add_u32 {sKVS}, {sGS}, {hb*32768}")
                d(f"buffer_load_dwordx4 v{vKV}, {srdn}, {sKVS} offen nt lds", tag="kv"); g.append(d.items)
        return g
    kvs = Prog()
    srd(kvs, 8, 66, 2097152); srd(kvs, 12, 68, 2097152)
    kvs(f"s_lshl_b32 {t0}, {sNT}, 9"); kvs(f"s_lshl_b32 {t1}, {sW}, 7"); kvs(f"s_add_u32 {t0}, {t0}, {t1}")
    kvs(f"v_lshl_add_u32 v{vKS}, v{u3}, 4, {t0}")
    kvs(f"s_lshl_b32 {t1}, {sMT2}, 2"); kvs(f"s_add_u32 {sF13W}, {t0}, {t1}"); kvs(f"s_add_u32 {sF13W}, {sF13W}, {F1}")
    kvs(f"s_lshl_b32 {t0}, {sW}, 13"); kvs(f"s_add_u32 {sGS}, {sT2}, {t0}"); kvs(f"s_mul_i32 {sKL}, {sW}, 1040")
    m = Prog()
    srd(m, 16, 72, 2097152); srd(m, 32, 92, 2097152); srd(m, 88, 64, 2097152)
    m("s_mov_b64 s[96:97], s[94:95]")
    m(f"s_and_b32 {sW1_}, {sW}, 1"); m(f"s_lshr_b32 {sWh}, {sW}, 1")
    m(f"s_lshl_b32 {t0}, {sNT}, 7"); m(f"s_lshl_b32 {t1}, {sMT2}, 2"); m(f"s_add_u32 {t0}, {t0}, {t1}")
    m(f"s_load_dword {sD0}, s[74:75], {t0}", tag="ssmD")
    mg = groups_of(m)
    d = Prog(); d(f"s_mul_i32 {t0}, {sW}, {11*32768}"); d(f"s_lshl_b32 {t1}, {sNT}, 7"); d(f"s_add_u32 {t0}, {t0}, {t1}")
    mg.append(d.items + srd_off(24, 82, t0, 1376*1024, sub=True))
    d = Prog(); d(f"s_mul_i32 {t0}, {sMT2}, 44"); d(f"s_mul_i32 {t1}, {sW}, 11"); d(f"s_add_u32 {t0}, {t0}, {t1}"); d(f"s_lshl_b32 {t0}, {t0}, 12")
    d(f"s_add_u32 {t0}, {t0}, {WS_H}")
    mg.append(d.items + srd_off(36, 28, t0, 45056))
    for _ in range(2):
        d = Prog(); d(f"s_sub_u32 {t0}, {sRW}, 11"); d(f"s_cmp_ge_u32 {sRW}, 11"); d(f"s_cselect_b32 {sRW}, {t0}, {sRW}"); mg.append(d.items)
    m = Prog()
    m(f"s_lshl_b32 {sRH}, {sRW}, 12"); m(f"s_lshl_b32 {sRW}, {sRW}, 15")
    m(f"s_lshl_b32 {t0}, {sNT}, 9"); m(f"s_lshr_b32 {t1}, {sMT2}, 3"); m(f"s_lshl_b32 {t1}, {t1}, 7"); m(f"s_add_u32 {t0}, {t0}, {t1}")
    m(f"s_add_u32 {sF13R}, {t0}, {F1}")
    m(f"s_lshl_b32 {t1}, {sMT1}, 1"); m(f"s_add_u32 {t0}, {sWh}, {t1}")
    m(f"s_mul_i32 {sHS}, {t0}, 44"); m(f"s_add_u32 {sHS}, {sHS}, {sFT0}"); m(f"s_lshl_b32 {sHS}, {sHS}, 12")
    m(f"s_lshl_b32 {t1}, {sW1_}, 11"); m(f"s_add_u32 {sHS}, {sHS}, {t1}"); m(f"s_add_u32 {sHS}, {sHS}, {WS_H}")
    m(f"s_lshl_b32 {t0}, {t0}, 7"); m(f"s_lshl_b32 {t1}, {sW1_}, 2"); m(f"s_add_u32 {t0}, {t0}, {t1}")
    m(f"s_lshl_b32 {t1}, {sC1}, 3"); m(f"s_add_u32 {t0}, {t0}, {t1}"); m(f"s_add_u32 {sF2W}, {t0}, {F2}")
    m(f"s_lshl_b32 {sF2R}, {sMT2}, 7"); m(f"s_add_u32 {sF2R}, {sF2R}, {F2}")
    m(f"s_lshl_b32 {t0}, {sNT}, 5"); m(f"s_add_u32 {t0}, {t0}, {sMT2}"); m(f"s_lshl_b32 {t0}, {t0}, 13")
    m(f"s_lshl_b32 {t1}, {sW}, 11"); m(f"s_add_u32 {sDOFF}, {t0}, {t1}"); m(f"s_add_u32 {sYS}, {sDOFF}, {WS_Y}")
    m(f"s_lshl_b32 {t1}, {sW1_}, 11"); m(f"s_mul_i32 {sRAW}, {sWh}, {CHP}"); m(f"s_add_u32 {sRAW}, {sRAW}, {t1}"); m(f"s_add_u32 {sRAW}, {sRAW}, {HC+32}")
    m(f"v_add_u32 v{vTW}, {sRAW}, v{vL16}")
    m(f"s_mul_i32 {t0}, {sWh}, 4608"); m(f"s_add_u32 {t1}, {t0}, {t1}"); m(f"s_add_u32 {t1}, {t1}, {U+512}"); m(f"v_add_u32 v{vUW}, {t1}, v{vL16}")
    m(f"s_lshl_b32 {t1}, {sW1_}, 8"); m(f"s_sub_u32 {t0}, {t0}, {t1}"); m(f"s_add_u32 {t0}, {t0}, {U + 512 - 32 - 192}")
    m(f"v_and_b32 v{uA}, 15, v{uL}"); m(f"v_lshlrev_b32 v{uB}, 5, v{uA}"); m(f"v_lshl_add_u32 v{uB}, v{u4}, 4, v{uB}"); m(f"v_add_u32 v{vCB}, {t0}, v{uB}")
    m(f"v_and_b32 v{uB}, 1, v{u4}"); m(f"v_and_b32 v{uC}, 2, v{u4}"); m(f"v_lshl_or_b32 v{uB}, v{uC}, 2, v{uB}")
    m(f"v_xor_b32 v{uA}, v{uA}, v{uB}"); m(f"v_lshl_add_u32 v{uA}, v{u4}, 4, v{uA}"); m(f"v_lshlrev_b32 v{uA}, 4, v{uA}")
    m(f"s_lshl_b32 {t0}, {sW}, 13"); m(f"v_add_u32 v{vEW}, {t0}, v{uA}")
    m(f"v_lshrrev_b32 v{uA}, 2, v{uL}"); m(f"v_and_b32 v{uB}, 1, v{uL}"); m(f"v_and_b32 v{uC}, 2, v{uL}"); m(f"v_lshl_or_b32 v{uB}, v{uC}, 2, v{uB}")
    m(f"v_xor_b32 v{uA}, v{uA}, v{uB}"); m(f"v_and_b32 v{uC}, 3, v{uL}"); m(f"v_lshl_add_u32 v{uA}, v{uC}, 4, v{uA}"); m(f"v_lshlrev_b32 v{uA}, 4, v{uA}")
    m(f"s_lshl_b32 {t0}, {sW}, 11"); m(f"v_add_u32 v{vER}, {t0}, v{uA}")
    m(f"s_lshl_b32 {t0}, {sW}, 10"); m(f"s_add_u32 {t0}, {t0}, {U+512}"); m(f"v_lshl_add_u32 v{vEK}, v{uL}, 3, {t0}")
    m(f"v_bfe_u32 v{uA}, v{uL}, 2, 2"); m(f"v_mul_u32_u24 v{uB}, {CP}, v{uA}"); m(f"v_lshl_add_u32 v{uB}, v{u4}, 4, v{uB}")
    m(f"v_lshlrev_b32 v{uC}, 3, v{uC}"); m(f"v_sub_u32 v{uB}, v{uC}, v{uB}")
    m(f"s_mul_i32 {t0}, {sWh}, {CHP}"); m(f"s_add_u32 {t0}, {t0}, {t1}"); m(f"s_add_u32 {t0}, {t0}, {HC + 3*CP + 56}"); m(f"v_add_u32 v{vCA}, {t0}, v{uB}")
    m(f"v_and_b32 v{uB}, 1, v{u4}"); m(f"v_lshl_add_u32 v{uC}, v{uB}, 5, v{uC}")
    m(f"v_lshl_add_u32 v{vWA}, v{uHI}, 3, v{uA}"); m(f"v_mul_u32_u24 v{vWA}, 192, v{vWA}"); m(f"v_add_u32 v{vWA}, v{vWA}, v{uC}"); m(f"v_add_u32 v{vWA}, {WR}, v{vWA}")
    m(f"v_lshl_add_u32 v{vB2}, v{uHI}, 2, v{uA}"); m(f"v_lshl_add_u32 v{vB2}, v{vB2}, 7, v{uC}")
    m(f"v_and_b32 v{uA}, 2, v{uA}"); m(f"v_lshlrev_b32 v{uA}, 5, v{uA}"); m(f"v_xor_b32 v{vB2}, v{vB2}, v{uA}")
    m(f"s_lshl_b32 {t0}, {sW1_}, 6"); m(f"v_xor_b32 v{vB2}, {t0}, v{vB2}"); m(f"v_add_u32 v{vB2}, {sXL}, v{vB2}"); m(f"v_xor_b32 v{vB2+1}, 64, v{vB2}")
    m(f"v_lshlrev_b32 v{uB}, 2, v{uB}"); m(f"v_xor_b32 v{uB}, v{uB}, v{u7}"); m(f"v_lshlrev_b32 v{uB}, 4, v{uB}"); m(f"v_lshl_add_u32 v{vW2}, v{u3}, 10, v{uB}")
    for i in range(1, 4): m(f"v_add_u32 v{vW2+i}, {7168*i}, v{vW2}")
    m(f"v_and_b32 v{uA}, 31, v{uL}"); m(f"v_lshlrev_b32 v{vL4}, 2, v{uA}"); m(f"v_bfe_u32 v{uB}, v{uA}, 1, 3"); m(f"v_xor_b32 v{uB}, v{uB}, v{uHI}")
    m(f"v_lshlrev_b32 v{uB}, 4, v{uB}"); m(f"v_lshl_add_u32 v{uB}, v{uA}, 7, v{uB}"); m(f"v_add_u32 v{vXA}, {sXL}, v{uB}")
    for jj in range(1, 4): m(f"v_xor_b32 v{vXA+jj}, {32*jj}, v{vXA}")
    m(f"v_xor_b32 v{uB}, v{u4}, v{uL}"); m(f"v_and_b32 v{uB}, 1, v{uB}"); m(f"v_lshlrev_b32 v{uB}, 10, v{uB}")
    m(f"v_lshl_add_u32 v{uB}, v{uHI}, 4, v{uB}"); m(f"v_add_u32 v{vGA}, {GWT}, v{uB}")
    m(f"s_lshl_b32 {t0}, {sW}, 5"); m(f"s_add_u32 {t0}, {t0}, {KST}")
    m(f"v_mul_u32_u24 v{vPA}, 1040, v{u7}"); m(f"v_lshl_add_u32 v{vPA}, v{u3}, 2, v{vPA}"); m(f"v_add_u32 v{vPA}, {t0}, v{vPA}")
    for i in range(4): m(f"v_mov_b32 v{ZR+i}, 0")
    m(f"v_add_u32 v{uA}, {GWZ}, v{vL16}"); m(f"ds_write_b128 v{uA}, {q4(ZR)}", tag="gz")
    m(f"v_lshlrev_b32 v{vB1}, 3, v{uHI}"); m(f"v_add_u32 v{vB1}, {B1T}, v{vB1}")
    m(f"s_lshl_b32 {t0}, {sWh}, 11"); m(f"v_add_u32 v{vH}, {t0}, v{vL16}"); m(f"v_xor_b32 v{vH+1}, 2048, v{vH}")
    m(f"v_mul_u32_u24 v{vZ1}, {CHP}, v{u7}"); m(f"v_and_b32 v{uA}, 1, v{u3}"); m(f"v_lshl_add_u32 v{vZ1}, v{uA}, 4, v{vZ1}"); m(f"v_add_u32 v{vZ1}, {HC}, v{vZ1}")
    m(f"v_or_b32 v{uB}, 6, v{u7}"); m(f"v_mul_u32_u24 v{vZ0}, {CHP}, v{uB}"); m(f"v_lshl_add_u32 v{vZ0}, v{uA}, 4, v{vZ0}"); m(f"v_add_u32 v{vZ0}, {HC}, v{vZ0}")
    m(f"v_mul_u32_u24 v{vZ2}, 4608, v{uHI}"); m(f"v_lshl_add_u32 v{vZ2}, v{vL4}, 2, v{vZ2}"); m(f"v_add_u32 v{vZ2}, {U}, v{vZ2}")
    C0 = -2.0 * 0.7978845608028654 * 1.4426950408889634
    C1 = C0 * 0.044715
    m(f"v_mov_b32 v{vC0}, {fb(C0)}"); m(f"v_mov_b32 v{vC0+1}, {fb(C0)}"); m(f"s_mov_b32 s94, {fb(C1)}"); m(f"s_mov_b32 s95, {fb(C1)}")
    mg += groups_of(m)
    d = Prog(); d(f"s_cmp_gt_u32 {sLIM}, 8"); d(f"s_cselect_b64 vcc, -1, 0"); d(f"v_cndmask_b32 v{vH2}, v{uOOB}, v{vL16}, vcc"); mg.append(d.items)
    KST_V = 243
    d = Prog(); d(f"v_lshlrev_b32 v{KST_V}, 13, v{u3}"); d(f"v_lshl_add_u32 v{KST_V}, v{u7}, 4, v{KST_V}"); mg.append(d.items)
    kvpos = P["kvpos"]
    if kvpos == "first":
        p.ext(kvs); p.ext(flat(kv_groups())); pro = chunk_dma(0) + chunk_dma(1)
    elif kvpos == "pro1":
        p.ext(flat(chunk_dma(0))); p.ext(kvs); pro = kv_groups() + chunk_dma(1)
    elif kvpos == "pro2":
        p.ext(flat(chunk_dma(0))); p.ext(kvs); pro = chunk_dma(1) + kv_groups()
    else:
        p.ext(flat(chunk_dma(0))); p.ext(kvs); pro = chunk_dma(1)
    p.ext(weave(pro, (mg, 0, len(pro) - 1)))
    stamp()
    ACC = 48; FR = 96; GF = 144; GA = 156
    p.wvm("c0"); p.w0(vm=False, lg=True)
    p(f"s_and_b32 {sD1}, {sD0}, 0xffff0000"); p(f"s_lshl_b32 {sD0}, {sD0}, 16")
    p(f"s_or_b32 {t0}, s2, {sW}"); p(f"s_cmp_lg_u32 {t0}, 0"); p("s_cbranch_scc1 L_notag")
    p(f"v_add_u32 v{vTC}, {TAGK}, v{vTC}"); p(f"v_or_b32 v{vTC}, 1, v{vTC}"); p(f"s_mov_b32 {t0}, {EPO}")
    p("s_mov_b64 exec, 1")
    p.items.append(("raw", f"global_store_dword v{vZ}, v{vTC}, {DBG} sc1"))
    p.items.append(("raw", f"buffer_store_dword v{vTC}, v{vZ}, {WS}, {t0} offen sc1"))
    p("s_mov_b64 exec, -1")
    p("L_notag:")
    p("s_barrier")
    stamp()
    BT = 160
    for t in range(3):
        for q in range(4): p(f"ds_read_b64 {pr(BT+(t*4+q)*2)}, v{vB1} offset:{t*64+q*16}", tag="b1r")
    KR, VR, KF, VF, CF, KS = 160, 172, 180, 202, 218, 226
    def w2_dma(tau):
        g = []
        for i in range(4):
            d = Prog()
            if i == 0:
                if tau: d(f"s_add_u32 {sRW}, {sRW}, 32768"); d(f"s_cmp_eq_u32 {sRW}, {11*32768}"); d(f"s_cselect_b32 {sRW}, 0, {sRW}")
                d(f"s_add_u32 m0, {sXL}, {XR + ((tau+3)%5)*4096}")
            d(f"buffer_load_dwordx4 v{vW2+i}, {W2}, {sRW} offen offset:{1024*i} lds", tag=f"w2_{tau}")
            g.append(d.items)
        return g
    def w2_read(tau):
        d = Prog()
        d.wvm(f"w2_{tau}")
        for tdd in range(2):
            for ks in range(2):
                for j in range(2):
                    a = tau*16 + tdd*8 + ks*4 + 2*j
                    d(f"ds_read_b64_tr_b16 a[{a}:{a+1}], v{vB2+tdd} offset:{XR + ((tau+3)%5)*4096 + (16*ks+8*j)*128}", tag=f"w2r_{tau}")
        return d.items
    st_mid_idx = nst[0]
    if stamps: nst[0] += 1
    def gemm1(gate):
        o = Prog()
        nt_ = 2 if gate else 3
        def reads(ks):
            c, jj = divmod(ks, 4); slot = c % 5; b = FR + 16*(ks % 3)
            r_ = [I(f"ds_read_b128 {q4(b)}, v{vXA+jj} offset:{slot*4096}", f"r{ks}")]
            for t in range(nt_):
                for h in range(2):
                    r_.append(I(f"ds_read_b64_tr_b16 {pr(b+4+4*t+2*h)}, v{vWA} offset:{slot*12288 + (16*jj+4*h)*192 + t*64}", f"r{ks}"))
            if gate: r_.append(I(f"ds_read_b128 {q4(GF+4*(ks%3))}, v{vGA} offset:{32*ks}", f"r{ks}"))
            return r_
        o.ext(reads(0)); o.ext(reads(1))
        bi = Prog()
        bi.wlg("b1r")
        for t in range(3):
            for q in range(4):
                r = BT + (t*4+q)*2; a = ACC + t*16 + q*4
                unpack(bi, a, a+1, r); unpack(bi, a+2, a+3, r+1)
        LA = P["LA"]
        first = [c for c in range(2, 8) if 4*c - LA < 0]
        fg = flat([chunk_dma(c) for c in first]) if first else []
        o.ext(weave(groups_of(bi, 7), (fg, 0, 6)) if fg else bi.items)
        pre_r = Prog()
        for i in range(11):
            off = 640 + 128*i if i < 3 else 1040 + 128*(i-3)
            pre_r(f"ds_read_b32 v{KR+i}, v{vPA} offset:{off}", tag="pk")
        for i in range(8): pre_r(f"ds_read_b32 v{VR+i}, v{vPA} offset:{VST-KST+128*i}", tag="pk")
        pc = Prog()
        unpack(pc, CF+0, CF+2, SH); unpack(pc, CF+4, CF+6, SH+1); unpack(pc, CF+1, CF+3, SH+2); unpack(pc, CF+5, CF+7, SH+3)
        pc(f"s_lshl_b32 {t0}, {sNT}, 18"); pc(f"s_lshl_b32 {t1}, {sW}, 16"); pc(f"s_add_u32 {t0}, {t0}, {t1}")
        pc(f"s_lshl_b32 {t1}, {sMT2}, 7"); pc(f"s_add_u32 {t0}, {t0}, {t1}"); pc(f"s_add_u32 {t1}, {t0}, 4096")
        pc.wlg("pk")
        for i in range(11): unpack(pc, KF+2*i, KF+2*i+1, KR+i)
        for i in range(8): unpack(pc, VF+2*i, VF+2*i+1, VR+i)
        for i in range(8): pc(f"v_pk_mul_f32 {pr(KS+2*i)}, {pr(KF+2*(i+3))}, {pr(CF)}")
        for j in range(1, 4):
            for i in range(8): pc(f"v_pk_fma_f32 {pr(KS+2*i)}, {pr(KF+2*(i+3-j))}, {pr(CF+2*j)}, {pr(KS+2*i)}")
        for i in range(8): pc(f"v_pk_mul_f32 {pr(KS+2*i)}, {pr(KS+2*i)}, {pr(VF+2*i)}")
        for ch in range(2):
            for i in range(4): pc(f"v_cvt_pk_bf16_f32 v{KR+4*ch+i}, v{KS+4*i+ch}, v{KS+4*i+2+ch}")
        if P.get("x_kvst", "sc1") != "none":
            kf = P.get("x_kvst", "sc1").replace("plain", "")
            pc(f"buffer_store_dwordx4 {q4(KR)}, v{KST_V}, {WS}, {t0} offen {kf}", tag="kvst")
            pc(f"buffer_store_dwordx4 {q4(KR+4)}, v{KST_V}, {WS}, {t1} offen {kf}", tag="kvst")
        pc(f"global_load_dword v{vTC}, v{vZ}, {DBG} sc1", tag="tg")
        rw = Prog()
        rw(f"s_add_u32 m0, {sRAW}, {3*CP}"); rw(f"ds_write_b128 v{vZ0}, {q4(ZR)}", tag="rz")
        rw(f"buffer_load_dwordx4 v{vL16}, {SSM}, {sDOFF} offen nt lds", tag="raw")
        rw(f"buffer_load_dwordx4 v{vL16}, {SSM}, {sDOFF} offen offset:1024 nt lds", tag="raw")
        fl1 = Prog()
        poll_check(fl1, "tg", f"global_load_dword v{vTC}, v{vZ}, {DBG} sc1", f"v_cmp_eq_u32 vcc, 0, v{vTC}", "-1", "tg" + "gn"[gate])
        cnt(fl1, 0)
        fl1(f"v_readfirstlane_b32 {sTC}, v{vTC}")
        flag_store(fl1, sF13W)
        po1 = Prog(); poll_issue(po1, "f1", sF13R)
        R0 = 180; C = 196
        tb = Prog()
        for r in range(2):
            tb(f"ds_read_b64 {pr(R0+8*r)}, v{vTW} offset:{3*CP + 1024*r - 8}", tag="rw"); tb(f"ds_read_b128 {q4(R0+8*r+2)}, v{vTW} offset:{3*CP + 1024*r}", tag="rw")
        tb(f"ds_write_b128 v{vZ1}, {q4(ZR)}", tag="z"); tb(f"ds_write_b128 v{vZ2}, {q4(ZR)}", tag="z")
        tb.wlg("rw")
        for r in range(2):
            R = R0 + 8*r; c = C + 12*r
            for i in range(4):
                tb(f"v_alignbit_b32 v{c+i}, v{R+2+i}, v{R+1+i}, 16"); tb(f"v_mov_b32 v{c+4+i}, v{R+1+i}"); tb(f"v_alignbit_b32 v{c+8+i}, v{R+1+i}, v{R+i}, 16")
            for cc in range(3): tb(f"ds_write_b128 v{vTW}, {q4(c+4*cc)} offset:{(2-cc)*CP + r*1024}", tag="z")
        qd = Prog()
        qd(f"s_lshl_b32 {t0}, {sW}, 14"); qd(f"s_add_u32 {t0}, {t0}, {sT2}"); qd(f"s_lshl_b32 {t1}, {sW}, 11"); qd(f"s_add_u32 m0, {t1}, {QT}")
        qd(f"buffer_load_dwordx4 v{vX}, {Q}, {t0} offen lds", tag="qt"); qd(f"buffer_load_dwordx4 v{vX+1}, {Q}, {t0} offen offset:1024 lds", tag="qt")
        slots = []
        extra_wait = {}
        if kvpos in ("first", "pro1"): kvb = 2
        elif kvpos == "pro2": kvb = 2; extra_wait[2] = "kv"
        else: kvb = int(P["kvb"])
        rawb = kvb + 4
        tbb = P.get("tbb", 22)
        extra_wait[tbb] = "raw"
        for ks in range(32):
            b = FR + 16*(ks % 3)
            pre = [("wlg", f"r{ks}")]
            nx = ks + 2
            if nx < 32 and nx % 4 == 0:
                pre = pre + [("wvm", f"c{nx//4}")]
                if ks in extra_wait: pre.append(("wvm", extra_wait[ks]))
                if not P.get("x_nobar"): pre.append(I("s_barrier"))
            rd = reads(nx) if nx < 32 else []
            if P.get("x_nord"): rd = []
            mf = [I(f"v_mfma_f32_32x32x16_bf16 v[{ACC+16*t}:{ACC+16*t+15}], {q4(b+4+4*t)}, {q4(b)}, v[{ACC+16*t}:{ACC+16*t+15}]") for t in range(nt_)]
            if gate: mf.append(I(f"v_mfma_f32_16x16x32_bf16 {q4(GA)}, {q4(GF+4*(ks%3))}, {q4(b)}, {q4(GA) if ks else 0}"))
            slots += [pre + [mf[0]] + rd[0:3], [mf[1]] + rd[3:5], [mf[2]] + rd[5:7]]
        S = lambda ks, i=0: 3*ks + i
        streams = []
        pos = 0
        for c in range(2, 8):
            if c in first: continue
            a = max(S(4*c - LA), pos); b_ = max(S(4*c - LA + 3, 2), a + 6)
            if kvpos == "mid" and c == P["kvc"]:
                streams.append((kv_groups(), a, a + 4)); a += 5; b_ = max(b_, a + 6)
            if a <= S(rawb) <= b_ + 1 or (c == 7 and S(rawb) > b_):
                pass
            streams.append((chunk_dma(c), a, b_)); pos = b_ + 1
            if pos > S(rawb) and rw is not None:
                streams.append(([rw.items], b_, b_)); rw = None
        assert rw is None
        w2free = [S(15, 1), S(19, 1), S(23, 1), S(27, 1), S(31, 1)]
        for tau in range(P["w2in"]):
            a = max(pos, w2free[tau]); b_ = min(a + P["w2span"], S(31, 2))
            streams.append((w2_dma(tau), a, b_)); pos = b_ + 1
            assert tau == 4 or pos <= S(30, 2), (tau, pos)
        streams.insert(0, ([qd.items], S(30, 2), S(30, 2))); streams.insert(0, ([po1.items], S(31), S(31)))
        pcl = P.get("pclen", 8)
        if P.get("x_noprep"): pc.items = pc.items[-1:]
        else: streams.append((groups_of(pre_r, 2), S(kvb), S(kvb + 1, 2)))
        streams.append((groups_of(pc), S(kvb + 2), S(kvb + 2 + pcl, 2)))
        f1p = P.get("fl1", kvb + 2 + pcl + 9)
        assert tbb >= kvb + 3 + pcl
        streams.append(([fl1.items], S(f1p, 1), S(f1p, 1)))
        if not P.get("x_notb"): streams.append((groups_of(tb), S(tbb), S(min(tbb + 6, 31), 2)))
        if stamps: streams.append(([[I(f"s_memtime s[{64+2*st_mid_idx}:{65+2*st_mid_idx}]", "stamp")]], S(16), S(16)))
        o.ext(weave(slots, *streams))
        if gate:
            G = 160
            o(f"v_and_b32 v{G}, 256, v{vL16}"); o(f"v_cmp_ne_u32 vcc, 0, v{G}"); o(f"v_cndmask_b32 v{G}, v{GA}, v{GA+1}, vcc")
            o(f"v_cvt_pk_bf16_f32 v{G}, v{G}, v{G}"); o(f"v_and_b32 v{G}, 0xffff0000, v{G}")
            o(f"v_mul_f32 v{G}, {fb(-1.4426950408889634)}, v{G}"); o(f"v_exp_f32 v{G}, v{G}"); o(f"v_add_f32 v{G}, 1.0, v{G}"); o(f"v_rcp_f32 v{G}, v{G}")
            o(f"v_cvt_pk_bf16_f32 v{G}, v{G}, v{G}"); o(f"v_and_b32 v{G}, 0xffff0000, v{G}")
            o(f"v_sub_f32 v{G+1}, 1.0, v{G}"); o(f"v_cvt_pk_bf16_f32 v{G+1}, v{G+1}, v{G+1}"); o(f"v_and_b32 v{G+1}, 0xffff0000, v{G+1}")
            o(f"v_lshlrev_b32 v{G+2}, 1, v{vL4}")
            o(f"s_lshl_b32 {t0}, {sMT1}, 10"); o(f"s_lshl_b32 {t1}, {sW}, 8"); o(f"s_add_u32 {t0}, {t0}, {t1}"); o(f"s_add_u32 {t0}, {t0}, {WS_G}")
            o("s_mov_b32 exec_hi, 0")
            o.items.append(("raw", f"buffer_store_dwordx2 {pr(G)}, v{G+2}, {WS}, {t0} offen sc1"))
            o("s_mov_b32 exec_hi, -1")
            o.w0(vm=False, lg=True)
        return o.items
    p(f"s_cmp_eq_u32 {sC1}, 15"); p("s_cbranch_scc1 L_gate")
    p.items.append(("fork", "L_gate", gemm1(True), "L_join"))
    p.ext(gemm1(False))
    p.items.append(("join", "L_join"))
    stamp()
    T = 96; HP = 112
    g = Prog()
    for t in range(3):
        a = ACC + 16*t
        for i in range(8): g(f"v_pk_mul_f32 {pr(T+2*i)}, {pr(a+2*i)}, {pr(a+2*i)}")
        for i in range(8): g(f"v_pk_fma_f32 {pr(T+2*i)}, {pr(T+2*i)}, s[94:95], {pr(vC0)}")
        for i in range(8): g(f"v_pk_mul_f32 {pr(T+2*i)}, {pr(T+2*i)}, {pr(a+2*i)}")
        for i in range(16): g(f"v_exp_f32 v{T+i}, v{T+i}")
        for i in range(8): g(f"v_pk_add_f32 {pr(T+2*i)}, {pr(T+2*i)}, 1.0 op_sel_hi:[1,0]")
        for i in range(16): g(f"v_rcp_f32 v{T+i}, v{T+i}")
        for i in range(8): g(f"v_pk_mul_f32 {pr(T+2*i)}, {pr(T+2*i)}, {pr(a+2*i)}")
        for i in range(8): g(f"v_cvt_pk_bf16_f32 v{HP+8*t+i}, v{T+2*i}, v{T+2*i+1}")
        if t: g(f"s_add_u32 {sHS}, {sHS}, 4096")
        for ks in range(2):
            g(f"buffer_store_dwordx4 {q4(HP+8*t+4*ks)}, v{vH2 if t == 2 else vL16}, {WS}, {sHS} offen offset:{1024*ks} sc1", tag="hst")
    gs = groups_of(g, 4)
    k1 = Prog()
    flag_check(k1, "f1", sF13R, "-1"); cnt(k1, 1)
    for r in range(2): k1(f"buffer_load_dwordx4 {q4(248+4*r)}, v{vL16}, {WS}, {sDOFF} offen offset:{1024*r} sc1", tag="kvt")
    def w2_rd_dma(tau):
        o = [w2_read(tau)]
        if tau + 5 < 11:
            gd = w2_dma(tau + 5)
            gd[0] = [("wlg", f"w2r_{tau}")] + gd[0]
            o += gd
        return o
    n = len(gs)
    ng = P.get("w2_gelu", 2)
    st_ = [([k1.items], P["ck1"], P["ck1"])]
    late = flat([w2_dma(t) for t in range(P["w2in"], 5)])
    if ng or late: st_.append((late + flat([w2_rd_dma(t) for t in range(ng)]), 1, n - 1))
    p.ext(weave(gs, *st_))
    stamp()
    p.wvm("kvt")
    for r in range(2): p(f"ds_write_b128 v{vUW}, {q4(248+4*r)} offset:{r*1024}", tag="z")
    p(f"s_lshl_b32 {t0}, {sW}, 3"); p(f"s_lshl_b64 s[94:95], 0xff, {t0}"); p("s_or_b32 s94, s94, 0xc0000000")
    p(f"s_lshl_b32 {sGS}, {sMT2}, 9"); p(f"s_lshl_b32 {t1}, {sWh}, 8"); p(f"s_add_u32 {sGS}, {sGS}, {t1}"); p(f"s_add_u32 {sGS}, {sGS}, {WS_G}")
    p(f"v_lshlrev_b32 v{vKV}, 1, v{vL4}")
    p.w0(vm=False, lg=True)
    p("s_barrier")
    CACC = 48; CAf = [80, 144]; CBf = [112, 176]
    def conv_reads(ii):
        o = []; b = ii & 1
        for a in range(8):
            o.append(I(f"ds_read_b128 {q4(CBf[b]+4*a)}, v{vCB} offset:{512*a + 64*(3-ii)}", f"cv{ii}_{a}"))
            for j in range(2):
                o.append(I(f"ds_read_b64_tr_b16 {pr(CAf[b]+4*a+2*j)}, v{vCA} offset:{512*a + 64*ii + (8 if j == 0 else 0)}", f"cv{ii}_{a}"))
        return o
    p.ext(conv_reads(0))
    slots = []
    seen = set()
    for ii in range(4):
        b = ii & 1
        rd = conv_reads(ii + 1) if ii < 3 else []
        pairs = sorted([(a, bb) for a in range(8) for bb in range(8 - a)], key=lambda x: (max(x), x))
        for k, (a, bb) in enumerate(pairs):
            t = a + bb
            cc = q4(CACC+4*t) if t in seen else "0"
            seen.add(t)
            s = [("wlg", f"cv{ii}_{max(a, bb)}" if ii == 0 else f"cv{ii}_7")]
            s.append(I(f"v_mfma_f32_16x16x32_bf16 {q4(CACC+4*t)}, {q4(CAf[b]+4*a)}, {q4(CBf[b]+4*bb)}, {cc}"))
            kk = k - (8 if ii == 0 else 0)
            if 0 <= kk < len(rd): s.append(rd[kk])
            slots.append(s)
    HREG = [("v", 208), ("v", 224), ("v", 240), ("a", 176), ("a", 192), ("a", 208), ("a", 224), ("a", 240), ("v", 160), ("v", 176), ("v", 192)]
    def h_load(tau):
        o = []
        kind, base = HREG[tau]
        for ts in range(2):
            for ks in range(2):
                d = Prog()
                if ts == 0 and ks == 0 and tau:
                    d(f"s_add_u32 {sRH}, {sRH}, 4096"); d(f"s_cmp_eq_u32 {sRH}, {11*4096}"); d(f"s_cselect_b32 {sRH}, 0, {sRH}")
                d(f"buffer_load_dwordx4 {q4(base+ts*8+ks*4, kind)}, v{vH + ts}, {HS}, {sRH} offen offset:{ks*1024} sc1", tag=f"h{tau}")
                o.append(d.items)
        return o
    GR = vC0
    fl2 = Prog(); fl2.wvm("hst"); flag_store(fl2, sF2W)
    po2 = Prog(); poll_issue(po2, "f2", sF2R)
    ck2 = Prog(); flag_check(ck2, "f2", sF2R, "s[94:95]"); cnt(ck2, 2)
    ck2(f"buffer_load_dwordx2 {pr(GR)}, v{vKV}, {WS}, {sGS} offen sc1", tag="g")
    pf2, pp2, pc2 = P["fl2"], P["po2"], P["ck2"]
    hl = [x for tau in range(8) for x in h_load(tau)]
    nh_in = P["nh_in"]
    def split_reads(gs_):
        o = []
        for g_ in gs_:
            if len(g_) >= 8 and isinstance(g_[-1], I) and g_[-1].cls == "ds":
                o.append(g_[:-6]); o += [g_[-6:-4], g_[-4:-2], g_[-2:]]
            else: o.append(g_)
        return o
    wa, wb = P.get("w2a", 60), P.get("w2b", 108)
    streams = [
        (split_reads(flat([w2_rd_dma(t) for t in range(ng, 6)])), 0, wa),
        ([fl2.items], pf2, pf2),
        (split_reads([w2_read(t) for t in range(6, 11)]), wa + 1, wb),
        ([po2.items], pp2, pp2),
    ]
    if pc2 >= 0: streams.append(([ck2.items], pc2, pc2))
    else: nh_in = 0
    if nh_in: streams.append((hl[:nh_in], pc2 + 1, 143))
    p.ext(weave(slots, *streams))
    stamp()
    e = Prog()
    for t in range(8): e(f"ds_write_b128 v{vEW}, {q4(CACC+4*t)} offset:{EX + 1024*t}", tag="ex")
    e.w0(vm=False, lg=True)
    e("s_barrier")
    E = 80; KVr = 112; KVf = 120
    for tt in range(2):
        for wv in range(4):
            e(f"ds_read_b128 {q4(E+(tt*4+wv)*4)}, v{vER} offset:{EX + wv*8192 + tt*1024}", tag=f"exr{tt}")
        for ch in range(2):
            e(f"ds_read_b64 {pr(KVr+(tt*2+ch)*2)}, v{vEK} offset:{ch*4608 + tt*512}", tag=f"exr{tt}")
    A2 = 48; QR = 144; BR = 152; QF = 112; YR = 128
    e(f"s_lshl_b32 {t0}, {sW1_}, 6"); e(f"v_add_u32 v{vB1}, {t0}, v{vB1}")
    for q in range(4): e(f"ds_read_b64 {pr(BR+2*q)}, v{vB1} offset:{B2T-B1T+16*q}", tag="b2r")
    for tt in range(2):
        e.wlg(f"exr{tt}")
        for ch in range(2):
            ee = E + (tt*4+2*ch)*4; r = KVr + (tt*2+ch)*2; f = KVf + (tt*2+ch)*4
            unpack(e, f, f+1, r); unpack(e, f+2, f+3, r+1)
            for i in range(2): e(f"v_pk_add_f32 {pr(ee+2*i)}, {pr(ee+2*i)}, {pr(ee+4+2*i)}")
            for i in range(4): e(f"v_fma_f32 v{ee+i}, v{f+i}, {sD0 if ch == 0 else sD1}, v{ee+i}")
        o = 136 + 4*tt
        for i in range(4): e(f"v_cvt_pk_bf16_f32 v{o+i}, v{E+tt*16+i}, v{E+tt*16+8+i}")
        e(f"buffer_store_dwordx4 {q4(o)}, v{vL16}, {WS}, {sYS} offen offset:{1024*tt} sc1", tag="yst")
    e.wlg("b2r")
    for q in range(4):
        unpack(e, A2+4*q, A2+4*q+1, BR+2*q); unpack(e, A2+4*q+2, A2+4*q+3, BR+2*q+1)
    p.w0(vm=False, lg=True)
    p("s_barrier")
    eg = groups_of(e, 6)
    nh_ex = P["nh_ex"]
    if pc2 >= 0: p.ext(weave(eg, (hl[nh_in:nh_in+nh_ex], 0, len(eg) - 1)))
    else:
        p.ext(e); p.ext(ck2); p.ext(flat(hl[:nh_ex]))
    stamp()
    rest = hl[nh_in+nh_ex:] + h_load(8) + h_load(9) + h_load(10)
    slots = []
    for tau in range(11):
        kind, base = HREG[tau]
        k = 0
        for ks in range(2):
            for ts in range(2):
                for tdd in range(2):
                    a = A2 + (tdd + 2*ts)*16
                    cc = "0" if (tau == 0 and ks == 0 and (tdd or ts)) else f"v[{a}:{a+15}]"
                    wa_ = tau*16 + tdd*8 + ks*4
                    s = [("wvm", f"h{tau}")] if k == 0 else []
                    s.append(I(f"v_mfma_f32_32x32x16_bf16 v[{a}:{a+15}], {q4(wa_, 'a')}, {q4(base+ts*8+ks*4, kind)}, {cc}"))
                    slots.append(s); k += 1
    eq = Prog()
    xa, xb, xhi = 6, 7, 8
    eq(f"v_lshrrev_b32 v{xhi}, 9, v{vL16}")
    eq(f"s_lshl_b32 {t0}, {sWh}, 5"); eq(f"v_lshrrev_b32 v{xa}, 2, v{vL4}"); eq(f"v_add_u32 v{xa}, {t0}, v{xa}")
    eq(f"v_bfe_u32 v{xb}, v{xa}, 1, 3"); eq(f"s_lshl_b32 {t1}, {sW1_}, 2"); eq(f"v_xor_b32 v{xb}, {t1}, v{xb}")
    eq(f"v_lshlrev_b32 v{xb}, 4, v{xb}"); eq(f"v_lshl_add_u32 v{xb}, v{xa}, 7, v{xb}"); eq(f"v_lshl_add_u32 v{xb}, v{xhi}, 3, v{xb}"); eq(f"v_add_u32 v{xb}, {QT}, v{xb}")
    for q in range(4):
        if q: eq(f"v_xor_b32 v{xa}, {16*q}, v{xb}")
        eq(f"ds_read_b64 {pr(QR+2*q)}, v{xa if q else xb}", tag="qr")
    vRD, vRR, vOW, vOR, vOG, vY = 10, 13, 14, 15, 16, 17
    for idx in range(1, 4):
        eq(f"s_xor_b32 {t0}, {sW}, {idx}"); eq(f"s_mul_i32 {t0}, {t0}, 12288"); eq(f"s_add_u32 {t0}, {t0}, {RED + (idx-1)*4096}")
        eq(f"v_add_u32 v{vRD+idx-1}, {t0}, v{vL16}")
    eq.wlg("qr")
    for q in range(4):
        unpack(eq, QF+4*q, QF+4*q+1, QR+2*q); unpack(eq, QF+4*q+2, QF+4*q+3, QR+2*q+1)
    eq.wvm("g")
    for i in range(8): eq(f"v_pk_mul_f32 {pr(QF+2*i)}, {pr(QF+2*i)}, {pr(GR)} op_sel_hi:[1,0]")
    eq(f"s_mul_i32 {t0}, {sW}, 12288"); eq(f"s_add_u32 {t0}, {t0}, {RED}"); eq(f"v_add_u32 v{vRR}, {t0}, v{vL16}")
    eq(f"s_lshl_b32 {t0}, {sW}, 11"); eq(f"s_add_u32 {t0}, {t0}, {OT}")
    eq(f"v_lshl_add_u32 v{vOW}, v{vL4}, 4, {t0}"); eq(f"v_lshl_add_u32 v{vOW}, v{xhi}, 3, v{vOW}"); eq(f"v_add_u32 v{vOR}, {t0}, v{vL16}")
    eq(f"v_lshrrev_b32 v{vOG}, 6, v{vL16}"); eq(f"v_and_b32 v{xa}, 48, v{vL16}"); eq(f"v_lshl_add_u32 v{vOG}, v{vOG}, 10, v{xa}")
    sO = sDOFF; sY = sRAW
    eq(f"s_lshl_b32 {t1}, {sWh}, 15"); eq(f"s_add_u32 {sO}, {sT2}, {t1}"); eq(f"s_lshl_b32 {t1}, {sW1_}, 6"); eq(f"s_add_u32 {sO}, {sO}, {t1}")
    eq(f"v_lshl_add_u32 v{vY}, v{xhi}, 14, v{vL4}")
    for i in range(1, 8): eq(f"v_add_u32 v{vY+i}, {(4*(i//2)+(i%2))*8192}, v{vY}")
    eq(f"s_lshl_b32 {sY}, {sNT}, 18"); eq(f"s_lshl_b32 {t1}, {sW1_}, 17"); eq(f"s_add_u32 {sY}, {sY}, {t1}")
    eq(f"s_lshl_b32 {t1}, {sMT2}, 8"); eq(f"s_add_u32 {sY}, {sY}, {t1}"); eq(f"s_lshl_b32 {t1}, {sWh}, 7")
    eq(f"s_add_u32 {sY}, {sY}, {t1}"); eq(f"s_add_u32 {sY}, {sY}, {WS_Y}")
    eq(f"s_add_u32 {t2}, {sO}, 16384")
    fl3 = Prog(); fl3.wvm("yst"); fl3(f"s_add_u32 {sF13W}, {sF13W}, 8192"); flag_store(fl3, sF13W)
    po3 = Prog(); po3(f"s_add_u32 {sF13R}, {sF13R}, 8192"); poll_issue(po3, "f3", sF13R)
    ck3 = Prog(); flag_check(ck3, "f3", sF13R, "-1"); cnt(ck3, 3)
    for i in range(8): ck3(f"buffer_load_dword v{YR+i}, v{vY+i}, {WS}, {sY} offen sc1", tag="y")
    streams = [(rest, 0, P["hend"]), (groups_of(eq, 2), 0, 60), ([fl3.items], P["fl3"], P["fl3"]), ([po3.items], P["po3"], P["po3"])]
    p.ext(weave(slots, *streams))
    stamp()
    p.ext(ck3)
    for idx in range(1, 4):
        for q in range(4):
            p(f"ds_write_b128 v{vRD+idx-1}, {q4(A2+idx*16+4*q)} offset:{1024*q}", tag="red")
    p.w0(vm=False, lg=True)
    p("s_barrier")
    PR = 160; ZF = 208
    for i in range(12): p(f"ds_read_b128 {q4(PR+4*i)}, v{vRR} offset:{1024*i}", tag=f"rr{i//4}")
    p.wvm("y")
    for i in range(8): unpack(p, ZF+2*i, ZF+2*i+1, YR+i)
    for i in range(8): p(f"v_pk_mul_f32 {pr(QF+2*i)}, {pr(QF+2*i)}, {pr(ZF+2*i)}")
    for s in range(3):
        p.wlg(f"rr{s}")
        for i in range(8): p(f"v_pk_add_f32 {pr(A2+2*i)}, {pr(A2+2*i)}, {pr(PR+16*s+2*i)}")
    for i in range(8): p(f"v_pk_fma_f32 {pr(QF+2*i)}, {pr(A2+2*i)}, {pr(GR)}, {pr(QF+2*i)} op_sel:[0,1,0]")
    for i in range(8): p(f"v_cvt_pk_bf16_f32 v{ZF+i}, v{QF+2*i}, v{QF+2*i+1}")
    for q in range(4): p(f"ds_write_b64 v{vOW}, {pr(ZF+2*q)} offset:{16*q}", tag="ow")
    for i in range(2): p(f"ds_read_b128 {q4(PR+4*i)}, v{vOR} offset:{1024*i}", tag=f"or{i}")
    p.wlg("or0")
    p(f"buffer_store_dwordx4 {q4(PR)}, v{vOG}, {OUT}, {sO} offen", tag="out")
    p.wlg("or1")
    p(f"buffer_store_dwordx4 {q4(PR+4)}, v{vOG}, {OUT}, {t2} offen", tag="out")
    if stamps:
        p.w0(vm=True, lg=True)
        stamp()
        p("s_memrealtime s[94:95]"); p.w0(vm=False, lg=True)
        for i in range(nst[0]): p(f"v_writelane_b32 v0, s{64+2*i}, {i+1}")
        p(f"v_writelane_b32 v0, s94, {nst[0]+1}")
        p(f"s_lshl_b32 {t0}, s2, 2"); p(f"s_add_u32 {t0}, {t0}, {sW}"); p(f"s_lshl_b32 {t0}, {t0}, 8"); p(f"s_add_u32 {t0}, {t0}, {14<<20}")
        p(f"v_lshrrev_b32 v6, 2, v{vL16}")
        p(f"buffer_store_dword v0, v6, {WS}, {t0} offen")
        assert nst[0] <= 9
    p("L_end:"); p("s_endpgm")
    body = resolve(p.items)
    hdr = [f"; @launch grid=(256,1,1) block=(256,1,1) lds={LDS_BYTES}",
           '.amdgcn_target "amdgcn-amd-amdhsa--gfx950"', ".text", f".globl {NAME}_kernel", ".p2align 8",
           f".type {NAME}_kernel,@function", f"{NAME}_kernel:", "L_codestart:"]
    ftr = ["L_codeend:", '.section .rodata,"a"', ".p2align 6", f".amdhsa_kernel {NAME}_kernel",
           "  .amdhsa_next_free_vgpr 512", "  .amdhsa_next_free_sgpr 102", "  .amdhsa_accum_offset 256",
           "  .amdhsa_group_segment_fixed_size 0", "  .amdhsa_kernarg_size 120", "  .amdhsa_user_sgpr_count 2",
           "  .amdhsa_user_sgpr_kernarg_segment_ptr 1", "  .amdhsa_system_sgpr_workgroup_id_x 1",
           "  .amdhsa_float_denorm_mode_32 3", ".end_amdhsa_kernel"]
    return "\n".join(hdr + body + ftr) + "\n"

if __name__ == "__main__":
    kw = {}
    for a in sys.argv[2:]:
        if "=" in a:
            k, v = a.split("="); kw[k] = int(v) if v.lstrip("-").isdigit() else v
    open(sys.argv[1], "w").write(gen(stamps=("stamps" in sys.argv), **kw))
```

```python
import sys, struct
sys.path.insert(0, "dev")
from asmlib import *
NAME = "gated_mix__ssm_conv_h3__dense_activation_gelu__prompt"
NST = 10; NWAVES = 8

WS_KVT = 0; WS_Y = 0; WS_H = 8 << 20; WS_F = (13 << 20) + (768 << 10); WS_X = 16 << 20
EPO = WS_F; ARR = WS_F + 4096; F2 = WS_F + 16384; F1 = WS_F + 32768; F3 = WS_F + 49152; WS_G = WS_F + 65536
WS_SIZE = 16 << 20
TAGK = 0x9E3779B0
OOB = 0x80000000
XR = 0; WR = 65536; KST = 65536 + 49152 - 17680; VST = KST + 9360; U = 115200; HC = 124416; CP = 8256; CHP = 4128
SY = 157440; SHT = 157696; B1T = 158208; B2T = 158464; EPT = 158720; GWT = 161280; GWZ = 162304
EX = HC
PLACE = [x for s in range(3) for x in ([XR + w*16384 + s*4096 for w in range(4)] + [WR + s*12288 + i*4096 for i in range(3)])] + [XR + 3*4096]
ORD = [11*(j >> 2) + 3*(j & 3) + t for t in range(3) for j in range(8) if not (t == 2 and (j & 3) == 3)]
OT = WR + 3*12288
LDS_BYTES = 163840
WS = "s[28:31]"
sW, sMT1, sC1, sMT2, sNT, sFT0, sLIM, sTC, sXC, sWC = "s40", "s41", "s42", "s43", "s44", "s45", "s46", "s47", "s48", "s49"
sXL, sMTL, sW1_, sWh = "s50", "s51", "s52", "s53"
t0, t1, t2, t3 = "s56", "s57", "s58", "s59"
sCNT, sT2, sJH, sROT = "s60", "s63", "s96", "s97"
fb = lambda x: "0x%08x" % struct.unpack("<I", struct.pack("<f", x))[0]
pr = lambda r, k="v": f"{k}[{r}:{r+1}]"
q4 = lambda r, k="v": f"{k}[{r}:{r+3}]"
flat = lambda gs: [x for g in gs for x in g]

def srd(p, base, ptr, size):
    p(f"s_mov_b32 s{base}, s{ptr}"); p(f"s_and_b32 s{base+1}, s{ptr+1}, 0xffff")
    p(f"s_mov_b32 s{base+2}, {size}"); p(f"s_mov_b32 s{base+3}, 0x20000")
def srd_off(base, ptr, off_s, size, sub=False):
    p = Prog()
    p(f"s_add_u32 s{base}, s{ptr}, {off_s}"); p(f"s_addc_u32 s{base+1}, s{ptr+1}, 0"); p(f"s_and_b32 s{base+1}, s{base+1}, 0xffff")
    p(f"s_sub_u32 s{base+2}, {size}, {off_s}" if sub else f"s_mov_b32 s{base+2}, {size}"); p(f"s_mov_b32 s{base+3}, 0x20000")
    return p.items
def unpack(p, lo, hi, src):
    p(f"v_lshlrev_b32 v{lo}, 16, v{src}"); p(f"v_and_b32 v{hi}, 0xffff0000, v{src}")
MAXSPIN = 0x8000
def retry(p, lab, tag, check, reloads, mask=None, sleep=1):
    p.wvm(tag)
    p(f"s_mov_b32 {sCNT}, 0")
    p(f"L_{lab}:")
    for c in check: p(c)
    p(f"s_and_b64 vcc, vcc, {mask or '-1'}")
    p(f"s_cbranch_scc0 L_{lab}_ok")
    if sleep: p(f"s_sleep {sleep}")
    for r in reloads: p.items.append(("raw", r))
    p(f"s_add_u32 {sCNT}, {sCNT}, 1")
    p(f"s_cmp_lt_u32 {sCNT}, {MAXSPIN}")
    p.items.append(("raw", "s_waitcnt vmcnt(0)"))
    p(f"s_cbranch_scc1 L_{lab}")
    p(f"L_{lab}_ok:")
def tagcheck(regs, tmp):
    o = [f"v_xor_b32 v{tmp}, {sTC}, v{regs[0]}"]
    for r in regs[1:]: o.append(f"v_bitop3_b32 v{tmp}, v{r}, {sTC}, v{tmp} bitop3:0xbe")
    o.append(f"v_cmp_ne_u32 vcc, 0, v{tmp}")
    return o

DEF = dict(pf=1, prio=2, prio2=0, vp8=3, flt=7, lag=10, sl_kv=8, sl_f2=4, sl_y=4, kvt=7, ncv=0, b8=61, tbi=2, c3=1, wq=0, bs=1, f1i=49, outf="sc1", kvi=65, w2pw=0, f1k=-1, f3pos=78, ck3=88, xf="nt", rot1=1, rot2=2, warmf=1, flagfirst=1, f2after=0, nh0=4, vprio=1)

def gen(stamps=False, **kw):
    P = dict(DEF); P.update(kw)
    KVF = P.get("kvf", "nt").replace("plain", "")
    global MAXSPIN; MAXSPIN = P.get("maxspin", 0x8000)
    class St:
        def __init__(s): s.n = 0
        def __call__(s, pp):
            if stamps:
                pp(f"s_memtime s[{64+2*s.n}:{65+2*s.n}]", tag="stamp"); s.n += 1
        def item(s):
            i = s.n; s.n += 1
            return [I(f"s_memtime s[{64+2*i}:{65+2*i}]", "stamp")] if stamps else []
    def early2(i):
        d = Prog()
        if stamps and P.get("early") == 2:
            d("s_memtime s[98:99]"); d.w0(vm=False, lg=True); d(f"v_writelane_b32 v0, s98, {44+i}")
        return d.items
    def early(pp, i):
        if stamps and P.get("early") == 1:
            pp("s_memtime s[98:99]"); pp.w0(vm=False, lg=True); pp(f"v_writelane_b32 v0, s98, {44+i}")
    def cnt(pp, i):
        if stamps: pp(f"v_writelane_b32 v0, {sCNT}, {32+i}")
    def dump(pp, st, vL16, role):
        if not stamps: return
        pp.w0(vm=True, lg=True)
        while st.n < NST - 1: st(pp)
        pp("s_memrealtime s[98:99]"); pp.w0(vm=False, lg=True)
        for i in range(st.n): pp(f"v_writelane_b32 v0, s{64+2*i}, {i+1}")
        pp(f"v_writelane_b32 v0, s98, {st.n+1}")
        pp(f"s_lshl_b32 {t0}, s2, 3"); pp(f"s_add_u32 {t0}, {t0}, {sW}"); pp(f"s_add_u32 {t0}, {t0}, {4*role}")
        pp(f"s_lshl_b32 {t0}, {t0}, 8"); pp(f"s_add_u32 {t0}, {t0}, {14<<20}")
        pp(f"v_lshrrev_b32 v6, 2, v{vL16}")
        pp(f"buffer_store_dword v0, v6, {WS}, {t0} offen")
    def rot_setup(pp):
        pp(f"s_mul_i32 {sROT}, {sMTL}, 11"); pp(f"s_lshr_b32 {sROT}, {sROT}, 1"); pp(f"s_bfe_u32 {t0}, s2, 0x20001"); pp(f"s_add_u32 {sROT}, {sROT}, {t0}")
        if P["hrot"]:
            pp(f"s_mul_i32 {t0}, {sNT}, 11"); pp(f"s_lshr_b32 {t0}, {t0}, 2"); pp(f"s_add_u32 {sROT}, {sROT}, {t0}")
        pp(f"s_sub_u32 {t0}, {sROT}, 22"); pp(f"s_cmp_ge_u32 {sROT}, 22"); pp(f"s_cselect_b32 {sROT}, {t0}, {sROT}")
    p = Prog()
    uL, uHI, u3, u7, u4, uA, uB, uC, uOOB, uSP, uKV = 120, 121, 122, 123, 124, 125, 126, 127, 128, 129, 130
    vL16, vL4, vZ, vTC = 1, 2, 3, 4
    sSO, sSM, sEL, sEH = "s32", "s33", "s34", "s35"
    p("s_cmp_ge_u32 s2, 256"); p("s_cbranch_scc1 L_end")
    p(f"v_lshrrev_b32 v{uA}, 6, v0")
    p("s_load_dwordx16 s[64:79], s[0:1], 0")
    p(f"v_readfirstlane_b32 {sW}, v{uA}")
    p("s_load_dwordx8 s[80:87], s[0:1], 64"); p("s_load_dwordx2 s[92:93], s[0:1], 96"); p("s_load_dwordx2 s[28:29], s[0:1], 112")
    if stamps: p("s_memtime s[98:99]"); p("s_memrealtime s[100:101]")
    p("s_mov_b32 s34, 0x50401808"); p("s_mov_b32 s35, 0x58585870"); p(f"s_lshl_b32 {t0}, {sW}, 3"); p(f"s_lshr_b64 s[34:35], s[34:35], {t0}")
    p(f"s_and_b32 {t2}, s34, 0xff"); p(f"s_load_dwordx2 s[36:37], s[0:1], {t2}")
    p(f"v_and_b32 v{uL}, 63, v0"); p(f"v_lshrrev_b32 v{u3}, 3, v{uL}"); p(f"v_and_b32 v{u7}, 7, v{uL}")
    p(f"v_lshlrev_b32 v{uKV}, 10, v{u3}"); p(f"v_lshl_add_u32 v{uKV}, v{u7}, 4, v{uKV}")
    p(f"s_and_b32 {t0}, s2, 7"); p(f"s_lshr_b32 {sMTL}, s2, 6"); p(f"s_bfe_u32 {sNT}, s2, 0x30003")
    if P.get("x_ntx"): p(f"s_xor_b32 {sNT}, {sNT}, {P['x_ntx']}")
    p(f"s_lshl_b32 {sMT2}, {t0}, 2"); p(f"s_add_u32 {sMT2}, {sMT2}, {sMTL}")
    p(f"s_lshl_b32 {sT2}, {sMT2}, 16"); p(f"s_lshl_b32 {t1}, {sNT}, 7"); p(f"s_add_u32 {sT2}, {sT2}, {t1}")
    p(f"s_and_b32 {t3}, {sW}, 3"); p(f"s_lshl_b32 s12, {t3}, 13"); p(f"s_add_u32 s12, s12, {sT2}"); p(f"s_add_u32 s13, s12, 32768")
    p(f"s_mul_i32 s14, {t3}, 1040"); p(f"s_cmp_ge_u32 {sW}, 4"); p(f"s_cselect_b32 s15, {VST-KST-1040}, 0"); p("s_add_u32 s14, s14, s15"); p(f"s_add_u32 s14, s14, {KST+1040}")
    p(f"s_mov_b32 s10, {0 if P.get('x_nokv') else 2097152}"); p("s_mov_b32 s11, 0x20000")
    p(f"s_lshl_b32 s6, {sNT}, 5"); p(f"s_add_u32 s6, s6, {sMT2}"); p(f"s_lshl_b32 s6, s6, 3"); p(f"s_add_u32 s6, s6, {sW}"); p("s_lshl_b32 s6, s6, 10")
    p(f"s_lshl_b32 s7, {sW}, 10"); p(f"s_cmp_ge_u32 {sW}, 4"); p(f"s_cselect_b32 s15, 32, 0"); p("s_add_u32 s7, s7, s15"); p(f"s_add_u32 s7, s7, {HC + 3*CP + 32}")
    p(f"s_mov_b32 s18, {0 if P.get('x_noraw') else 2097152}"); p("s_mov_b32 s19, 0x20000")
    p(f"s_and_b32 {sMT1}, {t0}, 6"); p(f"s_lshl_b32 {sMT1}, {sMT1}, 1"); p(f"s_add_u32 {sMT1}, {sMT1}, {sMTL}")
    if P.get("rot1", 1) == 0:
        p(f"s_lshr_b32 {sXC}, {t0}, 1"); p(f"s_add_u32 {sXC}, {sXC}, {sNT}"); p(f"s_lshl_b32 {t3}, {sMTL}, 1"); p(f"s_add_u32 {sXC}, {sXC}, {t3}")
    elif P.get("rot1", 1) == 1:
        p(f"s_lshr_b32 {sXC}, {t0}, 1"); p(f"s_lshl_b32 {t3}, {sNT}, 1"); p(f"s_add_u32 {sXC}, {sXC}, {t3}"); p(f"s_lshl_b32 {t3}, {sMTL}, 2"); p(f"s_add_u32 {sXC}, {sXC}, {t3}")
        p(f"s_and_b32 {t3}, {t0}, 1"); p(f"s_add_u32 {sXC}, {sXC}, {t3}")
    else:
        p(f"s_mov_b32 {sXC}, {t0}")
    p(f"s_and_b32 {sXC}, {sXC}, 7"); p(f"s_lshl_b32 {sXC}, {sXC}, 7")
    p(f"s_and_b32 {sJH}, {t0}, 1"); p(f"s_lshl_b32 {t0}, {sJH}, 3"); p(f"s_add_u32 {sC1}, {t0}, {sNT}")
    p(f"s_and_b32 {t3}, {sC1}, 3")
    p(f"s_lshr_b32 {t0}, {sC1}, 2"); p(f"s_mul_i32 {sFT0}, {t0}, 11"); p(f"s_mul_i32 {t0}, {t3}, 3"); p(f"s_add_u32 {sFT0}, {sFT0}, {t0}")
    p(f"s_cmp_eq_u32 {t3}, 3"); p(f"s_cselect_b32 {sLIM}, {12 if P.get('x_lim') else 8}, 12"); p(f"s_cmp_eq_u32 {sC1}, 15"); p(f"s_cselect_b32 {sLIM}, 4, {sLIM}")
    p(f"v_lshlrev_b32 v{vL16}, 4, v{uL}")
    p("s_mov_b32 s38, 1024"); p(f"s_mov_b32 {sSO}, {sXC}"); p(f"s_mov_b32 {sSM}, {GWT}")
    p(f"s_cmp_eq_u32 {sW}, 5"); p(f"s_cselect_b32 {t0}, {sC1}, 0"); p(f"s_cselect_b32 {t2}, 1023, -1"); p(f"s_cmp_eq_u32 {t0}, 15"); p(f"s_cselect_b64 s[34:35], -1, 0")
    p(f"s_lshl_b32 {t0}, {sNT}, 9"); p(f"s_lshl_b32 {t3}, {sFT0}, 6")
    for (w, sz, so, dst, el) in ((1, 4096, t0, SHT, -1), (2, 2752, t3, B1T, 0xfff), (3, 1024, t1, B2T, 0xff), (4, WS_SIZE, EPO, EPT, 1)):
        p(f"s_cmp_eq_u32 {sW}, {w}")
        if sz != 1024: p(f"s_cselect_b32 s38, {sz}, s38")
        p(f"s_cselect_b32 {sSO}, {so}, {sSO}"); p(f"s_cselect_b32 {sSM}, {dst}, {sSM}"); p(f"s_cselect_b32 {sEL}, {el}, {sEL}")
    p(f"v_add_u32 v{uSP}, {sSO}, v{vL16}"); p(f"v_and_b32 v{uSP}, {t2}, v{uSP}")
    p(f"s_cmp_lg_u32 {sW}, 0"); p("s_cbranch_scc1 L_nh")
    p("s_mov_b32 s38, 2097152"); p(f"s_mov_b32 {sSM}, {KST}"); p(f"s_mov_b32 {sEH}, 0xffffff00")
    p(f"s_sub_u32 {t0}, {sT2}, 8192"); p(f"v_add_u32 v{uSP}, {t0}, v{uKV}")
    p("L_nh:")
    p("s_mov_b32 s39, 0x20000"); p("s_mov_b32 m0, s14"); p(f"s_cmp_ge_u32 {sW}, 4")
    p.w0(vm=False, lg=True)
    p("s_cselect_b64 s[8:9], s[68:69], s[66:67]"); p("s_and_b32 s9, s9, 0xffff")
    p(f"buffer_load_dwordx4 v{uKV}, s[8:11], s12 offen {KVF} lds", tag="kv")
    p("s_add_u32 m0, s14, 4160"); p("s_and_b32 s37, s37, 0xffff")
    p(f"buffer_load_dwordx4 v{uKV}, s[8:11], s13 offen {KVF} lds", tag="kv")
    p(f"s_mov_b32 m0, {sSM}"); p("s_mov_b64 exec, s[34:35]"); p("s_cbranch_execz L_spn")
    p.items.append(("raw", f"buffer_load_dwordx4 v{uSP}, s[36:39], 0 offen sc1 lds"))
    p("L_spn:"); p("s_mov_b64 exec, -1")
    p("s_mov_b32 m0, s7"); p("s_mov_b32 s16, s72"); p("s_and_b32 s17, s73, 0xffff")
    p(f"buffer_load_dwordx4 v{vL16}, s[16:19], s6 offen {KVF} lds", tag="kv")
    if stamps: p("v_mov_b32 v0, 0"); p("v_writelane_b32 v0, s98, 0"); p("v_writelane_b32 v0, s100, 40")
    early(p, 0)
    if P["bs"]: p("s_barrier")
    p(f"v_lshrrev_b32 v{u4}, 4, v{uL}"); p(f"v_mov_b32 v{uOOB}, {OOB}"); p(f"v_mov_b32 v{vZ}, 0")
    p(f"s_mov_b32 s30, {WS_SIZE}"); p("s_mov_b32 s31, 0x20000"); p("s_and_b32 s29, s29, 0xffff")
    p(f"s_and_b32 {t0}, {sW}, 4"); p(f"s_and_b32 {sW}, {sW}, 3"); p(f"s_lshl_b32 {sXL}, {sW}, 14")
    p(f"s_and_b32 {sW1_}, {sW}, 1"); p(f"s_lshr_b32 {sWh}, {sW}, 1")
    p(f"s_cmp_lg_u32 {t0}, 0"); p("s_cbranch_scc1 L_G")
    def startstamp(pp):
        if stamps: pp("v_mov_b32 v0, 0"); pp("v_writelane_b32 v0, s98, 0"); pp("v_writelane_b32 v0, s100, 40")
    v = Prog(); st = St()
    XS, W1, SSM, W2 = "s[4:7]", "s[20:23]", "s[16:19]", "s[24:27]"
    sWL, sW2L, sRAW, sDOFF, sD0, sD1, sKT, sYS = "s54", "s55", "s62", "s88", "s89", "s90", "s91", "s3"
    vX, vW, vW2_, vTW, vUW, vCA, vCB, vEW, vER, vEK, vZ1, vZ2, vZ0, vSY, vONE, vT = 6, 10, 13, 14, 15, 16, 17, 18, 19, 20, 21, 22, 23, 24, 25, 26
    ZR = 28; vW2 = 112
    def D(c):
        g = []; slot = c % 4
        for i in range(4):
            d = Prog()
            if i == 0:
                if c: d(f"s_add_u32 {sXC}, {sXC}, 128"); d(f"s_and_b32 {sXC}, {sXC}, 1023"); d(f"s_mul_i32 {sWC}, {sXC}, 1376")
                d(f"s_add_u32 m0, {sXL}, {XR + slot*4096}")
            d(f"buffer_load_dwordx4 v{vX+i}, {XS}, {sXC} offen offset:{1024*i} {P.get('xf', '')} lds", tag=f"c{c}")
            g.append(d.items)
        for i in range(3):
            d = Prog()
            if i == 0: d(f"s_add_u32 m0, {sWL}, {slot*12288}")
            d(f"buffer_load_dwordx4 v{vW+i}, {W1}, {sWC} offen offset:{1024*i} {P.get('wf', '')} lds", tag=f"c{c}")
            g.append(d.items)
        return g
    PL = [0, 1, 2, 4, 5, 3]
    def rotstep(d, reg, unit):
        d(f"s_add_u32 {reg}, {reg}, {unit}"); d(f"s_cmp_eq_u32 {reg}, {11*unit}"); d(f"s_cselect_b32 {reg}, 0, {reg}")
    def Wt(tau, pl, vw, sxl, sw2l):
        o = []
        for i in range(4):
            d = Prog()
            if i == 0:
                if tau: rotstep(d, sROT, 32768)
                d(f"s_add_u32 m0, {sxl}, {XR + pl*4096}" if pl < 4 else f"s_add_u32 m0, {sw2l}, {WR + (pl-4)*4096}")
            d(f"buffer_load_dwordx4 v{vw+i}, {W2}, {sROT} offen offset:{1024*i} lds", tag=f"w2_{tau}")
            o.append(d.items)
        return o
    def rot2(pp, first):
        if P["rot2"]:
            pp(f"s_mul_i32 {sROT}, {sMTL}, {[0, 3, 0, 1][P['rot2']]}"); pp(f"s_and_b32 {t0}, s2, 7"); pp(f"s_add_u32 {sROT}, {sROT}, {t0}")
            if first: pp(f"s_add_u32 {sROT}, {sROT}, {first}")
            for _ in range(2): pp(f"s_sub_u32 {t0}, {sROT}, 11"); pp(f"s_cmp_ge_u32 {sROT}, 11"); pp(f"s_cselect_b32 {sROT}, {t0}, {sROT}")
        else: pp(f"s_mov_b32 {sROT}, {first}")
    v(f"v_xor_b32 v{vX}, v{u7}, v{u4}"); v(f"v_lshlrev_b32 v{vX}, 4, v{vX}"); v(f"v_lshl_add_u32 v{vX}, v{u3}, 10, v{vX}")
    v(f"v_xor_b32 v{vX+1}, 64, v{vX}"); v(f"v_add_u32 v{vX+1}, 7168, v{vX+1}"); v(f"v_add_u32 v{vX+2}, 14336, v{vX}"); v(f"v_add_u32 v{vX+3}, 14336, v{vX+1}")
    v(f"s_lshl_b32 {t2}, {sMT1}, 17"); v(f"s_lshl_b32 {t0}, {sW}, 15"); v(f"s_add_u32 {t2}, {t2}, {t0}")
    v.ext(srd_off(4, 64, t2, 32768))
    v.ext(flat(D(0)[:4]))
    for i in range(3):
        v(f"v_add_u32 v{uA}, {64*i}, v{uL}"); v(f"v_mul_u32_u24 v{uB}, 171, v{uA}"); v(f"v_lshrrev_b32 v{uB}, 11, v{uB}")
        v(f"v_mul_u32_u24 v{uC}, 12, v{uB}"); v(f"v_sub_u32 v{uC}, v{uA}, v{uC}")
        v(f"v_mul_u32_u24 v{uB}, 2752, v{uB}"); v(f"v_cmp_gt_u32 vcc, {sLIM}, v{uC}"); v(f"v_lshl_add_u32 v{uB}, v{uC}, 4, v{uB}")
        v(f"v_subrev_u32 v{uB}, {1024*i}, v{uB}"); v(f"v_cndmask_b32 v{vW+i}, v{uOOB}, v{uB}, vcc")
    v(f"s_mul_i32 {sWC}, {sXC}, 1376")
    v(f"s_mul_i32 {t2}, {sW}, {16*2752}"); v(f"s_add_u32 {t3}, {t3}, {t2}")
    v(f"s_mul_i32 {sWL}, {sW}, 3072"); v(f"s_add_u32 {sWL}, {sWL}, {WR}")
    v.ext(srd_off(20, 78, t3, 512*2752, sub=True))
    v.ext(flat(D(0)[4:]))
    early(v, 1)
    m = v
    for i in range(4): m(f"v_mov_b32 v{ZR+i}, 0")
    m(f"v_add_u32 v{uA}, {GWZ}, v{vL16}"); m(f"ds_write_b128 v{uA}, {q4(ZR)}", tag="gz")
    m(f"v_mov_b32 v{vSY}, {SY}"); m(f"ds_write_b128 v{vSY}, {q4(ZR)}", tag="gz"); m(f"ds_write_b128 v{vSY}, {q4(ZR)} offset:16", tag="gz"); m(f"v_mov_b32 v{vONE}, 1")
    m(f"s_lshl_b32 {t0}, {sNT}, 7"); m(f"s_lshl_b32 {t1}, {sMT2}, 2"); m(f"s_add_u32 {t0}, {t0}, {t1}")
    m(f"s_load_dword {sD0}, s[74:75], {t0}", tag="ssmD")
    m(f"s_lshl_b32 {t0}, {sNT}, 5"); m(f"s_add_u32 {t0}, {t0}, {sMT2}"); m(f"s_lshl_b32 {t0}, {t0}, 13")
    m(f"s_lshl_b32 {t1}, {sW}, 11"); m(f"s_add_u32 {sDOFF}, {t0}, {t1}"); m(f"s_lshl_b32 {t0}, {sNT}, 11"); m(f"s_lshr_b32 {t1}, {sMT2}, 3"); m(f"s_lshl_b32 {t1}, {t1}, 9"); m(f"s_add_u32 {sKT}, {t0}, {t1}"); m(f"s_add_u32 {sKT}, {sKT}, {F1}")
    m(f"s_lshl_b32 {t1}, {sW}, 9"); m(f"s_add_u32 {t0}, {t0}, {t1}"); m(f"s_lshl_b32 {t1}, {sMT2}, 4"); m(f"s_add_u32 {t0}, {t0}, {t1}"); m(f"s_add_u32 {sYS}, {t0}, {F3}")
    m(f"s_lshl_b32 {t1}, {sW1_}, 11"); m(f"s_mul_i32 {sRAW}, {sWh}, {CHP}"); m(f"s_add_u32 {sRAW}, {sRAW}, {t1}"); m(f"s_add_u32 {sRAW}, {sRAW}, {HC+32}")
    m(f"v_add_u32 v{vTW}, {sRAW}, v{vL16}")
    m(f"v_and_b32 v{uA}, 1, v{u3}")
    m(f"v_mul_u32_u24 v{vZ1}, {CHP}, v{u7}"); m(f"v_lshl_add_u32 v{vZ1}, v{uA}, 4, v{vZ1}"); m(f"v_add_u32 v{vZ1}, {HC}, v{vZ1}"); m(f"ds_write_b128 v{vZ1}, {q4(ZR)}", tag="gz")
    m(f"v_lshrrev_b32 v{uHI}, 5, v{uL}"); m(f"v_and_b32 v{uB}, 31, v{uL}")
    m(f"v_mul_u32_u24 v{vZ2}, 4608, v{uHI}"); m(f"v_lshl_add_u32 v{vZ2}, v{uB}, 4, v{vZ2}"); m(f"v_add_u32 v{vZ2}, {U}, v{vZ2}"); m(f"ds_write_b128 v{vZ2}, {q4(ZR)}", tag="gz")
    m(f"s_mul_i32 {t0}, {sWh}, 4608"); m(f"s_add_u32 {t1}, {t0}, {t1}"); m(f"s_add_u32 {t1}, {t1}, {U+512}")
    m(f"v_add_u32 v{vUW}, {t1}, v{vL16}"); m(f"v_lshlrev_b32 v{vL4}, 4, v{uB}")
    m(f"s_lshl_b32 {t1}, {sW1_}, 8"); m(f"s_sub_u32 {t0}, {t0}, {t1}"); m(f"s_add_u32 {t0}, {t0}, {U + 512 - 32 - 192}")
    m(f"v_and_b32 v{uA}, 15, v{uL}"); m(f"v_lshlrev_b32 v{uB}, 5, v{uA}"); m(f"v_lshl_add_u32 v{uB}, v{u4}, 4, v{uB}"); m(f"v_add_u32 v{vCB}, {t0}, v{uB}")
    m(f"v_and_b32 v{uB}, 1, v{u4}"); m(f"v_lshlrev_b32 v{vW2}, 2, v{uB}"); m(f"v_and_b32 v{uC}, 2, v{u4}"); m(f"v_lshl_or_b32 v{uB}, v{uC}, 2, v{uB}")
    m(f"v_xor_b32 v{uA}, v{uA}, v{uB}"); m(f"v_lshl_add_u32 v{uA}, v{u4}, 4, v{uA}"); m(f"v_lshlrev_b32 v{uA}, 4, v{uA}")
    m(f"s_lshl_b32 {t0}, {sW}, 13"); m(f"s_add_u32 {t0}, {t0}, {EX}"); m(f"v_add_u32 v{vEW}, {t0}, v{uA}")
    m(f"v_xor_b32 v{vW2}, v{vW2}, v{u7}"); m(f"v_lshlrev_b32 v{vW2}, 4, v{vW2}"); m(f"v_lshl_add_u32 v{vW2}, v{u3}, 10, v{vW2}")
    for i in range(1, 4): m(f"v_add_u32 v{vW2+i}, {7168*i}, v{vW2}")
    m(f"v_lshrrev_b32 v{uA}, 2, v{uL}"); m(f"v_and_b32 v{uB}, 1, v{uL}"); m(f"v_and_b32 v{uC}, 2, v{uL}"); m(f"v_lshl_or_b32 v{uB}, v{uC}, 2, v{uB}")
    m(f"v_xor_b32 v{uA}, v{uA}, v{uB}"); m(f"v_and_b32 v{uC}, 3, v{uL}"); m(f"v_lshl_add_u32 v{uA}, v{uC}, 4, v{uA}"); m(f"v_lshlrev_b32 v{uA}, 4, v{uA}")
    m(f"s_lshl_b32 {t0}, {sW}, 11"); m(f"s_add_u32 {t0}, {t0}, {EX}"); m(f"v_add_u32 v{vER}, {t0}, v{uA}")
    m(f"s_lshl_b32 {sW2L}, {sW}, 13"); m(f"s_lshl_b32 {t0}, {sW}, 10"); m(f"s_add_u32 {t0}, {t0}, {U+512}"); m(f"v_lshl_add_u32 v{vEK}, v{uL}, 3, {t0}")
    m(f"v_bfe_u32 v{uA}, v{uL}, 2, 2"); m(f"v_mul_u32_u24 v{uB}, {CP}, v{uA}"); m(f"v_lshl_add_u32 v{uB}, v{u4}, 4, v{uB}")
    m(f"v_lshlrev_b32 v{uC}, 3, v{uC}"); m(f"v_sub_u32 v{uB}, v{uC}, v{uB}")
    m(f"s_mul_i32 {t0}, {sWh}, {CHP}"); m(f"s_add_u32 {t0}, {t0}, {t1}"); m(f"s_add_u32 {t0}, {t0}, {HC + 3*CP + 56}"); m(f"v_add_u32 v{vCA}, {t0}, v{uB}")
    rot2(m, 0); m(f"s_lshl_b32 {sROT}, {sROT}, 15")
    m(f"s_mul_i32 {t0}, {sW}, {11*32768}"); m(f"s_lshl_b32 {t1}, {sNT}, 7"); m(f"s_add_u32 {t1}, {t0}, {t1}")
    m.ext(srd_off(24, 82, t1, 1376*1024, sub=True))
    vPW = 5
    srd(m, 8, 82, 1376*1024)
    m(f"s_lshl_b32 {t0}, s2, 2"); m(f"s_add_u32 {t0}, {t0}, {sW}"); m(f"s_mul_i32 {t0}, {t0}, {11*128}")
    m(f"v_min_u32 v{vPW}, 10, v{uL}"); m(f"v_lshl_add_u32 v{vPW}, v{vPW}, 7, {t0}")
    if P["c3"]:
        m(f"s_lshr_b32 {t0}, s2, 3"); m(f"s_lshl_b32 {t0}, {t0}, 2"); m(f"s_add_u32 {t0}, {t0}, {sW}"); m(f"s_mul_i32 {t0}, {t0}, {11*1024}"); m(f"s_add_u32 {t0}, {t0}, 384")
        m(f"v_and_b32 v{uA}, 31, v{uL}"); m(f"v_min_u32 v{uA}, 10, v{uA}"); m(f"v_lshl_add_u32 v{uA}, v{uA}, 10, {t0}")
        m(f"v_cmp_gt_u32 vcc, 32, v{uL}"); m(f"v_cndmask_b32 v{vPW}, v{uA}, v{vPW}, vcc")
    v.w0(vm=False, lg=True)
    m(f"s_and_b32 {sD1}, {sD0}, 0xffff0000"); m(f"s_lshl_b32 {sD0}, {sD0}, 16")
    v.wvm("kv")
    early(v, 2)
    v("s_barrier")
    early(v, 3)
    v(f"ds_read_b32 v{vT}, v{vSY} offset:{EPT-SY}", tag="ep")
    R0 = 64; C = 80
    tb = Prog()
    tg_ = Prog(); tg_.wlg("ep")
    tg_(f"v_readfirstlane_b32 {sTC}, v{vT}"); tg_(f"s_add_u32 {sTC}, {sTC}, {TAGK}"); tg_(f"s_and_b32 {sTC}, {sTC}, 0xfffffff0")
    for r in range(2):
        tb(f"ds_read_b64 {pr(R0+8*r)}, v{vTW} offset:{3*CP + 1024*r - 8}", tag="rw"); tb(f"ds_read_b128 {q4(R0+8*r+2)}, v{vTW} offset:{3*CP + 1024*r}", tag="rw")
    tb.wlg("rw")
    for r in range(2):
        R = R0 + 8*r; c = C + 12*r
        for i in range(4):
            tb(f"v_alignbit_b32 v{c+i}, v{R+2+i}, v{R+1+i}, 16"); tb(f"v_mov_b32 v{c+4+i}, v{R+1+i}"); tb(f"v_alignbit_b32 v{c+8+i}, v{R+1+i}, v{R+i}, 16")
        for cc in range(3): tb(f"ds_write_b128 v{vTW}, {q4(c+4*cc)} offset:{(2-cc)*CP + r*1024}", tag="z")
    KT = 104
    kl = [f"buffer_load_dwordx4 {q4(KT+4*i)}, v{vL16}, {WS}, {sDOFF} offen offset:{1024*i} sc1" for i in range(2)]
    f1ld = f"buffer_load_dword v{vT+1}, v{vL4}, {WS}, {sKT} offen sc1"
    CACC = 32; CAf = [("a", 0), ("a", 32)]; CBf = [("a", 64), ("v", 64)]
    def conv_reads(ii):
        o = []; b = ii & 1
        for a in range(8):
            o.append(I(f"ds_read_b128 {q4(CBf[b][1]+4*a, CBf[b][0])}, v{vCB} offset:{512*a + 64*(3-ii)}", f"cv{ii}_{a}"))
            for j in range(2):
                o.append(I(f"ds_read_b64_tr_b16 {pr(CAf[b][1]+4*a+2*j, 'a')}, v{vCA} offset:{512*a + 64*ii + (8 if j == 0 else 0)}", f"cv{ii}_{a}"))
        return o
    arr1 = Prog(); arr1.w0(vm=False, lg=True)
    arr1("s_mov_b64 exec, 1"); arr1(f"ds_add_u32 v{vSY}, v{vONE} offset:4"); arr1("s_mov_b64 exec, -1")
    cslots = []
    seen = set()
    for ii in range(4):
        b = ii & 1
        rd = conv_reads(ii + 1) if ii < 3 else []
        pairs = sorted([(a, bb) for a in range(8) for bb in range(8 - a)], key=lambda x: (max(x), x))
        for k, (a, bb) in enumerate(pairs):
            t = a + bb
            cc = q4(CACC+4*t) if t in seen else "0"
            seen.add(t)
            sl = conv_reads(0) if (ii == 0 and k == 0) else []
            sl.append(("wlg", f"cv{ii}_{max(a, bb)}" if ii == 0 else f"cv{ii}_7"))
            sl.append(I(f"v_mfma_f32_16x16x32_bf16 {q4(CACC+4*t)}, {q4(CAf[b][1]+4*a, 'a')}, {q4(CBf[b][1]+4*bb, CBf[b][0])}, {cc}"))
            kk = k - (8 if ii == 0 else 0)
            if 0 <= kk < len(rd): sl.append(rd[kk])
            if ii == 3 and k == 0: sl += arr1.items
            cslots.append(sl)
    kw_ = Prog()
    kw_.wvm("kvt")
    for i in range(2): kw_(f"ds_write_b128 v{vUW}, {q4(KT+4*i)} offset:{1024*i}", tag="z")
    kw_.w0(vm=False, lg=True)
    seq = flat([D(c) for c in range(1, 8)])
    seq += flat([Wt(t, PL[t], vW2, sXL, sW2L) for t in range(6)])
    lag = P["lag"]; assert lag <= 11
    bar = {min(7*c + lag, [99]*6 + [53, 57])[0:0] or min(7*c + lag, ([99]*6 + [53, 57])[c]): c for c in range(8)} if False else {min(7*c + lag, ([99]*6 + [53, 57])[c]): c for c in range(8)}
    b8 = P["b8"]; assert 57 < b8 <= 69
    kvt = P["kvt"]
    ncv = P["ncv"] if kvt < 7 else 0
    cstart = 7*(kvt + 1) + lag
    tbg = groups_of(tb, 6); ti = 0; ci = 0
    for i, gq in enumerate(seq):
        if i in bar:
            c = bar[i]
            if 1 <= c <= 4: v.ext(early2(2*c - 2))
            v.wvm(f"c{c}")
            if 1 <= c <= 4: v.ext(early2(2*c - 1))
            if c == kvt + 1: v.ext(kw_)
            v("s_barrier")
            if c in (0, 3, 7): st(v)
        if i == P["f1i"]: v(f1ld, tag="f1")
        if i == 49:
            if P["warmf"]:
                v(f"v_mov_b32 v{vT}, {sTC}"); v(f"v_add_u32 v{vT}, 8, v{vT}"); v("s_mov_b64 exec, 1")
                v(f"buffer_store_dword v{vT}, v{vZ}, {WS}, {sYS} offen sc1", tag="wf"); v("s_mov_b64 exec, -1")
        if i == P["kvi"]:
            retry(v, "f1", "f1", [f"v_cmp_ne_u32 vcc, {sTC}, v{vT+1}"], [f1ld], sleep=P["sl_kv"]); cnt(v, 0)
            for x in kl: v(x, tag="kvt")
        if i == P["w2pw"]:
            v(f"buffer_load_dword v{vPW}, v{vPW}, s[8:11], 0 offen", tag="pw")
        if i == b8:
            v("s_barrier")
            if P["vp8"]: v(f"s_setprio {P['vp8']}")
        if i > 57 and P["wq"]: v.items.append(("wmax", P["wq"]))
        v.ext(gq)
        if i == 3: v.ext(tg_)
        if i >= P["tbi"] and ti < len(tbg): v.ext(tbg[ti]); ti += 1
        if ncv and cstart <= i < b8:
            assert ti == len(tbg)
            upto = (ncv * (i - cstart + 1)) // (b8 - cstart)
            while ci < upto: v.ext(cslots[ci]); ci += 1
    while ti < len(tbg): v.ext(tbg[ti]); ti += 1
    def varrive(i):
        v.w0(vm=False, lg=True)
        v("s_mov_b64 exec, 1"); v(f"ds_add_u32 v{vSY}, v{vONE} offset:{4*i}"); v("s_mov_b64 exec, -1")
    def vsync(i, arrive=True, n=4):
        if arrive: varrive(i)
        v(f"s_mov_b32 {sCNT}, 0")
        v(f"L_vs{i}:")
        v(f"ds_read_b32 v{vT}, v{vSY} offset:{4*i}"); v(f"s_add_u32 {sCNT}, {sCNT}, 1")
        v.w0(vm=False, lg=True)
        v(f"v_cmp_ne_u32 vcc, {n}, v{vT}"); v(f"s_cbranch_vccz L_vs{i}_ok")
        if n == 8: v("s_sleep 1")
        v(f"s_cmp_lt_u32 {sCNT}, 0x40000"); v(f"s_cbranch_scc1 L_vs{i}")
        v(f"L_vs{i}_ok:")
    v(f"s_lshl_b32 {t0}, {sW}, 2"); v(f"v_add_u32 v{vT+1}, {t0}, v{vSY}")
    v.w0(vm=True, lg=False)
    v(f"ds_write_b32 v{vT+1}, v{vONE} offset:16", tag="sig")
    if kvt >= 7: v.ext(kw_)
    varrive(0)
    st(v)
    vsync(0, arrive=False, n=8)
    st(v)
    v(f"s_setprio {P['vprio']}")
    while ci < 144: v.ext(cslots[ci]); ci += 1
    vsync(1, arrive=False)
    st(v)
    for t in range(8): v(f"ds_write_b128 v{vEW}, {q4(CACC+4*t)} offset:{1024*t}", tag="ex")
    E = 64; KVr = 96; KVf = 104; YO = 120
    vsync(2)
    for tt in range(2):
        for wv in range(4): v(f"ds_read_b128 {q4(E+(tt*4+wv)*4)}, v{vER} offset:{wv*8192 + tt*1024}", tag=f"exr{tt}")
        for ch in range(2): v(f"ds_read_b64 {pr(KVr+(tt*2+ch)*2)}, v{vEK} offset:{ch*4608 + tt*512}", tag=f"exr{tt}")
    for tt in range(2):
        v.wlg(f"exr{tt}")
        for ch in range(2):
            ee = E + (tt*4+2*ch)*4; r = KVr + (tt*2+ch)*2; f = KVf + (tt*2+ch)*4
            unpack(v, f, f+1, r); unpack(v, f+2, f+3, r+1)
            for i in range(4): v(f"v_add_f32 v{ee+i}, v{ee+i}, v{ee+4+i}")
            for i in range(4): v(f"v_fma_f32 v{ee+i}, v{f+i}, {sD0 if ch == 0 else sD1}, v{ee+i}")
        for i in range(4): v(f"v_cvt_pk_bf16_f32 v{YO+4*tt+i}, v{E+tt*16+i}, v{E+tt*16+8+i}")
        v(f"buffer_store_dwordx4 {q4(YO+4*tt)}, v{vL16}, {WS}, {sDOFF} offen offset:{1024*tt} sc1", tag="yst")
    st(v)
    v(f"v_mov_b32 v{vT}, {sTC}")
    v.wvm("yst")
    v("s_mov_b64 exec, 1"); v(f"buffer_store_dword v{vT}, v{vZ}, {WS}, {sYS} offen sc1"); v("s_mov_b64 exec, -1")
    v(f"s_or_b32 {t0}, s2, {sW}"); v(f"s_cmp_lg_u32 {t0}, 0"); v("s_cbranch_scc1 L_noep")
    cl = [f"buffer_load_dword v{64+i}, v{vL16}, {WS}, {t1} offen offset:{1024*i} sc1" for i in range(4)]
    v(f"s_mov_b32 {t1}, {ARR}")
    for x in cl: v(x, tag="cn")
    ck = tagcheck([64, 65, 66, 67], vT); ck[-1] = f"v_cmp_lt_u32 vcc, 15, v{vT}"
    retry(v, "cn", "cn", ck, cl, sleep=8)
    v(f"v_mov_b32 v{vT}, {sTC}"); v(f"s_mov_b32 {t0}, {EPO}"); v("s_mov_b64 exec, 1")
    v(f"buffer_store_dword v{vT}, v{vZ}, {WS}, {t0} offen sc1"); v("s_mov_b64 exec, -1")
    v("L_noep:")
    dump(v, st, vL16, 0)
    v("L_end:"); v("s_endpgm")
    g = Prog(); st = St()
    W2 = "s[24:27]"
    K, V, SP, HS, Q, OUT = "s[8:11]", "s[12:15]", "s[36:39]", "s[36:39]", "s[4:7]", "s[32:35]"
    sKL, sKO, sHS, sF2W, sF2R, sGS, sO, sY, sKV, sXS, sXR_, sFAST = "s54", "s55", "s61", "s62", "s88", "s89", "s90", "s91", "s3", "s94", "s95", "s24"
    CK = "s[20:21]"
    vPOLL, vXA, vWA, vPA, vKS, vH2, vB2, vKV, vC0 = 5, 6, 10, 11, 12, 13, 14, 18, 22
    vGA = 142; vB2V = 143
    ACC = 24
    g("L_G:")
    if P["prio"]: g(f"s_setprio {P['prio']}")
    if P["pf"]:
        g("s_getpc_b64 s[60:61]"); g("L_pc:"); g(f"s_sub_u32 s60, s60, L_pc-L_codestart"); g("s_subb_u32 s61, s61, 0")
        g(f"s_and_b32 {t0}, s2, 0xf8"); g(f"v_or_b32 v{uA}, {t0}, v{u7}"); g(f"v_lshlrev_b32 v{uA}, 7, v{uA}")
        g(f"v_min_u32 v{uA}, L_codeend-L_codestart-4, v{uA}")
        g(f"global_load_dword v{vPOLL}, v{uA}, s[60:61]", tag="pf")
    early(g, 1)
    g(f"v_lshrrev_b32 v{uHI}, 5, v{uL}")
    srd(g, 4, 64, 2097152); srd(g, 32, 92, 2097152)
    sW2L_, sRH, sGW = "s94", "s95", "s22"
    g(f"s_lshl_b32 {t1}, {sMT1}, 1"); g(f"s_add_u32 {t0}, {sWh}, {t1}")
    g(f"s_mul_i32 {sHS}, {t0}, 44"); g(f"s_add_u32 {sHS}, {sHS}, {sFT0}"); g(f"s_lshl_b32 {sHS}, {sHS}, 12")
    g(f"s_lshl_b32 {t1}, {sW1_}, 11"); g(f"s_add_u32 {sHS}, {sHS}, {t1}"); g(f"s_add_u32 {sHS}, {sHS}, {WS_H}")
    g(f"s_lshl_b32 {t0}, {t0}, 9"); g(f"s_lshl_b32 {t1}, {sC1}, 5"); g(f"s_add_u32 {t0}, {t0}, {t1}"); g(f"s_lshl_b32 {t1}, {sW1_}, 4"); g(f"s_add_u32 {t0}, {t0}, {t1}")
    g(f"s_add_u32 {sF2W}, {t0}, {F2}"); g(f"s_lshl_b32 {sF2R}, {sMT2}, 9"); g(f"s_add_u32 {sF2R}, {sF2R}, {F2}")
    g(f"s_mul_i32 {t0}, {sMT2}, 44"); g(f"s_mul_i32 {t1}, {sW}, 11"); g(f"s_add_u32 {t0}, {t0}, {t1}"); g(f"s_lshl_b32 {t0}, {t0}, 12"); g(f"s_add_u32 {t0}, {t0}, {WS_H}")
    g.ext(srd_off(36, 28, t0, 45056))
    g(f"s_mul_i32 {t0}, {sW}, {11*32768}"); g(f"s_lshl_b32 {t1}, {sNT}, 7"); g(f"s_add_u32 {t1}, {t0}, {t1}")
    g.ext(srd_off(24, 82, t1, 1376*1024, sub=True))
    rot2(g, 0); g(f"s_lshl_b32 {sRH}, {sROT}, 12"); rot2(g, 5); g(f"s_lshl_b32 {sROT}, {sROT}, 15")
    g(f"s_lshl_b32 {sW2L_}, {sW}, 13")
    g(f"s_lshl_b32 {t2}, {sMT2}, 1"); g(f"s_add_u32 {t2}, {t2}, {sWh}")
    g(f"s_lshl_b32 {sGS}, {t2}, 8"); g(f"s_add_u32 {sGS}, {sGS}, {WS_G}")
    g(f"s_lshl_b32 {sGW}, {sMT1}, 10"); g(f"s_lshl_b32 {t1}, {sW}, 8"); g(f"s_add_u32 {sGW}, {sGW}, {t1}"); g(f"s_add_u32 {sGW}, {sGW}, {WS_G}")
    g(f"s_lshl_b32 {t1}, {sWh}, 15"); g(f"s_add_u32 {sO}, {sT2}, {t1}"); g(f"s_lshl_b32 {t1}, {sW1_}, 6"); g(f"s_add_u32 {sO}, {sO}, {t1}")
    g(f"s_lshl_b32 {sY}, {sNT}, 18"); g(f"s_lshl_b32 {t1}, {sW1_}, 17"); g(f"s_add_u32 {sY}, {sY}, {t1}")
    g(f"s_lshl_b32 {t1}, {t2}, 7"); g(f"s_add_u32 {sY}, {sY}, {t1}")
    g(f"s_lshl_b32 {t0}, {sNT}, 11"); g(f"s_lshl_b32 {t1}, {sW}, 9"); g(f"s_add_u32 {sKL}, {t0}, {t1}"); g(f"s_lshl_b32 {t1}, {sMT2}, 4"); g(f"s_add_u32 {sKL}, {sKL}, {t1}"); g(f"s_add_u32 {sKL}, {sKL}, {F1}")
    g(f"s_lshr_b32 {t1}, {t2}, 4"); g(f"s_lshl_b32 {t1}, {t1}, 9"); g(f"s_add_u32 {t0}, {t0}, {t1}"); g(f"s_lshl_b32 {t1}, {sW1_}, 8"); g(f"s_add_u32 {t0}, {t0}, {t1}"); g(f"s_add_u32 {sKO}, {t0}, {F3}")
    g(f"s_lshl_b32 {sKV}, {sNT}, 18"); g(f"s_lshl_b32 {t1}, {sW}, 16"); g(f"s_add_u32 {sKV}, {sKV}, {t1}"); g(f"s_lshl_b32 {t1}, {sMT2}, 7"); g(f"s_add_u32 {sKV}, {sKV}, {t1}")
    g(f"v_lshlrev_b32 v{vKS}, 13, v{u3}"); g(f"v_lshl_add_u32 v{vKS}, v{u7}, 4, v{vKS}")
    g(f"v_bfe_u32 v{uA}, v{uL}, 2, 2"); g(f"v_and_b32 v{uC}, 3, v{uL}"); g(f"v_lshlrev_b32 v{uC}, 3, v{uC}")
    g(f"v_and_b32 v{uB}, 1, v{u4}"); g(f"v_lshl_add_u32 v{uC}, v{uB}, 5, v{uC}")
    g(f"v_lshl_add_u32 v{vWA}, v{uHI}, 3, v{uA}"); g(f"v_mul_u32_u24 v{vWA}, 192, v{vWA}"); g(f"v_add_u32 v{vWA}, v{vWA}, v{uC}"); g(f"v_add_u32 v{vWA}, {WR}, v{vWA}")
    g(f"v_lshl_add_u32 v{vB2}, v{uHI}, 2, v{uA}"); g(f"v_lshl_add_u32 v{vB2}, v{vB2}, 7, v{uC}")
    g(f"v_and_b32 v{uA}, 2, v{uA}"); g(f"v_lshlrev_b32 v{uA}, 5, v{uA}"); g(f"v_xor_b32 v{vB2}, v{vB2}, v{uA}")
    g(f"s_lshl_b32 {t0}, {sW1_}, 6"); g(f"v_xor_b32 v{vB2}, {t0}, v{vB2}")
    g(f"s_add_u32 {t0}, {sW2L_}, {WR}"); g(f"v_add_u32 v{vB2+2}, {t0}, v{vB2}"); g(f"v_add_u32 v{vB2}, {sXL}, v{vB2}")
    g(f"v_xor_b32 v{vB2+1}, 64, v{vB2}"); g(f"v_xor_b32 v{vB2+3}, 64, v{vB2+2}")
    g(f"v_lshlrev_b32 v{uB}, 2, v{uB}"); g(f"v_xor_b32 v{uB}, v{uB}, v{u7}"); g(f"v_lshlrev_b32 v{uB}, 4, v{uB}"); g(f"v_lshl_add_u32 v{vB2V}, v{u3}, 10, v{uB}")
    g(f"v_and_b32 v{uA}, 31, v{uL}"); g(f"v_lshlrev_b32 v{vL4}, 2, v{uA}"); g(f"v_bfe_u32 v{uB}, v{uA}, 1, 3"); g(f"v_xor_b32 v{uB}, v{uB}, v{uHI}")
    g(f"v_lshlrev_b32 v{uB}, 4, v{uB}"); g(f"v_lshl_add_u32 v{uB}, v{uA}, 7, v{uB}"); g(f"v_add_u32 v{vXA}, {sXL}, v{uB}")
    for jj in range(1, 4): g(f"v_xor_b32 v{vXA+jj}, {32*jj}, v{vXA}")
    g(f"v_xor_b32 v{uB}, v{u4}, v{uL}"); g(f"v_and_b32 v{uB}, 1, v{uB}"); g(f"v_lshlrev_b32 v{uB}, 10, v{uB}")
    g(f"v_lshl_add_u32 v{uB}, v{uHI}, 4, v{uB}"); g(f"v_add_u32 v{vGA}, {GWT}, v{uB}")
    g(f"s_lshl_b32 {t0}, {sW}, 5"); g(f"s_add_u32 {t0}, {t0}, {KST}")
    g(f"v_mul_u32_u24 v{vPA}, 1040, v{u7}"); g(f"v_lshl_add_u32 v{vPA}, v{u3}, 2, v{vPA}"); g(f"v_add_u32 v{vPA}, {t0}, v{vPA}")
    C0 = -2.0 * 0.7978845608028654 * 1.4426950408889634
    C1 = C0 * 0.044715
    g(f"v_mov_b32 v{vC0}, {fb(C0)}"); g(f"v_mov_b32 v{vC0+1}, {fb(C0)}"); g(f"s_mov_b32 s20, {fb(C1)}"); g(f"s_mov_b32 s21, {fb(C1)}")
    g(f"s_cmp_gt_u32 {sLIM}, 8"); g(f"s_cselect_b64 vcc, -1, 0"); g(f"v_cndmask_b32 v{vH2}, v{uOOB}, v{vL16}, vcc")
    for r in (1, 2, 3, 5, 6, 7, 9, 10, 11, 13, 14, 15, 17, 18, 19): g(f"v_accvgpr_write_b32 a{r}, 0")
    g(f"v_cmp_eq_u32 vcc, 0, v{uHI}"); g(f"v_mov_b32 v{uA}, 0x3f80"); g(f"v_cndmask_b32 v{uA}, 0, v{uA}, vcc"); g(f"v_accvgpr_write_b32 a16, v{uA}")
    SH = 136; vS1, vS2 = 132, 133
    g(f"s_lshl_b32 {t0}, {sW}, 7"); g(f"s_add_u32 {t0}, {t0}, {SHT}"); g(f"v_lshl_add_u32 v{vS1}, v{u3}, 4, {t0}")
    g(f"v_lshrrev_b32 v{vS2}, 1, v{vL4}"); g(f"v_add_u32 v{vS2}, {B1T}, v{vS2}")
    g(f"s_lshl_b32 {t0}, {sW1_}, 6"); g(f"v_add_u32 v{uA}, {t0}, v{vS2}")
    g(f"v_mov_b32 v{vTC}, {EPT}")
    KR, VR, CF, KF, KS = 72, 83, 96, 104, 126
    early(g, 2)
    g.items.append(("raw", f"s_waitcnt vmcnt({1 if P['pf'] else 0})"))
    early(g, 3)
    g("s_barrier")
    st(g)
    g(f"ds_read_b128 {q4(SH)}, v{vS1}", tag="sh"); g(f"ds_read_b32 v{vTC}, v{vTC}", tag="sh")
    for t in range(3): g(f"ds_read_u16 a{4*t}, v{vS2} offset:{64*t}", tag="sh")
    g(f"ds_read_u16 a12, v{uA} offset:{B2T-B1T}", tag="sh")
    for i in range(11):
        off = 640 + 128*i if i < 3 else 1040 + 128*(i-3)
        g(f"ds_read_b32 v{KR+i}, v{vPA} offset:{off}", tag="pk")
    for i in range(8): g(f"ds_read_b32 v{VR+i}, v{vPA} offset:{VST-KST+128*i}", tag="pv")
    g.wlg("sh")
    unpack(g, CF+0, CF+2, SH); unpack(g, CF+4, CF+6, SH+1); unpack(g, CF+1, CF+3, SH+2); unpack(g, CF+5, CF+7, SH+3)
    g(f"v_add_u32 v{vTC}, {TAGK}, v{vTC}"); g(f"v_and_b32 v{vTC}, 0xfffffff0, v{vTC}"); g(f"v_readfirstlane_b32 {sTC}, v{vTC}")
    g.wlg("pk")
    for i in range(11): unpack(g, KF+2*i, KF+2*i+1, KR+i)
    for i in range(8): g(f"v_pk_mul_f32 {pr(KS+2*i)}, {pr(KF+2*(i+3))}, {pr(CF)}")
    for j in range(1, 4):
        for i in range(8): g(f"v_pk_fma_f32 {pr(KS+2*i)}, {pr(KF+2*(i+3-j))}, {pr(CF+2*j)}, {pr(KS+2*i)}")
    g.wlg("pv")
    for i in range(8): unpack(g, KF+2*i, KF+2*i+1, VR+i)
    for i in range(8): g(f"v_pk_mul_f32 {pr(KS+2*i)}, {pr(KS+2*i)}, {pr(KF+2*i)}")
    for ch in range(2):
        for i in range(4): g(f"v_cvt_pk_bf16_f32 v{KF+4*ch+i}, v{KS+4*i+ch}, v{KS+4*i+2+ch}")
    g(f"s_add_u32 {t0}, {sKV}, 4096")
    early(g, 4)
    for ch in range(P.get("x_kvst", 2)):
        g(f"buffer_store_dwordx4 {q4(KF+4*ch)}, v{vKS}, {WS}, {t0 if ch else sKV} offen sc1", tag="kvs0")
    A2 = 72
    for t in range(3): g(f"v_mfma_f32_32x32x16_bf16 v[{ACC+16*t}:{ACC+16*t+15}], a[{4*t}:{4*t+3}], a[16:19], 0")
    g(f"v_mfma_f32_32x32x16_bf16 v[{A2}:{A2+15}], a[12:15], a[16:19], 0")
    if P["f1k"] < 0:
        g.wvm("kvs0"); g("s_mov_b64 exec, 1"); g(f"buffer_store_dword v{vTC}, v{vZ}, {WS}, {sKL} offen sc1", tag="fl1"); g("s_mov_b64 exec, -1")
    if P["warmf"]:
        g("s_mov_b64 exec, 1"); g(f"buffer_store_dword v{vTC}, v{vZ}, {WS}, {sF2W} offen sc1", tag="wf"); g("s_mov_b64 exec, -1")
    g(f"s_cmp_lg_u32 {sW}, 0"); g("s_cbranch_scc1 L_noarr")
    g(f"s_lshl_b32 {t0}, s2, 4")
    g(f"s_add_u32 {t0}, {t0}, {ARR}"); g("s_mov_b64 exec, 1")
    g.items.append(("raw", f"buffer_store_dword v{vTC}, v{vZ}, {WS}, {t0} offen sc1"))
    g("s_mov_b64 exec, -1")
    g("L_noarr:")
    early(g, 5)
    g("s_barrier")
    st(g)
    FR = 64; GF = 52; GA = ACC + 32
    mid_item = st.item()
    vOW, vOR, vOG, vY = 18, 19, 20, 21
    def gemm1(gate):
        o = Prog()
        nt_ = 2 if gate else 3
        def reads(ks):
            c, jj = divmod(ks, 4); slot = c % 4; b = FR + 16*(ks % 3)
            r_ = [I(f"ds_read_b128 {q4(b, 'a')}, v{vXA+jj} offset:{slot*4096}", f"r{ks}")]
            for t in range(nt_):
                for h in range(2):
                    r_.append(I(f"ds_read_b64_tr_b16 {pr(b+4+4*t+2*h, 'a')}, v{vWA} offset:{slot*12288 + (16*jj+4*h)*192 + t*64}", f"r{ks}"))
            if gate: r_.append(I(f"ds_read_b128 {q4(GF+4*(ks%3), 'a')}, v{vGA} offset:{32*ks}", f"r{ks}"))
            return r_
        o.ext(reads(0)); o.ext(reads(1))
        slots = []
        for ks in range(32):
            b = FR + 16*(ks % 3)
            nx = ks + 2
            pre = [("wlg", f"r{ks}")]
            if nx % 4 == 0:
                pre = [("wlg", f"r{ks+1}"), I("s_barrier")]
                if nx <= 16: pre = [pre[0]] + early2(nx//2 - 2) + [pre[1]] + early2(nx//2 - 1)
            rd = reads(nx) if nx < 32 else []
            mf = [I(f"v_mfma_f32_32x32x16_bf16 v[{ACC+16*t}:{ACC+16*t+15}], {q4(b+4+4*t, 'a')}, {q4(b, 'a')}, v[{ACC+16*t}:{ACC+16*t+15}]") for t in range(nt_)]
            if gate: mf.append(I(f"v_mfma_f32_16x16x32_bf16 {q4(GA)}, {q4(GF+4*(ks%3), 'a')}, {q4(b, 'a')}, {q4(GA) if ks else 0}"))
            slots += [pre + [mf[0]] + rd[0:3], [mf[1]] + rd[3:5], [mf[2]] + rd[5:7]]
        S = lambda ks, i=0: 3*ks + i
        xhi, xa = 110, 111
        eq = Prog()
        eq(f"v_lshrrev_b32 v{xhi}, 9, v{vL16}")
        eq(f"s_lshl_b32 {t0}, {sW}, 11"); eq(f"s_add_u32 {t2}, {t0}, {OT}")
        eq(f"v_lshl_add_u32 v{vOW}, v{vL4}, 4, {t2}"); eq(f"v_lshl_add_u32 v{vOW}, v{xhi}, 3, v{vOW}"); eq(f"v_add_u32 v{vOR}, {t2}, v{vL16}")
        eq(f"v_lshrrev_b32 v{vOG}, 6, v{vL16}"); eq(f"v_and_b32 v{xa}, 48, v{vL16}"); eq(f"v_lshl_add_u32 v{vOG}, v{vOG}, 10, v{xa}")
        eq(f"v_lshl_add_u32 v{vY}, v{xhi}, 14, v{vL4}")
        eq(f"v_lshlrev_b32 v{vPA}, 1, v{vL4}"); eq(f"v_and_b32 v{vKS}, 0x70, v{vL16}")
        eq(f"s_lshl_b32 {t0}, {sW}, 7"); eq(f"v_add_u32 v{vKS}, {t0}, v{vKS}"); eq(f"v_or_b32 v{xa}, 0x1e0, v{vKS}")
        eq(f"v_cmp_gt_u32 vcc, 512, v{vL16}"); eq(f"v_cndmask_b32 v{vKS}, v{xa}, v{vKS}, vcc")
        for i in range(8): eq(f"s_add_u32 s{12+i}, {sY}, {(4*(i//2)+(i%2))*8192}")
        eq(f"s_add_u32 {t3}, {sO}, {16384-1024}")
        f1 = Prog(); f1.wvm("kvs0"); f1("s_mov_b64 exec, 1"); f1(f"buffer_store_dword v{vTC}, v{vZ}, {WS}, {sKL} offen sc1", tag="fl1"); f1("s_mov_b64 exec, -1")
        streams = [(groups_of(eq), S(4), S(14))]
        if P["f1k"] >= 0: streams.append(([f1.items], S(P["f1k"], 1), S(P["f1k"], 1)))
        if stamps: streams.append(([mid_item], S(16), S(16)))
        o.ext(weave(slots, *streams))
        if gate:
            G_ = 140
            o(f"v_and_b32 v{G_}, 256, v{vL16}"); o(f"v_cmp_ne_u32 vcc, 0, v{G_}"); o(f"v_cndmask_b32 v{G_}, v{GA}, v{GA+1}, vcc")
            o(f"v_cvt_pk_bf16_f32 v{G_}, v{G_}, v{G_}"); o(f"v_and_b32 v{G_}, 0xffff0000, v{G_}")
            o(f"v_mul_f32 v{G_}, {fb(-1.4426950408889634)}, v{G_}"); o(f"v_exp_f32 v{G_}, v{G_}"); o(f"v_add_f32 v{G_}, 1.0, v{G_}"); o(f"v_rcp_f32 v{G_}, v{G_}")
            o(f"v_cvt_pk_bf16_f32 v{G_}, v{G_}, v{G_}"); o(f"v_and_b32 v{G_}, 0xffff0000, v{G_}")
            o(f"v_sub_f32 v{G_+1}, 1.0, v{G_}"); o(f"v_cvt_pk_bf16_f32 v{G_+1}, v{G_+1}, v{G_+1}"); o(f"v_and_b32 v{G_+1}, 0xffff0000, v{G_+1}")
            o("s_mov_b32 exec_hi, 0")
            o.items.append(("raw", f"buffer_store_dwordx2 {pr(G_)}, v{vPA}, {WS}, {sGW} offen sc1"))
            o("s_mov_b32 exec_hi, -1")
            o.w0(vm=False, lg=True)
        return o.items
    g(f"s_cmp_eq_u32 {sC1}, 15"); g("s_cbranch_scc1 L_gate")
    g.items.append(("fork", "L_gate", gemm1(True), "L_join"))
    g.ext(gemm1(False))
    g.items.append(("join", "L_join"))
    st(g)
    T = 88; HP = 104
    vFL = vWA
    def flag(n):
        d = Prog()
        d.wvm(f"hst{n-1}")
        d(f"v_add_u32 v{vFL}, {n}, v{vTC}"); d("s_mov_b64 exec, 1"); d(f"buffer_store_dword v{vFL}, v{vZ}, {WS}, {sF2W} offen sc1", tag=f"flag{n}"); d("s_mov_b64 exec, -1")
        return d.items
    ge = Prog()
    for t in range(3):
        a = ACC + 16*t
        for i in range(8): ge(f"v_pk_mul_f32 {pr(T+2*i)}, {pr(a+2*i)}, {pr(a+2*i)}")
        for i in range(8): ge(f"v_pk_fma_f32 {pr(T+2*i)}, {pr(T+2*i)}, {CK}, {pr(vC0)}")
        for i in range(8): ge(f"v_pk_mul_f32 {pr(T+2*i)}, {pr(T+2*i)}, {pr(a+2*i)}")
        for i in range(16): ge(f"v_exp_f32 v{T+i}, v{T+i}")
        for i in range(8): ge(f"v_pk_add_f32 {pr(T+2*i)}, {pr(T+2*i)}, 1.0 op_sel_hi:[1,0]")
        for i in range(16): ge(f"v_rcp_f32 v{T+i}, v{T+i}")
        for i in range(8): ge(f"v_pk_mul_f32 {pr(T+2*i)}, {pr(T+2*i)}, {pr(a+2*i)}")
        for i in range(8): ge(f"v_cvt_pk_bf16_f32 v{HP+8*t+i}, v{T+2*i}, v{T+2*i+1}")
        if t: ge(f"s_add_u32 {sHS}, {sHS}, 4096")
        for ks in range(2):
            ge(f"buffer_store_dwordx4 {q4(HP+8*t+4*ks)}, v{vH2 if t == 2 else vL16}, {WS}, {sHS} offen offset:{1024*ks} sc1", tag=f"hst{t}")
    g.ext(ge)
    st(g)
    vW2g = 6; vH = [10, 13]; vSG = 128; vTG = 129
    g(f"v_mov_b32 v{vSG}, {SY}"); g(f"v_mov_b32 v{vTG}, 1"); g("s_mov_b64 exec, 1"); g(f"ds_add_u32 v{vSG}, v{vTG}", tag="gs"); g("s_mov_b64 exec, -1")
    g(f"s_mov_b32 m0, {t2}")
    g(f"buffer_load_dwordx4 v{vOG}, {Q}, {sO} offen lds", tag="qt"); g(f"buffer_load_dwordx4 v{vOG}, {Q}, {t3} offen offset:1024 lds", tag="qt")
    for i in range(4): g(f"v_add_u32 v{vW2g+i}, {7168*i}, v{vB2V}")
    g(f"s_lshl_b32 {t0}, {sW}, 2"); g(f"v_add_u32 v{vSG}, {t0}, v{vSG}")
    def w2_read(tau, pl, areg):
        o = [("wvm", f"w2_{tau}")]
        for tdd in range(2):
            for ks in range(2):
                for j in range(2):
                    o.append(I(f"ds_read_b64_tr_b16 {pr(areg+tdd*8+ks*4+2*j, 'a')}, v{vB2+tdd+(2 if pl >= 4 else 0)} offset:{(pl % 4)*4096 + (16*ks+8*j)*128}", f"w2r_{tau}"))
        return o
    sDONE = "s23"
    fl_raw = [f"v_add_u32 v{vFL}, 3, v{vTC}", "s_mov_b64 exec, 1", f"buffer_store_dword v{vFL}, v{vZ}, {WS}, {sF2W} offen sc1", "s_mov_b64 exec, -1"]
    if P["flagfirst"] == 1: g.ext(flag(3))
    g(f"s_mov_b32 {sCNT}, 0"); g(f"s_mov_b32 {sDONE}, 0")
    g("L_gw:")
    g(f"ds_read_b32 v{vTG}, v{vSG} offset:16"); g(f"s_add_u32 {sCNT}, {sCNT}, 1")
    g.w0(vm=False, lg=True)
    g(f"v_cmp_ne_u32 vcc, 1, v{vTG}"); g("s_cbranch_vccz L_gw_ok")
    if P["flagfirst"] == 2:
        g(f"s_cmp_lg_u32 {sDONE}, 0"); g("s_cbranch_scc1 L_gw2")
        g.items.append(("raw", "s_waitcnt vmcnt(0)"))
        for x in fl_raw: g.items.append(("raw", x))
        g(f"s_mov_b32 {sDONE}, 1")
        g("L_gw2:")
    g("s_sleep 1"); g(f"s_cmp_lt_u32 {sCNT}, 0x40000"); g("s_cbranch_scc1 L_gw")
    g("L_gw_ok:")
    if stamps: g(f"s_sub_u32 {sCNT}, {sCNT}, 1"); cnt(g, 0)
    for tau in range(5): g.ext(w2_read(tau, PL[tau], 16*tau))
    PL2 = {6+i: PL[i] for i in range(5)}; PL2[5] = PL[5]
    for tau in range(6, 11):
        g.wlg(f"w2r_{tau-6}"); g.ext(flat(Wt(tau, PL2[tau], vW2g, sXL, sW2L_)))
        if tau == P["flt"] and P["flagfirst"] == 0: g.ext(flag(3))
        if tau == P["flt"] and P["flagfirst"] == 2:
            g.wvm("hst2")
            g(f"s_cmp_lg_u32 {sDONE}, 0"); g("s_cbranch_scc1 L_gw3")
            for x in fl_raw: g.items.append(("raw", x))
            g("L_gw3:")
    st(g)
    f2ld = f"buffer_load_dword v{vPOLL}, v{vKS}, {WS}, {sF2R} offen sc1"
    if P["f2after"]: g.wvm(f"w2_{P['f2after']}")
    g(f2ld, tag="f2")
    vRW = 6
    g(f"v_add_u32 v{vRW}, {sXL}, v{vL16}")
    for idx in range(1, 4): g(f"v_xor_b32 v{vRW+idx}, {idx*16384}, v{vRW}")
    g(f"s_lshl_b32 {t0}, {sWh}, 11"); g(f"v_add_u32 v{vH[0]}, {t0}, v{vL16}"); g(f"v_xor_b32 v{vH[1]}, 2048, v{vH[0]}")
    g(f"s_add_u32 {t1}, {sTC}, 3")
    QR = 136; GR = vC0
    g.wvm("qt")
    for q in range(4): g(f"ds_read_b64 {pr(QR+2*q)}, v{vOW} offset:{16*q}", tag="qr")
    retry(g, "f2", "f2", [f"v_cmp_ne_u32 vcc, {t1}, v{vPOLL}"], [f2ld], sleep=P["sl_f2"]); cnt(g, 1)
    st(g)
    HREG = [("v", 88), ("v", 104), ("v", 120), ("a", 80), ("a", 96)]
    NH = 5
    def h_load(tau):
        o = []
        kind, base = HREG[tau % NH]
        for ks in range(2):
            for ts in range(2):
                d = Prog()
                if ts == 0 and ks == 0 and tau: rotstep(d, sRH, 4096)
                d(f"buffer_load_dwordx4 {q4(base+ts*8+ks*4, kind)}, v{vH[ts]}, {HS}, {sRH} offen offset:{ks*1024} sc1", tag=f"h{tau}_{ks}{ts}")
                o.append(d.items)
        return o
    g(f"buffer_load_dwordx2 {pr(GR)}, v{vPA}, {WS}, {sGS} offen sc1", tag="g")
    nh0 = P["nh0"]
    for tau in range(nh0): g.ext(flat(h_load(tau)))
    if P["prio2"] != P["prio"]: g(f"s_setprio {P['prio2']}")
    AB = [A2, 24, 40, 56]
    YR = 104; QF = 112
    yl = [f"buffer_load_dword v{YR+i}, v{vY}, {WS}, s{12+i} offen sc1" for i in range(8)]
    f3ld = f"buffer_load_dword v{vPOLL}, v{vKS}, {WS}, {sKO} offen sc1"
    slots = []
    for tau in range(11):
        kind, base = HREG[tau % NH]
        nl = h_load(tau + nh0) if tau + nh0 < 11 else [[], [], [], []]
        rr = []
        if 5 <= tau + 4 <= 10:
            it = w2_read(tau + 4, PL2[tau + 4], 16*((tau + 4) % 5))
            rr = [it[:-7]] + [[x] for x in it[-7:]]
        k = 0
        for ks in range(2):
            for ts in range(2):
                for tdd in range(2):
                    a = AB[tdd + 2*ts]
                    cc = "0" if (tau == 0 and ks == 0 and (tdd or ts)) else f"v[{a}:{a+15}]"
                    s_ = [("wvm", f"h{tau}_{ks}{ts}")] if tdd == 0 else []
                    if k == 0: s_.append(("wlg", f"w2r_{tau}"))
                    s_.append(I(f"v_mfma_f32_32x32x16_bf16 v[{a}:{a+15}], {q4(16*(tau % 5)+tdd*8+ks*4, 'a')}, {q4(base+ts*8+ks*4, kind)}, {cc}"))
                    if tdd == 1: s_ += nl[ks*2+ts]
                    if rr: s_ += rr[k]
                    slots.append(s_); k += 1
    eq = Prog()
    for q in range(4):
        unpack(eq, QF+4*q, QF+4*q+1, QR+2*q); unpack(eq, QF+4*q+2, QF+4*q+3, QR+2*q+1)
    for i in range(16): eq(f"v_mul_f32 v{QF+i}, v{GR}, v{QF+i}")
    ck3 = Prog()
    retry(ck3, "f3", "f3", [f"v_cmp_ne_u32 vcc, {sTC}, v{vPOLL}"], [f3ld], sleep=P["sl_y"]); cnt(ck3, 2)
    for x in yl: ck3(x, tag="y")
    ws_ = [(groups_of(eq, 2), 65, 86), ([[I(f"v_and_b32 v{vKS}, 0xf0, v{vL16}"), I(f3ld, "f3")]], P["f3pos"], P["f3pos"])]
    if P["ck3"] < 88: ws_.append(([ck3.items], P["ck3"], P["ck3"]))
    g.ext(weave(slots, *ws_))
    st(g)
    if P["ck3"] >= 88: g.ext(ck3)
    for idx in range(1, 4):
        for q in range(4): g(f"ds_write_b128 v{vRW}, {q4(AB[idx]+4*q)} offset:{(idx-1)*4096 + 1024*q}", tag="red")
    g.w0(vm=False, lg=True)
    g("s_barrier")
    for idx in range(1, 4):
        for q in range(4): g(f"ds_read_b128 {q4(AB[idx]+4*q)}, v{vRW+idx} offset:{(idx-1)*4096 + 1024*q}", tag=f"rr{idx}")
    ZF = 88
    g.wvm("y")
    for i in range(8): unpack(g, ZF+2*i, ZF+2*i+1, YR+i)
    for i in range(8): g(f"v_pk_mul_f32 {pr(QF+2*i)}, {pr(QF+2*i)}, {pr(ZF+2*i)}")
    for idx in range(1, 4):
        g.wlg(f"rr{idx}")
        for i in range(8): g(f"v_pk_add_f32 {pr(A2+2*i)}, {pr(A2+2*i)}, {pr(AB[idx]+2*i)}")
    for i in range(8): g(f"v_pk_fma_f32 {pr(QF+2*i)}, {pr(A2+2*i)}, {pr(GR)}, {pr(QF+2*i)} op_sel:[0,1,0]")
    for i in range(8): g(f"v_cvt_pk_bf16_f32 v{ZF+i}, v{QF+2*i}, v{QF+2*i+1}")
    for q in range(4): g(f"ds_write_b64 v{vOW}, {pr(ZF+2*q)} offset:{16*q}", tag="ow")
    for i in range(2): g(f"ds_read_b128 {q4(24+4*i)}, v{vOR} offset:{1024*i}", tag=f"or{i}")
    of = P["outf"].replace("plain", "")
    g.wlg("or0")
    g(f"buffer_store_dwordx4 {q4(24)}, v{vOG}, {OUT}, {sO} offen {of}", tag="out")
    g.wlg("or1")
    g(f"buffer_store_dwordx4 {q4(28)}, v{vOG}, {OUT}, {t3} offen offset:1024 {of}", tag="out")
    dump(g, st, vL16, 1)
    g("s_endpgm")
    body = resolve(p.items + v.items)
    stG = dict(hist=[], vm=[], lg=[], smem=False)
    tailG = []
    bodyG = resolve(g.items, stG, tailG) + tailG
    hdr = [f"; @launch grid=(256,1,1) block=(512,1,1) lds={LDS_BYTES}",
           '.amdgcn_target "amdgcn-amd-amdhsa--gfx950"', ".text", f".globl {NAME}_kernel", ".p2align 8",
           f".type {NAME}_kernel,@function", f"{NAME}_kernel:", "L_codestart:"]
    ftr = ["L_codeend:", '.section .rodata,"a"', ".p2align 6", f".amdhsa_kernel {NAME}_kernel",
           "  .amdhsa_next_free_vgpr 256", "  .amdhsa_next_free_sgpr 102", "  .amdhsa_accum_offset 144",
           "  .amdhsa_group_segment_fixed_size 0", "  .amdhsa_kernarg_size 120", "  .amdhsa_user_sgpr_count 2",
           "  .amdhsa_user_sgpr_kernarg_segment_ptr 1", "  .amdhsa_system_sgpr_workgroup_id_x 1",
           "  .amdhsa_float_denorm_mode_32 3", ".end_amdhsa_kernel"]
    return "\n".join(hdr + body + bodyG + ftr) + "\n"

if __name__ == "__main__":
    kw = {}
    for a in sys.argv[2:]:
        if "=" in a:
            k, v = a.split("="); kw[k] = int(v) if v.lstrip("-").isdigit() else v
    open(sys.argv[1], "w").write(gen(stamps=("stamps" in sys.argv), **kw))
```

```python
import sys, struct
sys.path.insert(0, "dev")
from asmlib import *
NAME = "gated_mix__ssm_conv_h3__dense_activation_gelu__prompt"
NST = 10; NWAVES = 8

WS_KVT = 0; WS_Y = 0; WS_H = 8 << 20; WS_F = (13 << 20) + (768 << 10); WS_X = 16 << 20
EPO = WS_F; ARR = WS_F + 4096; F2 = WS_F + 16384; F1 = WS_F + 32768; F3 = WS_F + 49152; WS_G = WS_F + 65536
WS_SIZE = 16 << 20
TAGK = 0x9E3779B0
OOB = 0x80000000
XR = 0; WR = 65536; KST = 65536 + 49152 - 17680; VST = KST + 9360; U = 115200; HC = 124416; CP = 8256; CHP = 4128
SY = 157440; SHT = 157696; B1T = 158208; B2T = 158464; EPT = 158720; GWT = 161280; GWZ = 162304
EX = HC
PLACE = [x for s in range(3) for x in ([XR + w*16384 + s*4096 for w in range(4)] + [WR + s*12288 + i*4096 for i in range(3)])] + [XR + 3*4096]
ORD = [11*(j >> 2) + 3*(j & 3) + t for t in range(3) for j in range(8) if not (t == 2 and (j & 3) == 3)]
OT = WR + 3*12288
LDS_BYTES = 163840
WS = "s[28:31]"
sW, sMT1, sC1, sMT2, sNT, sFT0, sLIM, sTC, sXC, sWC = "s40", "s41", "s42", "s43", "s44", "s45", "s46", "s47", "s48", "s49"
sXL, sMTL, sW1_, sWh = "s50", "s51", "s52", "s53"
t0, t1, t2, t3 = "s56", "s57", "s58", "s59"
sCNT, sT2, sJH, sROT = "s60", "s63", "s96", "s97"
fb = lambda x: "0x%08x" % struct.unpack("<I", struct.pack("<f", x))[0]
pr = lambda r, k="v": f"{k}[{r}:{r+1}]"
q4 = lambda r, k="v": f"{k}[{r}:{r+3}]"
flat = lambda gs: [x for g in gs for x in g]

def srd(p, base, ptr, size):
    p(f"s_mov_b32 s{base}, s{ptr}"); p(f"s_and_b32 s{base+1}, s{ptr+1}, 0xffff")
    p(f"s_mov_b32 s{base+2}, {size}"); p(f"s_mov_b32 s{base+3}, 0x20000")
def srd_off(base, ptr, off_s, size, sub=False):
    p = Prog()
    p(f"s_add_u32 s{base}, s{ptr}, {off_s}"); p(f"s_addc_u32 s{base+1}, s{ptr+1}, 0"); p(f"s_and_b32 s{base+1}, s{base+1}, 0xffff")
    p(f"s_sub_u32 s{base+2}, {size}, {off_s}" if sub else f"s_mov_b32 s{base+2}, {size}"); p(f"s_mov_b32 s{base+3}, 0x20000")
    return p.items
def unpack(p, lo, hi, src):
    p(f"v_lshlrev_b32 v{lo}, 16, v{src}"); p(f"v_and_b32 v{hi}, 0xffff0000, v{src}")
MAXSPIN = 0x8000
def retry(p, lab, tag, check, reloads, mask=None, sleep=1):
    p.wvm(tag)
    p(f"s_mov_b32 {sCNT}, 0")
    p(f"L_{lab}:")
    for c in check: p(c)
    p(f"s_and_b64 vcc, vcc, {mask or '-1'}")
    p(f"s_cbranch_scc0 L_{lab}_ok")
    if sleep: p(f"s_sleep {sleep}")
    for r in reloads: p.items.append(("raw", r))
    p(f"s_add_u32 {sCNT}, {sCNT}, 1")
    p(f"s_cmp_lt_u32 {sCNT}, {MAXSPIN}")
    p.items.append(("raw", "s_waitcnt vmcnt(0)"))
    p(f"s_cbranch_scc1 L_{lab}")
    p(f"L_{lab}_ok:")
def tagcheck(regs, tmp):
    o = [f"v_xor_b32 v{tmp}, {sTC}, v{regs[0]}"]
    for r in regs[1:]: o.append(f"v_bitop3_b32 v{tmp}, v{r}, {sTC}, v{tmp} bitop3:0xbe")
    o.append(f"v_cmp_ne_u32 vcc, 0, v{tmp}")
    return o

DEF = dict(pf=1, prio=2, prio2=0, vp8=3, flt=7, lag=10, sl_kv=8, sl_f2=4, sl_y=4, kvt=7, ncv=0, b8=61, tbi=2, c3=1, wq=0, bs=1, f1i=49, outf="sc1", kvi=65, w2pw=0, f1k=-1, f3pos=78, ck3=88, xf="nt", rot1=1, rot2=2, warmf=1, flagfirst=1, f2after=0, nh0=4, vprio=1)

def gen(stamps=False, **kw):
    P = dict(DEF); P.update(kw)
    KVF = P.get("kvf", "nt").replace("plain", "")
    global MAXSPIN; MAXSPIN = P.get("maxspin", 0x8000)
    class St:
        def __init__(s): s.n = 0
        def __call__(s, pp):
            if stamps:
                pp(f"s_memtime s[{64+2*s.n}:{65+2*s.n}]", tag="stamp"); s.n += 1
        def item(s):
            i = s.n; s.n += 1
            return [I(f"s_memtime s[{64+2*i}:{65+2*i}]", "stamp")] if stamps else []
    def early2(i):
        d = Prog()
        if stamps and P.get("early") == 2:
            d("s_memtime s[98:99]"); d.w0(vm=False, lg=True); d(f"v_writelane_b32 v0, s98, {44+i}")
        return d.items
    def early(pp, i):
        if stamps and P.get("early") == 1:
            pp("s_memtime s[98:99]"); pp.w0(vm=False, lg=True); pp(f"v_writelane_b32 v0, s98, {44+i}")
    def cnt(pp, i):
        if stamps: pp(f"v_writelane_b32 v0, {sCNT}, {32+i}")
    def dump(pp, st, vL16, role):
        if not stamps: return
        pp.w0(vm=True, lg=True)
        while st.n < NST - 1: st(pp)
        pp("s_memrealtime s[98:99]"); pp.w0(vm=False, lg=True)
        for i in range(st.n): pp(f"v_writelane_b32 v0, s{64+2*i}, {i+1}")
        pp(f"v_writelane_b32 v0, s98, {st.n+1}")
        pp(f"s_lshl_b32 {t0}, s2, 3"); pp(f"s_add_u32 {t0}, {t0}, {sW}"); pp(f"s_add_u32 {t0}, {t0}, {4*role}")
        pp(f"s_lshl_b32 {t0}, {t0}, 8"); pp(f"s_add_u32 {t0}, {t0}, {14<<20}")
        pp(f"v_lshrrev_b32 v6, 2, v{vL16}")
        pp(f"buffer_store_dword v0, v6, {WS}, {t0} offen")
        if P.get("dbgout") is not None and role == 1:
            pp(f"s_cmp_lg_u32 s2, {P['dbgout']}"); pp("s_cbranch_scc1 L_nodbg"); pp(f"s_cmp_lg_u32 {sW}, 0"); pp("s_cbranch_scc1 L_nodbg")
            pp("s_load_dwordx2 s[98:99], s[0:1], 104"); pp("v_writelane_b32 v0, s100, 11"); pp.w0(vm=False, lg=True)
            pp("s_mov_b64 exec, 0xffff"); pp("global_store_dword v6, v0, s[98:99]")
            pp("L_nodbg:")
    def rot_setup(pp):
        pp(f"s_mul_i32 {sROT}, {sMTL}, 11"); pp(f"s_lshr_b32 {sROT}, {sROT}, 1"); pp(f"s_bfe_u32 {t0}, s2, 0x20001"); pp(f"s_add_u32 {sROT}, {sROT}, {t0}")
        if P["hrot"]:
            pp(f"s_mul_i32 {t0}, {sNT}, 11"); pp(f"s_lshr_b32 {t0}, {t0}, 2"); pp(f"s_add_u32 {sROT}, {sROT}, {t0}")
        pp(f"s_sub_u32 {t0}, {sROT}, 22"); pp(f"s_cmp_ge_u32 {sROT}, 22"); pp(f"s_cselect_b32 {sROT}, {t0}, {sROT}")
    p = Prog()
    uL, uHI, u3, u7, u4, uA, uB, uC, uOOB, uSP, uKV = 120, 121, 122, 123, 124, 125, 126, 127, 128, 129, 130
    vL16, vL4, vZ, vTC = 1, 2, 3, 4
    sSO, sSM, sEL, sEH = "s32", "s33", "s34", "s35"
    p("s_cmp_ge_u32 s2, 256"); p("s_cbranch_scc1 L_end")
    p(f"v_lshrrev_b32 v{uA}, 6, v0")
    p("s_load_dwordx16 s[64:79], s[0:1], 0")
    p(f"v_readfirstlane_b32 {sW}, v{uA}")
    p("s_load_dwordx8 s[80:87], s[0:1], 64"); p("s_load_dwordx2 s[92:93], s[0:1], 96"); p("s_load_dwordx2 s[28:29], s[0:1], 112")
    if stamps: p("s_memtime s[98:99]"); p("s_memrealtime s[100:101]")
    p("s_mov_b32 s34, 0x50401808"); p("s_mov_b32 s35, 0x58585870"); p(f"s_lshl_b32 {t0}, {sW}, 3"); p(f"s_lshr_b64 s[34:35], s[34:35], {t0}")
    p(f"s_and_b32 {t2}, s34, 0xff"); p(f"s_load_dwordx2 s[36:37], s[0:1], {t2}")
    p(f"v_and_b32 v{uL}, 63, v0"); p(f"v_lshrrev_b32 v{u3}, 3, v{uL}"); p(f"v_and_b32 v{u7}, 7, v{uL}")
    p(f"v_lshlrev_b32 v{uKV}, 10, v{u3}"); p(f"v_lshl_add_u32 v{uKV}, v{u7}, 4, v{uKV}")
    p(f"s_and_b32 {t0}, s2, 7"); p(f"s_lshr_b32 {sMTL}, s2, 6"); p(f"s_bfe_u32 {sNT}, s2, 0x30003")
    if P.get("x_ntx"): p(f"s_xor_b32 {sNT}, {sNT}, {P['x_ntx']}")
    p(f"s_lshl_b32 {sMT2}, {t0}, 2"); p(f"s_add_u32 {sMT2}, {sMT2}, {sMTL}")
    p(f"s_lshl_b32 {sT2}, {sMT2}, 16"); p(f"s_lshl_b32 {t1}, {sNT}, 7"); p(f"s_add_u32 {sT2}, {sT2}, {t1}")
    p(f"s_and_b32 {t3}, {sW}, 3"); p(f"s_lshl_b32 s12, {t3}, 13"); p(f"s_add_u32 s12, s12, {sT2}"); p(f"s_add_u32 s13, s12, 32768")
    p(f"s_mul_i32 s14, {t3}, 1040"); p(f"s_cmp_ge_u32 {sW}, 4"); p(f"s_cselect_b32 s15, {VST-KST-1040}, 0"); p("s_add_u32 s14, s14, s15"); p(f"s_add_u32 s14, s14, {KST+1040}")
    p(f"s_mov_b32 s10, {0 if P.get('x_nokv') else 2097152}"); p("s_mov_b32 s11, 0x20000")
    p(f"s_lshl_b32 s6, {sNT}, 5"); p(f"s_add_u32 s6, s6, {sMT2}"); p(f"s_lshl_b32 s6, s6, 3"); p(f"s_add_u32 s6, s6, {sW}"); p("s_lshl_b32 s6, s6, 10")
    p(f"s_lshl_b32 s7, {sW}, 10"); p(f"s_cmp_ge_u32 {sW}, 4"); p(f"s_cselect_b32 s15, 32, 0"); p("s_add_u32 s7, s7, s15"); p(f"s_add_u32 s7, s7, {HC + 3*CP + 32}")
    p(f"s_mov_b32 s18, {0 if P.get('x_noraw') else 2097152}"); p("s_mov_b32 s19, 0x20000")
    p(f"s_and_b32 {sMT1}, {t0}, 6"); p(f"s_lshl_b32 {sMT1}, {sMT1}, 1"); p(f"s_add_u32 {sMT1}, {sMT1}, {sMTL}")
    if P.get("rot1", 1) == 0:
        p(f"s_lshr_b32 {sXC}, {t0}, 1"); p(f"s_add_u32 {sXC}, {sXC}, {sNT}"); p(f"s_lshl_b32 {t3}, {sMTL}, 1"); p(f"s_add_u32 {sXC}, {sXC}, {t3}")
    elif P.get("rot1", 1) == 1:
        p(f"s_lshr_b32 {sXC}, {t0}, 1"); p(f"s_lshl_b32 {t3}, {sNT}, 1"); p(f"s_add_u32 {sXC}, {sXC}, {t3}"); p(f"s_lshl_b32 {t3}, {sMTL}, 2"); p(f"s_add_u32 {sXC}, {sXC}, {t3}")
        p(f"s_and_b32 {t3}, {t0}, 1"); p(f"s_add_u32 {sXC}, {sXC}, {t3}")
    else:
        p(f"s_mov_b32 {sXC}, {t0}")
    p(f"s_and_b32 {sXC}, {sXC}, 7"); p(f"s_lshl_b32 {sXC}, {sXC}, 7")
    p(f"s_and_b32 {sJH}, {t0}, 1"); p(f"s_lshl_b32 {t0}, {sJH}, 3"); p(f"s_add_u32 {sC1}, {t0}, {sNT}")
    p(f"s_and_b32 {t3}, {sC1}, 3")
    p(f"s_lshr_b32 {t0}, {sC1}, 2"); p(f"s_mul_i32 {sFT0}, {t0}, 11"); p(f"s_mul_i32 {t0}, {t3}, 3"); p(f"s_add_u32 {sFT0}, {sFT0}, {t0}")
    p(f"s_cmp_eq_u32 {t3}, 3"); p(f"s_cselect_b32 {sLIM}, {12 if P.get('x_lim') else 8}, 12"); p(f"s_cmp_eq_u32 {sC1}, 15"); p(f"s_cselect_b32 {sLIM}, 4, {sLIM}")
    p(f"v_lshlrev_b32 v{vL16}, 4, v{uL}")
    p("s_mov_b32 s38, 1024"); p(f"s_mov_b32 {sSO}, {sXC}"); p(f"s_mov_b32 {sSM}, {GWT}")
    p(f"s_cmp_eq_u32 {sW}, 5"); p(f"s_cselect_b32 {t0}, {sC1}, 0"); p(f"s_cselect_b32 {t2}, 1023, -1"); p(f"s_cmp_eq_u32 {t0}, 15"); p(f"s_cselect_b64 s[34:35], -1, 0")
    p(f"s_lshl_b32 {t0}, {sNT}, 9"); p(f"s_lshl_b32 {t3}, {sFT0}, 6")
    for (w, sz, so, dst, el) in ((1, 4096, t0, SHT, -1), (2, 2752, t3, B1T, 0xfff), (3, 1024, t1, B2T, 0xff), (4, WS_SIZE, EPO, EPT, 1)):
        p(f"s_cmp_eq_u32 {sW}, {w}")
        if sz != 1024: p(f"s_cselect_b32 s38, {sz}, s38")
        p(f"s_cselect_b32 {sSO}, {so}, {sSO}"); p(f"s_cselect_b32 {sSM}, {dst}, {sSM}"); p(f"s_cselect_b32 {sEL}, {el}, {sEL}")
    p(f"v_add_u32 v{uSP}, {sSO}, v{vL16}"); p(f"v_and_b32 v{uSP}, {t2}, v{uSP}")
    p(f"s_cmp_lg_u32 {sW}, 0"); p("s_cbranch_scc1 L_nh")
    p("s_mov_b32 s38, 2097152"); p(f"s_mov_b32 {sSM}, {KST}"); p(f"s_mov_b32 {sEH}, 0xffffff00")
    p(f"s_sub_u32 {t0}, {sT2}, 8192"); p(f"v_add_u32 v{uSP}, {t0}, v{uKV}")
    p("L_nh:")
    p("s_mov_b32 s39, 0x20000"); p("s_mov_b32 m0, s14"); p(f"s_cmp_ge_u32 {sW}, 4")
    p.w0(vm=False, lg=True)
    p("s_cselect_b64 s[8:9], s[68:69], s[66:67]"); p("s_and_b32 s9, s9, 0xffff")
    p(f"buffer_load_dwordx4 v{uKV}, s[8:11], s12 offen {KVF} lds", tag="kv")
    p("s_add_u32 m0, s14, 4160"); p("s_and_b32 s37, s37, 0xffff")
    p(f"buffer_load_dwordx4 v{uKV}, s[8:11], s13 offen {KVF} lds", tag="kv")
    p(f"s_mov_b32 m0, {sSM}"); p("s_mov_b64 exec, s[34:35]"); p("s_cbranch_execz L_spn")
    p.items.append(("raw", f"buffer_load_dwordx4 v{uSP}, s[36:39], 0 offen sc1 lds"))
    p("L_spn:"); p("s_mov_b64 exec, -1")
    p("s_mov_b32 m0, s7"); p("s_mov_b32 s16, s72"); p("s_and_b32 s17, s73, 0xffff")
    p(f"buffer_load_dwordx4 v{vL16}, s[16:19], s6 offen {KVF} lds", tag="kv")
    if stamps: p("v_mov_b32 v0, 0"); p("v_writelane_b32 v0, s98, 0"); p("v_writelane_b32 v0, s100, 40")
    early(p, 0)
    if P["bs"]: p("s_barrier")
    p(f"v_lshrrev_b32 v{u4}, 4, v{uL}"); p(f"v_mov_b32 v{uOOB}, {OOB}"); p(f"v_mov_b32 v{vZ}, 0")
    p(f"s_mov_b32 s30, {WS_SIZE}"); p("s_mov_b32 s31, 0x20000"); p("s_and_b32 s29, s29, 0xffff")
    p(f"s_and_b32 {t0}, {sW}, 4"); p(f"s_and_b32 {sW}, {sW}, 3"); p(f"s_lshl_b32 {sXL}, {sW}, 14")
    p(f"s_and_b32 {sW1_}, {sW}, 1"); p(f"s_lshr_b32 {sWh}, {sW}, 1")
    p(f"s_cmp_lg_u32 {t0}, 0"); p("s_cbranch_scc1 L_G")
    def startstamp(pp):
        if stamps: pp("v_mov_b32 v0, 0"); pp("v_writelane_b32 v0, s98, 0"); pp("v_writelane_b32 v0, s100, 40")
    v = Prog(); st = St()
    XS, W1, SSM, W2 = "s[4:7]", "s[20:23]", "s[16:19]", "s[24:27]"
    sWL, sW2L, sRAW, sDOFF, sD0, sD1, sKT, sYS = "s54", "s55", "s62", "s88", "s89", "s90", "s91", "s3"
    vX, vW, vW2_, vTW, vUW, vCA, vCB, vEW, vER, vEK, vZ1, vZ2, vZ0, vSY, vONE, vT = 6, 10, 13, 14, 15, 16, 17, 18, 19, 20, 21, 22, 23, 24, 25, 26
    ZR = 28; vW2 = 112
    def D(c):
        g = []; slot = c % 4
        for i in range(4):
            d = Prog()
            if i == 0:
                if c: d(f"s_add_u32 {sXC}, {sXC}, 128"); d(f"s_and_b32 {sXC}, {sXC}, 1023"); d(f"s_mul_i32 {sWC}, {sXC}, 1376")
                d(f"s_add_u32 m0, {sXL}, {XR + slot*4096}")
            d(f"buffer_load_dwordx4 v{vX+i}, {XS}, {sXC} offen offset:{1024*i} {P.get('xf', '')} lds", tag=f"c{c}")
            g.append(d.items)
        for i in range(3):
            d = Prog()
            if i == 0: d(f"s_add_u32 m0, {sWL}, {slot*12288}")
            d(f"buffer_load_dwordx4 v{vW+i}, {W1}, {sWC} offen offset:{1024*i} {P.get('wf', '')} lds", tag=f"c{c}")
            g.append(d.items)
        return g
    PL = [0, 1, 2, 4, 5, 3]
    def rotstep(d, reg, unit):
        d(f"s_add_u32 {reg}, {reg}, {unit}"); d(f"s_cmp_eq_u32 {reg}, {11*unit}"); d(f"s_cselect_b32 {reg}, 0, {reg}")
    def Wt(tau, pl, vw, sxl, sw2l):
        o = []
        for i in range(4):
            d = Prog()
            if i == 0:
                if tau: rotstep(d, sROT, 32768)
                d(f"s_add_u32 m0, {sxl}, {XR + pl*4096}" if pl < 4 else f"s_add_u32 m0, {sw2l}, {WR + (pl-4)*4096}")
            d(f"buffer_load_dwordx4 v{vw+i}, {W2}, {sROT} offen offset:{1024*i} lds", tag=f"w2_{tau}")
            o.append(d.items)
        return o
    def rot2(pp, first):
        if P["rot2"]:
            pp(f"s_mul_i32 {sROT}, {sMTL}, {[0, 3, 0, 1][P['rot2']]}"); pp(f"s_and_b32 {t0}, s2, 7"); pp(f"s_add_u32 {sROT}, {sROT}, {t0}")
            if first: pp(f"s_add_u32 {sROT}, {sROT}, {first}")
            for _ in range(2): pp(f"s_sub_u32 {t0}, {sROT}, 11"); pp(f"s_cmp_ge_u32 {sROT}, 11"); pp(f"s_cselect_b32 {sROT}, {t0}, {sROT}")
        else: pp(f"s_mov_b32 {sROT}, {first}")
    v(f"v_xor_b32 v{vX}, v{u7}, v{u4}"); v(f"v_lshlrev_b32 v{vX}, 4, v{vX}"); v(f"v_lshl_add_u32 v{vX}, v{u3}, 10, v{vX}")
    v(f"v_xor_b32 v{vX+1}, 64, v{vX}"); v(f"v_add_u32 v{vX+1}, 7168, v{vX+1}"); v(f"v_add_u32 v{vX+2}, 14336, v{vX}"); v(f"v_add_u32 v{vX+3}, 14336, v{vX+1}")
    v(f"s_lshl_b32 {t2}, {sMT1}, 17"); v(f"s_lshl_b32 {t0}, {sW}, 15"); v(f"s_add_u32 {t2}, {t2}, {t0}")
    v.ext(srd_off(4, 64, t2, 32768))
    v.ext(flat(D(0)[:4]))
    for i in range(3):
        v(f"v_add_u32 v{uA}, {64*i}, v{uL}"); v(f"v_mul_u32_u24 v{uB}, 171, v{uA}"); v(f"v_lshrrev_b32 v{uB}, 11, v{uB}")
        v(f"v_mul_u32_u24 v{uC}, 12, v{uB}"); v(f"v_sub_u32 v{uC}, v{uA}, v{uC}")
        v(f"v_mul_u32_u24 v{uB}, 2752, v{uB}"); v(f"v_cmp_gt_u32 vcc, {sLIM}, v{uC}"); v(f"v_lshl_add_u32 v{uB}, v{uC}, 4, v{uB}")
        v(f"v_subrev_u32 v{uB}, {1024*i}, v{uB}"); v(f"v_cndmask_b32 v{vW+i}, v{uOOB}, v{uB}, vcc")
    v(f"s_mul_i32 {sWC}, {sXC}, 1376")
    v(f"s_mul_i32 {t2}, {sW}, {16*2752}"); v(f"s_add_u32 {t3}, {t3}, {t2}")
    v(f"s_mul_i32 {sWL}, {sW}, 3072"); v(f"s_add_u32 {sWL}, {sWL}, {WR}")
    v.ext(srd_off(20, 78, t3, 512*2752, sub=True))
    v.ext(flat(D(0)[4:]))
    early(v, 1)
    m = v
    for i in range(4): m(f"v_mov_b32 v{ZR+i}, 0")
    m(f"v_add_u32 v{uA}, {GWZ}, v{vL16}"); m(f"ds_write_b128 v{uA}, {q4(ZR)}", tag="gz")
    m(f"v_mov_b32 v{vSY}, {SY}"); m(f"ds_write_b128 v{vSY}, {q4(ZR)}", tag="gz"); m(f"ds_write_b128 v{vSY}, {q4(ZR)} offset:16", tag="gz"); m(f"v_mov_b32 v{vONE}, 1")
    m(f"s_lshl_b32 {t0}, {sNT}, 7"); m(f"s_lshl_b32 {t1}, {sMT2}, 2"); m(f"s_add_u32 {t0}, {t0}, {t1}")
    m(f"s_load_dword {sD0}, s[74:75], {t0}", tag="ssmD")
    m(f"s_lshl_b32 {t0}, {sNT}, 5"); m(f"s_add_u32 {t0}, {t0}, {sMT2}"); m(f"s_lshl_b32 {t0}, {t0}, 13")
    m(f"s_lshl_b32 {t1}, {sW}, 11"); m(f"s_add_u32 {sDOFF}, {t0}, {t1}"); m(f"s_lshl_b32 {t0}, {sNT}, 11"); m(f"s_lshr_b32 {t1}, {sMT2}, 3"); m(f"s_lshl_b32 {t1}, {t1}, 9"); m(f"s_add_u32 {sKT}, {t0}, {t1}"); m(f"s_add_u32 {sKT}, {sKT}, {F1}")
    m(f"s_lshl_b32 {t1}, {sW}, 9"); m(f"s_add_u32 {t0}, {t0}, {t1}"); m(f"s_lshl_b32 {t1}, {sMT2}, 4"); m(f"s_add_u32 {t0}, {t0}, {t1}"); m(f"s_add_u32 {sYS}, {t0}, {F3}")
    m(f"s_lshl_b32 {t1}, {sW1_}, 11"); m(f"s_mul_i32 {sRAW}, {sWh}, {CHP}"); m(f"s_add_u32 {sRAW}, {sRAW}, {t1}"); m(f"s_add_u32 {sRAW}, {sRAW}, {HC+32}")
    m(f"v_add_u32 v{vTW}, {sRAW}, v{vL16}")
    m(f"v_and_b32 v{uA}, 1, v{u3}")
    m(f"v_mul_u32_u24 v{vZ1}, {CHP}, v{u7}"); m(f"v_lshl_add_u32 v{vZ1}, v{uA}, 4, v{vZ1}"); m(f"v_add_u32 v{vZ1}, {HC}, v{vZ1}"); m(f"ds_write_b128 v{vZ1}, {q4(ZR)}", tag="gz")
    m(f"v_lshrrev_b32 v{uHI}, 5, v{uL}"); m(f"v_and_b32 v{uB}, 31, v{uL}")
    m(f"v_mul_u32_u24 v{vZ2}, 4608, v{uHI}"); m(f"v_lshl_add_u32 v{vZ2}, v{uB}, 4, v{vZ2}"); m(f"v_add_u32 v{vZ2}, {U}, v{vZ2}"); m(f"ds_write_b128 v{vZ2}, {q4(ZR)}", tag="gz")
    m(f"s_mul_i32 {t0}, {sWh}, 4608"); m(f"s_add_u32 {t1}, {t0}, {t1}"); m(f"s_add_u32 {t1}, {t1}, {U+512}")
    m(f"v_add_u32 v{vUW}, {t1}, v{vL16}"); m(f"v_lshlrev_b32 v{vL4}, 4, v{uB}")
    m(f"s_lshl_b32 {t1}, {sW1_}, 8"); m(f"s_sub_u32 {t0}, {t0}, {t1}"); m(f"s_add_u32 {t0}, {t0}, {U + 512 - 32 - 192}")
    m(f"v_and_b32 v{uA}, 15, v{uL}"); m(f"v_lshlrev_b32 v{uB}, 5, v{uA}"); m(f"v_lshl_add_u32 v{uB}, v{u4}, 4, v{uB}"); m(f"v_add_u32 v{vCB}, {t0}, v{uB}")
    m(f"v_and_b32 v{uB}, 1, v{u4}"); m(f"v_lshlrev_b32 v{vW2}, 2, v{uB}"); m(f"v_and_b32 v{uC}, 2, v{u4}"); m(f"v_lshl_or_b32 v{uB}, v{uC}, 2, v{uB}")
    m(f"v_xor_b32 v{uA}, v{uA}, v{uB}"); m(f"v_lshl_add_u32 v{uA}, v{u4}, 4, v{uA}"); m(f"v_lshlrev_b32 v{uA}, 4, v{uA}")
    m(f"s_lshl_b32 {t0}, {sW}, 13"); m(f"s_add_u32 {t0}, {t0}, {EX}"); m(f"v_add_u32 v{vEW}, {t0}, v{uA}")
    m(f"v_xor_b32 v{vW2}, v{vW2}, v{u7}"); m(f"v_lshlrev_b32 v{vW2}, 4, v{vW2}"); m(f"v_lshl_add_u32 v{vW2}, v{u3}, 10, v{vW2}")
    for i in range(1, 4): m(f"v_add_u32 v{vW2+i}, {7168*i}, v{vW2}")
    m(f"v_lshrrev_b32 v{uA}, 2, v{uL}"); m(f"v_and_b32 v{uB}, 1, v{uL}"); m(f"v_and_b32 v{uC}, 2, v{uL}"); m(f"v_lshl_or_b32 v{uB}, v{uC}, 2, v{uB}")
    m(f"v_xor_b32 v{uA}, v{uA}, v{uB}"); m(f"v_and_b32 v{uC}, 3, v{uL}"); m(f"v_lshl_add_u32 v{uA}, v{uC}, 4, v{uA}"); m(f"v_lshlrev_b32 v{uA}, 4, v{uA}")
    m(f"s_lshl_b32 {t0}, {sW}, 11"); m(f"s_add_u32 {t0}, {t0}, {EX}"); m(f"v_add_u32 v{vER}, {t0}, v{uA}")
    m(f"s_lshl_b32 {sW2L}, {sW}, 13"); m(f"s_lshl_b32 {t0}, {sW}, 10"); m(f"s_add_u32 {t0}, {t0}, {U+512}"); m(f"v_lshl_add_u32 v{vEK}, v{uL}, 3, {t0}")
    m(f"v_bfe_u32 v{uA}, v{uL}, 2, 2"); m(f"v_mul_u32_u24 v{uB}, {CP}, v{uA}"); m(f"v_lshl_add_u32 v{uB}, v{u4}, 4, v{uB}")
    m(f"v_lshlrev_b32 v{uC}, 3, v{uC}"); m(f"v_sub_u32 v{uB}, v{uC}, v{uB}")
    m(f"s_mul_i32 {t0}, {sWh}, {CHP}"); m(f"s_add_u32 {t0}, {t0}, {t1}"); m(f"s_add_u32 {t0}, {t0}, {HC + 3*CP + 56}"); m(f"v_add_u32 v{vCA}, {t0}, v{uB}")
    rot2(m, 0); m(f"s_lshl_b32 {sROT}, {sROT}, 15")
    m(f"s_mul_i32 {t0}, {sW}, {11*32768}"); m(f"s_lshl_b32 {t1}, {sNT}, 7"); m(f"s_add_u32 {t1}, {t0}, {t1}")
    m.ext(srd_off(24, 82, t1, 1376*1024, sub=True))
    vPW = 5
    srd(m, 8, 82, 1376*1024)
    m(f"s_lshl_b32 {t0}, s2, 2"); m(f"s_add_u32 {t0}, {t0}, {sW}"); m(f"s_mul_i32 {t0}, {t0}, {11*128}")
    m(f"v_min_u32 v{vPW}, 10, v{uL}"); m(f"v_lshl_add_u32 v{vPW}, v{vPW}, 7, {t0}")
    if P["c3"]:
        m(f"s_lshr_b32 {t0}, s2, 3"); m(f"s_lshl_b32 {t0}, {t0}, 2"); m(f"s_add_u32 {t0}, {t0}, {sW}"); m(f"s_mul_i32 {t0}, {t0}, {11*1024}"); m(f"s_add_u32 {t0}, {t0}, 384")
        m(f"v_and_b32 v{uA}, 31, v{uL}"); m(f"v_min_u32 v{uA}, 10, v{uA}"); m(f"v_lshl_add_u32 v{uA}, v{uA}, 10, {t0}")
        m(f"v_cmp_gt_u32 vcc, 32, v{uL}"); m(f"v_cndmask_b32 v{vPW}, v{uA}, v{vPW}, vcc")
    v.w0(vm=False, lg=True)
    m(f"s_and_b32 {sD1}, {sD0}, 0xffff0000"); m(f"s_lshl_b32 {sD0}, {sD0}, 16")
    v.wvm("kv")
    early(v, 2)
    v("s_barrier")
    early(v, 3)
    v(f"ds_read_b32 v{vT}, v{vSY} offset:{EPT-SY}", tag="ep")
    R0 = 64; C = 80
    tb = Prog()
    tg_ = Prog(); tg_.wlg("ep")
    tg_(f"v_readfirstlane_b32 {sTC}, v{vT}"); tg_(f"s_add_u32 {sTC}, {sTC}, {TAGK}"); tg_(f"s_and_b32 {sTC}, {sTC}, 0xfffffff0")
    for r in range(2):
        tb(f"ds_read_b64 {pr(R0+8*r)}, v{vTW} offset:{3*CP + 1024*r - 8}", tag="rw"); tb(f"ds_read_b128 {q4(R0+8*r+2)}, v{vTW} offset:{3*CP + 1024*r}", tag="rw")
    tb.wlg("rw")
    for r in range(2):
        R = R0 + 8*r; c = C + 12*r
        for i in range(4):
            tb(f"v_alignbit_b32 v{c+i}, v{R+2+i}, v{R+1+i}, 16"); tb(f"v_mov_b32 v{c+4+i}, v{R+1+i}"); tb(f"v_alignbit_b32 v{c+8+i}, v{R+1+i}, v{R+i}, 16")
        for cc in range(3): tb(f"ds_write_b128 v{vTW}, {q4(c+4*cc)} offset:{(2-cc)*CP + r*1024}", tag="z")
    KT = 104
    kl = [f"buffer_load_dwordx4 {q4(KT+4*i)}, v{vL16}, {WS}, {sDOFF} offen offset:{1024*i} sc1" for i in range(2)]
    f1ld = f"buffer_load_dword v{vT+1}, v{vL4}, {WS}, {sKT} offen sc1"
    CACC = 32; CAf = [("a", 0), ("a", 32)]; CBf = [("a", 64), ("v", 64)]
    def conv_reads(ii):
        o = []; b = ii & 1
        for a in range(8):
            o.append(I(f"ds_read_b128 {q4(CBf[b][1]+4*a, CBf[b][0])}, v{vCB} offset:{512*a + 64*(3-ii)}", f"cv{ii}_{a}"))
            for j in range(2):
                o.append(I(f"ds_read_b64_tr_b16 {pr(CAf[b][1]+4*a+2*j, 'a')}, v{vCA} offset:{512*a + 64*ii + (8 if j == 0 else 0)}", f"cv{ii}_{a}"))
        return o
    arr1 = Prog(); arr1.w0(vm=False, lg=True)
    arr1("s_mov_b64 exec, 1"); arr1(f"ds_add_u32 v{vSY}, v{vONE} offset:4"); arr1("s_mov_b64 exec, -1")
    cslots = []
    seen = set()
    for ii in range(4):
        b = ii & 1
        rd = conv_reads(ii + 1) if ii < 3 else []
        pairs = sorted([(a, bb) for a in range(8) for bb in range(8 - a)], key=lambda x: (max(x), x))
        for k, (a, bb) in enumerate(pairs):
            t = a + bb
            cc = q4(CACC+4*t) if t in seen else "0"
            seen.add(t)
            sl = conv_reads(0) if (ii == 0 and k == 0) else []
            sl.append(("wlg", f"cv{ii}_{max(a, bb)}" if ii == 0 else f"cv{ii}_7"))
            sl.append(I(f"v_mfma_f32_16x16x32_bf16 {q4(CACC+4*t)}, {q4(CAf[b][1]+4*a, 'a')}, {q4(CBf[b][1]+4*bb, CBf[b][0])}, {cc}"))
            kk = k - (8 if ii == 0 else 0)
            if 0 <= kk < len(rd): sl.append(rd[kk])
            if ii == 3 and k == 0: sl += arr1.items
            cslots.append(sl)
    kw_ = Prog()
    kw_.wvm("kvt")
    for i in range(2): kw_(f"ds_write_b128 v{vUW}, {q4(KT+4*i)} offset:{1024*i}", tag="z")
    kw_.w0(vm=False, lg=True)
    seq = flat([D(c) for c in range(1, 8)])
    seq += flat([Wt(t, PL[t], vW2, sXL, sW2L) for t in range(6)])
    lag = P["lag"]; assert lag <= 11
    bar = {min(7*c + lag, [99]*6 + [53, 57])[0:0] or min(7*c + lag, ([99]*6 + [53, 57])[c]): c for c in range(8)} if False else {min(7*c + lag, ([99]*6 + [53, 57])[c]): c for c in range(8)}
    b8 = P["b8"]; assert 57 < b8 <= 69
    kvt = P["kvt"]
    ncv = P["ncv"] if kvt < 7 else 0
    cstart = 7*(kvt + 1) + lag
    tbg = groups_of(tb, 6); ti = 0; ci = 0
    for i, gq in enumerate(seq):
        if i in bar:
            c = bar[i]
            if 1 <= c <= 4: v.ext(early2(2*c - 2))
            v.wvm(f"c{c}")
            if 1 <= c <= 4: v.ext(early2(2*c - 1))
            if c == kvt + 1: v.ext(kw_)
            v("s_barrier")
            if c in (0, 3, 7): st(v)
        if i == P["f1i"]: v(f1ld, tag="f1")
        if i == 49:
            if P["warmf"]:
                v(f"v_mov_b32 v{vT}, {sTC}"); v(f"v_add_u32 v{vT}, 8, v{vT}"); v("s_mov_b64 exec, 1")
                v(f"buffer_store_dword v{vT}, v{vZ}, {WS}, {sYS} offen sc1", tag="wf"); v("s_mov_b64 exec, -1")
        if i == P["kvi"]:
            retry(v, "f1", "f1", [f"v_cmp_ne_u32 vcc, {sTC}, v{vT+1}"], [f1ld], sleep=P["sl_kv"]); cnt(v, 0)
            for x in kl: v(x, tag="kvt")
        if i == P["w2pw"]:
            v(f"buffer_load_dword v{vPW}, v{vPW}, s[8:11], 0 offen", tag="pw")
        if i == b8:
            v("s_barrier")
            if P["vp8"]: v(f"s_setprio {P['vp8']}")
        if i > 57 and P["wq"]: v.items.append(("wmax", P["wq"]))
        v.ext(gq)
        if i == 3: v.ext(tg_)
        if i >= P["tbi"] and ti < len(tbg): v.ext(tbg[ti]); ti += 1
        if ncv and cstart <= i < b8:
            assert ti == len(tbg)
            upto = (ncv * (i - cstart + 1)) // (b8 - cstart)
            while ci < upto: v.ext(cslots[ci]); ci += 1
    while ti < len(tbg): v.ext(tbg[ti]); ti += 1
    def varrive(i):
        v.w0(vm=False, lg=True)
        v("s_mov_b64 exec, 1"); v(f"ds_add_u32 v{vSY}, v{vONE} offset:{4*i}"); v("s_mov_b64 exec, -1")
    def vsync(i, arrive=True, n=4):
        if arrive: varrive(i)
        v(f"s_mov_b32 {sCNT}, 0")
        v(f"L_vs{i}:")
        v(f"ds_read_b32 v{vT}, v{vSY} offset:{4*i}"); v(f"s_add_u32 {sCNT}, {sCNT}, 1")
        v.w0(vm=False, lg=True)
        v(f"v_cmp_ne_u32 vcc, {n}, v{vT}"); v(f"s_cbranch_vccz L_vs{i}_ok")
        if n == 8: v("s_sleep 1")
        v(f"s_cmp_lt_u32 {sCNT}, 0x40000"); v(f"s_cbranch_scc1 L_vs{i}")
        v(f"L_vs{i}_ok:")
    v(f"s_lshl_b32 {t0}, {sW}, 2"); v(f"v_add_u32 v{vT+1}, {t0}, v{vSY}")
    v.w0(vm=True, lg=False)
    v(f"ds_write_b32 v{vT+1}, v{vONE} offset:16", tag="sig")
    if kvt >= 7: v.ext(kw_)
    varrive(0)
    st(v)
    vsync(0, arrive=False, n=8)
    st(v)
    v(f"s_setprio {P['vprio']}")
    while ci < 144: v.ext(cslots[ci]); ci += 1
    vsync(1, arrive=False)
    st(v)
    for t in range(8): v(f"ds_write_b128 v{vEW}, {q4(CACC+4*t)} offset:{1024*t}", tag="ex")
    E = 64; KVr = 96; KVf = 104; YO = 120
    vsync(2)
    for tt in range(2):
        for wv in range(4): v(f"ds_read_b128 {q4(E+(tt*4+wv)*4)}, v{vER} offset:{wv*8192 + tt*1024}", tag=f"exr{tt}")
        for ch in range(2): v(f"ds_read_b64 {pr(KVr+(tt*2+ch)*2)}, v{vEK} offset:{ch*4608 + tt*512}", tag=f"exr{tt}")
    for tt in range(2):
        v.wlg(f"exr{tt}")
        for ch in range(2):
            ee = E + (tt*4+2*ch)*4; r = KVr + (tt*2+ch)*2; f = KVf + (tt*2+ch)*4
            unpack(v, f, f+1, r); unpack(v, f+2, f+3, r+1)
            for i in range(4): v(f"v_add_f32 v{ee+i}, v{ee+i}, v{ee+4+i}")
            for i in range(4): v(f"v_fma_f32 v{ee+i}, v{f+i}, {sD0 if ch == 0 else sD1}, v{ee+i}")
        for i in range(4): v(f"v_cvt_pk_bf16_f32 v{YO+4*tt+i}, v{E+tt*16+i}, v{E+tt*16+8+i}")
        v(f"buffer_store_dwordx4 {q4(YO+4*tt)}, v{vL16}, {WS}, {sDOFF} offen offset:{1024*tt} sc1", tag="yst")
    st(v)
    v(f"v_mov_b32 v{vT}, {sTC}")
    v.wvm("yst")
    v("s_mov_b64 exec, 1"); v(f"buffer_store_dword v{vT}, v{vZ}, {WS}, {sYS} offen sc1"); v("s_mov_b64 exec, -1")
    v(f"s_or_b32 {t0}, s2, {sW}"); v(f"s_cmp_lg_u32 {t0}, 0"); v("s_cbranch_scc1 L_noep")
    cl = [f"buffer_load_dword v{64+i}, v{vL16}, {WS}, {t1} offen offset:{1024*i} sc1" for i in range(4)]
    v(f"s_mov_b32 {t1}, {ARR}")
    for x in cl: v(x, tag="cn")
    ck = tagcheck([64, 65, 66, 67], vT); ck[-1] = f"v_cmp_lt_u32 vcc, 15, v{vT}"
    retry(v, "cn", "cn", ck, cl, sleep=8)
    v(f"v_mov_b32 v{vT}, {sTC}"); v(f"s_mov_b32 {t0}, {EPO}"); v("s_mov_b64 exec, 1")
    v(f"buffer_store_dword v{vT}, v{vZ}, {WS}, {t0} offen sc1"); v("s_mov_b64 exec, -1")
    v("L_noep:")
    dump(v, st, vL16, 0)
    v("L_end:"); v("s_endpgm")
    g = Prog(); st = St()
    W2 = "s[24:27]"
    K, V, SP, HS, Q, OUT = "s[8:11]", "s[12:15]", "s[36:39]", "s[36:39]", "s[4:7]", "s[32:35]"
    sKL, sKO, sHS, sF2W, sF2R, sGS, sO, sY, sKV, sXS, sXR_, sFAST = "s54", "s55", "s61", "s62", "s88", "s89", "s90", "s91", "s3", "s94", "s95", "s24"
    CK = "s[20:21]"
    vPOLL, vXA, vWA, vPA, vKS, vH2, vB2, vKV, vC0 = 5, 6, 10, 11, 12, 13, 14, 18, 22
    vGA = 142; vB2V = 143
    ACC = 24
    g("L_G:")
    if P["prio"]: g(f"s_setprio {P['prio']}")
    if P["pf"]:
        g("s_getpc_b64 s[60:61]"); g("L_pc:"); g(f"s_sub_u32 s60, s60, L_pc-L_codestart"); g("s_subb_u32 s61, s61, 0")
        g(f"s_and_b32 {t0}, s2, 0xf8"); g(f"v_or_b32 v{uA}, {t0}, v{u7}"); g(f"v_lshlrev_b32 v{uA}, 7, v{uA}")
        g(f"v_min_u32 v{uA}, L_codeend-L_codestart-4, v{uA}")
        g(f"global_load_dword v{vPOLL}, v{uA}, s[60:61]", tag="pf")
    early(g, 1)
    g(f"v_lshrrev_b32 v{uHI}, 5, v{uL}")
    srd(g, 4, 64, 2097152); srd(g, 32, 92, 2097152)
    sW2L_, sRH, sGW = "s94", "s95", "s22"
    g(f"s_lshl_b32 {t1}, {sMT1}, 1"); g(f"s_add_u32 {t0}, {sWh}, {t1}")
    g(f"s_mul_i32 {sHS}, {t0}, 44"); g(f"s_add_u32 {sHS}, {sHS}, {sFT0}"); g(f"s_lshl_b32 {sHS}, {sHS}, 12")
    g(f"s_lshl_b32 {t1}, {sW1_}, 11"); g(f"s_add_u32 {sHS}, {sHS}, {t1}"); g(f"s_add_u32 {sHS}, {sHS}, {WS_H}")
    g(f"s_lshl_b32 {t0}, {t0}, 9"); g(f"s_lshl_b32 {t1}, {sC1}, 5"); g(f"s_add_u32 {t0}, {t0}, {t1}"); g(f"s_lshl_b32 {t1}, {sW1_}, 4"); g(f"s_add_u32 {t0}, {t0}, {t1}")
    g(f"s_add_u32 {sF2W}, {t0}, {F2}"); g(f"s_lshl_b32 {sF2R}, {sMT2}, 9"); g(f"s_add_u32 {sF2R}, {sF2R}, {F2}")
    g(f"s_mul_i32 {t0}, {sMT2}, 44"); g(f"s_mul_i32 {t1}, {sW}, 11"); g(f"s_add_u32 {t0}, {t0}, {t1}"); g(f"s_lshl_b32 {t0}, {t0}, 12"); g(f"s_add_u32 {t0}, {t0}, {WS_H}")
    g.ext(srd_off(36, 28, t0, 45056))
    g(f"s_mul_i32 {t0}, {sW}, {11*32768}"); g(f"s_lshl_b32 {t1}, {sNT}, 7"); g(f"s_add_u32 {t1}, {t0}, {t1}")
    g.ext(srd_off(24, 82, t1, 1376*1024, sub=True))
    rot2(g, 0); g(f"s_lshl_b32 {sRH}, {sROT}, 12"); rot2(g, 5); g(f"s_lshl_b32 {sROT}, {sROT}, 15")
    g(f"s_lshl_b32 {sW2L_}, {sW}, 13")
    g(f"s_lshl_b32 {t2}, {sMT2}, 1"); g(f"s_add_u32 {t2}, {t2}, {sWh}")
    g(f"s_lshl_b32 {sGS}, {t2}, 8"); g(f"s_add_u32 {sGS}, {sGS}, {WS_G}")
    g(f"s_lshl_b32 {sGW}, {sMT1}, 10"); g(f"s_lshl_b32 {t1}, {sW}, 8"); g(f"s_add_u32 {sGW}, {sGW}, {t1}"); g(f"s_add_u32 {sGW}, {sGW}, {WS_G}")
    g(f"s_lshl_b32 {t1}, {sWh}, 15"); g(f"s_add_u32 {sO}, {sT2}, {t1}"); g(f"s_lshl_b32 {t1}, {sW1_}, 6"); g(f"s_add_u32 {sO}, {sO}, {t1}")
    g(f"s_lshl_b32 {sY}, {sNT}, 18"); g(f"s_lshl_b32 {t1}, {sW1_}, 17"); g(f"s_add_u32 {sY}, {sY}, {t1}")
    g(f"s_lshl_b32 {t1}, {t2}, 7"); g(f"s_add_u32 {sY}, {sY}, {t1}")
    g(f"s_lshl_b32 {t0}, {sNT}, 11"); g(f"s_lshl_b32 {t1}, {sW}, 9"); g(f"s_add_u32 {sKL}, {t0}, {t1}"); g(f"s_lshl_b32 {t1}, {sMT2}, 4"); g(f"s_add_u32 {sKL}, {sKL}, {t1}"); g(f"s_add_u32 {sKL}, {sKL}, {F1}")
    g(f"s_lshr_b32 {t1}, {t2}, 4"); g(f"s_lshl_b32 {t1}, {t1}, 9"); g(f"s_add_u32 {t0}, {t0}, {t1}"); g(f"s_lshl_b32 {t1}, {sW1_}, 8"); g(f"s_add_u32 {t0}, {t0}, {t1}"); g(f"s_add_u32 {sKO}, {t0}, {F3}")
    g(f"s_lshl_b32 {sKV}, {sNT}, 18"); g(f"s_lshl_b32 {t1}, {sW}, 16"); g(f"s_add_u32 {sKV}, {sKV}, {t1}"); g(f"s_lshl_b32 {t1}, {sMT2}, 7"); g(f"s_add_u32 {sKV}, {sKV}, {t1}")
    g(f"v_lshlrev_b32 v{vKS}, 13, v{u3}"); g(f"v_lshl_add_u32 v{vKS}, v{u7}, 4, v{vKS}")
    g(f"v_bfe_u32 v{uA}, v{uL}, 2, 2"); g(f"v_and_b32 v{uC}, 3, v{uL}"); g(f"v_lshlrev_b32 v{uC}, 3, v{uC}")
    g(f"v_and_b32 v{uB}, 1, v{u4}"); g(f"v_lshl_add_u32 v{uC}, v{uB}, 5, v{uC}")
    g(f"v_lshl_add_u32 v{vWA}, v{uHI}, 3, v{uA}"); g(f"v_mul_u32_u24 v{vWA}, 192, v{vWA}"); g(f"v_add_u32 v{vWA}, v{vWA}, v{uC}"); g(f"v_add_u32 v{vWA}, {WR}, v{vWA}")
    g(f"v_lshl_add_u32 v{vB2}, v{uHI}, 2, v{uA}"); g(f"v_lshl_add_u32 v{vB2}, v{vB2}, 7, v{uC}")
    g(f"v_and_b32 v{uA}, 2, v{uA}"); g(f"v_lshlrev_b32 v{uA}, 5, v{uA}"); g(f"v_xor_b32 v{vB2}, v{vB2}, v{uA}")
    g(f"s_lshl_b32 {t0}, {sW1_}, 6"); g(f"v_xor_b32 v{vB2}, {t0}, v{vB2}")
    g(f"s_add_u32 {t0}, {sW2L_}, {WR}"); g(f"v_add_u32 v{vB2+2}, {t0}, v{vB2}"); g(f"v_add_u32 v{vB2}, {sXL}, v{vB2}")
    g(f"v_xor_b32 v{vB2+1}, 64, v{vB2}"); g(f"v_xor_b32 v{vB2+3}, 64, v{vB2+2}")
    g(f"v_lshlrev_b32 v{uB}, 2, v{uB}"); g(f"v_xor_b32 v{uB}, v{uB}, v{u7}"); g(f"v_lshlrev_b32 v{uB}, 4, v{uB}"); g(f"v_lshl_add_u32 v{vB2V}, v{u3}, 10, v{uB}")
    g(f"v_and_b32 v{uA}, 31, v{uL}"); g(f"v_lshlrev_b32 v{vL4}, 2, v{uA}"); g(f"v_bfe_u32 v{uB}, v{uA}, 1, 3"); g(f"v_xor_b32 v{uB}, v{uB}, v{uHI}")
    g(f"v_lshlrev_b32 v{uB}, 4, v{uB}"); g(f"v_lshl_add_u32 v{uB}, v{uA}, 7, v{uB}"); g(f"v_add_u32 v{vXA}, {sXL}, v{uB}")
    for jj in range(1, 4): g(f"v_xor_b32 v{vXA+jj}, {32*jj}, v{vXA}")
    g(f"v_xor_b32 v{uB}, v{u4}, v{uL}"); g(f"v_and_b32 v{uB}, 1, v{uB}"); g(f"v_lshlrev_b32 v{uB}, 10, v{uB}")
    g(f"v_lshl_add_u32 v{uB}, v{uHI}, 4, v{uB}"); g(f"v_add_u32 v{vGA}, {GWT}, v{uB}")
    g(f"s_lshl_b32 {t0}, {sW}, 5"); g(f"s_add_u32 {t0}, {t0}, {KST}")
    g(f"v_mul_u32_u24 v{vPA}, 1040, v{u7}"); g(f"v_lshl_add_u32 v{vPA}, v{u3}, 2, v{vPA}"); g(f"v_add_u32 v{vPA}, {t0}, v{vPA}")
    C0 = -2.0 * 0.7978845608028654 * 1.4426950408889634
    C1 = C0 * 0.044715
    g(f"v_mov_b32 v{vC0}, {fb(C0)}"); g(f"v_mov_b32 v{vC0+1}, {fb(C0)}"); g(f"s_mov_b32 s20, {fb(C1)}"); g(f"s_mov_b32 s21, {fb(C1)}")
    g(f"s_cmp_gt_u32 {sLIM}, 8"); g(f"s_cselect_b64 vcc, -1, 0"); g(f"v_cndmask_b32 v{vH2}, v{uOOB}, v{vL16}, vcc")
    for r in (1, 2, 3, 5, 6, 7, 9, 10, 11, 13, 14, 15, 17, 18, 19): g(f"v_accvgpr_write_b32 a{r}, 0")
    g(f"v_cmp_eq_u32 vcc, 0, v{uHI}"); g(f"v_mov_b32 v{uA}, 0x3f80"); g(f"v_cndmask_b32 v{uA}, 0, v{uA}, vcc"); g(f"v_accvgpr_write_b32 a16, v{uA}")
    SH = 136; vS1, vS2 = 132, 133
    g(f"s_lshl_b32 {t0}, {sW}, 7"); g(f"s_add_u32 {t0}, {t0}, {SHT}"); g(f"v_lshl_add_u32 v{vS1}, v{u3}, 4, {t0}")
    g(f"v_lshrrev_b32 v{vS2}, 1, v{vL4}"); g(f"v_add_u32 v{vS2}, {B1T}, v{vS2}")
    g(f"s_lshl_b32 {t0}, {sW1_}, 6"); g(f"v_add_u32 v{uA}, {t0}, v{vS2}")
    g(f"v_mov_b32 v{vTC}, {EPT}")
    KR, VR, CF, KF, KS = 72, 83, 96, 104, 126
    early(g, 2)
    g.items.append(("raw", f"s_waitcnt vmcnt({1 if P['pf'] else 0})"))
    early(g, 3)
    g("s_barrier")
    st(g)
    g(f"ds_read_b128 {q4(SH)}, v{vS1}", tag="sh"); g(f"ds_read_b32 v{vTC}, v{vTC}", tag="sh")
    for t in range(3): g(f"ds_read_u16 a{4*t}, v{vS2} offset:{64*t}", tag="sh")
    g(f"ds_read_u16 a12, v{uA} offset:{B2T-B1T}", tag="sh")
    for i in range(11):
        off = 640 + 128*i if i < 3 else 1040 + 128*(i-3)
        g(f"ds_read_b32 v{KR+i}, v{vPA} offset:{off}", tag="pk")
    for i in range(8): g(f"ds_read_b32 v{VR+i}, v{vPA} offset:{VST-KST+128*i}", tag="pv")
    g.wlg("sh")
    unpack(g, CF+0, CF+2, SH); unpack(g, CF+4, CF+6, SH+1); unpack(g, CF+1, CF+3, SH+2); unpack(g, CF+5, CF+7, SH+3)
    g(f"v_add_u32 v{vTC}, {TAGK}, v{vTC}"); g(f"v_and_b32 v{vTC}, 0xfffffff0, v{vTC}"); g(f"v_readfirstlane_b32 {sTC}, v{vTC}")
    g.wlg("pk")
    for i in range(11): unpack(g, KF+2*i, KF+2*i+1, KR+i)
    for i in range(8): g(f"v_pk_mul_f32 {pr(KS+2*i)}, {pr(KF+2*(i+3))}, {pr(CF)}")
    for j in range(1, 4):
        for i in range(8): g(f"v_pk_fma_f32 {pr(KS+2*i)}, {pr(KF+2*(i+3-j))}, {pr(CF+2*j)}, {pr(KS+2*i)}")
    g.wlg("pv")
    for i in range(8): unpack(g, KF+2*i, KF+2*i+1, VR+i)
    for i in range(8): g(f"v_pk_mul_f32 {pr(KS+2*i)}, {pr(KS+2*i)}, {pr(KF+2*i)}")
    for ch in range(2):
        for i in range(4): g(f"v_cvt_pk_bf16_f32 v{KF+4*ch+i}, v{KS+4*i+ch}, v{KS+4*i+2+ch}")
    g(f"s_add_u32 {t0}, {sKV}, 4096")
    early(g, 4)
    for ch in range(P.get("x_kvst", 2)):
        g(f"buffer_store_dwordx4 {q4(KF+4*ch)}, v{vKS}, {WS}, {t0 if ch else sKV} offen sc1", tag="kvs0")
    A2 = 72
    for t in range(3): g(f"v_mfma_f32_32x32x16_bf16 v[{ACC+16*t}:{ACC+16*t+15}], a[{4*t}:{4*t+3}], a[16:19], 0")
    g(f"v_mfma_f32_32x32x16_bf16 v[{A2}:{A2+15}], a[12:15], a[16:19], 0")
    if P["f1k"] < 0:
        g.wvm("kvs0"); g("s_mov_b64 exec, 1"); g(f"buffer_store_dword v{vTC}, v{vZ}, {WS}, {sKL} offen sc1", tag="fl1"); g("s_mov_b64 exec, -1")
    if P["warmf"]:
        g("s_mov_b64 exec, 1"); g(f"buffer_store_dword v{vTC}, v{vZ}, {WS}, {sF2W} offen sc1", tag="wf"); g("s_mov_b64 exec, -1")
    g(f"s_cmp_lg_u32 {sW}, 0"); g("s_cbranch_scc1 L_noarr")
    g(f"s_lshl_b32 {t0}, s2, 4")
    g(f"s_add_u32 {t0}, {t0}, {ARR}"); g("s_mov_b64 exec, 1")
    g.items.append(("raw", f"buffer_store_dword v{vTC}, v{vZ}, {WS}, {t0} offen sc1"))
    g("s_mov_b64 exec, -1")
    g("L_noarr:")
    early(g, 5)
    g("s_barrier")
    st(g)
    FR = 64; GF = 52; GA = ACC + 32
    mid_item = st.item()
    vOW, vOR, vOG, vY = 18, 19, 20, 21
    def gemm1(gate):
        o = Prog()
        nt_ = 2 if gate else 3
        def reads(ks):
            c, jj = divmod(ks, 4); slot = c % 4; b = FR + 16*(ks % 3)
            r_ = [I(f"ds_read_b128 {q4(b, 'a')}, v{vXA+jj} offset:{slot*4096}", f"r{ks}")]
            for t in range(nt_):
                for h in range(2):
                    r_.append(I(f"ds_read_b64_tr_b16 {pr(b+4+4*t+2*h, 'a')}, v{vWA} offset:{slot*12288 + (16*jj+4*h)*192 + t*64}", f"r{ks}"))
            if gate: r_.append(I(f"ds_read_b128 {q4(GF+4*(ks%3), 'a')}, v{vGA} offset:{32*ks}", f"r{ks}"))
            return r_
        o.ext(reads(0)); o.ext(reads(1))
        slots = []
        for ks in range(32):
            b = FR + 16*(ks % 3)
            nx = ks + 2
            pre = [("wlg", f"r{ks}")]
            if nx % 4 == 0:
                pre = [("wlg", f"r{ks+1}"), I("s_barrier")]
                if nx <= 16: pre = [pre[0]] + early2(nx//2 - 2) + [pre[1]] + early2(nx//2 - 1)
            rd = reads(nx) if nx < 32 else []
            mf = [I(f"v_mfma_f32_32x32x16_bf16 v[{ACC+16*t}:{ACC+16*t+15}], {q4(b+4+4*t, 'a')}, {q4(b, 'a')}, v[{ACC+16*t}:{ACC+16*t+15}]") for t in range(nt_)]
            if gate: mf.append(I(f"v_mfma_f32_16x16x32_bf16 {q4(GA)}, {q4(GF+4*(ks%3), 'a')}, {q4(b, 'a')}, {q4(GA) if ks else 0}"))
            slots += [pre + [mf[0]] + rd[0:3], [mf[1]] + rd[3:5], [mf[2]] + rd[5:7]]
        S = lambda ks, i=0: 3*ks + i
        xhi, xa = 110, 111
        eq = Prog()
        eq(f"v_lshrrev_b32 v{xhi}, 9, v{vL16}")
        eq(f"s_lshl_b32 {t0}, {sW}, 11"); eq(f"s_add_u32 {t2}, {t0}, {OT}")
        eq(f"v_lshl_add_u32 v{vOW}, v{vL4}, 4, {t2}"); eq(f"v_lshl_add_u32 v{vOW}, v{xhi}, 3, v{vOW}"); eq(f"v_add_u32 v{vOR}, {t2}, v{vL16}")
        eq(f"v_lshrrev_b32 v{vOG}, 6, v{vL16}"); eq(f"v_and_b32 v{xa}, 48, v{vL16}"); eq(f"v_lshl_add_u32 v{vOG}, v{vOG}, 10, v{xa}")
        eq(f"v_lshl_add_u32 v{vY}, v{xhi}, 14, v{vL4}")
        eq(f"v_lshlrev_b32 v{vPA}, 1, v{vL4}"); eq(f"v_and_b32 v{vKS}, 0x70, v{vL16}")
        eq(f"s_lshl_b32 {t0}, {sW}, 7"); eq(f"v_add_u32 v{vKS}, {t0}, v{vKS}"); eq(f"v_or_b32 v{xa}, 0x1e0, v{vKS}")
        eq(f"v_cmp_gt_u32 vcc, 512, v{vL16}"); eq(f"v_cndmask_b32 v{vKS}, v{xa}, v{vKS}, vcc")
        for i in range(8): eq(f"s_add_u32 s{12+i}, {sY}, {(4*(i//2)+(i%2))*8192}")
        eq(f"s_add_u32 {t3}, {sO}, {16384-1024}")
        f1 = Prog(); f1.wvm("kvs0"); f1("s_mov_b64 exec, 1"); f1(f"buffer_store_dword v{vTC}, v{vZ}, {WS}, {sKL} offen sc1", tag="fl1"); f1("s_mov_b64 exec, -1")
        streams = [(groups_of(eq), S(4), S(14))]
        if P["f1k"] >= 0: streams.append(([f1.items], S(P["f1k"], 1), S(P["f1k"], 1)))
        if stamps: streams.append(([mid_item], S(16), S(16)))
        o.ext(weave(slots, *streams))
        if gate:
            G_ = 140
            o(f"v_and_b32 v{G_}, 256, v{vL16}"); o(f"v_cmp_ne_u32 vcc, 0, v{G_}"); o(f"v_cndmask_b32 v{G_}, v{GA}, v{GA+1}, vcc")
            o(f"v_cvt_pk_bf16_f32 v{G_}, v{G_}, v{G_}"); o(f"v_and_b32 v{G_}, 0xffff0000, v{G_}")
            o(f"v_mul_f32 v{G_}, {fb(-1.4426950408889634)}, v{G_}"); o(f"v_exp_f32 v{G_}, v{G_}"); o(f"v_add_f32 v{G_}, 1.0, v{G_}"); o(f"v_rcp_f32 v{G_}, v{G_}")
            o(f"v_cvt_pk_bf16_f32 v{G_}, v{G_}, v{G_}"); o(f"v_and_b32 v{G_}, 0xffff0000, v{G_}")
            o(f"v_sub_f32 v{G_+1}, 1.0, v{G_}"); o(f"v_cvt_pk_bf16_f32 v{G_+1}, v{G_+1}, v{G_+1}"); o(f"v_and_b32 v{G_+1}, 0xffff0000, v{G_+1}")
            o("s_mov_b32 exec_hi, 0")
            o.items.append(("raw", f"buffer_store_dwordx2 {pr(G_)}, v{vPA}, {WS}, {sGW} offen sc1"))
            o("s_mov_b32 exec_hi, -1")
            o.w0(vm=False, lg=True)
        return o.items
    g(f"s_cmp_eq_u32 {sC1}, 15"); g("s_cbranch_scc1 L_gate")
    g.items.append(("fork", "L_gate", gemm1(True), "L_join"))
    g.ext(gemm1(False))
    g.items.append(("join", "L_join"))
    st(g)
    T = 88; HP = 104
    vFL = vWA
    def flag(n):
        d = Prog()
        d.wvm(f"hst{n-1}")
        d(f"v_add_u32 v{vFL}, {n}, v{vTC}"); d("s_mov_b64 exec, 1"); d(f"buffer_store_dword v{vFL}, v{vZ}, {WS}, {sF2W} offen sc1", tag=f"flag{n}"); d("s_mov_b64 exec, -1")
        return d.items
    ge = Prog()
    for t in range(3):
        a = ACC + 16*t
        for i in range(8): ge(f"v_pk_mul_f32 {pr(T+2*i)}, {pr(a+2*i)}, {pr(a+2*i)}")
        for i in range(8): ge(f"v_pk_fma_f32 {pr(T+2*i)}, {pr(T+2*i)}, {CK}, {pr(vC0)}")
        for i in range(8): ge(f"v_pk_mul_f32 {pr(T+2*i)}, {pr(T+2*i)}, {pr(a+2*i)}")
        for i in range(16): ge(f"v_exp_f32 v{T+i}, v{T+i}")
        for i in range(8): ge(f"v_pk_add_f32 {pr(T+2*i)}, {pr(T+2*i)}, 1.0 op_sel_hi:[1,0]")
        for i in range(16): ge(f"v_rcp_f32 v{T+i}, v{T+i}")
        for i in range(8): ge(f"v_pk_mul_f32 {pr(T+2*i)}, {pr(T+2*i)}, {pr(a+2*i)}")
        for i in range(8): ge(f"v_cvt_pk_bf16_f32 v{HP+8*t+i}, v{T+2*i}, v{T+2*i+1}")
        if t: ge(f"s_add_u32 {sHS}, {sHS}, 4096")
        for ks in range(2):
            ge(f"buffer_store_dwordx4 {q4(HP+8*t+4*ks)}, v{vH2 if t == 2 else vL16}, {WS}, {sHS} offen offset:{1024*ks} sc1", tag=f"hst{t}")
    g.ext(ge)
    st(g)
    vW2g = 6; vH = [10, 13]; vSG = 128; vTG = 129
    g(f"v_mov_b32 v{vSG}, {SY}"); g(f"v_mov_b32 v{vTG}, 1"); g("s_mov_b64 exec, 1"); g(f"ds_add_u32 v{vSG}, v{vTG}", tag="gs"); g("s_mov_b64 exec, -1")
    g(f"s_mov_b32 m0, {t2}")
    g(f"buffer_load_dwordx4 v{vOG}, {Q}, {sO} offen lds", tag="qt"); g(f"buffer_load_dwordx4 v{vOG}, {Q}, {t3} offen offset:1024 lds", tag="qt")
    for i in range(4): g(f"v_add_u32 v{vW2g+i}, {7168*i}, v{vB2V}")
    g(f"s_lshl_b32 {t0}, {sW}, 2"); g(f"v_add_u32 v{vSG}, {t0}, v{vSG}")
    def w2_read(tau, pl, areg):
        o = [("wvm", f"w2_{tau}")]
        for tdd in range(2):
            for ks in range(2):
                for j in range(2):
                    o.append(I(f"ds_read_b64_tr_b16 {pr(areg+tdd*8+ks*4+2*j, 'a')}, v{vB2+tdd+(2 if pl >= 4 else 0)} offset:{(pl % 4)*4096 + (16*ks+8*j)*128}", f"w2r_{tau}"))
        return o
    sDONE = "s23"
    fl_raw = [f"v_add_u32 v{vFL}, 3, v{vTC}", "s_mov_b64 exec, 1", f"buffer_store_dword v{vFL}, v{vZ}, {WS}, {sF2W} offen sc1", "s_mov_b64 exec, -1"]
    if P["flagfirst"] == 1: g.ext(flag(3))
    g(f"s_mov_b32 {sCNT}, 0"); g(f"s_mov_b32 {sDONE}, 0")
    g("L_gw:")
    g(f"ds_read_b32 v{vTG}, v{vSG} offset:16"); g(f"s_add_u32 {sCNT}, {sCNT}, 1")
    g.w0(vm=False, lg=True)
    g(f"v_cmp_ne_u32 vcc, 1, v{vTG}"); g("s_cbranch_vccz L_gw_ok")
    if P["flagfirst"] == 2:
        g(f"s_cmp_lg_u32 {sDONE}, 0"); g("s_cbranch_scc1 L_gw2")
        g.items.append(("raw", "s_waitcnt vmcnt(0)"))
        for x in fl_raw: g.items.append(("raw", x))
        g(f"s_mov_b32 {sDONE}, 1")
        g("L_gw2:")
    g("s_sleep 1"); g(f"s_cmp_lt_u32 {sCNT}, 0x40000"); g("s_cbranch_scc1 L_gw")
    g("L_gw_ok:")
    if stamps: g(f"s_sub_u32 {sCNT}, {sCNT}, 1"); cnt(g, 0)
    for tau in range(5): g.ext(w2_read(tau, PL[tau], 16*tau))
    PL2 = {6+i: PL[i] for i in range(5)}; PL2[5] = PL[5]
    for tau in range(6, 11):
        g.wlg(f"w2r_{tau-6}"); g.ext(flat(Wt(tau, PL2[tau], vW2g, sXL, sW2L_)))
        if tau == P["flt"] and P["flagfirst"] == 0: g.ext(flag(3))
        if tau == P["flt"] and P["flagfirst"] == 2:
            g.wvm("hst2")
            g(f"s_cmp_lg_u32 {sDONE}, 0"); g("s_cbranch_scc1 L_gw3")
            for x in fl_raw: g.items.append(("raw", x))
            g("L_gw3:")
    st(g)
    f2ld = f"buffer_load_dword v{vPOLL}, v{vKS}, {WS}, {sF2R} offen sc1"
    if P["f2after"]: g.wvm(f"w2_{P['f2after']}")
    g(f2ld, tag="f2")
    vRW = 6
    g(f"v_add_u32 v{vRW}, {sXL}, v{vL16}")
    for idx in range(1, 4): g(f"v_xor_b32 v{vRW+idx}, {idx*16384}, v{vRW}")
    g(f"s_lshl_b32 {t0}, {sWh}, 11"); g(f"v_add_u32 v{vH[0]}, {t0}, v{vL16}"); g(f"v_xor_b32 v{vH[1]}, 2048, v{vH[0]}")
    g(f"s_add_u32 {t1}, {sTC}, 3")
    QR = 136; GR = vC0
    g.wvm("qt")
    for q in range(4): g(f"ds_read_b64 {pr(QR+2*q)}, v{vOW} offset:{16*q}", tag="qr")
    retry(g, "f2", "f2", [f"v_cmp_ne_u32 vcc, {t1}, v{vPOLL}"], [f2ld], sleep=P["sl_f2"]); cnt(g, 1)
    st(g)
    HREG = [("v", 88), ("v", 104), ("v", 120), ("a", 80), ("a", 96)]
    NH = 5
    def h_load(tau):
        o = []
        kind, base = HREG[tau % NH]
        for ks in range(2):
            for ts in range(2):
                d = Prog()
                if ts == 0 and ks == 0 and tau: rotstep(d, sRH, 4096)
                d(f"buffer_load_dwordx4 {q4(base+ts*8+ks*4, kind)}, v{vH[ts]}, {HS}, {sRH} offen offset:{ks*1024} sc1", tag=f"h{tau}_{ks}{ts}")
                o.append(d.items)
        return o
    g(f"buffer_load_dwordx2 {pr(GR)}, v{vPA}, {WS}, {sGS} offen sc1", tag="g")
    nh0 = P["nh0"]
    for tau in range(nh0): g.ext(flat(h_load(tau)))
    if P["prio2"] != P["prio"]: g(f"s_setprio {P['prio2']}")
    AB = [A2, 24, 40, 56]
    YR = 104; QF = 112
    yl = [f"buffer_load_dword v{YR+i}, v{vY}, {WS}, s{12+i} offen sc1" for i in range(8)]
    f3ld = f"buffer_load_dword v{vPOLL}, v{vKS}, {WS}, {sKO} offen sc1"
    slots = []
    for tau in range(11):
        kind, base = HREG[tau % NH]
        nl = h_load(tau + nh0) if tau + nh0 < 11 else [[], [], [], []]
        rr = []
        if 5 <= tau + 4 <= 10:
            it = w2_read(tau + 4, PL2[tau + 4], 16*((tau + 4) % 5))
            rr = [it[:-7]] + [[x] for x in it[-7:]]
        k = 0
        for ks in range(2):
            for ts in range(2):
                for tdd in range(2):
                    a = AB[tdd + 2*ts]
                    cc = "0" if (tau == 0 and ks == 0 and (tdd or ts)) else f"v[{a}:{a+15}]"
                    s_ = [("wvm", f"h{tau}_{ks}{ts}")] if tdd == 0 else []
                    if k == 0: s_.append(("wlg", f"w2r_{tau}"))
                    s_.append(I(f"v_mfma_f32_32x32x16_bf16 v[{a}:{a+15}], {q4(16*(tau % 5)+tdd*8+ks*4, 'a')}, {q4(base+ts*8+ks*4, kind)}, {cc}"))
                    if tdd == 1: s_ += nl[ks*2+ts]
                    if rr: s_ += rr[k]
                    slots.append(s_); k += 1
    eq = Prog()
    for q in range(4):
        unpack(eq, QF+4*q, QF+4*q+1, QR+2*q); unpack(eq, QF+4*q+2, QF+4*q+3, QR+2*q+1)
    for i in range(16): eq(f"v_mul_f32 v{QF+i}, v{GR}, v{QF+i}")
    ck3 = Prog()
    retry(ck3, "f3", "f3", [f"v_cmp_ne_u32 vcc, {sTC}, v{vPOLL}"], [f3ld], sleep=P["sl_y"]); cnt(ck3, 2)
    for x in yl: ck3(x, tag="y")
    ws_ = [(groups_of(eq, 2), 65, 86), ([[I(f"v_and_b32 v{vKS}, 0xf0, v{vL16}"), I(f3ld, "f3")]], P["f3pos"], P["f3pos"])]
    if P["ck3"] < 88: ws_.append(([ck3.items], P["ck3"], P["ck3"]))
    g.ext(weave(slots, *ws_))
    st(g)
    if P["ck3"] >= 88: g.ext(ck3)
    for idx in range(1, 4):
        for q in range(4): g(f"ds_write_b128 v{vRW}, {q4(AB[idx]+4*q)} offset:{(idx-1)*4096 + 1024*q}", tag="red")
    g.w0(vm=False, lg=True)
    g("s_barrier")
    for idx in range(1, 4):
        for q in range(4): g(f"ds_read_b128 {q4(AB[idx]+4*q)}, v{vRW+idx} offset:{(idx-1)*4096 + 1024*q}", tag=f"rr{idx}")
    ZF = 88
    g.wvm("y")
    for i in range(8): unpack(g, ZF+2*i, ZF+2*i+1, YR+i)
    for i in range(8): g(f"v_pk_mul_f32 {pr(QF+2*i)}, {pr(QF+2*i)}, {pr(ZF+2*i)}")
    for idx in range(1, 4):
        g.wlg(f"rr{idx}")
        for i in range(8): g(f"v_pk_add_f32 {pr(A2+2*i)}, {pr(A2+2*i)}, {pr(AB[idx]+2*i)}")
    for i in range(8): g(f"v_pk_fma_f32 {pr(QF+2*i)}, {pr(A2+2*i)}, {pr(GR)}, {pr(QF+2*i)} op_sel:[0,1,0]")
    for i in range(8): g(f"v_cvt_pk_bf16_f32 v{ZF+i}, v{QF+2*i}, v{QF+2*i+1}")
    for q in range(4): g(f"ds_write_b64 v{vOW}, {pr(ZF+2*q)} offset:{16*q}", tag="ow")
    for i in range(2): g(f"ds_read_b128 {q4(24+4*i)}, v{vOR} offset:{1024*i}", tag=f"or{i}")
    of = P["outf"].replace("plain", "")
    g.wlg("or0")
    g(f"buffer_store_dwordx4 {q4(24)}, v{vOG}, {OUT}, {sO} offen {of}", tag="out")
    g.wlg("or1")
    g(f"buffer_store_dwordx4 {q4(28)}, v{vOG}, {OUT}, {t3} offen offset:1024 {of}", tag="out")
    dump(g, st, vL16, 1)
    g("s_endpgm")
    body = resolve(p.items + v.items)
    stG = dict(hist=[], vm=[], lg=[], smem=False)
    tailG = []
    bodyG = resolve(g.items, stG, tailG) + tailG
    hdr = [f"; @launch grid=(256,1,1) block=(512,1,1) lds={LDS_BYTES}",
           '.amdgcn_target "amdgcn-amd-amdhsa--gfx950"', ".text", f".globl {NAME}_kernel", ".p2align 8",
           f".type {NAME}_kernel,@function", f"{NAME}_kernel:", "L_codestart:"]
    ftr = ["L_codeend:", '.section .rodata,"a"', ".p2align 6", f".amdhsa_kernel {NAME}_kernel",
           "  .amdhsa_next_free_vgpr 256", "  .amdhsa_next_free_sgpr 102", "  .amdhsa_accum_offset 144",
           "  .amdhsa_group_segment_fixed_size 0", "  .amdhsa_kernarg_size 120", "  .amdhsa_user_sgpr_count 2",
           "  .amdhsa_user_sgpr_kernarg_segment_ptr 1", "  .amdhsa_system_sgpr_workgroup_id_x 1",
           "  .amdhsa_float_denorm_mode_32 3", ".end_amdhsa_kernel"]
    return "\n".join(hdr + body + bodyG + ftr) + "\n"

if __name__ == "__main__":
    kw = {}
    for a in sys.argv[2:]:
        if "=" in a:
            k, v = a.split("="); kw[k] = int(v) if v.lstrip("-").isdigit() else v
    open(sys.argv[1], "w").write(gen(stamps=("stamps" in sys.argv), **kw))
```

```python
import sys, struct
sys.path.insert(0, "dev")
from asmlib import *
NAME = "gated_mix__ssm_conv_h3__dense_activation_gelu__prompt"
NST = 10; NWAVES = 8

WS_KVT = 0; WS_Y = 0; WS_H = 8 << 20; WS_F = (13 << 20) + (768 << 10); WS_X = 16 << 20
EPO = WS_F; ARR = WS_F + 4096; F2 = WS_F + 98304; F1 = WS_F + 32768; F3 = WS_F + 49152; WS_G = WS_F + 65536
WS_SIZE = 16 << 20
TAGK = 0x9E3779B0
OOB = 0x80000000
XR = 0; WR = 65536; KST = 65536 + 49152 - 17680; VST = KST + 9360; U = 115200; HC = 124416; CP = 8256; CHP = 4128
SY = 157440; SHT = 157696; B1T = 158208; B2T = 158464; EPT = 158720; GWT = 161280; GWZ = 162304
EX = HC
PLACE = [x for s in range(3) for x in ([XR + w*16384 + s*4096 for w in range(4)] + [WR + s*12288 + i*4096 for i in range(3)])] + [XR + 3*4096]
ORD = [11*(j >> 2) + 3*(j & 3) + t for t in range(3) for j in range(8) if not (t == 2 and (j & 3) == 3)]
OT = WR + 3*12288
LDS_BYTES = 163840
WS = "s[28:31]"
sW, sMT1, sC1, sMT2, sNT, sFT0, sLIM, sTC, sXC, sWC = "s40", "s41", "s42", "s43", "s44", "s45", "s46", "s47", "s48", "s49"
sXL, sMTL, sW1_, sWh = "s50", "s51", "s52", "s53"
t0, t1, t2, t3 = "s56", "s57", "s58", "s59"
sCNT, sT2, sJH, sROT = "s60", "s63", "s96", "s97"
fb = lambda x: "0x%08x" % struct.unpack("<I", struct.pack("<f", x))[0]
pr = lambda r, k="v": f"{k}[{r}:{r+1}]"
q4 = lambda r, k="v": f"{k}[{r}:{r+3}]"
flat = lambda gs: [x for g in gs for x in g]

def srd(p, base, ptr, size):
    p(f"s_mov_b32 s{base}, s{ptr}"); p(f"s_and_b32 s{base+1}, s{ptr+1}, 0xffff")
    p(f"s_mov_b32 s{base+2}, {size}"); p(f"s_mov_b32 s{base+3}, 0x20000")
def srd_off(base, ptr, off_s, size, sub=False):
    p = Prog()
    p(f"s_add_u32 s{base}, s{ptr}, {off_s}"); p(f"s_addc_u32 s{base+1}, s{ptr+1}, 0"); p(f"s_and_b32 s{base+1}, s{base+1}, 0xffff")
    p(f"s_sub_u32 s{base+2}, {size}, {off_s}" if sub else f"s_mov_b32 s{base+2}, {size}"); p(f"s_mov_b32 s{base+3}, 0x20000")
    return p.items
def unpack(p, lo, hi, src):
    p(f"v_lshlrev_b32 v{lo}, 16, v{src}"); p(f"v_and_b32 v{hi}, 0xffff0000, v{src}")
MAXSPIN = 0x8000
def retry(p, lab, tag, check, reloads, mask=None, sleep=1):
    p.wvm(tag)
    p(f"s_mov_b32 {sCNT}, 0")
    p(f"L_{lab}:")
    for c in check: p(c)
    p(f"s_and_b64 vcc, vcc, {mask or '-1'}")
    p(f"s_cbranch_scc0 L_{lab}_ok")
    if sleep: p(f"s_sleep {sleep}")
    for r in reloads: p.items.append(("raw", r))
    p(f"s_add_u32 {sCNT}, {sCNT}, 1")
    p(f"s_cmp_lt_u32 {sCNT}, {MAXSPIN}")
    p.items.append(("raw", "s_waitcnt vmcnt(0)"))
    p(f"s_cbranch_scc1 L_{lab}")
    p(f"L_{lab}_ok:")
def tagcheck(regs, tmp):
    o = [f"v_xor_b32 v{tmp}, {sTC}, v{regs[0]}"]
    for r in regs[1:]: o.append(f"v_bitop3_b32 v{tmp}, v{r}, {sTC}, v{tmp} bitop3:0xbe")
    o.append(f"v_cmp_ne_u32 vcc, 0, v{tmp}")
    return o

DEF = dict(pf=1, prio=2, prio2=0, vp8=3, flt=7, lag=10, sl_kv=8, sl_f2=4, sl_y=4, kvt=7, ncv=0, b8=61, pair=1, fsh=3, f2t=11, c3i=-1, tbi=9, tbn=99, tbg=1, rawi=-1, c3=1, wq=0, bs=1, f1i=49, outf="sc1", kvi=65, w2pw=0, f1k=3, f3pos=78, ck3=90, xf="", rot1=1, rot2=0, warmf=1, flagfirst=1, f2after=0, nh0=2, vprio=1)

def gen(stamps=False, **kw):
    P = dict(DEF); P.update(kw)
    KVF = P.get("kvf", "nt").replace("plain", "")
    global MAXSPIN; MAXSPIN = P.get("maxspin", 0x8000)
    class St:
        def __init__(s): s.n = 0
        def __call__(s, pp):
            if stamps:
                pp(f"s_memtime s[{64+2*s.n}:{65+2*s.n}]", tag="stamp"); s.n += 1
        def item(s):
            i = s.n; s.n += 1
            return [I(f"s_memtime s[{64+2*i}:{65+2*i}]", "stamp")] if stamps else []
    def early2(i):
        d = Prog()
        if stamps and P.get("early") == 2:
            d("s_memtime s[98:99]"); d.w0(vm=False, lg=True); d(f"v_writelane_b32 v0, s98, {44+i}")
        return d.items
    def e3(pp, i):
        if stamps and P.get("early") == 3:
            pp("s_memtime s[98:99]"); pp.w0(vm=False, lg=True); pp(f"v_writelane_b32 v0, s98, {44+i}")
    def early(pp, i):
        if stamps and P.get("early") == 1:
            pp("s_memtime s[98:99]"); pp.w0(vm=False, lg=True); pp(f"v_writelane_b32 v0, s98, {44+i}")
    def cnt(pp, i):
        if stamps: pp(f"v_writelane_b32 v0, {sCNT}, {32+i}")
    def dump(pp, st, vL16, role):
        if not stamps: return
        pp.w0(vm=True, lg=True)
        while st.n < NST - 1: st(pp)
        pp("s_memrealtime s[98:99]"); pp.w0(vm=False, lg=True)
        for i in range(st.n): pp(f"v_writelane_b32 v0, s{64+2*i}, {i+1}")
        pp(f"v_writelane_b32 v0, s98, {st.n+1}")
        pp(f"s_lshl_b32 {t0}, s2, 3"); pp(f"s_add_u32 {t0}, {t0}, {sW}"); pp(f"s_add_u32 {t0}, {t0}, {4*role}")
        pp(f"s_lshl_b32 {t0}, {t0}, 8"); pp(f"s_add_u32 {t0}, {t0}, {14<<20}")
        pp(f"v_lshrrev_b32 v6, 2, v{vL16}")
        pp(f"buffer_store_dword v0, v6, {WS}, {t0} offen")
        if P.get("dbgout") is not None and role == 1:
            pp(f"s_cmp_lg_u32 s2, {P['dbgout']}"); pp("s_cbranch_scc1 L_nodbg"); pp(f"s_cmp_lg_u32 {sW}, 0"); pp("s_cbranch_scc1 L_nodbg")
            pp("s_load_dwordx2 s[98:99], s[0:1], 104"); pp("v_writelane_b32 v0, s100, 11"); pp.w0(vm=False, lg=True)
            pp("s_mov_b64 exec, 0xffff"); pp("global_store_dword v6, v0, s[98:99]")
            pp("L_nodbg:")
    def rot_setup(pp):
        pp(f"s_mul_i32 {sROT}, {sMTL}, 11"); pp(f"s_lshr_b32 {sROT}, {sROT}, 1"); pp(f"s_bfe_u32 {t0}, s2, 0x20001"); pp(f"s_add_u32 {sROT}, {sROT}, {t0}")
        if P["hrot"]:
            pp(f"s_mul_i32 {t0}, {sNT}, 11"); pp(f"s_lshr_b32 {t0}, {t0}, 2"); pp(f"s_add_u32 {sROT}, {sROT}, {t0}")
        pp(f"s_sub_u32 {t0}, {sROT}, 22"); pp(f"s_cmp_ge_u32 {sROT}, 22"); pp(f"s_cselect_b32 {sROT}, {t0}, {sROT}")
    p = Prog()
    uL, uHI, u3, u7, u4, uA, uB, uC, uOOB, uSP, uKV = 120, 121, 122, 123, 124, 125, 126, 127, 128, 129, 130
    vL16, vL4, vZ, vTC = 1, 2, 3, 4
    sSO, sSM, sEL, sEH = "s32", "s33", "s34", "s35"
    p("s_cmp_ge_u32 s2, 256"); p("s_cbranch_scc1 L_end")
    p(f"v_lshrrev_b32 v{uA}, 6, v0")
    p("s_load_dwordx16 s[64:79], s[0:1], 0")
    p(f"v_readfirstlane_b32 {sW}, v{uA}")
    p("s_load_dwordx8 s[80:87], s[0:1], 64"); p("s_load_dwordx2 s[92:93], s[0:1], 96"); p("s_load_dwordx2 s[28:29], s[0:1], 112")
    if stamps: p("s_memtime s[98:99]"); p("s_memrealtime s[100:101]")
    if P["pf"]:
        p("s_getpc_b64 s[60:61]"); p(f"s_and_b32 {t0}, s2, 0xf8"); p(f"v_and_b32 v{uB}, 7, v0"); p(f"v_or_b32 v{uB}, {t0}, v{uB}"); p(f"v_lshlrev_b32 v{uB}, 7, v{uB}")
        p(f"v_min_u32 v{uB}, L_codeend-L_codestart-128, v{uB}")
        p(f"s_cmp_lg_u32 {sW}, 7"); p("s_cbranch_scc1 L_npf")
        p.items.append(("raw", f"global_load_dword v131, v{uB}, s[60:61]"))
        p("L_npf:")
    p("s_mov_b32 s34, 0x50401808"); p("s_mov_b32 s35, 0x58585870"); p(f"s_lshl_b32 {t0}, {sW}, 3"); p(f"s_lshr_b64 s[34:35], s[34:35], {t0}")
    p(f"s_and_b32 {t2}, s34, 0xff"); p(f"s_load_dwordx2 s[36:37], s[0:1], {t2}")
    p(f"v_and_b32 v{uL}, 63, v0"); p(f"v_lshrrev_b32 v{u3}, 3, v{uL}"); p(f"v_and_b32 v{u7}, 7, v{uL}")
    p(f"v_lshlrev_b32 v{uKV}, 10, v{u3}"); p(f"v_lshl_add_u32 v{uKV}, v{u7}, 4, v{uKV}")
    p(f"s_and_b32 {t0}, s2, 7"); p(f"s_lshr_b32 {sMTL}, s2, 6"); p(f"s_bfe_u32 {sNT}, s2, 0x30003")
    if P.get("x_ntx"): p(f"s_xor_b32 {sNT}, {sNT}, {P['x_ntx']}")
    p(f"s_lshl_b32 {sMT2}, {t0}, 2"); p(f"s_add_u32 {sMT2}, {sMT2}, {sMTL}")
    p(f"s_lshl_b32 {sT2}, {sMT2}, 16"); p(f"s_lshl_b32 {t1}, {sNT}, 7"); p(f"s_add_u32 {sT2}, {sT2}, {t1}")
    p(f"s_and_b32 {t3}, {sW}, 3"); p(f"s_lshl_b32 s12, {t3}, 13"); p(f"s_add_u32 s12, s12, {sT2}"); p(f"s_add_u32 s13, s12, 32768")
    p(f"s_mul_i32 s14, {t3}, 1040"); p(f"s_cmp_ge_u32 {sW}, 4"); p(f"s_cselect_b32 s15, {VST-KST-1040}, 0"); p("s_add_u32 s14, s14, s15"); p(f"s_add_u32 s14, s14, {KST+1040}")
    p(f"s_mov_b32 s10, {0 if P.get('x_nokv') else 2097152}"); p("s_mov_b32 s11, 0x20000")
    p(f"s_lshl_b32 s6, {sNT}, 5"); p(f"s_add_u32 s6, s6, {sMT2}"); p(f"s_lshl_b32 s6, s6, 3"); p(f"s_add_u32 s6, s6, {sW}"); p("s_lshl_b32 s6, s6, 10")
    p(f"s_lshl_b32 s7, {sW}, 10"); p(f"s_cmp_ge_u32 {sW}, 4"); p(f"s_cselect_b32 s15, 32, 0"); p("s_add_u32 s7, s7, s15"); p(f"s_add_u32 s7, s7, {HC + 3*CP + 32}")
    p(f"s_mov_b32 s18, {0 if P.get('x_noraw') else 2097152}"); p("s_mov_b32 s19, 0x20000")
    p(f"s_and_b32 {sMT1}, {t0}, 6"); p(f"s_lshl_b32 {sMT1}, {sMT1}, 1"); p(f"s_add_u32 {sMT1}, {sMT1}, {sMTL}")
    if P.get("rot1", 1) == 0:
        p(f"s_lshr_b32 {sXC}, {t0}, 1"); p(f"s_add_u32 {sXC}, {sXC}, {sNT}"); p(f"s_lshl_b32 {t3}, {sMTL}, 1"); p(f"s_add_u32 {sXC}, {sXC}, {t3}")
    elif P.get("rot1", 1) == 1:
        p(f"s_lshr_b32 {sXC}, {t0}, 1"); p(f"s_lshl_b32 {t3}, {sNT}, 1"); p(f"s_add_u32 {sXC}, {sXC}, {t3}"); p(f"s_lshl_b32 {t3}, {sMTL}, 2"); p(f"s_add_u32 {sXC}, {sXC}, {t3}")
        p(f"s_and_b32 {t3}, {t0}, 1"); p(f"s_add_u32 {sXC}, {sXC}, {t3}")
    else:
        p(f"s_mov_b32 {sXC}, {t0}")
    p(f"s_and_b32 {sXC}, {sXC}, 7"); p(f"s_lshl_b32 {sXC}, {sXC}, 7")
    p(f"s_and_b32 {sJH}, {t0}, 1"); p(f"s_lshl_b32 {t0}, {sJH}, 3"); p(f"s_add_u32 {sC1}, {t0}, {sNT}")
    p(f"s_and_b32 {t3}, {sC1}, 3")
    p(f"s_lshr_b32 {t0}, {sC1}, 2"); p(f"s_mul_i32 {sFT0}, {t0}, 11"); p(f"s_mul_i32 {t0}, {t3}, 3"); p(f"s_add_u32 {sFT0}, {sFT0}, {t0}")
    p(f"s_cmp_eq_u32 {t3}, 3"); p(f"s_cselect_b32 {sLIM}, {12 if P.get('x_lim') else 8}, 12"); p(f"s_cmp_eq_u32 {sC1}, 15"); p(f"s_cselect_b32 {sLIM}, 4, {sLIM}")
    p(f"v_lshlrev_b32 v{vL16}, 4, v{uL}")
    p("s_mov_b32 s38, 1024"); p(f"s_mov_b32 {sSO}, {sXC}"); p(f"s_mov_b32 {sSM}, {GWT}")
    p(f"s_cmp_eq_u32 {sW}, 5"); p(f"s_cselect_b32 {t0}, {sC1}, 0"); p(f"s_cselect_b32 {t2}, 1023, -1"); p(f"s_cmp_eq_u32 {t0}, 15"); p(f"s_cselect_b64 s[34:35], -1, 0")
    p(f"s_lshl_b32 {t0}, {sNT}, 9"); p(f"s_lshl_b32 {t3}, {sFT0}, 6")
    for (w, sz, so, dst, el) in ((1, 4096, t0, SHT, -1), (2, 2752, t3, B1T, 0xfff), (3, 1024, t1, B2T, 0xff), (4, WS_SIZE, EPO, EPT, 1)):
        p(f"s_cmp_eq_u32 {sW}, {w}")
        if sz != 1024: p(f"s_cselect_b32 s38, {sz}, s38")
        p(f"s_cselect_b32 {sSO}, {so}, {sSO}"); p(f"s_cselect_b32 {sSM}, {dst}, {sSM}"); p(f"s_cselect_b32 {sEL}, {el}, {sEL}")
    p(f"v_add_u32 v{uSP}, {sSO}, v{vL16}"); p(f"v_and_b32 v{uSP}, {t2}, v{uSP}")
    p(f"s_cmp_lg_u32 {sW}, 0"); p("s_cbranch_scc1 L_nh")
    p("s_mov_b32 s38, 2097152"); p(f"s_mov_b32 {sSM}, {KST}"); p(f"s_mov_b32 {sEH}, 0xffffff00")
    p(f"s_sub_u32 {t0}, {sT2}, 8192"); p(f"v_add_u32 v{uSP}, {t0}, v{uKV}")
    p("L_nh:")
    p("s_mov_b32 s39, 0x20000"); p("s_mov_b32 m0, s14"); p(f"s_cmp_ge_u32 {sW}, 4")
    p.w0(vm=False, lg=True)
    p("s_cselect_b64 s[8:9], s[68:69], s[66:67]"); p("s_and_b32 s9, s9, 0xffff")
    p(f"buffer_load_dwordx4 v{uKV}, s[8:11], s12 offen {KVF} lds", tag="kv")
    p("s_add_u32 m0, s14, 4160"); p("s_and_b32 s37, s37, 0xffff")
    p(f"buffer_load_dwordx4 v{uKV}, s[8:11], s13 offen {KVF} lds", tag="kv")
    p(f"s_mov_b32 m0, {sSM}"); p("s_mov_b64 exec, s[34:35]"); p("s_cbranch_execz L_spn")
    p.items.append(("raw", f"buffer_load_dwordx4 v{uSP}, s[36:39], 0 offen sc1 lds"))
    p("L_spn:"); p("s_mov_b64 exec, -1")
    p("s_mov_b32 m0, s7"); p("s_mov_b32 s16, s72"); p("s_and_b32 s17, s73, 0xffff")
    if P["rawi"] < 0: p(f"buffer_load_dwordx4 v{vL16}, s[16:19], s6 offen {KVF} lds", tag="kv")
    if stamps: p("v_mov_b32 v0, 0"); p("v_writelane_b32 v0, s98, 0"); p("v_writelane_b32 v0, s100, 40")
    early(p, 0)
    if P["bs"]: p("s_barrier")
    p(f"v_lshrrev_b32 v{u4}, 4, v{uL}"); p(f"v_mov_b32 v{uOOB}, {OOB}"); p(f"v_mov_b32 v{vZ}, 0")
    p(f"s_mov_b32 s30, {WS_SIZE}"); p("s_mov_b32 s31, 0x20000"); p("s_and_b32 s29, s29, 0xffff")
    p(f"s_and_b32 {t0}, {sW}, 4"); p(f"s_and_b32 {sW}, {sW}, 3"); p(f"s_lshl_b32 {sXL}, {sW}, 14")
    p(f"s_and_b32 {sW1_}, {sW}, 1"); p(f"s_lshr_b32 {sWh}, {sW}, 1")
    p(f"s_cmp_lg_u32 {t0}, 0"); p("s_cbranch_scc1 L_G")
    def startstamp(pp):
        if stamps: pp("v_mov_b32 v0, 0"); pp("v_writelane_b32 v0, s98, 0"); pp("v_writelane_b32 v0, s100, 40")
    v = Prog(); st = St()
    XS, W1, SSM, W2 = "s[4:7]", "s[20:23]", "s[16:19]", "s[24:27]"
    sWL, sW2L, sRAW, sDOFF, sD0, sD1, sKT, sYS = "s54", "s55", "s62", "s88", "s89", "s90", "s91", "s3"
    vX, vW, vW2_, vTW, vUW, vCA, vCB, vEW, vER, vEK, vZ1, vZ2, vZ0, vSY, vONE, vT = 6, 10, 13, 14, 15, 16, 17, 18, 19, 20, 21, 22, 23, 24, 25, 26
    ZR = 28; vW2 = 112
    def D(c):
        g = []; slot = c % 4
        for i in range(4):
            d = Prog()
            if i == 0:
                if c: d(f"s_add_u32 {sXC}, {sXC}, 128"); d(f"s_and_b32 {sXC}, {sXC}, 1023"); d(f"s_mul_i32 {sWC}, {sXC}, 1376")
                d(f"s_add_u32 m0, {sXL}, {XR + slot*4096}")
            d(f"buffer_load_dwordx4 v{vX+i}, {XS}, {sXC} offen offset:{1024*i} {P.get('xf', '')} lds", tag=f"c{c}")
            g.append(d.items)
        for i in range(3):
            d = Prog()
            if i == 0: d(f"s_add_u32 m0, {sWL}, {slot*12288}")
            d(f"buffer_load_dwordx4 v{vW+i}, {W1}, {sWC} offen offset:{1024*i} {P.get('wf', '')} lds", tag=f"c{c}")
            g.append(d.items)
        return g
    PL = [0, 1, 2, 4, 5, 3]
    def rotstep(d, reg, unit):
        d(f"s_add_u32 {reg}, {reg}, {unit}"); d(f"s_cmp_eq_u32 {reg}, {11*unit}"); d(f"s_cselect_b32 {reg}, 0, {reg}")
    def Wt(tau, pl, vw, sxl, sw2l):
        o = []
        for i in range(4):
            d = Prog()
            if i == 0:
                if tau: rotstep(d, sROT, 32768)
                d(f"s_add_u32 m0, {sxl}, {XR + pl*4096}" if pl < 4 else f"s_add_u32 m0, {sw2l}, {WR + (pl-4)*4096}")
            d(f"buffer_load_dwordx4 v{vw+i}, {W2}, {sROT} offen offset:{1024*i} lds", tag=f"w2_{tau}")
            o.append(d.items)
        return o
    def rot2(pp, first):
        if P["rot2"] >= 4:
            if P["rot2"] == 4: pp(f"s_and_b32 {sROT}, {sNT}, 1"); pp(f"s_mul_i32 {sROT}, {sROT}, 5")
            else: pp(f"s_and_b32 {sROT}, {sNT}, 3"); pp(f"s_mul_i32 {sROT}, {sROT}, 11"); pp(f"s_lshr_b32 {sROT}, {sROT}, 2")
            if first: pp(f"s_add_u32 {sROT}, {sROT}, {first}")
            pp(f"s_sub_u32 {t0}, {sROT}, 11"); pp(f"s_cmp_ge_u32 {sROT}, 11"); pp(f"s_cselect_b32 {sROT}, {t0}, {sROT}")
        elif P["rot2"]:
            pp(f"s_mul_i32 {sROT}, {sMTL}, {[0, 3, 0, 1][P['rot2']]}"); pp(f"s_and_b32 {t0}, s2, 7"); pp(f"s_add_u32 {sROT}, {sROT}, {t0}")
            if first: pp(f"s_add_u32 {sROT}, {sROT}, {first}")
            for _ in range(2): pp(f"s_sub_u32 {t0}, {sROT}, 11"); pp(f"s_cmp_ge_u32 {sROT}, 11"); pp(f"s_cselect_b32 {sROT}, {t0}, {sROT}")
        else: pp(f"s_mov_b32 {sROT}, {first}")
    v(f"v_xor_b32 v{vX}, v{u7}, v{u4}"); v(f"v_lshlrev_b32 v{vX}, 4, v{vX}"); v(f"v_lshl_add_u32 v{vX}, v{u3}, 10, v{vX}")
    v(f"v_xor_b32 v{vX+1}, 64, v{vX}"); v(f"v_add_u32 v{vX+1}, 7168, v{vX+1}"); v(f"v_add_u32 v{vX+2}, 14336, v{vX}"); v(f"v_add_u32 v{vX+3}, 14336, v{vX+1}")
    v(f"s_lshl_b32 {t2}, {sMT1}, 17"); v(f"s_lshl_b32 {t0}, {sW}, 15"); v(f"s_add_u32 {t2}, {t2}, {t0}")
    v.ext(srd_off(4, 64, t2, 32768))
    v.ext(flat(D(0)[:4]))
    for i in range(3):
        v(f"v_add_u32 v{uA}, {64*i}, v{uL}"); v(f"v_mul_u32_u24 v{uB}, 171, v{uA}"); v(f"v_lshrrev_b32 v{uB}, 11, v{uB}")
        v(f"v_mul_u32_u24 v{uC}, 12, v{uB}"); v(f"v_sub_u32 v{uC}, v{uA}, v{uC}")
        v(f"v_mul_u32_u24 v{uB}, 2752, v{uB}"); v(f"v_cmp_gt_u32 vcc, {sLIM}, v{uC}"); v(f"v_lshl_add_u32 v{uB}, v{uC}, 4, v{uB}")
        v(f"v_subrev_u32 v{uB}, {1024*i}, v{uB}"); v(f"v_cndmask_b32 v{vW+i}, v{uOOB}, v{uB}, vcc")
    v(f"s_mul_i32 {sWC}, {sXC}, 1376")
    v(f"s_mul_i32 {t2}, {sW}, {16*2752}"); v(f"s_add_u32 {t3}, {t3}, {t2}")
    v(f"s_mul_i32 {sWL}, {sW}, 3072"); v(f"s_add_u32 {sWL}, {sWL}, {WR}")
    v.ext(srd_off(20, 78, t3, 512*2752, sub=True))
    v.ext(flat(D(0)[4:]))
    early(v, 1)
    m = v
    for i in range(4): m(f"v_mov_b32 v{ZR+i}, 0")
    m(f"v_add_u32 v{uA}, {GWZ}, v{vL16}"); m(f"ds_write_b128 v{uA}, {q4(ZR)}", tag="gz")
    m(f"v_mov_b32 v{vSY}, {SY}"); m(f"ds_write_b128 v{vSY}, {q4(ZR)}", tag="gz"); m(f"ds_write_b128 v{vSY}, {q4(ZR)} offset:16", tag="gz"); m(f"ds_write_b128 v{vSY}, {q4(ZR)} offset:32", tag="gz"); m(f"v_mov_b32 v{vONE}, 1")
    m(f"s_lshl_b32 {t0}, {sNT}, 7"); m(f"s_lshl_b32 {t1}, {sMT2}, 2"); m(f"s_add_u32 {t0}, {t0}, {t1}")
    m(f"s_load_dword {sD0}, s[74:75], {t0}", tag="ssmD")
    m(f"s_lshl_b32 {t0}, {sNT}, 5"); m(f"s_add_u32 {t0}, {t0}, {sMT2}"); m(f"s_lshl_b32 {t0}, {t0}, 13")
    m(f"s_lshl_b32 {t1}, {sW}, 11"); m(f"s_add_u32 {sDOFF}, {t0}, {t1}"); m(f"s_lshl_b32 {t0}, {sNT}, 11"); m(f"s_lshr_b32 {t1}, {sMT2}, 3"); m(f"s_lshl_b32 {t1}, {t1}, 9"); m(f"s_add_u32 {sKT}, {t0}, {t1}"); m(f"s_add_u32 {sKT}, {sKT}, {F1}")
    m(f"s_lshl_b32 {t1}, {sW}, 9"); m(f"s_add_u32 {t0}, {t0}, {t1}"); m(f"s_lshl_b32 {t1}, {sMT2}, 4"); m(f"s_add_u32 {t0}, {t0}, {t1}"); m(f"s_add_u32 {sYS}, {t0}, {F3}")
    m(f"s_lshl_b32 {t1}, {sW1_}, 11"); m(f"s_mul_i32 {sRAW}, {sWh}, {CHP}"); m(f"s_add_u32 {sRAW}, {sRAW}, {t1}"); m(f"s_add_u32 {sRAW}, {sRAW}, {HC+32}")
    m(f"v_add_u32 v{vTW}, {sRAW}, v{vL16}")
    m(f"v_and_b32 v{uA}, 1, v{u3}")
    m(f"v_mul_u32_u24 v{vZ1}, {CHP}, v{u7}"); m(f"v_lshl_add_u32 v{vZ1}, v{uA}, 4, v{vZ1}"); m(f"v_add_u32 v{vZ1}, {HC}, v{vZ1}"); m(f"ds_write_b128 v{vZ1}, {q4(ZR)}", tag="gz")
    m(f"v_lshrrev_b32 v{uHI}, 5, v{uL}"); m(f"v_and_b32 v{uB}, 31, v{uL}")
    m(f"v_mul_u32_u24 v{vZ2}, 4608, v{uHI}"); m(f"v_lshl_add_u32 v{vZ2}, v{uB}, 4, v{vZ2}"); m(f"v_add_u32 v{vZ2}, {U}, v{vZ2}"); m(f"ds_write_b128 v{vZ2}, {q4(ZR)}", tag="gz")
    m(f"s_mul_i32 {t0}, {sWh}, 4608"); m(f"s_add_u32 {t1}, {t0}, {t1}"); m(f"s_add_u32 {t1}, {t1}, {U+512}")
    m(f"v_add_u32 v{vUW}, {t1}, v{vL16}"); m(f"v_lshlrev_b32 v{vL4}, 4, v{uB}")
    m(f"s_lshl_b32 {t1}, {sW1_}, 8"); m(f"s_sub_u32 {t0}, {t0}, {t1}"); m(f"s_add_u32 {t0}, {t0}, {U + 512 - 32 - 192}")
    m(f"v_and_b32 v{uA}, 15, v{uL}"); m(f"v_lshlrev_b32 v{uB}, 5, v{uA}"); m(f"v_lshl_add_u32 v{uB}, v{u4}, 4, v{uB}"); m(f"v_add_u32 v{vCB}, {t0}, v{uB}")
    m(f"v_and_b32 v{uB}, 1, v{u4}"); m(f"v_lshlrev_b32 v{vW2}, 2, v{uB}"); m(f"v_and_b32 v{uC}, 2, v{u4}"); m(f"v_lshl_or_b32 v{uB}, v{uC}, 2, v{uB}")
    m(f"v_xor_b32 v{uA}, v{uA}, v{uB}"); m(f"v_lshl_add_u32 v{uA}, v{u4}, 4, v{uA}"); m(f"v_lshlrev_b32 v{uA}, 4, v{uA}")
    m(f"s_lshl_b32 {t0}, {sW}, 13"); m(f"s_add_u32 {t0}, {t0}, {EX}"); m(f"v_add_u32 v{vEW}, {t0}, v{uA}")
    m(f"v_xor_b32 v{vW2}, v{vW2}, v{u7}"); m(f"v_lshlrev_b32 v{vW2}, 4, v{vW2}"); m(f"v_lshl_add_u32 v{vW2}, v{u3}, 10, v{vW2}")
    for i in range(1, 4): m(f"v_add_u32 v{vW2+i}, {7168*i}, v{vW2}")
    m(f"v_lshrrev_b32 v{uA}, 2, v{uL}"); m(f"v_and_b32 v{uB}, 1, v{uL}"); m(f"v_and_b32 v{uC}, 2, v{uL}"); m(f"v_lshl_or_b32 v{uB}, v{uC}, 2, v{uB}")
    m(f"v_xor_b32 v{uA}, v{uA}, v{uB}"); m(f"v_and_b32 v{uC}, 3, v{uL}"); m(f"v_lshl_add_u32 v{uA}, v{uC}, 4, v{uA}"); m(f"v_lshlrev_b32 v{uA}, 4, v{uA}")
    m(f"s_lshl_b32 {t0}, {sW}, 11"); m(f"s_add_u32 {t0}, {t0}, {EX}"); m(f"v_add_u32 v{vER}, {t0}, v{uA}")
    m(f"s_lshl_b32 {sW2L}, {sW}, 13"); m(f"s_lshl_b32 {t0}, {sW}, 10"); m(f"s_add_u32 {t0}, {t0}, {U+512}"); m(f"v_lshl_add_u32 v{vEK}, v{uL}, 3, {t0}")
    m(f"v_bfe_u32 v{uA}, v{uL}, 2, 2"); m(f"v_mul_u32_u24 v{uB}, {CP}, v{uA}"); m(f"v_lshl_add_u32 v{uB}, v{u4}, 4, v{uB}")
    m(f"v_lshlrev_b32 v{uC}, 3, v{uC}"); m(f"v_sub_u32 v{uB}, v{uC}, v{uB}")
    m(f"s_mul_i32 {t0}, {sWh}, {CHP}"); m(f"s_add_u32 {t0}, {t0}, {t1}"); m(f"s_add_u32 {t0}, {t0}, {HC + 3*CP + 56}"); m(f"v_add_u32 v{vCA}, {t0}, v{uB}")
    rot2(m, 0); m(f"s_lshl_b32 {sROT}, {sROT}, 15")
    m(f"s_mul_i32 {t0}, {sW}, {11*32768}"); m(f"s_lshl_b32 {t1}, {sNT}, 7"); m(f"s_add_u32 {t1}, {t0}, {t1}")
    m.ext(srd_off(24, 82, t1, 1376*1024, sub=True))
    vPW = 5
    srd(m, 8, 82, 1376*1024)
    m(f"s_lshl_b32 {t0}, s2, 2"); m(f"s_add_u32 {t0}, {t0}, {sW}"); m(f"s_mul_i32 {t0}, {t0}, {11*128}")
    m(f"v_min_u32 v{vPW}, 10, v{uL}"); m(f"v_lshl_add_u32 v{vPW}, v{vPW}, 7, {t0}")
    if P["c3"]:
        m(f"s_lshr_b32 {t0}, s2, 3"); m(f"s_lshl_b32 {t0}, {t0}, 2"); m(f"s_add_u32 {t0}, {t0}, {sW}"); m(f"s_mul_i32 {t0}, {t0}, {11*1024}"); m(f"s_add_u32 {t0}, {t0}, 384")
        m(f"v_and_b32 v{uA}, 31, v{uL}"); m(f"v_min_u32 v{uA}, 10, v{uA}"); m(f"v_lshl_add_u32 v{uA}, v{uA}, 10, {t0}")
        if P["c3i"] < 0: m(f"v_cmp_gt_u32 vcc, 32, v{uL}"); m(f"v_cndmask_b32 v{vPW}, v{uA}, v{vPW}, vcc")
        else: m(f"v_mov_b32 v13, v{uA}")
    v.w0(vm=False, lg=True)
    m(f"s_and_b32 {sD1}, {sD0}, 0xffff0000"); m(f"s_lshl_b32 {sD0}, {sD0}, 16")
    v.wvm("kv")
    early(v, 2)
    v("s_barrier")
    early(v, 3)
    v(f"ds_read_b32 v{vT}, v{vSY} offset:{EPT-SY}", tag="ep")
    tg_ = Prog(); tg_.wlg("ep")
    tg_(f"v_readfirstlane_b32 {sTC}, v{vT}"); tg_(f"s_add_u32 {sTC}, {sTC}, {TAGK}"); tg_(f"s_and_b32 {sTC}, {sTC}, 0xfffffff0")
    def mk_tb(R0, C, vtw):
        tb = Prog()
        for r in range(2):
            tb(f"ds_read_b64 {pr(R0+8*r)}, v{vtw} offset:{3*CP + 1024*r - 8}", tag="rw"); tb(f"ds_read_b128 {q4(R0+8*r+2)}, v{vtw} offset:{3*CP + 1024*r}", tag="rw")
        tb.wlg("rw")
        for r in range(2):
            R = R0 + 8*r; c = C + 12*r
            for i in range(4):
                tb(f"v_alignbit_b32 v{c+i}, v{R+2+i}, v{R+1+i}, 16"); tb(f"v_mov_b32 v{c+4+i}, v{R+1+i}"); tb(f"v_alignbit_b32 v{c+8+i}, v{R+1+i}, v{R+i}, 16")
            for cc in range(3): tb(f"ds_write_b128 v{vtw}, {q4(c+4*cc)} offset:{(2-cc)*CP + r*1024}", tag="z")
        return tb
    tb = mk_tb(64, 80, vTW) if P["tbg"] == 0 else Prog()
    rawg = Prog()
    rawg(f"s_add_u32 m0, {sRAW}, {3*CP}")
    rawg(f"buffer_load_dwordx4 v{vL16}, {SSM}, {sDOFF} offen {KVF} lds", tag="raw")
    rawg(f"buffer_load_dwordx4 v{vL16}, {SSM}, {sDOFF} offen offset:1024 {KVF} lds", tag="raw")
    KT = 104
    kl = [f"buffer_load_dwordx4 {q4(KT+4*i)}, v{vL16}, {WS}, {sDOFF} offen offset:{1024*i} sc1" for i in range(2)]
    f1ld = f"buffer_load_dword v{vT+1}, v{vL4}, {WS}, {sKT} offen sc1"
    CACC = 32; CAf = [("a", 0), ("a", 32)]; CBf = [("a", 64), ("v", 64)]
    def conv_reads(ii):
        o = []; b = ii & 1
        for a in range(8):
            o.append(I(f"ds_read_b128 {q4(CBf[b][1]+4*a, CBf[b][0])}, v{vCB} offset:{512*a + 64*(3-ii)}", f"cv{ii}_{a}"))
            for j in range(2):
                o.append(I(f"ds_read_b64_tr_b16 {pr(CAf[b][1]+4*a+2*j, 'a')}, v{vCA} offset:{512*a + 64*ii + (8 if j == 0 else 0)}", f"cv{ii}_{a}"))
        return o
    arr1 = Prog(); arr1.w0(vm=False, lg=True)
    arr1("s_mov_b64 exec, 1"); arr1(f"ds_add_u32 v{vSY}, v{vONE} offset:4"); arr1("s_mov_b64 exec, -1")
    cslots = []
    seen = set()
    for ii in range(4):
        b = ii & 1
        rd = conv_reads(ii + 1) if ii < 3 else []
        pairs = sorted([(a, bb) for a in range(8) for bb in range(8 - a)], key=lambda x: (max(x), x))
        for k, (a, bb) in enumerate(pairs):
            t = a + bb
            cc = q4(CACC+4*t) if t in seen else "0"
            seen.add(t)
            sl = conv_reads(0) if (ii == 0 and k == 0) else []
            sl.append(("wlg", f"cv{ii}_{max(a, bb)}" if ii == 0 else f"cv{ii}_7"))
            sl.append(I(f"v_mfma_f32_16x16x32_bf16 {q4(CACC+4*t)}, {q4(CAf[b][1]+4*a, 'a')}, {q4(CBf[b][1]+4*bb, CBf[b][0])}, {cc}"))
            kk = k - (8 if ii == 0 else 0)
            if 0 <= kk < len(rd): sl.append(rd[kk])
            if ii == 3 and k == 0: sl += arr1.items
            cslots.append(sl)
    kw_ = Prog()
    kw_.wvm("kvt")
    for i in range(2): kw_(f"ds_write_b128 v{vUW}, {q4(KT+4*i)} offset:{1024*i}", tag="z")
    kw_.w0(vm=False, lg=True)
    seq = flat([D(c) for c in range(1, 8)])
    seq += flat([Wt(t, PL[t], vW2, sXL, sW2L) for t in range(6)])
    lag = P["lag"]; assert lag <= 11
    bar = {min(7*c + lag, [99]*6 + [53, 57])[0:0] or min(7*c + lag, ([99]*6 + [53, 57])[c]): c for c in range(8)} if False else {min(7*c + lag, ([99]*6 + [53, 57])[c]): c for c in range(8)}
    b8 = P["b8"]; assert 57 < b8 <= 69
    kvt = P["kvt"]
    ncv = P["ncv"] if kvt < 7 else 0
    cstart = 7*(kvt + 1) + lag
    tbg = groups_of(tb, P["tbn"]); ti = 0; ci = 0
    for i, gq in enumerate(seq):
        if i in bar:
            c = bar[i]
            if 1 <= c <= 4: v.ext(early2(2*c - 2))
            v.wvm(f"c{c}")
            if 1 <= c <= 4: v.ext(early2(2*c - 1))
            if c == kvt + 1: v.ext(kw_)
            v("s_barrier")
            if c in (0, 3, 7): st(v)
        if i == P["rawi"]: v.ext(rawg)
        if i == P["f1i"]: v(f1ld, tag="f1")
        if i == 49:
            if P["warmf"]:
                v(f"v_mov_b32 v{vT}, {sTC}"); v(f"v_add_u32 v{vT}, 8, v{vT}"); v("s_mov_b64 exec, 1")
                v(f"buffer_store_dword v{vT}, v{vZ}, {WS}, {sYS} offen sc1", tag="wf"); v("s_mov_b64 exec, -1")
        if i == P["kvi"]:
            retry(v, "f1", "f1", [f"v_cmp_ne_u32 vcc, {sTC}, v{vT+1}"], [f1ld], sleep=P["sl_kv"]); cnt(v, 0)
            for x in kl: v(x, tag="kvt")
        if i == P["c3i"] and P["c3"]: v(f"buffer_load_dword v13, v13, s[8:11], 0 offen", tag="pw")
        if i == P["w2pw"]:
            v(f"buffer_load_dword v{vPW}, v{vPW}, s[8:11], 0 offen", tag="pw")
        if i == b8:
            v("s_barrier")
            if P["vp8"]: v(f"s_setprio {P['vp8']}")
        if i > 57 and P["wq"]: v.items.append(("wmax", P["wq"]))
        v.ext(gq)
        if i == 3: v.ext(tg_)
        if i >= P["tbi"] and ti < len(tbg): v.ext(tbg[ti]); ti += 1
        if ncv and cstart <= i < b8:
            assert ti == len(tbg)
            upto = (ncv * (i - cstart + 1)) // (b8 - cstart)
            while ci < upto: v.ext(cslots[ci]); ci += 1
    while ti < len(tbg): v.ext(tbg[ti]); ti += 1
    def varrive(i):
        v.w0(vm=False, lg=True)
        v("s_mov_b64 exec, 1"); v(f"ds_add_u32 v{vSY}, v{vONE} offset:{4*i}"); v("s_mov_b64 exec, -1")
    def vsync(i, arrive=True, n=4):
        if arrive: varrive(i)
        v(f"s_mov_b32 {sCNT}, 0")
        v(f"L_vs{i}:")
        v(f"ds_read_b32 v{vT}, v{vSY} offset:{4*i}"); v(f"s_add_u32 {sCNT}, {sCNT}, 1")
        v.w0(vm=False, lg=True)
        v(f"v_cmp_ne_u32 vcc, {n}, v{vT}"); v(f"s_cbranch_vccz L_vs{i}_ok")
        if n == 8: v("s_sleep 1")
        v(f"s_cmp_lt_u32 {sCNT}, 0x40000"); v(f"s_cbranch_scc1 L_vs{i}")
        v(f"L_vs{i}_ok:")
    v(f"s_lshl_b32 {t0}, {sW}, 2"); v(f"v_add_u32 v{vT+1}, {t0}, v{vSY}")
    if kvt >= 7: v.ext(kw_)
    varrive(0)
    v.w0(vm=True, lg=False)
    v(f"ds_write_b32 v{vT+1}, v{vONE} offset:16", tag="sig")
    st(v)
    if P["pair"]:
        vsync(0, arrive=False)
        v.ext(cslots[0][:24]); cslots[0] = cslots[0][24:]
        v(f"s_mov_b32 {sCNT}, 0")
        v("L_vg:")
        v(f"ds_read_b32 v{vT}, v{vT+1} offset:32"); v(f"s_add_u32 {sCNT}, {sCNT}, 1")
        v.w0(vm=False, lg=True)
        v(f"v_cmp_eq_u32 vcc, 0, v{vT}"); v("s_cbranch_vccz L_vg_ok")
        v("s_sleep 1"); v(f"s_cmp_lt_u32 {sCNT}, 0x40000"); v("s_cbranch_scc1 L_vg")
        v("L_vg_ok:")
    else: vsync(0, arrive=False, n=8)
    st(v)
    v(f"s_setprio {P['vprio']}")
    while ci < 144: v.ext(cslots[ci]); ci += 1
    e3(v, 0)
    vsync(1, arrive=False)
    e3(v, 1)
    st(v)
    for t in range(8): v(f"ds_write_b128 v{vEW}, {q4(CACC+4*t)} offset:{1024*t}", tag="ex")
    E = 64; KVr = 96; KVf = 104; YO = 120
    e3(v, 2)
    vsync(2)
    e3(v, 3)
    for tt in range(2):
        for wv in range(4): v(f"ds_read_b128 {q4(E+(tt*4+wv)*4)}, v{vER} offset:{wv*8192 + tt*1024}", tag=f"exr{tt}")
        for ch in range(2): v(f"ds_read_b64 {pr(KVr+(tt*2+ch)*2)}, v{vEK} offset:{ch*4608 + tt*512}", tag=f"exr{tt}")
    for tt in range(2):
        v.wlg(f"exr{tt}")
        for ch in range(2):
            ee = E + (tt*4+2*ch)*4; r = KVr + (tt*2+ch)*2; f = KVf + (tt*2+ch)*4
            unpack(v, f, f+1, r); unpack(v, f+2, f+3, r+1)
            for i in range(4): v(f"v_add_f32 v{ee+i}, v{ee+i}, v{ee+4+i}")
            for i in range(4): v(f"v_fma_f32 v{ee+i}, v{f+i}, {sD0 if ch == 0 else sD1}, v{ee+i}")
        for i in range(4): v(f"v_cvt_pk_bf16_f32 v{YO+4*tt+i}, v{E+tt*16+i}, v{E+tt*16+8+i}")
        v(f"buffer_store_dwordx4 {q4(YO+4*tt)}, v{vL16}, {WS}, {sDOFF} offen offset:{1024*tt} sc1", tag="yst")
    st(v)
    v(f"v_mov_b32 v{vT}, {sTC}")
    e3(v, 4)
    v.wvm("yst")
    e3(v, 5)
    v("s_mov_b64 exec, 1"); v(f"buffer_store_dword v{vT}, v{vZ}, {WS}, {sYS} offen sc1"); v("s_mov_b64 exec, -1")
    v(f"s_or_b32 {t0}, s2, {sW}"); v(f"s_cmp_lg_u32 {t0}, 0"); v("s_cbranch_scc1 L_noep")
    cl = [f"buffer_load_dword v{64+i}, v{vL16}, {WS}, {t1} offen offset:{1024*i} sc1" for i in range(4)]
    v(f"s_mov_b32 {t1}, {ARR}")
    for x in cl: v(x, tag="cn")
    ck = tagcheck([64, 65, 66, 67], vT); ck[-1] = f"v_cmp_lt_u32 vcc, 15, v{vT}"
    retry(v, "cn", "cn", ck, cl, sleep=8)
    v(f"v_mov_b32 v{vT}, {sTC}"); v(f"s_mov_b32 {t0}, {EPO}"); v("s_mov_b64 exec, 1")
    v(f"buffer_store_dword v{vT}, v{vZ}, {WS}, {t0} offen sc1"); v("s_mov_b64 exec, -1")
    v("L_noep:")
    dump(v, st, vL16, 0)
    v("L_end:"); v("s_endpgm")
    g = Prog(); st = St()
    W2 = "s[24:27]"
    K, V, SP, HS, Q, OUT = "s[8:11]", "s[12:15]", "s[36:39]", "s[36:39]", "s[4:7]", "s[32:35]"
    sKL, sKO, sHS, sF2W, sF2R, sGS, sO, sY, sKV, sXS, sXR_, sFAST = "s54", "s55", "s61", "s62", "s88", "s89", "s90", "s91", "s3", "s94", "s95", "s24"
    CK = "s[20:21]"
    vPOLL, vXA, vWA, vPA, vKS, vH2, vB2, vKV, vC0 = 5, 6, 10, 11, 12, 13, 14, 18, 22
    vGA = 142; vB2V = 143
    ACC = 24
    g("L_G:")
    if P["prio"]: g(f"s_setprio {P['prio']}")
    early(g, 1)
    g(f"v_lshrrev_b32 v{uHI}, 5, v{uL}")
    srd(g, 4, 64, 2097152); srd(g, 32, 92, 2097152)
    sW2L_, sRH, sGW = "s94", "s95", "s22"
    g(f"s_lshl_b32 {t1}, {sMT1}, 1"); g(f"s_add_u32 {t0}, {sWh}, {t1}")
    g(f"s_mul_i32 {sHS}, {t0}, 44"); g(f"s_add_u32 {sHS}, {sHS}, {sFT0}"); g(f"s_lshl_b32 {sHS}, {sHS}, 12")
    g(f"s_lshl_b32 {t1}, {sW1_}, 11"); g(f"s_add_u32 {sHS}, {sHS}, {t1}"); g(f"s_add_u32 {sHS}, {sHS}, {WS_H}")
    fs = P["fsh"]
    g(f"s_lshl_b32 {t0}, {t0}, {9+fs}"); g(f"s_lshl_b32 {t1}, {sC1}, {5+fs}"); g(f"s_add_u32 {t0}, {t0}, {t1}"); g(f"s_lshl_b32 {t1}, {sW1_}, {4+fs}"); g(f"s_add_u32 {t0}, {t0}, {t1}")
    g(f"s_add_u32 {sF2W}, {t0}, {F2}"); g(f"s_lshl_b32 {sF2R}, {sMT2}, {9+fs}"); g(f"s_add_u32 {sF2R}, {sF2R}, {F2}")
    g(f"s_mul_i32 {t0}, {sMT2}, 44"); g(f"s_mul_i32 {t1}, {sW}, 11"); g(f"s_add_u32 {t0}, {t0}, {t1}"); g(f"s_lshl_b32 {t0}, {t0}, 12"); g(f"s_add_u32 {t0}, {t0}, {WS_H}")
    g.ext(srd_off(36, 28, t0, 45056))
    g(f"s_mul_i32 {t0}, {sW}, {11*32768}"); g(f"s_lshl_b32 {t1}, {sNT}, 7"); g(f"s_add_u32 {t1}, {t0}, {t1}")
    g.ext(srd_off(24, 82, t1, 1376*1024, sub=True))
    rot2(g, 0); g(f"s_lshl_b32 {sRH}, {sROT}, 12"); rot2(g, 5); g(f"s_lshl_b32 {sROT}, {sROT}, 15")
    g(f"s_lshl_b32 {sW2L_}, {sW}, 13")
    g(f"s_lshl_b32 {t2}, {sMT2}, 1"); g(f"s_add_u32 {t2}, {t2}, {sWh}")
    g(f"s_lshl_b32 {sGS}, {t2}, 8"); g(f"s_add_u32 {sGS}, {sGS}, {WS_G}")
    g(f"s_lshl_b32 {sGW}, {sMT1}, 10"); g(f"s_lshl_b32 {t1}, {sW}, 8"); g(f"s_add_u32 {sGW}, {sGW}, {t1}"); g(f"s_add_u32 {sGW}, {sGW}, {WS_G}")
    g(f"s_lshl_b32 {t1}, {sWh}, 15"); g(f"s_add_u32 {sO}, {sT2}, {t1}"); g(f"s_lshl_b32 {t1}, {sW1_}, 6"); g(f"s_add_u32 {sO}, {sO}, {t1}")
    g(f"s_lshl_b32 {sY}, {sNT}, 18"); g(f"s_lshl_b32 {t1}, {sW1_}, 17"); g(f"s_add_u32 {sY}, {sY}, {t1}")
    g(f"s_lshl_b32 {t1}, {t2}, 7"); g(f"s_add_u32 {sY}, {sY}, {t1}")
    g(f"s_lshl_b32 {t0}, {sNT}, 11"); g(f"s_lshl_b32 {t1}, {sW}, 9"); g(f"s_add_u32 {sKL}, {t0}, {t1}"); g(f"s_lshl_b32 {t1}, {sMT2}, 4"); g(f"s_add_u32 {sKL}, {sKL}, {t1}"); g(f"s_add_u32 {sKL}, {sKL}, {F1}")
    g(f"s_lshr_b32 {t1}, {t2}, 4"); g(f"s_lshl_b32 {t1}, {t1}, 9"); g(f"s_add_u32 {t0}, {t0}, {t1}"); g(f"s_lshl_b32 {t1}, {sW1_}, 8"); g(f"s_add_u32 {t0}, {t0}, {t1}"); g(f"s_add_u32 {sKO}, {t0}, {F3}")
    g(f"s_lshl_b32 {sKV}, {sNT}, 18"); g(f"s_lshl_b32 {t1}, {sW}, 16"); g(f"s_add_u32 {sKV}, {sKV}, {t1}"); g(f"s_lshl_b32 {t1}, {sMT2}, 7"); g(f"s_add_u32 {sKV}, {sKV}, {t1}")
    g(f"v_lshlrev_b32 v{vKS}, 13, v{u3}"); g(f"v_lshl_add_u32 v{vKS}, v{u7}, 4, v{vKS}")
    g(f"v_bfe_u32 v{uA}, v{uL}, 2, 2"); g(f"v_and_b32 v{uC}, 3, v{uL}"); g(f"v_lshlrev_b32 v{uC}, 3, v{uC}")
    g(f"v_and_b32 v{uB}, 1, v{u4}"); g(f"v_lshl_add_u32 v{uC}, v{uB}, 5, v{uC}")
    g(f"v_lshl_add_u32 v{vWA}, v{uHI}, 3, v{uA}"); g(f"v_mul_u32_u24 v{vWA}, 192, v{vWA}"); g(f"v_add_u32 v{vWA}, v{vWA}, v{uC}"); g(f"v_add_u32 v{vWA}, {WR}, v{vWA}")
    g(f"v_lshl_add_u32 v{vB2}, v{uHI}, 2, v{uA}"); g(f"v_lshl_add_u32 v{vB2}, v{vB2}, 7, v{uC}")
    g(f"v_and_b32 v{uA}, 2, v{uA}"); g(f"v_lshlrev_b32 v{uA}, 5, v{uA}"); g(f"v_xor_b32 v{vB2}, v{vB2}, v{uA}")
    g(f"s_lshl_b32 {t0}, {sW1_}, 6"); g(f"v_xor_b32 v{vB2}, {t0}, v{vB2}")
    g(f"s_add_u32 {t0}, {sW2L_}, {WR}"); g(f"v_add_u32 v{vB2+2}, {t0}, v{vB2}"); g(f"v_add_u32 v{vB2}, {sXL}, v{vB2}")
    g(f"v_xor_b32 v{vB2+1}, 64, v{vB2}"); g(f"v_xor_b32 v{vB2+3}, 64, v{vB2+2}")
    g(f"v_lshlrev_b32 v{uB}, 2, v{uB}"); g(f"v_xor_b32 v{uB}, v{uB}, v{u7}"); g(f"v_lshlrev_b32 v{uB}, 4, v{uB}"); g(f"v_lshl_add_u32 v{vB2V}, v{u3}, 10, v{uB}")
    g(f"v_and_b32 v{uA}, 31, v{uL}"); g(f"v_lshlrev_b32 v{vL4}, 2, v{uA}"); g(f"v_bfe_u32 v{uB}, v{uA}, 1, 3"); g(f"v_xor_b32 v{uB}, v{uB}, v{uHI}")
    g(f"v_lshlrev_b32 v{uB}, 4, v{uB}"); g(f"v_lshl_add_u32 v{uB}, v{uA}, 7, v{uB}"); g(f"v_add_u32 v{vXA}, {sXL}, v{uB}")
    for jj in range(1, 4): g(f"v_xor_b32 v{vXA+jj}, {32*jj}, v{vXA}")
    g(f"v_xor_b32 v{uB}, v{u4}, v{uL}"); g(f"v_and_b32 v{uB}, 1, v{uB}"); g(f"v_lshlrev_b32 v{uB}, 10, v{uB}")
    g(f"v_lshl_add_u32 v{uB}, v{uHI}, 4, v{uB}"); g(f"v_add_u32 v{vGA}, {GWT}, v{uB}")
    g(f"s_lshl_b32 {t0}, {sW}, 5"); g(f"s_add_u32 {t0}, {t0}, {KST}")
    g(f"v_mul_u32_u24 v{vPA}, 1040, v{u7}"); g(f"v_lshl_add_u32 v{vPA}, v{u3}, 2, v{vPA}"); g(f"v_add_u32 v{vPA}, {t0}, v{vPA}")
    C0 = -2.0 * 0.7978845608028654 * 1.4426950408889634
    C1 = C0 * 0.044715
    g(f"v_mov_b32 v{vC0}, {fb(C0)}"); g(f"v_mov_b32 v{vC0+1}, {fb(C0)}"); g(f"s_mov_b32 s20, {fb(C1)}"); g(f"s_mov_b32 s21, {fb(C1)}")
    g(f"s_cmp_gt_u32 {sLIM}, 8"); g(f"s_cselect_b64 vcc, -1, 0"); g(f"v_cndmask_b32 v{vH2}, v{uOOB}, v{vL16}, vcc")
    for r in (1, 2, 3, 5, 6, 7, 9, 10, 11, 13, 14, 15, 17, 18, 19): g(f"v_accvgpr_write_b32 a{r}, 0")
    g(f"v_cmp_eq_u32 vcc, 0, v{uHI}"); g(f"v_mov_b32 v{uA}, 0x3f80"); g(f"v_cndmask_b32 v{uA}, 0, v{uA}, vcc"); g(f"v_accvgpr_write_b32 a16, v{uA}")
    SH = 136; vS1, vS2 = 132, 133
    g(f"s_lshl_b32 {t0}, {sW}, 7"); g(f"s_add_u32 {t0}, {t0}, {SHT}"); g(f"v_lshl_add_u32 v{vS1}, v{u3}, 4, {t0}")
    g(f"v_lshrrev_b32 v{vS2}, 1, v{vL4}"); g(f"v_add_u32 v{vS2}, {B1T}, v{vS2}")
    g(f"s_lshl_b32 {t0}, {sW1_}, 6"); g(f"v_add_u32 v{uA}, {t0}, v{vS2}")
    g(f"v_mov_b32 v{vTC}, {EPT}")
    KR, VR, CF, KF, KS = 72, 83, 96, 104, 126
    early(g, 2)
    g.items.append(("raw", "s_waitcnt vmcnt(0)"))
    early(g, 3)
    g("s_barrier")
    st(g)
    g(f"ds_read_b128 {q4(SH)}, v{vS1}", tag="sh"); g(f"ds_read_b32 v{vTC}, v{vTC}", tag="sh")
    for t in range(3): g(f"ds_read_u16 a{4*t}, v{vS2} offset:{64*t}", tag="sh")
    g(f"ds_read_u16 a12, v{uA} offset:{B2T-B1T}", tag="sh")
    for i in range(11):
        off = 640 + 128*i if i < 3 else 1040 + 128*(i-3)
        g(f"ds_read_b32 v{KR+i}, v{vPA} offset:{off}", tag="pk")
    for i in range(8): g(f"ds_read_b32 v{VR+i}, v{vPA} offset:{VST-KST+128*i}", tag="pv")
    g.wlg("sh")
    unpack(g, CF+0, CF+2, SH); unpack(g, CF+4, CF+6, SH+1); unpack(g, CF+1, CF+3, SH+2); unpack(g, CF+5, CF+7, SH+3)
    g(f"v_add_u32 v{vTC}, {TAGK}, v{vTC}"); g(f"v_and_b32 v{vTC}, 0xfffffff0, v{vTC}"); g(f"v_readfirstlane_b32 {sTC}, v{vTC}")
    g.wlg("pk")
    for i in range(11): unpack(g, KF+2*i, KF+2*i+1, KR+i)
    for i in range(8): g(f"v_pk_mul_f32 {pr(KS+2*i)}, {pr(KF+2*(i+3))}, {pr(CF)}")
    for j in range(1, 4):
        for i in range(8): g(f"v_pk_fma_f32 {pr(KS+2*i)}, {pr(KF+2*(i+3-j))}, {pr(CF+2*j)}, {pr(KS+2*i)}")
    g.wlg("pv")
    for i in range(8): unpack(g, KF+2*i, KF+2*i+1, VR+i)
    for i in range(8): g(f"v_pk_mul_f32 {pr(KS+2*i)}, {pr(KS+2*i)}, {pr(KF+2*i)}")
    for ch in range(2):
        for i in range(4): g(f"v_cvt_pk_bf16_f32 v{KF+4*ch+i}, v{KS+4*i+ch}, v{KS+4*i+2+ch}")
    g(f"s_add_u32 {t0}, {sKV}, 4096")
    early(g, 4)
    for ch in range(P.get("x_kvst", 2)):
        g(f"buffer_store_dwordx4 {q4(KF+4*ch)}, v{vKS}, {WS}, {t0 if ch else sKV} offen sc1", tag="kvs0")
    if P["tbg"] == 1:
        g(f"s_lshl_b32 {t1}, {sW1_}, 11"); g(f"s_mul_i32 {t0}, {sWh}, {CHP}"); g(f"s_add_u32 {t0}, {t0}, {t1}"); g(f"s_add_u32 {t0}, {t0}, {HC+32}")
        g(f"v_add_u32 v{uA}, {t0}, v{vL16}")
        g.ext(mk_tb(24, 40, uA))
        g.w0(vm=False, lg=True)
    A2 = 72
    for t in range(3): g(f"v_mfma_f32_32x32x16_bf16 v[{ACC+16*t}:{ACC+16*t+15}], a[{4*t}:{4*t+3}], a[16:19], 0")
    g(f"v_mfma_f32_32x32x16_bf16 v[{A2}:{A2+15}], a[12:15], a[16:19], 0")
    if P["f1k"] < 0:
        g.wvm("kvs0"); g("s_mov_b64 exec, 1"); g(f"buffer_store_dword v{vTC}, v{vZ}, {WS}, {sKL} offen sc1", tag="fl1"); g("s_mov_b64 exec, -1")
    if P["warmf"]:
        g("s_mov_b64 exec, 1"); g(f"buffer_store_dword v{vTC}, v{vZ}, {WS}, {sF2W} offen sc1", tag="wf"); g("s_mov_b64 exec, -1")
    g(f"s_cmp_lg_u32 {sW}, 0"); g("s_cbranch_scc1 L_noarr")
    g(f"s_lshl_b32 {t0}, s2, 4")
    g(f"s_add_u32 {t0}, {t0}, {ARR}"); g("s_mov_b64 exec, 1")
    g.items.append(("raw", f"buffer_store_dword v{vTC}, v{vZ}, {WS}, {t0} offen sc1"))
    g("s_mov_b64 exec, -1")
    g("L_noarr:")
    early(g, 5)
    g("s_barrier")
    st(g)
    FR = 64; GF = 52; GA = ACC + 32
    mid_item = st.item()
    vOW, vOR, vOG, vY = 18, 19, 20, 21
    def gemm1(gate):
        o = Prog()
        nt_ = 2 if gate else 3
        def reads(ks):
            c, jj = divmod(ks, 4); slot = c % 4; b = FR + 16*(ks % 3)
            r_ = [I(f"ds_read_b128 {q4(b, 'a')}, v{vXA+jj} offset:{slot*4096}", f"r{ks}")]
            for t in range(nt_):
                for h in range(2):
                    r_.append(I(f"ds_read_b64_tr_b16 {pr(b+4+4*t+2*h, 'a')}, v{vWA} offset:{slot*12288 + (16*jj+4*h)*192 + t*64}", f"r{ks}"))
            if gate: r_.append(I(f"ds_read_b128 {q4(GF+4*(ks%3), 'a')}, v{vGA} offset:{32*ks}", f"r{ks}"))
            return r_
        o.ext(reads(0)); o.ext(reads(1))
        slots = []
        for ks in range(32):
            b = FR + 16*(ks % 3)
            nx = ks + 2
            pre = [("wlg", f"r{ks}")]
            if nx % 4 == 0:
                pre = [("wlg", f"r{ks+1}"), I("s_barrier")]
                if nx <= 16: pre = [pre[0]] + early2(nx//2 - 2) + [pre[1]] + early2(nx//2 - 1)
            rd = reads(nx) if nx < 32 else []
            mf = [I(f"v_mfma_f32_32x32x16_bf16 v[{ACC+16*t}:{ACC+16*t+15}], {q4(b+4+4*t, 'a')}, {q4(b, 'a')}, v[{ACC+16*t}:{ACC+16*t+15}]") for t in range(nt_)]
            if gate: mf.append(I(f"v_mfma_f32_16x16x32_bf16 {q4(GA)}, {q4(GF+4*(ks%3), 'a')}, {q4(b, 'a')}, {q4(GA) if ks else 0}"))
            slots += [pre + [mf[0]] + rd[0:3], [mf[1]] + rd[3:5], [mf[2]] + rd[5:7]]
        S = lambda ks, i=0: 3*ks + i
        xhi, xa = 110, 111
        eq = Prog()
        eq(f"v_lshrrev_b32 v{xhi}, 9, v{vL16}")
        eq(f"s_lshl_b32 {t0}, {sW}, 11"); eq(f"s_add_u32 {t2}, {t0}, {OT}")
        eq(f"v_lshl_add_u32 v{vOW}, v{vL4}, 4, {t2}"); eq(f"v_lshl_add_u32 v{vOW}, v{xhi}, 3, v{vOW}"); eq(f"v_add_u32 v{vOR}, {t2}, v{vL16}")
        eq(f"v_and_b32 v{xa}, 24, v{vL4}"); eq(f"v_lshl_add_u32 v{vOW}, v{xa}, 1, v{vOW}")
        eq(f"v_lshrrev_b32 v{vOG}, 6, v{vL16}"); eq(f"v_lshrrev_b32 v{xa}, 3, v{vL16}"); eq(f"v_xor_b32 v{xa}, v{xa}, v{vL16}"); eq(f"v_and_b32 v{xa}, 48, v{xa}"); eq(f"v_lshl_add_u32 v{vOG}, v{vOG}, 10, v{xa}")
        eq(f"v_lshl_add_u32 v{vY}, v{xhi}, 14, v{vL4}")
        eq(f"v_lshlrev_b32 v{vPA}, 1, v{vL4}"); eq(f"v_and_b32 v{vKS}, 0x70, v{vL16}")
        eq(f"s_lshl_b32 {t0}, {sW}, 7"); eq(f"v_add_u32 v{vKS}, {t0}, v{vKS}"); eq(f"v_or_b32 v{xa}, 0x1e0, v{vKS}")
        eq(f"v_cmp_gt_u32 vcc, 512, v{vL16}"); eq(f"v_cndmask_b32 v{vKS}, v{xa}, v{vKS}, vcc"); eq(f"v_lshlrev_b32 v{vKS}, {fs}, v{vKS}")
        for i in range(8): eq(f"s_add_u32 s{12+i}, {sY}, {(4*(i//2)+(i%2))*8192}")
        eq(f"s_add_u32 {t3}, {sO}, {16384-1024}")
        f1 = Prog(); f1.wvm("kvs0"); f1("s_mov_b64 exec, 1"); f1(f"buffer_store_dword v{vTC}, v{vZ}, {WS}, {sKL} offen sc1", tag="fl1"); f1("s_mov_b64 exec, -1")
        streams = [(groups_of(eq), S(4), S(14))]
        if P["f1k"] >= 0: streams.append(([f1.items], S(P["f1k"], 1), S(P["f1k"], 1)))
        if stamps: streams.append(([mid_item], S(16), S(16)))
        o.ext(weave(slots, *streams))
        if gate:
            G_ = 140
            o(f"v_and_b32 v{G_}, 256, v{vL16}"); o(f"v_cmp_ne_u32 vcc, 0, v{G_}"); o(f"v_cndmask_b32 v{G_}, v{GA}, v{GA+1}, vcc")
            o(f"v_cvt_pk_bf16_f32 v{G_}, v{G_}, v{G_}"); o(f"v_and_b32 v{G_}, 0xffff0000, v{G_}")
            o(f"v_mul_f32 v{G_}, {fb(-1.4426950408889634)}, v{G_}"); o(f"v_exp_f32 v{G_}, v{G_}"); o(f"v_add_f32 v{G_}, 1.0, v{G_}"); o(f"v_rcp_f32 v{G_}, v{G_}")
            o(f"v_cvt_pk_bf16_f32 v{G_}, v{G_}, v{G_}"); o(f"v_and_b32 v{G_}, 0xffff0000, v{G_}")
            o(f"v_sub_f32 v{G_+1}, 1.0, v{G_}"); o(f"v_cvt_pk_bf16_f32 v{G_+1}, v{G_+1}, v{G_+1}"); o(f"v_and_b32 v{G_+1}, 0xffff0000, v{G_+1}")
            o("s_mov_b32 exec_hi, 0")
            o.items.append(("raw", f"buffer_store_dwordx2 {pr(G_)}, v{vPA}, {WS}, {sGW} offen sc1"))
            o("s_mov_b32 exec_hi, -1")
            o.w0(vm=False, lg=True)
        return o.items
    g(f"s_cmp_eq_u32 {sC1}, 15"); g("s_cbranch_scc1 L_gate")
    g.items.append(("fork", "L_gate", gemm1(True), "L_join"))
    g.ext(gemm1(False))
    g.items.append(("join", "L_join"))
    st(g)
    T = 88; HP = 104
    vFL = vWA
    def flag(n):
        d = Prog()
        d.wvm(f"hst{n-1}")
        d(f"v_add_u32 v{vFL}, {n}, v{vTC}"); d("s_mov_b64 exec, 1"); d(f"buffer_store_dword v{vFL}, v{vZ}, {WS}, {sF2W} offen sc1", tag=f"flag{n}"); d("s_mov_b64 exec, -1")
        return d.items
    ge = Prog()
    for t in range(3):
        a = ACC + 16*t
        for i in range(8): ge(f"v_pk_mul_f32 {pr(T+2*i)}, {pr(a+2*i)}, {pr(a+2*i)}")
        for i in range(8): ge(f"v_pk_fma_f32 {pr(T+2*i)}, {pr(T+2*i)}, {CK}, {pr(vC0)}")
        for i in range(8): ge(f"v_pk_mul_f32 {pr(T+2*i)}, {pr(T+2*i)}, {pr(a+2*i)}")
        for i in range(16): ge(f"v_exp_f32 v{T+i}, v{T+i}")
        for i in range(8): ge(f"v_pk_add_f32 {pr(T+2*i)}, {pr(T+2*i)}, 1.0 op_sel_hi:[1,0]")
        for i in range(16): ge(f"v_rcp_f32 v{T+i}, v{T+i}")
        for i in range(8): ge(f"v_pk_mul_f32 {pr(T+2*i)}, {pr(T+2*i)}, {pr(a+2*i)}")
        if t == 2 and P["pair"]:
            ge(f"s_lshl_b32 {t0}, {sW}, 2"); ge(f"s_add_u32 {t0}, {t0}, {SY}"); ge(f"v_mov_b32 v128, {t0}"); ge("ds_write_b32 v128, v128 offset:32", tag="gd")
        for i in range(8): ge(f"v_cvt_pk_bf16_f32 v{HP+8*t+i}, v{T+2*i}, v{T+2*i+1}")
        if t: ge(f"s_add_u32 {sHS}, {sHS}, 4096")
        for ks in range(2):
            ge(f"buffer_store_dwordx4 {q4(HP+8*t+4*ks)}, v{vH2 if t == 2 else vL16}, {WS}, {sHS} offen offset:{1024*ks} sc1", tag=f"hst{t}")
    g.ext(ge)
    st(g)
    vW2g = 6; vH = [10, 13]; vSG = 128; vTG = 129
    g(f"v_mov_b32 v{vSG}, {SY}")
    if not P["pair"]: g(f"v_mov_b32 v{vTG}, 1"); g("s_mov_b64 exec, 1"); g(f"ds_add_u32 v{vSG}, v{vTG}", tag="gs"); g("s_mov_b64 exec, -1")
    g(f"s_mov_b32 m0, {t2}")
    g(f"buffer_load_dwordx4 v{vOG}, {Q}, {sO} offen lds", tag="qt"); g(f"buffer_load_dwordx4 v{vOG}, {Q}, {t3} offen offset:1024 lds", tag="qt")
    for i in range(4): g(f"v_add_u32 v{vW2g+i}, {7168*i}, v{vB2V}")
    g(f"s_lshl_b32 {t0}, {sW}, 2"); g(f"v_add_u32 v{vSG}, {t0}, v{vSG}")
    def w2_read(tau, pl, areg):
        o = [("wvm", f"w2_{tau}")]
        for tdd in range(2):
            for ks in range(2):
                for j in range(2):
                    o.append(I(f"ds_read_b64_tr_b16 {pr(areg+tdd*8+ks*4+2*j, 'a')}, v{vB2+tdd+(2 if pl >= 4 else 0)} offset:{(pl % 4)*4096 + (16*ks+8*j)*128}", f"w2r_{tau}"))
        return o
    sDONE = "s23"
    fl_raw = [f"v_add_u32 v{vFL}, 3, v{vTC}", "s_mov_b64 exec, 1", f"buffer_store_dword v{vFL}, v{vZ}, {WS}, {sF2W} offen sc1", "s_mov_b64 exec, -1"]
    if P["flagfirst"] == 1: g.ext(flag(3))
    g(f"s_mov_b32 {sCNT}, 0"); g(f"s_mov_b32 {sDONE}, 0")
    g("L_gw:")
    g(f"ds_read_b32 v{vTG}, v{vSG} offset:16"); g(f"s_add_u32 {sCNT}, {sCNT}, 1")
    g.w0(vm=False, lg=True)
    g(f"v_cmp_ne_u32 vcc, 1, v{vTG}"); g("s_cbranch_vccz L_gw_ok")
    if P["flagfirst"] == 2:
        g(f"s_cmp_lg_u32 {sDONE}, 0"); g("s_cbranch_scc1 L_gw2")
        g.items.append(("raw", "s_waitcnt vmcnt(0)"))
        for x in fl_raw: g.items.append(("raw", x))
        g(f"s_mov_b32 {sDONE}, 1")
        g("L_gw2:")
    g("s_sleep 1"); g(f"s_cmp_lt_u32 {sCNT}, 0x40000"); g("s_cbranch_scc1 L_gw")
    g("L_gw_ok:")
    if stamps: g(f"s_sub_u32 {sCNT}, {sCNT}, 1"); cnt(g, 0)
    for tau in range(5): g.ext(w2_read(tau, PL[tau], 16*tau))
    PL2 = {6+i: PL[i] for i in range(5)}; PL2[5] = PL[5]
    for tau in range(6, 11):
        g.wlg(f"w2r_{tau-6}"); g.ext(flat(Wt(tau, PL2[tau], vW2g, sXL, sW2L_)))
        if tau == P["f2t"]: g(f"buffer_load_dword v{vPOLL}, v{vKS}, {WS}, {sF2R} offen sc1", tag="f2")
        if tau == P["flt"] and P["flagfirst"] == 0: g.ext(flag(3))
        if tau == P["flt"] and P["flagfirst"] == 2:
            g.wvm("hst2")
            g(f"s_cmp_lg_u32 {sDONE}, 0"); g("s_cbranch_scc1 L_gw3")
            for x in fl_raw: g.items.append(("raw", x))
            g("L_gw3:")
    st(g)
    f2ld = f"buffer_load_dword v{vPOLL}, v{vKS}, {WS}, {sF2R} offen sc1"
    if P["f2after"]: g.wvm(f"w2_{P['f2after']}")
    if P["f2t"] > 10: g(f2ld, tag="f2")
    vRW = 6
    g(f"v_add_u32 v{vRW}, {sXL}, v{vL16}")
    for idx in range(1, 4): g(f"v_xor_b32 v{vRW+idx}, {idx*16384}, v{vRW}")
    g(f"s_lshl_b32 {t0}, {sWh}, 11"); g(f"v_add_u32 v{vH[0]}, {t0}, v{vL16}"); g(f"v_xor_b32 v{vH[1]}, 2048, v{vH[0]}")
    g(f"s_add_u32 {t1}, {sTC}, 3")
    QR = 136; GR = vC0
    g.wvm("qt")
    for q in range(4):
        if q: g(f"v_xor_b32 v{vTG}, {16*q}, v{vOW}")
        g(f"ds_read_b64 {pr(QR+2*q)}, v{vTG if q else vOW}", tag="qr")
    retry(g, "f2", "f2", [f"v_cmp_ne_u32 vcc, {t1}, v{vPOLL}"], [f2ld], sleep=P["sl_f2"]); cnt(g, 1)
    st(g)
    HREG = [("v", 88), ("v", 104), ("v", 120), ("a", 80), ("a", 96)]
    NH = 5
    def h_load(tau):
        o = []
        kind, base = HREG[tau % NH]
        for ks in range(2):
            for ts in range(2):
                d = Prog()
                if ts == 0 and ks == 0 and tau: rotstep(d, sRH, 4096)
                d(f"buffer_load_dwordx4 {q4(base+ts*8+ks*4, kind)}, v{vH[ts]}, {HS}, {sRH} offen offset:{ks*1024} sc1", tag=f"h{tau}_{ks}{ts}")
                o.append(d.items)
        return o
    g(f"buffer_load_dwordx2 {pr(GR)}, v{vPA}, {WS}, {sGS} offen sc1", tag="g")
    nh0 = P["nh0"]
    for tau in range(nh0): g.ext(flat(h_load(tau)))
    if P["prio2"] != P["prio"]: g(f"s_setprio {P['prio2']}")
    AB = [A2, 24, 40, 56]
    YR = 104; QF = 112
    yl = [f"buffer_load_dword v{YR+i}, v{vY}, {WS}, s{12+i} offen sc1" for i in range(8)]
    f3ld = f"buffer_load_dword v{vPOLL}, v{vKS}, {WS}, {sKO} offen sc1"
    slots = []
    for tau in range(11):
        kind, base = HREG[tau % NH]
        nl = h_load(tau + nh0) if tau + nh0 < 11 else [[], [], [], []]
        rr = []
        if 5 <= tau + 4 <= 10:
            it = w2_read(tau + 4, PL2[tau + 4], 16*((tau + 4) % 5))
            rr = [it[:-7]] + [[x] for x in it[-7:]]
        k = 0
        for ks in range(2):
            for ts in range(2):
                for tdd in range(2):
                    a = AB[tdd + 2*ts]
                    cc = "0" if (tau == 0 and ks == 0 and (tdd or ts)) else f"v[{a}:{a+15}]"
                    s_ = [("wvm", f"h{tau}_{ks}{ts}")] if tdd == 0 else []
                    if k == 0: s_.append(("wlg", f"w2r_{tau}"))
                    s_.append(I(f"v_mfma_f32_32x32x16_bf16 v[{a}:{a+15}], {q4(16*(tau % 5)+tdd*8+ks*4, 'a')}, {q4(base+ts*8+ks*4, kind)}, {cc}"))
                    if tdd == 1: s_ += nl[ks*2+ts]
                    if rr: s_ += rr[k]
                    slots.append(s_); k += 1
    eq = Prog()
    for q in range(4):
        unpack(eq, QF+4*q, QF+4*q+1, QR+2*q); unpack(eq, QF+4*q+2, QF+4*q+3, QR+2*q+1)
    for i in range(16): eq(f"v_mul_f32 v{QF+i}, v{GR}, v{QF+i}")
    for q in range(1, 4): eq(f"v_xor_b32 v{vB2+q}, {16*q}, v{vOW}")
    ck3 = Prog()
    retry(ck3, "f3", "f3", [f"v_cmp_ne_u32 vcc, {sTC}, v{vPOLL}"], [f3ld], sleep=P["sl_y"]); cnt(ck3, 2)
    for x in yl: ck3(x, tag="y")
    ws_ = [(groups_of(eq, 2), 65, 86), ([[I(f"v_and_b32 v{vKS}, 0xf0, v{vL16}"), I(f3ld, "f3")]], P["f3pos"], P["f3pos"])]
    if P["ck3"] < 88: ws_.append(([ck3.items], P["ck3"], P["ck3"]))
    g.ext(weave(slots, *ws_))
    st(g)
    e3(g, 0)
    if P["ck3"] == 88: g.ext(ck3)
    e3(g, 1)
    for idx in range(1, 4):
        for q in range(4): g(f"ds_write_b128 v{vRW}, {q4(AB[idx]+4*q)} offset:{(idx-1)*4096 + 1024*q}", tag="red")
        if P["ck3"] == 88 + idx: g.ext(ck3)
    g.w0(vm=False, lg=True)
    e3(g, 2)
    g("s_barrier")
    e3(g, 3)
    for idx in range(1, 4):
        for q in range(4): g(f"ds_read_b128 {q4(AB[idx]+4*q)}, v{vRW+idx} offset:{(idx-1)*4096 + 1024*q}", tag=f"rr{idx}")
    ZF = 88
    def ymul():
        g.wvm("y")
        e3(g, 4)
        for i in range(8): unpack(g, ZF+2*i, ZF+2*i+1, YR+i)
        for i in range(8): g(f"v_pk_mul_f32 {pr(QF+2*i)}, {pr(QF+2*i)}, {pr(ZF+2*i)}")
    if P["ck3"] <= 88: ymul()
    for idx in range(1, 4):
        g.wlg(f"rr{idx}")
        for i in range(8): g(f"v_pk_add_f32 {pr(A2+2*i)}, {pr(A2+2*i)}, {pr(AB[idx]+2*i)}")
    if P["ck3"] > 88: ymul()
    for i in range(8): g(f"v_pk_fma_f32 {pr(QF+2*i)}, {pr(A2+2*i)}, {pr(GR)}, {pr(QF+2*i)} op_sel:[0,1,0]")
    for i in range(8): g(f"v_cvt_pk_bf16_f32 v{ZF+i}, v{QF+2*i}, v{QF+2*i+1}")
    e3(g, 5)
    for q in range(4): g(f"ds_write_b64 v{vB2+q if q else vOW}, {pr(ZF+2*q)}", tag="ow")
    for i in range(2): g(f"ds_read_b128 {q4(24+4*i)}, v{vOR} offset:{1024*i}", tag=f"or{i}")
    of = P["outf"].replace("plain", "")
    g.wlg("or0")
    g(f"buffer_store_dwordx4 {q4(24)}, v{vOG}, {OUT}, {sO} offen {of}", tag="out")
    g.wlg("or1")
    g(f"buffer_store_dwordx4 {q4(28)}, v{vOG}, {OUT}, {t3} offen offset:1024 {of}", tag="out")
    e3(g, 6)
    if stamps and P.get("early") == 3: g.w0(vm=True, lg=True); e3(g, 7)
    dump(g, st, vL16, 1)
    g("s_endpgm")
    body = resolve(p.items + v.items)
    stG = dict(hist=[], vm=[], lg=[], smem=False)
    tailG = []
    bodyG = resolve(g.items, stG, tailG) + tailG
    hdr = [f"; @launch grid=(256,1,1) block=(512,1,1) lds={LDS_BYTES}",
           '.amdgcn_target "amdgcn-amd-amdhsa--gfx950"', ".text", f".globl {NAME}_kernel", ".p2align 8",
           f".type {NAME}_kernel,@function", f"{NAME}_kernel:", "L_codestart:"]
    ftr = ["L_codeend:", '.section .rodata,"a"', ".p2align 6", f".amdhsa_kernel {NAME}_kernel",
           "  .amdhsa_next_free_vgpr 256", "  .amdhsa_next_free_sgpr 102", "  .amdhsa_accum_offset 144",
           "  .amdhsa_group_segment_fixed_size 0", "  .amdhsa_kernarg_size 120", "  .amdhsa_user_sgpr_count 2",
           "  .amdhsa_user_sgpr_kernarg_segment_ptr 1", "  .amdhsa_system_sgpr_workgroup_id_x 1",
           "  .amdhsa_float_denorm_mode_32 3", ".end_amdhsa_kernel"]
    return "\n".join(hdr + body + bodyG + ftr) + "\n"

if __name__ == "__main__":
    kw = {}
    for a in sys.argv[2:]:
        if "=" in a:
            k, v = a.split("="); kw[k] = int(v) if v.lstrip("-").isdigit() else v
    open(sys.argv[1], "w").write(gen(stamps=("stamps" in sys.argv), **kw))
```

```python
import re

TRANS = ("v_exp_f32", "v_log_f32", "v_rcp_f32", "v_rsq_f32", "v_sqrt_f32", "v_sin_f32", "v_cos_f32")
_reg_re = re.compile(r"(?<![\w.])([vas])(?:(\d+)|\[(\d+):(\d+)\])(?![\w])")

def regs_of(op):
    out = set()
    for m in _reg_re.finditer(op):
        k = m.group(1)
        if m.group(2) is not None: out.add((k, int(m.group(2))))
        else:
            for i in range(int(m.group(3)), int(m.group(4)) + 1): out.add((k, i))
    if re.search(r"(?<![\w])vcc(?![\w])", op): out |= {("s", 106), ("s", 107)}
    if re.search(r"(?<![\w])vcc_lo(?![\w])", op): out.add(("s", 106))
    if re.search(r"(?<![\w])vcc_hi(?![\w])", op): out.add(("s", 107))
    if re.search(r"(?<![\w])m0(?![\w])", op): out.add(("s", 124))
    if re.search(r"(?<![\w])exec(?![\w])", op): out |= {("s", 126), ("s", 127)}
    return out

class I:
    __slots__ = ("text", "tag", "mn", "cls", "dst", "src", "ops", "passes", "srcc", "ab", "data")
    def __init__(self, text, tag=None):
        self.text = text.strip(); self.tag = tag
        t = self.text.split(";")[0].strip()
        parts = t.split(None, 1)
        self.mn = parts[0] if parts else ""
        rest = parts[1] if len(parts) > 1 else ""
        ops = [o.strip() for o in re.split(r",(?![^\[]*\])", rest)] if rest else []
        self.ops = ops
        mn = self.mn
        self.dst = set(); self.src = set(); self.passes = 0; self.srcc = set(); self.ab = set(); self.data = set()
        if mn.endswith(":") or mn.startswith("."): self.cls = "label"; return
        if mn.startswith("v_mfma"):
            self.cls = "mfma"
            self.dst = regs_of(ops[0]); self.ab = regs_of(ops[1]) | regs_of(ops[2]); self.srcc = regs_of(ops[3])
            self.src = self.ab | self.srcc
            self.passes = 8 if "32x32x16" in mn else (4 if "16x16x32" in mn else 16)
        elif mn.startswith("v_"):
            self.cls = "valu"
            nd = 1
            if mn.startswith(("v_add_co", "v_sub_co", "v_addc_co", "v_subb_co", "v_mad_u64", "v_div_scale")): nd = 2
            for o in ops[:nd]: self.dst |= regs_of(o)
            for o in ops[nd:]: self.src |= regs_of(o)
            if mn.startswith(("v_fmac", "v_dot2c", "v_pk_fmac", "v_writelane")) or "_dpp" in mn and mn.startswith("v_mov"): self.src |= self.dst
            if "swap" in mn:
                self.dst |= regs_of(ops[1]); self.src |= self.dst
            if mn.startswith("v_cmpx"): self.dst |= {("s", 126), ("s", 127)}
        elif mn.startswith("ds_"):
            self.cls = "ds"
            if mn.startswith(("ds_read", "ds_bpermute", "ds_permute", "ds_swizzle")) or "_rtn" in mn:
                self.dst = regs_of(ops[0])
                for o in ops[1:]: self.src |= regs_of(o)
            else:
                for o in ops: self.src |= regs_of(o)
        elif mn.startswith(("buffer_", "global_")):
            self.cls = "vmem"
            islds = re.search(r"\blds\b", t) is not None or "load_lds" in mn
            if "load" in mn and not islds:
                self.dst = regs_of(ops[0])
                for o in ops[1:]: self.src |= regs_of(o)
            else:
                for o in ops: self.src |= regs_of(o)
                if islds: self.src.add(("s", 124))
                if "store" in mn and ("x3" in mn or "x4" in mn):
                    self.data = regs_of(ops[0] if mn.startswith("buffer") else ops[1])
        elif mn.startswith(("s_load", "s_buffer_load", "s_memtime", "s_memrealtime")):
            self.cls = "smem"
            self.dst = regs_of(ops[0])
            for o in ops[1:]: self.src |= regs_of(o)
        elif mn.startswith("s_"):
            self.cls = "salu"
            if mn.startswith(("s_cmp", "s_cbranch", "s_branch", "s_nop", "s_waitcnt", "s_barrier", "s_endpgm", "s_setprio", "s_sleep", "s_bitcmp")):
                for o in ops: self.src |= regs_of(o)
            else:
                self.dst = regs_of(ops[0])
                for o in ops[1:]: self.src |= regs_of(o)
                if "saveexec" in mn: self.dst |= {("s", 126), ("s", 127)}
        else:
            raise ValueError("unknown instr: " + text)
    def states(self):
        if self.cls == "label": return 0
        if self.mn == "s_nop": return int(self.ops[0], 0) + 1
        return 1

def need(p, c):
    n = 0
    vs = lambda s: {r for r in s if r[0] != "s"}
    ss = lambda s: {r for r in s if r[0] == "s"}
    if p.cls == "valu":
        pv = vs(p.dst); psg = ss(p.dst)
        if c.cls == "mfma" and pv & c.src: n = max(n, 2)
        if c.cls == "mfma" and ("s", 126) in psg: n = max(n, 4)
        if c.cls == "valu":
            if p.mn.startswith(TRANS) and pv & c.src: n = max(n, 1)
            if ("dpp" in c.text or "permlane" in c.mn) and pv & c.src: n = max(n, 2)
            if c.mn.startswith(("v_readlane", "v_readfirstlane")) and pv & c.src: n = max(n, 1)
            if psg & c.src: n = max(n, 4 if c.mn.startswith(("v_readlane", "v_writelane")) else 2)
            if ("op_sel" in p.text and not p.mn.startswith("v_pk") or "sdwa" in p.text) and pv & (c.src | c.dst): n = max(n, 1)
            if ("s", 126) in psg and ("dpp" in c.text): n = max(n, 5)
            if ("s", 126) in psg and c.mn.startswith(("v_readlane", "v_readfirstlane", "v_writelane", "v_permlane")): n = max(n, 4)
        if c.cls == "vmem" and psg & c.src: n = max(n, 5)
        if c.cls in ("salu", "smem") and psg & c.src: n = max(n, 1)
    if p.cls == "mfma":
        big = {4: 8, 8: 12, 16: 20}[p.passes]
        if c.cls == "mfma":
            if p.dst & c.ab: n = max(n, big)
            if p.dst & c.srcc and not (p.dst == c.srcc and p.mn == c.mn): n = max(n, big - 2)
            if p.dst & c.dst and not (p.dst & c.srcc): n = max(n, big)
        elif c.cls in ("valu", "ds", "vmem"):
            if p.dst & (c.src | c.dst): n = max(n, big)
            if c.cls == "valu" and p.srcc & c.dst: n = max(n, {4: 3, 8: 7, 16: 15}[p.passes])
    if p.cls == "salu" and ("s", 124) in p.dst and c.cls == "vmem" and ("s", 124) in c.src: n = max(n, 1)
    if p.cls == "vmem" and p.data and p.data & c.dst and c.cls != "vmem": n = max(n, 2 if c.cls in ("valu", "mfma") else 1)
    return n

class Prog:
    def __init__(self):
        self.items = []
    def __call__(self, text, tag=None):
        for line in text.split("\n"):
            if line.strip(): self.items.append(I(line, tag))
    def wvm(self, tag): self.items.append(("wvm", tag))
    def wlg(self, tag): self.items.append(("wlg", tag))
    def w0(self, vm=True, lg=True): self.items.append(("w0", vm, lg))
    def forget(self): self.items.append(("forget",))
    def ext(self, other): self.items.extend(other.items if isinstance(other, Prog) else other)

def interleave(main, side, start=0, every=1, per=1):
    m = main.items if isinstance(main, Prog) else main
    s = list(side.items if isinstance(side, Prog) else side)
    out = []
    for i, it in enumerate(m):
        out.append(it)
        if i >= start and (i - start) % every == every - 1:
            for _ in range(per):
                if s: out.append(s.pop(0))
    out.extend(s)
    return out

def resolve(items, state=None, tail=None):
    top = tail is None
    if top: tail = []
    out = []
    st = state or dict(hist=[], vm=[], lg=[], smem=False)
    forks = {}
    def emit(ins):
        hist = st["hist"]
        if ins.cls == "label":
            out.append(ins.text); return
        dist = 0; req = 0
        for p in reversed(hist):
            r = need(p, ins) - dist
            if r > req: req = r
            dist += p.states()
            if dist >= 20: break
        while req > 0:
            k = min(req, 16)
            nop = I(f"s_nop {k-1}"); out.append("    " + nop.text); hist.append(nop); req -= k
        out.append("    " + ins.text); hist.append(ins)
        if len(hist) > 64: del hist[:32]
    for it in items:
        if isinstance(it, tuple):
            if it[0] == "wvm":
                vm = st["vm"]
                idx = [i for i, t in enumerate(vm) if t == it[1]]
                if idx:
                    n = min(len(vm) - 1 - idx[-1], 63)
                    emit(I(f"s_waitcnt vmcnt({n})")); st["vm"] = vm[len(vm) - n:] if n else []
            elif it[0] == "wmax":
                if len(st["vm"]) > it[1]:
                    emit(I(f"s_waitcnt vmcnt({it[1]})")); st["vm"] = st["vm"][len(st["vm"]) - it[1]:]
            elif it[0] == "wlg":
                lg = st["lg"]
                idx = [i for i, t in enumerate(lg) if t == it[1]]
                if idx:
                    n = 0 if st["smem"] else min(len(lg) - 1 - idx[-1], 15)
                    emit(I(f"s_waitcnt lgkmcnt({n})")); st["lg"] = lg[len(lg) - n:] if n else []
                    if n == 0: st["smem"] = False
            elif it[0] == "raw":
                ins = I(it[1]); ins.tag = None
                emit(ins)
            elif it[0] == "w0":
                w = []
                if it[1]: w.append("vmcnt(0)"); st["vm"] = []
                if it[2]: w.append("lgkmcnt(0)"); st["lg"] = []; st["smem"] = False
                emit(I("s_waitcnt " + " ".join(w)))
            elif it[0] == "fork":
                alt = dict(hist=list(st["hist"]), vm=list(st["vm"]), lg=list(st["lg"]), smem=st["smem"])
                body = resolve(it[2], alt, tail)
                tail.extend([it[1] + ":"] + body + ["    s_nop 15", "    s_nop 3", f"    s_branch {it[3]}"])
                forks[it[3]] = alt
            elif it[0] == "join":
                alt = forks[it[1]]
                assert alt["vm"] == st["vm"], (alt["vm"], st["vm"])
                assert not alt["lg"], alt["lg"]
                out.append(it[1] + ":")
            continue
        if it.cls == "vmem":
            assert len(st["vm"]) < 63, "too many outstanding vmem ops: " + it.text
            st["vm"].append(it.tag)
        elif it.cls == "ds": st["lg"].append(it.tag)
        elif it.cls == "smem": st["lg"].append(it.tag); st["smem"] = True
        emit(it)
    if top: out.extend(tail)
    return out

def groups_of(prog, n=1):
    it = prog.items if isinstance(prog, Prog) else prog
    return [it[i:i+n] for i in range(0, len(it), n)]

def weave(slots, *streams):
    extra = [[] for _ in slots]
    for groups, a, b in streams:
        n = len(groups); span = b - a + 1
        for i, g in enumerate(groups):
            extra[a + (i * span) // n].extend(g)
    out = []
    for s, e in zip(slots, extra):
        out.extend(s); out.extend(e)
    return out

import subprocess, tempfile, os
_WIDEN_OK = ("v_exp_f32", "v_rcp_f32", "v_mov_b32", "v_lshlrev_b32", "v_lshrrev_b32", "v_and_b32", "v_or_b32", "v_xor_b32", "v_add_u32",
             "v_sub_u32", "v_mul_f32", "v_add_f32", "v_mul_u32_u24", "v_subrev_u32", "v_min_u32")
def inst_sizes(text):
    d = tempfile.mkdtemp(); s = os.path.join(d, "a.s"); o = os.path.join(d, "a.o")
    open(s, "w").write(text)
    subprocess.run(["clang", "-x", "assembler", "-target", "amdgcn-amd-amdhsa", "-mcpu=gfx950", "-c", s, "-o", o], check=True)
    r = subprocess.run(["llvm-objdump", "-d", "--mcpu=gfx950", o], capture_output=True, text=True).stdout
    sz = []
    for l in r.splitlines():
        m = re.search(r"//\s+[0-9A-F]{12}:\s+((?:[0-9A-F]{8}\s*)+)", l)
        if m: sz.append(4 * len(m.group(1).split()))
    return sz
def align_pass(hdr, body, ftr, minrun=2, nopmin=5):
    sz = inst_sizes("\n".join(hdr + body + ftr) + "\n")
    idx = [i for i, l in enumerate(body) if l.startswith("    ")]
    assert len(idx) == len(sz), (len(idx), len(sz))
    body = list(body); ins = {}
    off = 0; n = len(idx); k = 0
    while k < n:
        if sz[k] == 8 and off % 8 == 4 and (k == 0 or sz[k-1] != 8):
            run = 0; mf = 0
            while k + run < n and sz[k+run] == 8:
                mf += "v_mfma" in body[idx[k+run]]; run += 1
            if run >= minrun and mf * 4 < run:
                j = k - 1; done = False
                while j >= 0 and sz[j] == 4:
                    mn = body[idx[j]].split()[0]
                    if mn in _WIDEN_OK and ((k - j) % 2 == 1):
                        body[idx[j]] = body[idx[j]].replace(mn, mn + "_e64", 1); off += 4; done = True; break
                    j -= 1
                if not done and run >= nopmin:
                    ins[idx[k]] = "    s_nop 0"; off += 4
        off += sz[k]; k += 1
    out = []
    for i, l in enumerate(body):
        if i in ins: out.append(ins[i])
        out.append(l)
    return out
```

```python
import sys, struct
sys.path.insert(0, "dev")
from asmlib import *
NAME = "gated_mix__ssm_conv_h3__dense_activation_gelu__prompt"
NST = 10; NWAVES = 8

WS_KVT = 0; WS_Y = 0; WS_H = 8 << 20; WS_F = (13 << 20) + (768 << 10); WS_X = 16 << 20
EPO = WS_F; ARR = WS_F + 4096; F2 = WS_F + 98304; F1 = WS_F + 32768; F3 = WS_F + 49152; WS_G = WS_F + 65536
WS_SIZE = 16 << 20
TAGK = 0x9E3779B0
OOB = 0x80000000
XR = 0; WR = 65536; KST = 65536 + 49152 - 17680; VST = KST + 9360; U = 115200; HC = 124416; CP = 8256; CHP = 4128
SY = 157440; SHT = 157696; B1T = 158208; B2T = 158464; EPT = 158720; GWT = 161280; GWZ = 162304
EX = HC
PLACE = [x for s in range(3) for x in ([XR + w*16384 + s*4096 for w in range(4)] + [WR + s*12288 + i*4096 for i in range(3)])] + [XR + 3*4096]
ORD = [11*(j >> 2) + 3*(j & 3) + t for t in range(3) for j in range(8) if not (t == 2 and (j & 3) == 3)]
OT = WR + 3*12288
LDS_BYTES = 163840
WS = "s[28:31]"
sW, sMT1, sC1, sMT2, sNT, sFT0, sLIM, sTC, sXC, sWC = "s40", "s41", "s42", "s43", "s44", "s45", "s46", "s47", "s48", "s49"
sXL, sMTL, sW1_, sWh = "s50", "s51", "s52", "s53"
t0, t1, t2, t3 = "s56", "s57", "s58", "s59"
sCNT, sT2, sJH, sROT = "s60", "s63", "s96", "s97"
sHM = "s96"
fb = lambda x: "0x%08x" % struct.unpack("<I", struct.pack("<f", x))[0]
pr = lambda r, k="v": f"{k}[{r}:{r+1}]"
q4 = lambda r, k="v": f"{k}[{r}:{r+3}]"
flat = lambda gs: [x for g in gs for x in g]

def srd(p, base, ptr, size):
    p(f"s_mov_b32 s{base}, s{ptr}"); p(f"s_and_b32 s{base+1}, s{ptr+1}, 0xffff")
    p(f"s_mov_b32 s{base+2}, {size}"); p(f"s_mov_b32 s{base+3}, 0x20000")
def srd_off(base, ptr, off_s, size, sub=False):
    p = Prog()
    p(f"s_add_u32 s{base}, s{ptr}, {off_s}"); p(f"s_addc_u32 s{base+1}, s{ptr+1}, 0"); p(f"s_and_b32 s{base+1}, s{base+1}, 0xffff")
    p(f"s_sub_u32 s{base+2}, {size}, {off_s}" if sub else f"s_mov_b32 s{base+2}, {size}"); p(f"s_mov_b32 s{base+3}, 0x20000")
    return p.items
def unpack(p, lo, hi, src):
    p(f"v_lshlrev_b32 v{lo}, 16, v{src}"); p(f"v_and_b32 v{hi}, {sHM}, v{src}")
MAXSPIN = 0x8000
def retry(p, lab, tag, check, reloads, mask=None, sleep=1):
    p.wvm(tag)
    p(f"s_mov_b32 {sCNT}, 0")
    p(f"L_{lab}:")
    for c in check: p(c)
    p(f"s_and_b64 vcc, vcc, {mask or '-1'}")
    p(f"s_cbranch_scc0 L_{lab}_ok")
    if sleep: p(f"s_sleep {sleep}")
    for r in reloads: p.items.append(("raw", r))
    p(f"s_add_u32 {sCNT}, {sCNT}, 1")
    p(f"s_cmp_lt_u32 {sCNT}, {MAXSPIN}")
    p.items.append(("raw", "s_waitcnt vmcnt(0)"))
    p(f"s_cbranch_scc1 L_{lab}")
    p(f"L_{lab}_ok:")
def tagcheck(regs, tmp):
    o = [f"v_xor_b32 v{tmp}, {sTC}, v{regs[0]}"]
    for r in regs[1:]: o.append(f"v_bitop3_b32 v{tmp}, v{r}, {sTC}, v{tmp} bitop3:0xbe")
    o.append(f"v_cmp_ne_u32 vcc, 0, v{tmp}")
    return o

DEF = dict(pf=1, prio=2, prio2=0, vp8=3, flt=7, lag=12, sl_kv=8, sl_f2=4, sl_y=4, kvt=7, ncv=0, b8=61, bf=1, kbi=2, b0=12, b1=18, pw=0, pair=1, sigc=-2, go=3, fsh=0, f2t=11, c3i=49, tbi=9, tbn=99, tbg=1, rawi=-1, c3=1, wq=0, bs=1, f1i=49, outf="sc1", kvi=65, w2pw=0, f1k=3, f3pos=78, ck3=89, xf="", rot1=1, rot2=0, warmf=1, flagfirst=1, f2after=0, nh0=2, vprio=1)

def gen(stamps=False, **kw):
    P = dict(DEF); P.update(kw)
    KVF = P.get("kvf", "nt").replace("plain", "")
    global MAXSPIN; MAXSPIN = P.get("maxspin", 0x8000)
    class St:
        def __init__(s): s.n = 0
        def __call__(s, pp):
            if stamps:
                pp(f"s_memtime s[{64+2*s.n}:{65+2*s.n}]", tag="stamp"); s.n += 1
        def item(s):
            i = s.n; s.n += 1
            return [I(f"s_memtime s[{64+2*i}:{65+2*i}]", "stamp")] if stamps else []
    def early2(i):
        d = Prog()
        if stamps and P.get("early") == 2:
            d("s_memtime s[98:99]"); d.w0(vm=False, lg=True); d(f"v_writelane_b32 v0, s98, {44+i}")
        return d.items
    def e3(pp, i):
        if stamps and P.get("early") == 3:
            pp("s_memtime s[98:99]"); pp.w0(vm=False, lg=True); pp(f"v_writelane_b32 v0, s98, {44+i}")
    def early(pp, i):
        if stamps and P.get("early") == 1:
            pp("s_memtime s[98:99]"); pp.w0(vm=False, lg=True); pp(f"v_writelane_b32 v0, s98, {44+i}")
    def cnt(pp, i):
        if stamps: pp(f"v_writelane_b32 v0, {sCNT}, {32+i}")
    def dump(pp, st, vL16, role):
        if not stamps: return
        pp.w0(vm=True, lg=True)
        while st.n < NST - 1: st(pp)
        pp("s_memrealtime s[98:99]"); pp.w0(vm=False, lg=True)
        for i in range(st.n): pp(f"v_writelane_b32 v0, s{64+2*i}, {i+1}")
        pp(f"v_writelane_b32 v0, s98, {st.n+1}")
        pp(f"s_lshl_b32 {t0}, s2, 3"); pp(f"s_add_u32 {t0}, {t0}, {sW}"); pp(f"s_add_u32 {t0}, {t0}, {4*role}")
        pp(f"s_lshl_b32 {t0}, {t0}, 8"); pp(f"s_add_u32 {t0}, {t0}, {14<<20}")
        pp(f"v_lshrrev_b32 v6, 2, v{vL16}")
        pp(f"buffer_store_dword v0, v6, {WS}, {t0} offen")
        if P.get("dbgout") is not None and role == 1:
            pp(f"s_cmp_lg_u32 s2, {P['dbgout']}"); pp("s_cbranch_scc1 L_nodbg"); pp(f"s_cmp_lg_u32 {sW}, 0"); pp("s_cbranch_scc1 L_nodbg")
            pp("s_load_dwordx2 s[98:99], s[0:1], 104"); pp("v_writelane_b32 v0, s100, 11"); pp.w0(vm=False, lg=True)
            pp("s_mov_b64 exec, 0xffff"); pp("global_store_dword v6, v0, s[98:99]")
            pp("L_nodbg:")
    def rot_setup(pp):
        pp(f"s_mul_i32 {sROT}, {sMTL}, 11"); pp(f"s_lshr_b32 {sROT}, {sROT}, 1"); pp(f"s_bfe_u32 {t0}, s2, 0x20001"); pp(f"s_add_u32 {sROT}, {sROT}, {t0}")
        if P["hrot"]:
            pp(f"s_mul_i32 {t0}, {sNT}, 11"); pp(f"s_lshr_b32 {t0}, {t0}, 2"); pp(f"s_add_u32 {sROT}, {sROT}, {t0}")
        pp(f"s_sub_u32 {t0}, {sROT}, 22"); pp(f"s_cmp_ge_u32 {sROT}, 22"); pp(f"s_cselect_b32 {sROT}, {t0}, {sROT}")
    p = Prog()
    uL, uHI, u3, u7, u4, uA, uB, uC, uOOB, uSP, uKV = 120, 121, 122, 123, 124, 125, 126, 127, 128, 129, 130
    vL16, vL4, vZ, vTC = 1, 2, 3, 4
    sSO, sSM, sEL, sEH = "s32", "s33", "s34", "s35"
    p("s_cmp_ge_u32 s2, 256"); p("s_cbranch_scc1 L_end")
    p(f"v_lshrrev_b32 v{uA}, 6, v0")
    p("s_load_dwordx16 s[64:79], s[0:1], 0")
    p(f"v_readfirstlane_b32 {sW}, v{uA}")
    p("s_load_dwordx8 s[80:87], s[0:1], 64"); p("s_load_dwordx2 s[92:93], s[0:1], 96"); p("s_load_dwordx2 s[28:29], s[0:1], 112")
    if stamps: p("s_memtime s[98:99]"); p("s_memrealtime s[100:101]")
    if P["pf"]:
        p("s_getpc_b64 s[60:61]"); p(f"s_and_b32 {t0}, s2, 0xf8"); p(f"v_and_b32 v{uB}, 7, v0"); p(f"v_or_b32 v{uB}, {t0}, v{uB}"); p(f"v_lshlrev_b32 v{uB}, 7, v{uB}")
        p(f"v_min_u32 v{uB}, L_codeend-L_codestart-128, v{uB}")
        p(f"s_cmp_lg_u32 {sW}, 7"); p("s_cbranch_scc1 L_npf")
        p.items.append(("raw", f"global_load_dword v131, v{uB}, s[60:61]"))
        p("L_npf:")
    p("s_mov_b32 s34, 0x50401808"); p("s_mov_b32 s35, 0x58585870"); p(f"s_lshl_b32 {t0}, {sW}, 3"); p(f"s_lshr_b64 s[34:35], s[34:35], {t0}")
    p(f"s_and_b32 {t2}, s34, 0xff"); p(f"s_load_dwordx2 s[36:37], s[0:1], {t2}")
    p(f"v_and_b32 v{uL}, 63, v0"); p(f"v_lshrrev_b32 v{u3}, 3, v{uL}"); p(f"v_and_b32 v{u7}, 7, v{uL}")
    p(f"v_lshlrev_b32 v{uKV}, 10, v{u3}"); p(f"v_lshl_add_u32 v{uKV}, v{u7}, 4, v{uKV}")
    p(f"s_and_b32 {t0}, s2, 7"); p(f"s_lshr_b32 {sMTL}, s2, 6"); p(f"s_bfe_u32 {sNT}, s2, 0x30003")
    if P.get("x_ntx"): p(f"s_xor_b32 {sNT}, {sNT}, {P['x_ntx']}")
    p(f"s_lshl_b32 {sMT2}, {t0}, 2"); p(f"s_add_u32 {sMT2}, {sMT2}, {sMTL}")
    p(f"s_lshl_b32 {sT2}, {sMT2}, 16"); p(f"s_lshl_b32 {t1}, {sNT}, 7"); p(f"s_add_u32 {sT2}, {sT2}, {t1}")
    p(f"s_and_b32 {t3}, {sW}, 3"); p(f"s_lshl_b32 s12, {t3}, 13"); p(f"s_add_u32 s12, s12, {sT2}"); p(f"s_add_u32 s13, s12, 32768")
    p(f"s_mul_i32 s14, {t3}, 1040"); p(f"s_cmp_ge_u32 {sW}, 4"); p(f"s_cselect_b32 s15, {VST-KST-1040}, 0"); p("s_add_u32 s14, s14, s15"); p(f"s_add_u32 s14, s14, {KST+1040}")
    p(f"s_mov_b32 s10, {0 if P.get('x_nokv') else 2097152}"); p("s_mov_b32 s11, 0x20000")
    p(f"s_lshl_b32 s6, {sNT}, 5"); p(f"s_add_u32 s6, s6, {sMT2}"); p(f"s_lshl_b32 s6, s6, 3"); p(f"s_add_u32 s6, s6, {sW}"); p("s_lshl_b32 s6, s6, 10")
    p(f"s_lshl_b32 s7, {sW}, 10"); p(f"s_cmp_ge_u32 {sW}, 4"); p(f"s_cselect_b32 s15, 32, 0"); p("s_add_u32 s7, s7, s15"); p(f"s_add_u32 s7, s7, {HC + 3*CP + 32}")
    p(f"s_mov_b32 s18, {0 if P.get('x_noraw') else 2097152}"); p("s_mov_b32 s19, 0x20000")
    p(f"v_lshlrev_b32 v{vL16}, 4, v{uL}"); p("s_mov_b32 m0, s14"); p(f"s_cmp_ge_u32 {sW}, 4")
    p.w0(vm=False, lg=True)
    p("s_cselect_b64 s[8:9], s[68:69], s[66:67]"); p("s_and_b32 s9, s9, 0xffff")
    p(f"buffer_load_dwordx4 v{uKV}, s[8:11], s12 offen {KVF} lds", tag="kv")
    p("s_add_u32 m0, s14, 4160"); p("s_mov_b32 s16, s72")
    p(f"buffer_load_dwordx4 v{uKV}, s[8:11], s13 offen {KVF} lds", tag="kv")
    p("s_mov_b32 m0, s7"); p("s_and_b32 s17, s73, 0xffff")
    if P["rawi"] < 0: p(f"buffer_load_dwordx4 v{vL16}, s[16:19], s6 offen {KVF} lds", tag="kv")
    p(f"s_and_b32 {sMT1}, {t0}, 6"); p(f"s_lshl_b32 {sMT1}, {sMT1}, 1"); p(f"s_add_u32 {sMT1}, {sMT1}, {sMTL}")
    if P.get("rot1", 1) == 0:
        p(f"s_lshr_b32 {sXC}, {t0}, 1"); p(f"s_add_u32 {sXC}, {sXC}, {sNT}"); p(f"s_lshl_b32 {t3}, {sMTL}, 1"); p(f"s_add_u32 {sXC}, {sXC}, {t3}")
    elif P.get("rot1", 1) == 1:
        p(f"s_lshr_b32 {sXC}, {t0}, 1"); p(f"s_lshl_b32 {t3}, {sNT}, 1"); p(f"s_add_u32 {sXC}, {sXC}, {t3}"); p(f"s_lshl_b32 {t3}, {sMTL}, 2"); p(f"s_add_u32 {sXC}, {sXC}, {t3}")
        p(f"s_and_b32 {t3}, {t0}, 1"); p(f"s_add_u32 {sXC}, {sXC}, {t3}")
    else:
        p(f"s_mov_b32 {sXC}, {t0}")
    p(f"s_and_b32 {sXC}, {sXC}, 7"); p(f"s_lshl_b32 {sXC}, {sXC}, 7")
    p(f"s_and_b32 {sJH}, {t0}, 1"); p(f"s_lshl_b32 {t0}, {sJH}, 3"); p(f"s_add_u32 {sC1}, {t0}, {sNT}")
    p(f"s_and_b32 {t3}, {sC1}, 3")
    p(f"s_lshr_b32 {t0}, {sC1}, 2"); p(f"s_mul_i32 {sFT0}, {t0}, 11"); p(f"s_mul_i32 {t0}, {t3}, 3"); p(f"s_add_u32 {sFT0}, {sFT0}, {t0}")
    p(f"s_cmp_eq_u32 {t3}, 3"); p(f"s_cselect_b32 {sLIM}, {12 if P.get('x_lim') else 8}, 12"); p(f"s_cmp_eq_u32 {sC1}, 15"); p(f"s_cselect_b32 {sLIM}, 4, {sLIM}")
    p("s_mov_b32 s38, 1024"); p(f"s_mov_b32 {sSO}, {sXC}"); p(f"s_mov_b32 {sSM}, {GWT}")
    p(f"s_cmp_eq_u32 {sW}, 5"); p(f"s_cselect_b32 {t0}, {sC1}, 0"); p(f"s_cselect_b32 {t2}, 1023, -1"); p(f"s_cmp_eq_u32 {t0}, 15"); p(f"s_cselect_b64 s[34:35], -1, 0")
    p(f"s_lshl_b32 {t0}, {sNT}, 9"); p(f"s_lshl_b32 {t3}, {sFT0}, 6")
    for (w, sz, so, dst, el) in ((1, 4096, t0, SHT, -1), (2, 2752, t3, B1T, 0xfff), (3, 1024, t1, B2T, 0xff), (4, WS_SIZE, EPO, EPT, 1)):
        p(f"s_cmp_eq_u32 {sW}, {w}")
        if sz != 1024: p(f"s_cselect_b32 s38, {sz}, s38")
        p(f"s_cselect_b32 {sSO}, {so}, {sSO}"); p(f"s_cselect_b32 {sSM}, {dst}, {sSM}"); p(f"s_cselect_b32 {sEL}, {el}, {sEL}")
    p(f"v_add_u32 v{uSP}, {sSO}, v{vL16}"); p(f"v_and_b32 v{uSP}, {t2}, v{uSP}")
    p(f"s_cmp_lg_u32 {sW}, 0"); p("s_cbranch_scc1 L_nh")
    p("s_mov_b32 s38, 2097152"); p(f"s_mov_b32 {sSM}, {KST}"); p(f"s_mov_b32 {sEH}, 0xffffff00")
    p(f"s_sub_u32 {t0}, {sT2}, 8192"); p(f"v_add_u32 v{uSP}, {t0}, v{uKV}")
    p("L_nh:")
    p("s_mov_b32 s39, 0x20000"); p("s_and_b32 s37, s37, 0xffff")
    p(f"s_mov_b32 m0, {sSM}"); p("s_mov_b64 exec, s[34:35]"); p("s_cbranch_execz L_spn")
    p.items.append(("raw", f"buffer_load_dwordx4 v{uSP}, s[36:39], 0 offen sc1 lds"))
    p("L_spn:"); p("s_mov_b64 exec, -1")
    if stamps: p("v_mov_b32 v0, 0"); p("v_writelane_b32 v0, s98, 0"); p("v_writelane_b32 v0, s100, 40")
    early(p, 0)
    if P["bs"]: p("s_barrier")
    p(f"v_lshrrev_b32 v{u4}, 4, v{uL}"); p(f"v_mov_b32 v{uOOB}, {OOB}"); p(f"v_mov_b32 v{vZ}, 0")
    p(f"s_mov_b32 s30, {WS_SIZE}"); p("s_mov_b32 s31, 0x20000"); p("s_and_b32 s29, s29, 0xffff")
    p(f"s_and_b32 {t0}, {sW}, 4"); p(f"s_and_b32 {sW}, {sW}, 3"); p(f"s_lshl_b32 {sXL}, {sW}, 14")
    p(f"s_and_b32 {sW1_}, {sW}, 1"); p(f"s_lshr_b32 {sWh}, {sW}, 1"); p(f"s_mov_b32 {sHM}, 0xffff0000")
    p(f"s_cmp_lg_u32 {t0}, 0"); p("s_cbranch_scc1 L_G")
    def startstamp(pp):
        if stamps: pp("v_mov_b32 v0, 0"); pp("v_writelane_b32 v0, s98, 0"); pp("v_writelane_b32 v0, s100, 40")
    v = Prog(); st = St()
    XS, W1, SSM, W2 = "s[4:7]", "s[20:23]", "s[16:19]", "s[24:27]"
    sWL, sW2L, sRAW, sDOFF, sD0, sD1, sKT, sYS = "s54", "s55", "s62", "s88", "s89", "s90", "s91", "s3"
    vX, vW, vW2_, vTW, vUW, vCA, vCB, vEW, vER, vEK, vZ1, vZ2, vZ0, vSY, vONE, vT = 6, 10, 13, 14, 15, 16, 17, 18, 19, 20, 21, 22, 23, 24, 25, 26
    ZR = 28; vW2 = 112
    def D(c):
        g = []; slot = c % 4
        for i in range(4):
            d = Prog()
            if i == 0:
                if c: d(f"s_add_u32 {sXC}, {sXC}, 128"); d(f"s_and_b32 {sXC}, {sXC}, 1023"); d(f"s_mul_i32 {sWC}, {sXC}, 1376")
                d(f"s_add_u32 m0, {sXL}, {XR + slot*4096}")
            d(f"buffer_load_dwordx4 v{vX+i}, {XS}, {sXC} offen offset:{1024*i} {P.get('xf', '')} lds", tag=f"c{c}")
            g.append(d.items)
        for i in range(3):
            d = Prog()
            if i == 0: d(f"s_add_u32 m0, {sWL}, {slot*12288}")
            d(f"buffer_load_dwordx4 v{vW+i}, {W1}, {sWC} offen offset:{1024*i} {P.get('wf', '')} lds", tag=f"c{c}")
            g.append(d.items)
        return g
    PL = [0, 1, 2, 4, 5, 3]
    def rotstep(d, reg, unit):
        d(f"s_add_u32 {reg}, {reg}, {unit}"); d(f"s_cmp_eq_u32 {reg}, {11*unit}"); d(f"s_cselect_b32 {reg}, 0, {reg}")
    def Wt(tau, pl, vw, sxl, sw2l):
        o = []
        for i in range(4):
            d = Prog()
            if i == 0:
                if tau: rotstep(d, sROT, 32768)
                d(f"s_add_u32 m0, {sxl}, {XR + pl*4096}" if pl < 4 else f"s_add_u32 m0, {sw2l}, {WR + (pl-4)*4096}")
            d(f"buffer_load_dwordx4 v{vw+i}, {W2}, {sROT} offen offset:{1024*i} lds", tag=f"w2_{tau}")
            o.append(d.items)
        return o
    def rot2(pp, first):
        if P["rot2"] >= 4:
            if P["rot2"] == 4: pp(f"s_and_b32 {sROT}, {sNT}, 1"); pp(f"s_mul_i32 {sROT}, {sROT}, 5")
            else: pp(f"s_and_b32 {sROT}, {sNT}, 3"); pp(f"s_mul_i32 {sROT}, {sROT}, 11"); pp(f"s_lshr_b32 {sROT}, {sROT}, 2")
            if first: pp(f"s_add_u32 {sROT}, {sROT}, {first}")
            pp(f"s_sub_u32 {t0}, {sROT}, 11"); pp(f"s_cmp_ge_u32 {sROT}, 11"); pp(f"s_cselect_b32 {sROT}, {t0}, {sROT}")
        elif P["rot2"]:
            pp(f"s_mul_i32 {sROT}, {sMTL}, {[0, 3, 0, 1][P['rot2']]}"); pp(f"s_and_b32 {t0}, s2, 7"); pp(f"s_add_u32 {sROT}, {sROT}, {t0}")
            if first: pp(f"s_add_u32 {sROT}, {sROT}, {first}")
            for _ in range(2): pp(f"s_sub_u32 {t0}, {sROT}, 11"); pp(f"s_cmp_ge_u32 {sROT}, 11"); pp(f"s_cselect_b32 {sROT}, {t0}, {sROT}")
        else: pp(f"s_mov_b32 {sROT}, {first}")
    if P["pw"] == 3:
        v(f"s_and_b32 {t0}, s2, 7"); v(f"s_lshr_b32 {t2}, s2, 3")
        v(f"s_cmp_eq_u32 {sW}, 2"); v("s_cbranch_scc1 L_pw6"); v(f"s_cmp_eq_u32 {sW}, 3"); v("s_cbranch_scc1 L_pw7")
        v(f"s_lshl_b32 {t0}, {t0}, 18"); v(f"s_lshl_b32 {t2}, {t2}, 13"); v(f"s_add_u32 {t0}, {t0}, {t2}"); v(f"s_lshl_b32 {t2}, {sW}, 12"); v(f"s_add_u32 {t0}, {t0}, {t2}")
        v(f"v_and_b32 v{uB}, 31, v{uL}"); v(f"v_lshl_add_u32 v{uC}, v{uB}, 7, {t0}"); v("s_mov_b64 s[4:5], s[64:65]")
        v("s_branch L_pwd")
        v("L_pw6:")
        v(f"s_lshr_b32 {t0}, {t0}, 1"); v(f"s_lshl_b32 {t0}, {t0}, 5"); v(f"s_add_u32 {t0}, {t0}, {t2}"); v(f"s_mul_i32 {t0}, {t0}, {4*2752}")
        v(f"s_mul_i32 {t2}, {sJH}, 1344"); v(f"s_add_u32 {t0}, {t0}, {t2}")
        v(f"v_mul_u32_u24 v{uC}, 2752, v{u4}"); v(f"v_and_b32 v{uB}, 15, v{uL}"); v(f"v_lshlrev_b32 v{uB}, 7, v{uB}")
        v(f"v_min_u32 v{uB}, 1404, v{uB}"); v(f"v_add3_u32 v{uC}, v{uC}, v{uB}, {t0}"); v("s_mov_b64 s[4:5], s[78:79]")
        v("s_branch L_pwd")
        v("L_pw7:")
        v(f"s_mul_i32 {t0}, s2, {43*128}"); v(f"v_min_u32 v{uC}, {42 if P['w2pw'] < 0 else 0}, v{uL}"); v(f"v_lshl_add_u32 v{uC}, v{uC}, 7, {t0}"); v("s_mov_b64 s[4:5], s[82:83]")
        v("L_pwd:")
        v(f"global_load_dword v131, v{uC}, s[4:5]", tag="tch")
    v(f"v_xor_b32 v{vX}, v{u7}, v{u4}"); v(f"v_lshlrev_b32 v{vX}, 4, v{vX}"); v(f"v_lshl_add_u32 v{vX}, v{u3}, 10, v{vX}")
    v(f"v_xor_b32 v{vX+1}, 64, v{vX}"); v(f"v_add_u32 v{vX+1}, 7168, v{vX+1}"); v(f"v_add_u32 v{vX+2}, 14336, v{vX}"); v(f"v_add_u32 v{vX+3}, 14336, v{vX+1}")
    v(f"s_lshl_b32 {t2}, {sMT1}, 17"); v(f"s_lshl_b32 {t0}, {sW}, 15"); v(f"s_add_u32 {t2}, {t2}, {t0}")
    v.ext(srd_off(4, 64, t2, 0 if P.get("x_nox") else 32768))
    v.ext(flat(D(0)[:4]))
    for i in range(3):
        v(f"v_add_u32 v{uA}, {64*i}, v{uL}"); v(f"v_mul_u32_u24 v{uB}, 171, v{uA}"); v(f"v_lshrrev_b32 v{uB}, 11, v{uB}")
        v(f"v_mul_u32_u24 v{uC}, 12, v{uB}"); v(f"v_sub_u32 v{uC}, v{uA}, v{uC}")
        v(f"v_mul_u32_u24 v{uB}, 2752, v{uB}"); v(f"v_cmp_gt_u32 vcc, {sLIM}, v{uC}"); v(f"v_lshl_add_u32 v{uB}, v{uC}, 4, v{uB}")
        v(f"v_subrev_u32 v{uB}, {1024*i}, v{uB}"); v(f"v_cndmask_b32 v{vW+i}, v{uOOB}, v{uB}, vcc")
    v(f"s_mul_i32 {sWC}, {sXC}, 1376")
    v(f"s_mul_i32 {t2}, {sW}, {16*2752}"); v(f"s_add_u32 {t3}, {t3}, {t2}")
    v(f"s_mul_i32 {sWL}, {sW}, 3072"); v(f"s_add_u32 {sWL}, {sWL}, {WR}")
    v.ext(srd_off(20, 78, t3, 512*2752, sub=True))
    if P.get("x_now1"): v("s_mov_b32 s22, 0")
    v.ext(flat(D(0)[4:]))
    early(v, 1)
    m = v
    for i in range(4): m(f"v_mov_b32 v{ZR+i}, 0")
    m(f"v_add_u32 v{uA}, {GWZ}, v{vL16}"); m(f"ds_write_b128 v{uA}, {q4(ZR)}", tag="gz")
    m(f"v_mov_b32 v{vSY}, {SY}"); m(f"ds_write_b128 v{vSY}, {q4(ZR)}", tag="gz"); m(f"ds_write_b128 v{vSY}, {q4(ZR)} offset:16", tag="gz"); m(f"ds_write_b128 v{vSY}, {q4(ZR)} offset:32", tag="gz"); m(f"v_mov_b32 v{vONE}, 1")
    m(f"s_lshl_b32 {t0}, {sNT}, 7"); m(f"s_lshl_b32 {t1}, {sMT2}, 2"); m(f"s_add_u32 {t0}, {t0}, {t1}")
    m(f"s_load_dword {sD0}, s[74:75], {t0}", tag="ssmD")
    m(f"s_lshl_b32 {t0}, {sNT}, 5"); m(f"s_add_u32 {t0}, {t0}, {sMT2}"); m(f"s_lshl_b32 {t0}, {t0}, 13")
    m(f"s_lshl_b32 {t1}, {sW}, 11"); m(f"s_add_u32 {sDOFF}, {t0}, {t1}"); m(f"s_lshl_b32 {t0}, {sNT}, 11"); m(f"s_lshr_b32 {t1}, {sMT2}, 3"); m(f"s_lshl_b32 {t1}, {t1}, 9"); m(f"s_add_u32 {sKT}, {t0}, {t1}"); m(f"s_add_u32 {sKT}, {sKT}, {F1}")
    m(f"s_lshl_b32 {t1}, {sW}, 9"); m(f"s_add_u32 {t0}, {t0}, {t1}"); m(f"s_lshl_b32 {t1}, {sMT2}, 4"); m(f"s_add_u32 {t0}, {t0}, {t1}"); m(f"s_add_u32 {sYS}, {t0}, {F3}")
    m(f"s_lshl_b32 {t1}, {sW1_}, 11"); m(f"s_mul_i32 {sRAW}, {sWh}, {CHP}"); m(f"s_add_u32 {sRAW}, {sRAW}, {t1}"); m(f"s_add_u32 {sRAW}, {sRAW}, {HC+32}")
    m(f"v_add_u32 v{vTW}, {sRAW}, v{vL16}")
    m(f"v_and_b32 v{uA}, 1, v{u3}")
    m(f"v_mul_u32_u24 v{vZ1}, {CHP}, v{u7}"); m(f"v_lshl_add_u32 v{vZ1}, v{uA}, 4, v{vZ1}"); m(f"v_add_u32 v{vZ1}, {HC}, v{vZ1}"); m(f"ds_write_b128 v{vZ1}, {q4(ZR)}", tag="gz")
    m(f"v_lshrrev_b32 v{uHI}, 5, v{uL}"); m(f"v_and_b32 v{uB}, 31, v{uL}")
    m(f"v_mul_u32_u24 v{vZ2}, 4608, v{uHI}"); m(f"v_lshl_add_u32 v{vZ2}, v{uB}, 4, v{vZ2}"); m(f"v_add_u32 v{vZ2}, {U}, v{vZ2}"); m(f"ds_write_b128 v{vZ2}, {q4(ZR)}", tag="gz")
    m(f"s_mul_i32 {t0}, {sWh}, 4608"); m(f"s_add_u32 {t1}, {t0}, {t1}"); m(f"s_add_u32 {t1}, {t1}, {U+512}")
    m(f"v_add_u32 v{vUW}, {t1}, v{vL16}"); m(f"v_lshlrev_b32 v{vL4}, 4, v{uB}")
    m(f"s_lshl_b32 {t1}, {sW1_}, 8"); m(f"s_sub_u32 {t0}, {t0}, {t1}"); m(f"s_add_u32 {t0}, {t0}, {U + 512 - 32 - 192}")
    m(f"v_and_b32 v{uA}, 15, v{uL}"); m(f"v_lshlrev_b32 v{uB}, 5, v{uA}"); m(f"v_lshl_add_u32 v{uB}, v{u4}, 4, v{uB}"); m(f"v_add_u32 v{vCB}, {t0}, v{uB}")
    m(f"v_and_b32 v{uB}, 1, v{u4}"); m(f"v_lshlrev_b32 v{vW2}, 2, v{uB}"); m(f"v_and_b32 v{uC}, 2, v{u4}"); m(f"v_lshl_or_b32 v{uB}, v{uC}, 2, v{uB}")
    m(f"v_xor_b32 v{uA}, v{uA}, v{uB}"); m(f"v_lshl_add_u32 v{uA}, v{u4}, 4, v{uA}"); m(f"v_lshlrev_b32 v{uA}, 4, v{uA}")
    m(f"s_lshl_b32 {t0}, {sW}, 13"); m(f"s_add_u32 {t0}, {t0}, {EX}"); m(f"v_add_u32 v{vEW}, {t0}, v{uA}")
    m(f"v_xor_b32 v{vW2}, v{vW2}, v{u7}"); m(f"v_lshlrev_b32 v{vW2}, 4, v{vW2}"); m(f"v_lshl_add_u32 v{vW2}, v{u3}, 10, v{vW2}")
    for i in range(1, 4): m(f"v_add_u32 v{vW2+i}, {7168*i}, v{vW2}")
    m(f"v_lshrrev_b32 v{uA}, 2, v{uL}"); m(f"v_and_b32 v{uB}, 1, v{uL}"); m(f"v_and_b32 v{uC}, 2, v{uL}"); m(f"v_lshl_or_b32 v{uB}, v{uC}, 2, v{uB}")
    m(f"v_xor_b32 v{uA}, v{uA}, v{uB}"); m(f"v_and_b32 v{uC}, 3, v{uL}"); m(f"v_lshl_add_u32 v{uA}, v{uC}, 4, v{uA}"); m(f"v_lshlrev_b32 v{uA}, 4, v{uA}")
    m(f"s_lshl_b32 {t0}, {sW}, 11"); m(f"s_add_u32 {t0}, {t0}, {EX}"); m(f"v_add_u32 v{vER}, {t0}, v{uA}")
    m(f"s_lshl_b32 {sW2L}, {sW}, 13"); m(f"s_lshl_b32 {t0}, {sW}, 10"); m(f"s_add_u32 {t0}, {t0}, {U+512}"); m(f"v_lshl_add_u32 v{vEK}, v{uL}, 3, {t0}")
    m(f"v_bfe_u32 v{uA}, v{uL}, 2, 2"); m(f"v_mul_u32_u24 v{uB}, {CP}, v{uA}"); m(f"v_lshl_add_u32 v{uB}, v{u4}, 4, v{uB}")
    m(f"v_lshlrev_b32 v{uC}, 3, v{uC}"); m(f"v_sub_u32 v{uB}, v{uC}, v{uB}")
    m(f"s_mul_i32 {t0}, {sWh}, {CHP}"); m(f"s_add_u32 {t0}, {t0}, {t1}"); m(f"s_add_u32 {t0}, {t0}, {HC + 3*CP + 56}"); m(f"v_add_u32 v{vCA}, {t0}, v{uB}")
    rot2(m, 0); m(f"s_lshl_b32 {sROT}, {sROT}, 15")
    m(f"s_mul_i32 {t0}, {sW}, {11*32768}"); m(f"s_lshl_b32 {t1}, {sNT}, 7"); m(f"s_add_u32 {t1}, {t0}, {t1}")
    m.ext(srd_off(24, 82, t1, 1376*1024, sub=True))
    if P.get("x_now2", 0) & 1: m("s_mov_b32 s26, 0")
    vPW = 5
    srd(m, 8, 82, 1376*1024)
    m(f"s_lshl_b32 {t0}, s2, 2"); m(f"s_add_u32 {t0}, {t0}, {sW}"); m(f"s_mul_i32 {t0}, {t0}, {11*128}")
    m(f"v_min_u32 v{vPW}, 10, v{uL}"); m(f"v_lshl_add_u32 v{vPW}, v{vPW}, 7, {t0}")
    if P["c3"]:
        m(f"s_lshr_b32 {t0}, s2, 3"); m(f"s_lshl_b32 {t0}, {t0}, 2"); m(f"s_add_u32 {t0}, {t0}, {sW}"); m(f"s_mul_i32 {t0}, {t0}, {11*1024}"); m(f"s_add_u32 {t0}, {t0}, 384")
        m(f"v_and_b32 v{uA}, 31, v{uL}"); m(f"v_min_u32 v{uA}, 10, v{uA}"); m(f"v_lshl_add_u32 v{uA}, v{uA}, 10, {t0}")
        if P["c3i"] < 0: m(f"v_cmp_gt_u32 vcc, 32, v{uL}"); m(f"v_cndmask_b32 v{vPW}, v{uA}, v{vPW}, vcc")
        else: m(f"v_mov_b32 v13, v{uA}")
    v.w0(vm=False, lg=True)
    m(f"s_and_b32 {sD1}, {sD0}, 0xffff0000"); m(f"s_lshl_b32 {sD0}, {sD0}, 16")
    bk = Prog()
    bk.wvm("kv")
    early(bk, 2)
    bk("s_barrier")
    if P["bf"]: bk("s_barrier")
    early(bk, 3)
    bk(f"ds_read_b32 v{vT}, v{vSY} offset:{EPT-SY}", tag="ep")
    tg_ = Prog(); tg_.wlg("ep")
    tg_(f"v_readfirstlane_b32 {sTC}, v{vT}"); tg_(f"s_add_u32 {sTC}, {sTC}, {TAGK}"); tg_(f"s_and_b32 {sTC}, {sTC}, 0xfffffff0")
    def mk_tb(R0, C, vtw):
        tb = Prog()
        for r in range(2):
            tb(f"ds_read_b64 {pr(R0+8*r)}, v{vtw} offset:{3*CP + 1024*r - 8}", tag="rw"); tb(f"ds_read_b128 {q4(R0+8*r+2)}, v{vtw} offset:{3*CP + 1024*r}", tag="rw")
        tb.wlg("rw")
        for r in range(2):
            R = R0 + 8*r; c = C + 12*r
            for i in range(4):
                tb(f"v_alignbit_b32 v{c+i}, v{R+2+i}, v{R+1+i}, 16"); tb(f"v_mov_b32 v{c+4+i}, v{R+1+i}"); tb(f"v_alignbit_b32 v{c+8+i}, v{R+1+i}, v{R+i}, 16")
            for cc in range(3): tb(f"ds_write_b128 v{vtw}, {q4(c+4*cc)} offset:{(2-cc)*CP + r*1024}", tag="z")
        return tb
    tb = mk_tb(64, 80, vTW) if P["tbg"] == 0 else Prog()
    rawg = Prog()
    rawg(f"s_add_u32 m0, {sRAW}, {3*CP}")
    rawg(f"buffer_load_dwordx4 v{vL16}, {SSM}, {sDOFF} offen {KVF} lds", tag="raw")
    rawg(f"buffer_load_dwordx4 v{vL16}, {SSM}, {sDOFF} offen offset:1024 {KVF} lds", tag="raw")
    KT = 104
    kl = [f"buffer_load_dwordx4 {q4(KT+4*i)}, v{vL16}, {WS}, {sDOFF} offen offset:{1024*i} sc1" for i in range(2)]
    f1ld = f"buffer_load_dword v{vT+1}, v{vL4}, {WS}, {sKT} offen sc1"
    CACC = 32; CAf = [("a", 0), ("a", 32)]; CBf = [("a", 64), ("v", 64)]
    def conv_reads(ii):
        o = []; b = ii & 1
        for a in range(8):
            o.append(I(f"ds_read_b128 {q4(CBf[b][1]+4*a, CBf[b][0])}, v{vCB} offset:{512*a + 64*(3-ii)}", f"cv{ii}_{a}"))
            for j in range(2):
                o.append(I(f"ds_read_b64_tr_b16 {pr(CAf[b][1]+4*a+2*j, 'a')}, v{vCA} offset:{512*a + 64*ii + (8 if j == 0 else 0)}", f"cv{ii}_{a}"))
        return o
    arr1 = Prog(); arr1.w0(vm=False, lg=True)
    arr1("s_mov_b64 exec, 1"); arr1(f"ds_add_u32 v{vSY}, v{vONE} offset:4"); arr1("s_mov_b64 exec, -1")
    cslots = []
    seen = set()
    for ii in range(4):
        b = ii & 1
        rd = conv_reads(ii + 1) if ii < 3 else []
        pairs = sorted([(a, bb) for a in range(8) for bb in range(8 - a)], key=lambda x: (max(x), x))
        for k, (a, bb) in enumerate(pairs):
            t = a + bb
            cc = q4(CACC+4*t) if t in seen else "0"
            seen.add(t)
            sl = conv_reads(0) if (ii == 0 and k == 0) else []
            sl.append(("wlg", f"cv{ii}_{max(a, bb)}" if ii == 0 else f"cv{ii}_7"))
            sl.append(I(f"v_mfma_f32_16x16x32_bf16 {q4(CACC+4*t)}, {q4(CAf[b][1]+4*a, 'a')}, {q4(CBf[b][1]+4*bb, CBf[b][0])}, {cc}"))
            kk = k - (8 if ii == 0 else 0)
            if 0 <= kk < len(rd): sl.append(rd[kk])
            if ii == 3 and k == 0: sl += arr1.items
            cslots.append(sl)
    kw_ = Prog()
    kw_.wvm("kvt")
    for i in range(2): kw_(f"ds_write_b128 v{vUW}, {q4(KT+4*i)} offset:{1024*i}", tag="z")
    kw_.w0(vm=False, lg=True)
    seq = flat([D(c) for c in range(1, 8)])
    seq += flat([Wt(t, PL[t], vW2, sXL, sW2L) for t in range(6)])
    lag = P["lag"]
    bpos = [min(7*c + lag, ([99]*6 + [53, 57])[c]) for c in range(8)]
    bpos[0] = P.get("b0", bpos[0]); bpos[1] = P.get("b1", bpos[1])
    assert P["bf"] or bpos[0] <= 11
    assert P["kbi"] <= min(11, bpos[0]) and all(bpos[c] <= 7*(c + 2) for c in range(1, 8)) and bpos == sorted(set(bpos))
    bar = {bpos[c]: c for c in range(8)}
    b8 = P["b8"]; assert 57 < b8 <= 69
    kvt = P["kvt"]
    ncv = P["ncv"] if kvt < 7 else 0
    cstart = 7*(kvt + 1) + lag
    tbg = groups_of(tb, P["tbn"]); ti = 0; ci = 0
    for i, gq in enumerate(seq):
        if i == P["kbi"]: v.ext(bk)
        if i in bar:
            c = bar[i]
            if 1 <= c <= 4: v.ext(early2(2*c - 2))
            v.wvm(f"c{c}")
            if 1 <= c <= 4: v.ext(early2(2*c - 1))
            if c == kvt + 1: v.ext(kw_)
            v("s_barrier")
            if c in (0, 3, 7): st(v)
        if i == P["rawi"]: v.ext(rawg)
        if i == P["f1i"]: v(f1ld, tag="f1")
        if i == 49:
            if P["warmf"]:
                v(f"v_mov_b32 v{vT}, {sTC}"); v(f"v_add_u32 v{vT}, 8, v{vT}"); v("s_mov_b64 exec, 1")
                v(f"buffer_store_dword v{vT}, v{vZ}, {WS}, {sYS} offen sc1", tag="wf"); v("s_mov_b64 exec, -1")
        if i == P["kvi"]:
            retry(v, "f1", "f1", [f"v_cmp_ne_u32 vcc, {sTC}, v{vT+1}"], [f1ld], sleep=P["sl_kv"]); cnt(v, 0)
            for x in kl: v(x, tag="kvt")
        if i == P["c3i"] and P["c3"]: v(f"buffer_load_dword v13, v13, s[8:11], 0 offen", tag="pw")
        if i == P["w2pw"]:
            v(f"buffer_load_dword v{vPW}, v{vPW}, s[8:11], 0 offen", tag="pw")
        if i == b8:
            v("s_barrier")
            if P["vp8"]: v(f"s_setprio {P['vp8']}")
        if i > 57 and P["wq"]: v.items.append(("wmax", P["wq"]))
        v.ext(gq)
        if i == P["kbi"] + 2: v.ext(tg_)
        if i >= P["tbi"] and ti < len(tbg): v.ext(tbg[ti]); ti += 1
        if ncv and cstart <= i < b8:
            assert ti == len(tbg)
            upto = (ncv * (i - cstart + 1)) // (b8 - cstart)
            while ci < upto: v.ext(cslots[ci]); ci += 1
    while ti < len(tbg): v.ext(tbg[ti]); ti += 1
    def varrive(i):
        v.w0(vm=False, lg=True)
        v("s_mov_b64 exec, 1"); v(f"ds_add_u32 v{vSY}, v{vONE} offset:{4*i}"); v("s_mov_b64 exec, -1")
    def vsync(i, arrive=True, n=4):
        if arrive: varrive(i)
        v(f"s_mov_b32 {sCNT}, 0")
        v(f"L_vs{i}:")
        v(f"ds_read_b32 v{vT}, v{vSY} offset:{4*i}"); v(f"s_add_u32 {sCNT}, {sCNT}, 1")
        v.w0(vm=False, lg=True)
        v(f"v_cmp_ne_u32 vcc, {n}, v{vT}"); v(f"s_cbranch_vccz L_vs{i}_ok")
        if n == 8: v("s_sleep 1")
        v(f"s_cmp_lt_u32 {sCNT}, 0x40000"); v(f"s_cbranch_scc1 L_vs{i}")
        v(f"L_vs{i}_ok:")
    v(f"s_lshl_b32 {t0}, {sW}, 2"); v(f"v_add_u32 v{vT+1}, {t0}, v{vSY}")
    if kvt >= 7: v.ext(kw_)
    varrive(0)
    def wsig():
        v.w0(vm=True, lg=False)
        v(f"ds_write_b32 v{vT+1}, v{vONE} offset:16", tag="sig")
    if P["sigc"] == -2: wsig()
    vsync(0, arrive=False)
    v.ext(cslots[0][:24]); cslots[0] = cslots[0][24:]
    if P["sigc"] == -1: wsig()
    st(v)
    v(f"s_mov_b32 {sCNT}, 0")
    v("L_vg:")
    v(f"ds_read_b32 v{vT}, v{vT+1} offset:32"); v(f"s_add_u32 {sCNT}, {sCNT}, 1")
    v.w0(vm=False, lg=True)
    v(f"v_cmp_eq_u32 vcc, 0, v{vT}"); v("s_cbranch_vccz L_vg_ok")
    v("s_sleep 1"); v(f"s_cmp_lt_u32 {sCNT}, 0x40000"); v("s_cbranch_scc1 L_vg")
    v("L_vg_ok:")
    st(v)
    v(f"s_setprio {P['vprio']}")
    while ci < 144:
        if ci == P["sigc"]: wsig()
        v.ext(cslots[ci]); ci += 1
    e3(v, 0)
    vsync(1, arrive=False)
    e3(v, 1)
    st(v)
    for t in range(8): v(f"ds_write_b128 v{vEW}, {q4(CACC+4*t)} offset:{1024*t}", tag="ex")
    E = 64; KVr = 96; KVf = 104; YO = 120
    e3(v, 2)
    vsync(2)
    e3(v, 3)
    for tt in range(2):
        for wv in range(4): v(f"ds_read_b128 {q4(E+(tt*4+wv)*4)}, v{vER} offset:{wv*8192 + tt*1024}", tag=f"exr{tt}")
        for ch in range(2): v(f"ds_read_b64 {pr(KVr+(tt*2+ch)*2)}, v{vEK} offset:{ch*4608 + tt*512}", tag=f"exr{tt}")
    for tt in range(2):
        v.wlg(f"exr{tt}")
        for ch in range(2):
            ee = E + (tt*4+2*ch)*4; r = KVr + (tt*2+ch)*2; f = KVf + (tt*2+ch)*4
            unpack(v, f, f+1, r); unpack(v, f+2, f+3, r+1)
            for i in range(4): v(f"v_add_f32 v{ee+i}, v{ee+i}, v{ee+4+i}")
            for i in range(4): v(f"v_fma_f32 v{ee+i}, v{f+i}, {sD0 if ch == 0 else sD1}, v{ee+i}")
        for i in range(4): v(f"v_cvt_pk_bf16_f32 v{YO+4*tt+i}, v{E+tt*16+i}, v{E+tt*16+8+i}")
        v(f"buffer_store_dwordx4 {q4(YO+4*tt)}, v{vL16}, {WS}, {sDOFF} offen offset:{1024*tt} sc1", tag="yst")
    st(v)
    v(f"v_mov_b32 v{vT}, {sTC}")
    e3(v, 4)
    v.wvm("yst")
    e3(v, 5)
    v("s_mov_b64 exec, 1"); v(f"buffer_store_dword v{vT}, v{vZ}, {WS}, {sYS} offen sc1"); v("s_mov_b64 exec, -1")
    v(f"s_or_b32 {t0}, s2, {sW}"); v(f"s_cmp_lg_u32 {t0}, 0"); v("s_cbranch_scc1 L_noep")
    cl = [f"buffer_load_dword v{64+i}, v{vL16}, {WS}, {t1} offen offset:{1024*i} sc1" for i in range(4)]
    v(f"s_mov_b32 {t1}, {ARR}")
    for x in cl: v(x, tag="cn")
    ck = tagcheck([64, 65, 66, 67], vT); ck[-1] = f"v_cmp_lt_u32 vcc, 15, v{vT}"
    retry(v, "cn", "cn", ck, cl, sleep=8)
    v(f"v_mov_b32 v{vT}, {sTC}"); v(f"s_mov_b32 {t0}, {EPO}"); v("s_mov_b64 exec, 1")
    v(f"buffer_store_dword v{vT}, v{vZ}, {WS}, {t0} offen sc1"); v("s_mov_b64 exec, -1")
    v("L_noep:")
    dump(v, st, vL16, 0)
    v("L_end:"); v("s_endpgm")
    g = Prog(); st = St()
    W2 = "s[24:27]"
    K, V, SP, HS, Q, OUT = "s[8:11]", "s[12:15]", "s[36:39]", "s[36:39]", "s[4:7]", "s[32:35]"
    sKL, sKO, sHS, sF2W, sF2R, sGS, sO, sY, sKV, sXS, sXR_, sFAST = "s54", "s55", "s61", "s62", "s88", "s89", "s90", "s91", "s3", "s94", "s95", "s24"
    CK = "s[20:21]"
    vPOLL, vXA, vWA, vPA, vKS, vH2, vB2, vKV, vC0 = 5, 6, 10, 11, 12, 13, 14, 18, 22
    vGA = 142; vB2V = 143
    ACC = 24
    g("L_G:")
    if P["prio"]: g(f"s_setprio {P['prio']}")
    early(g, 1)
    g(f"v_lshrrev_b32 v{uHI}, 5, v{uL}")
    srd(g, 4, 64, 2097152); srd(g, 32, 92, 2097152)
    sW2L_, sRH, sGW = "s94", "s95", "s22"
    g(f"s_lshl_b32 {t1}, {sMT1}, 1"); g(f"s_add_u32 {t0}, {sWh}, {t1}")
    g(f"s_mul_i32 {sHS}, {t0}, 44"); g(f"s_add_u32 {sHS}, {sHS}, {sFT0}"); g(f"s_lshl_b32 {sHS}, {sHS}, 12")
    g(f"s_lshl_b32 {t1}, {sW1_}, 11"); g(f"s_add_u32 {sHS}, {sHS}, {t1}"); g(f"s_add_u32 {sHS}, {sHS}, {WS_H}")
    fs = P["fsh"]
    g(f"s_lshl_b32 {t0}, {t0}, {9+fs}"); g(f"s_lshl_b32 {t1}, {sC1}, {5+fs}"); g(f"s_add_u32 {t0}, {t0}, {t1}"); g(f"s_lshl_b32 {t1}, {sW1_}, {4+fs}"); g(f"s_add_u32 {t0}, {t0}, {t1}")
    g(f"s_add_u32 {sF2W}, {t0}, {F2}"); g(f"s_lshl_b32 {sF2R}, {sMT2}, {9+fs}"); g(f"s_add_u32 {sF2R}, {sF2R}, {F2}")
    g(f"s_mul_i32 {t0}, {sMT2}, 44"); g(f"s_mul_i32 {t1}, {sW}, 11"); g(f"s_add_u32 {t0}, {t0}, {t1}"); g(f"s_lshl_b32 {t0}, {t0}, 12"); g(f"s_add_u32 {t0}, {t0}, {WS_H}")
    g.ext(srd_off(36, 28, t0, 0 if P.get("x_noh") else 45056))
    if P.get("x_nohst"): g(f"s_mov_b32 {sHS}, {WS_SIZE}")
    g(f"s_mul_i32 {t0}, {sW}, {11*32768}"); g(f"s_lshl_b32 {t1}, {sNT}, 7"); g(f"s_add_u32 {t1}, {t0}, {t1}")
    g.ext(srd_off(24, 82, t1, 1376*1024, sub=True))
    if P.get("x_now2", 0) & 2: g("s_mov_b32 s26, 0")
    rot2(g, 0); g(f"s_lshl_b32 {sRH}, {sROT}, 12"); rot2(g, 5); g(f"s_lshl_b32 {sROT}, {sROT}, 15")
    g(f"s_lshl_b32 {sW2L_}, {sW}, 13")
    g(f"s_lshl_b32 {t2}, {sMT2}, 1"); g(f"s_add_u32 {t2}, {t2}, {sWh}")
    g(f"s_lshl_b32 {sGS}, {t2}, 8"); g(f"s_add_u32 {sGS}, {sGS}, {WS_G}")
    g(f"s_lshl_b32 {sGW}, {sMT1}, 10"); g(f"s_lshl_b32 {t1}, {sW}, 8"); g(f"s_add_u32 {sGW}, {sGW}, {t1}"); g(f"s_add_u32 {sGW}, {sGW}, {WS_G}")
    g(f"s_lshl_b32 {t1}, {sWh}, 15"); g(f"s_add_u32 {sO}, {sT2}, {t1}"); g(f"s_lshl_b32 {t1}, {sW1_}, 6"); g(f"s_add_u32 {sO}, {sO}, {t1}")
    g(f"s_lshl_b32 {sY}, {sNT}, 18"); g(f"s_lshl_b32 {t1}, {sW1_}, 17"); g(f"s_add_u32 {sY}, {sY}, {t1}")
    g(f"s_lshl_b32 {t1}, {t2}, 7"); g(f"s_add_u32 {sY}, {sY}, {t1}")
    g(f"s_lshl_b32 {t0}, {sNT}, 11"); g(f"s_lshl_b32 {t1}, {sW}, 9"); g(f"s_add_u32 {sKL}, {t0}, {t1}"); g(f"s_lshl_b32 {t1}, {sMT2}, 4"); g(f"s_add_u32 {sKL}, {sKL}, {t1}"); g(f"s_add_u32 {sKL}, {sKL}, {F1}")
    g(f"s_lshr_b32 {t1}, {t2}, 4"); g(f"s_lshl_b32 {t1}, {t1}, 9"); g(f"s_add_u32 {t0}, {t0}, {t1}"); g(f"s_lshl_b32 {t1}, {sW1_}, 8"); g(f"s_add_u32 {t0}, {t0}, {t1}"); g(f"s_add_u32 {sKO}, {t0}, {F3}")
    g(f"s_lshl_b32 {sKV}, {sNT}, 18"); g(f"s_lshl_b32 {t1}, {sW}, 16"); g(f"s_add_u32 {sKV}, {sKV}, {t1}"); g(f"s_lshl_b32 {t1}, {sMT2}, 7"); g(f"s_add_u32 {sKV}, {sKV}, {t1}")
    g(f"v_lshlrev_b32 v{vKS}, 13, v{u3}"); g(f"v_lshl_add_u32 v{vKS}, v{u7}, 4, v{vKS}")
    g(f"v_bfe_u32 v{uA}, v{uL}, 2, 2"); g(f"v_and_b32 v{uC}, 3, v{uL}"); g(f"v_lshlrev_b32 v{uC}, 3, v{uC}")
    g(f"v_and_b32 v{uB}, 1, v{u4}"); g(f"v_lshl_add_u32 v{uC}, v{uB}, 5, v{uC}")
    g(f"v_lshl_add_u32 v{vWA}, v{uHI}, 3, v{uA}"); g(f"v_mul_u32_u24 v{vWA}, 192, v{vWA}"); g(f"v_add_u32 v{vWA}, v{vWA}, v{uC}"); g(f"v_add_u32 v{vWA}, {WR}, v{vWA}")
    g(f"v_lshl_add_u32 v{vB2}, v{uHI}, 2, v{uA}"); g(f"v_lshl_add_u32 v{vB2}, v{vB2}, 7, v{uC}")
    g(f"v_and_b32 v{uA}, 2, v{uA}"); g(f"v_lshlrev_b32 v{uA}, 5, v{uA}"); g(f"v_xor_b32 v{vB2}, v{vB2}, v{uA}")
    g(f"s_lshl_b32 {t0}, {sW1_}, 6"); g(f"v_xor_b32 v{vB2}, {t0}, v{vB2}")
    g(f"s_add_u32 {t0}, {sW2L_}, {WR}"); g(f"v_add_u32 v{vB2+2}, {t0}, v{vB2}"); g(f"v_add_u32 v{vB2}, {sXL}, v{vB2}")
    g(f"v_xor_b32 v{vB2+1}, 64, v{vB2}"); g(f"v_xor_b32 v{vB2+3}, 64, v{vB2+2}")
    g(f"v_lshlrev_b32 v{uB}, 2, v{uB}"); g(f"v_xor_b32 v{uB}, v{uB}, v{u7}"); g(f"v_lshlrev_b32 v{uB}, 4, v{uB}"); g(f"v_lshl_add_u32 v{vB2V}, v{u3}, 10, v{uB}")
    g(f"v_and_b32 v{uA}, 31, v{uL}"); g(f"v_lshlrev_b32 v{vL4}, 2, v{uA}"); g(f"v_bfe_u32 v{uB}, v{uA}, 1, 3"); g(f"v_xor_b32 v{uB}, v{uB}, v{uHI}")
    g(f"v_lshlrev_b32 v{uB}, 4, v{uB}"); g(f"v_lshl_add_u32 v{uB}, v{uA}, 7, v{uB}"); g(f"v_add_u32 v{vXA}, {sXL}, v{uB}")
    for jj in range(1, 4): g(f"v_xor_b32 v{vXA+jj}, {32*jj}, v{vXA}")
    g(f"v_xor_b32 v{uB}, v{u4}, v{uL}"); g(f"v_and_b32 v{uB}, 1, v{uB}"); g(f"v_lshlrev_b32 v{uB}, 10, v{uB}")
    g(f"v_lshl_add_u32 v{uB}, v{uHI}, 4, v{uB}"); g(f"v_add_u32 v{vGA}, {GWT}, v{uB}")
    g(f"s_lshl_b32 {t0}, {sW}, 5"); g(f"s_add_u32 {t0}, {t0}, {KST}")
    g(f"v_mul_u32_u24 v{vPA}, 1040, v{u7}"); g(f"v_lshl_add_u32 v{vPA}, v{u3}, 2, v{vPA}"); g(f"v_add_u32 v{vPA}, {t0}, v{vPA}")
    C0 = -2.0 * 0.7978845608028654 * 1.4426950408889634
    C1 = C0 * 0.044715
    g(f"v_mov_b32 v{vC0}, {fb(C0)}"); g(f"v_mov_b32 v{vC0+1}, {fb(C0)}"); g(f"s_mov_b32 s20, {fb(C1)}"); g(f"s_mov_b32 s21, {fb(C1)}")
    g(f"s_cmp_gt_u32 {sLIM}, 8"); g(f"s_cselect_b64 vcc, -1, 0"); g(f"v_cndmask_b32 v{vH2}, v{uOOB}, v{vL16}, vcc")
    for r in (1, 2, 3, 5, 6, 7, 9, 10, 11, 13, 14, 15, 17, 18, 19): g(f"v_accvgpr_write_b32 a{r}, 0")
    g(f"v_cmp_eq_u32 vcc, 0, v{uHI}"); g(f"v_mov_b32 v{uA}, 0x3f80"); g(f"v_cndmask_b32 v{uA}, 0, v{uA}, vcc"); g(f"v_accvgpr_write_b32 a16, v{uA}")
    SH = 136; vS1, vS2 = 132, 133
    g(f"s_lshl_b32 {t0}, {sW}, 7"); g(f"s_add_u32 {t0}, {t0}, {SHT}"); g(f"v_lshl_add_u32 v{vS1}, v{u3}, 4, {t0}")
    g(f"v_lshrrev_b32 v{vS2}, 1, v{vL4}"); g(f"v_add_u32 v{vS2}, {B1T}, v{vS2}")
    g(f"s_lshl_b32 {t0}, {sW1_}, 6"); g(f"v_add_u32 v{uA}, {t0}, v{vS2}")
    g(f"v_mov_b32 v{vTC}, {EPT}")
    KR, VR, CF, KF, KS = 72, 83, 96, 104, 126
    early(g, 2)
    g.items.append(("raw", "s_waitcnt vmcnt(0)"))
    early(g, 3)
    g("s_barrier")
    st(g)
    g(f"ds_read_b128 {q4(SH)}, v{vS1}", tag="sh"); g(f"ds_read_b32 v{vTC}, v{vTC}", tag="sh")
    for t in range(3): g(f"ds_read_u16 a{4*t}, v{vS2} offset:{64*t}", tag="sh")
    g(f"ds_read_u16 a12, v{uA} offset:{B2T-B1T}", tag="sh")
    for i in range(11):
        off = 640 + 128*i if i < 3 else 1040 + 128*(i-3)
        g(f"ds_read_b32 v{KR+i}, v{vPA} offset:{off}", tag="pk")
    for i in range(8): g(f"ds_read_b32 v{VR+i}, v{vPA} offset:{VST-KST+128*i}", tag="pv")
    if P["bf"]: g.w0(vm=False, lg=True); g("s_barrier")
    g.wlg("sh")
    unpack(g, CF+0, CF+2, SH); unpack(g, CF+4, CF+6, SH+1); unpack(g, CF+1, CF+3, SH+2); unpack(g, CF+5, CF+7, SH+3)
    g(f"v_add_u32 v{vTC}, {TAGK}, v{vTC}"); g(f"v_and_b32 v{vTC}, 0xfffffff0, v{vTC}"); g(f"v_readfirstlane_b32 {sTC}, v{vTC}")
    g.wlg("pk")
    for i in range(11): unpack(g, KF+2*i, KF+2*i+1, KR+i)
    for i in range(8): g(f"v_pk_mul_f32 {pr(KS+2*i)}, {pr(KF+2*(i+3))}, {pr(CF)}")
    for j in range(1, 4):
        for i in range(8): g(f"v_pk_fma_f32 {pr(KS+2*i)}, {pr(KF+2*(i+3-j))}, {pr(CF+2*j)}, {pr(KS+2*i)}")
    g.wlg("pv")
    for i in range(8): unpack(g, KF+2*i, KF+2*i+1, VR+i)
    for i in range(8): g(f"v_pk_mul_f32 {pr(KS+2*i)}, {pr(KS+2*i)}, {pr(KF+2*i)}")
    for ch in range(2):
        for i in range(4): g(f"v_cvt_pk_bf16_f32 v{KF+4*ch+i}, v{KS+4*i+ch}, v{KS+4*i+2+ch}")
    g(f"s_add_u32 {t0}, {sKV}, 4096")
    early(g, 4)
    for ch in range(P.get("x_kvst", 2)):
        g(f"buffer_store_dwordx4 {q4(KF+4*ch)}, v{vKS}, {WS}, {t0 if ch else sKV} offen sc1", tag="kvs0")
    if P["tbg"] == 1:
        g(f"s_lshl_b32 {t1}, {sW1_}, 11"); g(f"s_mul_i32 {t0}, {sWh}, {CHP}"); g(f"s_add_u32 {t0}, {t0}, {t1}"); g(f"s_add_u32 {t0}, {t0}, {HC+32}")
        g(f"v_add_u32 v{uA}, {t0}, v{vL16}")
        g.ext(mk_tb(24, 40, uA))
        g.w0(vm=False, lg=True)
    A2 = 72
    for t in range(3): g(f"v_mfma_f32_32x32x16_bf16 v[{ACC+16*t}:{ACC+16*t+15}], a[{4*t}:{4*t+3}], a[16:19], 0")
    g(f"v_mfma_f32_32x32x16_bf16 v[{A2}:{A2+15}], a[12:15], a[16:19], 0")
    if P["f1k"] < 0:
        g.wvm("kvs0"); g("s_mov_b64 exec, 1"); g(f"buffer_store_dword v{vTC}, v{vZ}, {WS}, {sKL} offen sc1", tag="fl1"); g("s_mov_b64 exec, -1")
    if P["warmf"]:
        g("s_mov_b64 exec, 1"); g(f"buffer_store_dword v{vTC}, v{vZ}, {WS}, {sF2W} offen sc1", tag="wf"); g("s_mov_b64 exec, -1")
    g(f"s_cmp_lg_u32 {sW}, 0"); g("s_cbranch_scc1 L_noarr")
    g(f"s_lshl_b32 {t0}, s2, 4")
    g(f"s_add_u32 {t0}, {t0}, {ARR}"); g("s_mov_b64 exec, 1")
    g.items.append(("raw", f"buffer_store_dword v{vTC}, v{vZ}, {WS}, {t0} offen sc1"))
    g("s_mov_b64 exec, -1")
    g("L_noarr:")
    early(g, 5)
    g("s_barrier")
    st(g)
    FR = 64; GF = 52; GA = ACC + 32
    mid_item = st.item()
    vOW, vOR, vOG, vY = 18, 19, 20, 21
    def gemm1(gate):
        o = Prog()
        nt_ = 2 if gate else 3
        def reads(ks):
            c, jj = divmod(ks, 4); slot = c % 4; b = FR + 16*(ks % 3)
            r_ = [I(f"ds_read_b128 {q4(b, 'a')}, v{vXA+jj} offset:{slot*4096}", f"r{ks}")]
            for t in range(nt_):
                for h in range(2):
                    r_.append(I(f"ds_read_b64_tr_b16 {pr(b+4+4*t+2*h, 'a')}, v{vWA} offset:{slot*12288 + (16*jj+4*h)*192 + t*64}", f"r{ks}"))
            if gate: r_.append(I(f"ds_read_b128 {q4(GF+4*(ks%3), 'a')}, v{vGA} offset:{32*ks}", f"r{ks}"))
            return r_
        o.ext(reads(0)); o.ext(reads(1))
        slots = []
        for ks in range(32):
            b = FR + 16*(ks % 3)
            nx = ks + 2
            pre = [("wlg", f"r{ks}")]
            if nx % 4 == 0:
                pre = [("wlg", f"r{ks+1}"), I("s_barrier")]
                if nx <= 16: pre = [pre[0]] + early2(nx//2 - 2) + [pre[1]] + early2(nx//2 - 1)
            rd = reads(nx) if nx < 32 else []
            mf = [I(f"v_mfma_f32_32x32x16_bf16 v[{ACC+16*t}:{ACC+16*t+15}], {q4(b+4+4*t, 'a')}, {q4(b, 'a')}, v[{ACC+16*t}:{ACC+16*t+15}]") for t in range(nt_)]
            if gate: mf.append(I(f"v_mfma_f32_16x16x32_bf16 {q4(GA)}, {q4(GF+4*(ks%3), 'a')}, {q4(b, 'a')}, {q4(GA) if ks else 0}"))
            slots += [pre + [mf[0]] + rd[0:3], [mf[1]] + rd[3:5], [mf[2]] + rd[5:7]]
        S = lambda ks, i=0: 3*ks + i
        xhi, xa = 110, 111
        eq = Prog()
        eq(f"v_lshrrev_b32 v{xhi}, 9, v{vL16}")
        eq(f"s_lshl_b32 {t0}, {sW}, 11"); eq(f"s_add_u32 {t2}, {t0}, {OT}")
        eq(f"v_lshl_add_u32 v{vOW}, v{vL4}, 4, {t2}"); eq(f"v_lshl_add_u32 v{vOW}, v{xhi}, 3, v{vOW}"); eq(f"v_add_u32 v{vOR}, {t2}, v{vL16}")
        eq(f"v_and_b32 v{xa}, 24, v{vL4}"); eq(f"v_lshl_add_u32 v{vOW}, v{xa}, 1, v{vOW}")
        eq(f"v_lshrrev_b32 v{vOG}, 6, v{vL16}"); eq(f"v_lshrrev_b32 v{xa}, 3, v{vL16}"); eq(f"v_xor_b32 v{xa}, v{xa}, v{vL16}"); eq(f"v_and_b32 v{xa}, 48, v{xa}"); eq(f"v_lshl_add_u32 v{vOG}, v{vOG}, 10, v{xa}")
        eq(f"v_lshl_add_u32 v{vY}, v{xhi}, 14, v{vL4}")
        eq(f"v_lshlrev_b32 v{vPA}, 1, v{vL4}"); eq(f"v_and_b32 v{vKS}, 0x70, v{vL16}")
        eq(f"s_lshl_b32 {t0}, {sW}, 7"); eq(f"v_add_u32 v{vKS}, {t0}, v{vKS}"); eq(f"v_or_b32 v{xa}, 0x1e0, v{vKS}")
        eq(f"v_cmp_gt_u32 vcc, 512, v{vL16}"); eq(f"v_cndmask_b32 v{vKS}, v{xa}, v{vKS}, vcc"); eq(f"v_lshlrev_b32 v{vKS}, {fs}, v{vKS}")
        for i in range(8): eq(f"s_add_u32 s{12+i}, {sY}, {(4*(i//2)+(i%2))*8192}")
        eq(f"s_add_u32 {t3}, {sO}, {16384-1024}")
        f1 = Prog(); f1.wvm("kvs0"); f1("s_mov_b64 exec, 1"); f1(f"buffer_store_dword v{vTC}, v{vZ}, {WS}, {sKL} offen sc1", tag="fl1"); f1("s_mov_b64 exec, -1")
        streams = [(groups_of(eq), S(4), S(14))]
        if P["f1k"] >= 0: streams.append(([f1.items], S(P["f1k"], 1), S(P["f1k"], 1)))
        if stamps: streams.append(([mid_item], S(16), S(16)))
        o.ext(weave(slots, *streams))
        if gate:
            G_ = 140
            o(f"v_and_b32 v{G_}, 256, v{vL16}"); o(f"v_cmp_ne_u32 vcc, 0, v{G_}"); o(f"v_cndmask_b32 v{G_}, v{GA}, v{GA+1}, vcc")
            o(f"v_cvt_pk_bf16_f32 v{G_}, v{G_}, v{G_}"); o(f"v_and_b32 v{G_}, 0xffff0000, v{G_}")
            o(f"v_mul_f32 v{G_}, {fb(-1.4426950408889634)}, v{G_}"); o(f"v_exp_f32 v{G_}, v{G_}"); o(f"v_add_f32 v{G_}, 1.0, v{G_}"); o(f"v_rcp_f32 v{G_}, v{G_}")
            o(f"v_cvt_pk_bf16_f32 v{G_}, v{G_}, v{G_}"); o(f"v_and_b32 v{G_}, 0xffff0000, v{G_}")
            o(f"v_sub_f32 v{G_+1}, 1.0, v{G_}"); o(f"v_cvt_pk_bf16_f32 v{G_+1}, v{G_+1}, v{G_+1}"); o(f"v_and_b32 v{G_+1}, 0xffff0000, v{G_+1}")
            o("s_mov_b32 exec_hi, 0")
            o.items.append(("raw", f"buffer_store_dwordx2 {pr(G_)}, v{vPA}, {WS}, {sGW} offen sc1"))
            o("s_mov_b32 exec_hi, -1")
            o.w0(vm=False, lg=True)
        return o.items
    g(f"s_cmp_eq_u32 {sC1}, 15"); g("s_cbranch_scc1 L_gate")
    g.items.append(("fork", "L_gate", gemm1(True), "L_join"))
    g.ext(gemm1(False))
    g.items.append(("join", "L_join"))
    st(g)
    T = 88; HP = 104
    vFL = vWA
    def flag(n):
        d = Prog()
        d.wvm(f"hst{n-1}")
        d(f"v_add_u32 v{vFL}, {n}, v{vTC}"); d("s_mov_b64 exec, 1"); d(f"buffer_store_dword v{vFL}, v{vZ}, {WS}, {sF2W} offen sc1", tag=f"flag{n}"); d("s_mov_b64 exec, -1")
        return d.items
    ge = Prog()
    ge(f"s_lshl_b32 {t0}, {sW}, 2"); ge(f"s_add_u32 {t0}, {t0}, {SY}"); ge(f"v_mov_b32 v128, {t0}")
    go = P["go"]
    def gosig(k):
        if k == go: ge("ds_write_b32 v128, v128 offset:32", tag="gd")
    for t in range(3):
        a = ACC + 16*t
        pk = lambda k: not (t == 2 and k > go)
        if t == 2: gosig(0)
        if pk(1):
            for i in range(8): ge(f"v_pk_mul_f32 {pr(T+2*i)}, {pr(a+2*i)}, {pr(a+2*i)}")
            for i in range(8): ge(f"v_pk_fma_f32 {pr(T+2*i)}, {pr(T+2*i)}, {CK}, {pr(vC0)}")
            for i in range(8): ge(f"v_pk_mul_f32 {pr(T+2*i)}, {pr(T+2*i)}, {pr(a+2*i)}")
        else:
            for i in range(16): ge(f"v_mul_f32 v{T+i}, v{a+i}, v{a+i}")
            for i in range(16): ge(f"v_fma_f32 v{T+i}, v{T+i}, s20, v{vC0}")
            for i in range(16): ge(f"v_mul_f32 v{T+i}, v{T+i}, v{a+i}")
        if t == 2: gosig(1)
        for i in range(16): ge(f"v_exp_f32 v{T+i}, v{T+i}")
        if pk(2):
            for i in range(8): ge(f"v_pk_add_f32 {pr(T+2*i)}, {pr(T+2*i)}, 1.0 op_sel_hi:[1,0]")
        else:
            for i in range(16): ge(f"v_add_f32 v{T+i}, 1.0, v{T+i}")
        if t == 2: gosig(2)
        for i in range(16): ge(f"v_rcp_f32 v{T+i}, v{T+i}")
        if pk(3):
            for i in range(8): ge(f"v_pk_mul_f32 {pr(T+2*i)}, {pr(T+2*i)}, {pr(a+2*i)}")
        else:
            for i in range(16): ge(f"v_mul_f32 v{T+i}, v{T+i}, v{a+i}")
        if t == 2: gosig(3)
        for i in range(8): ge(f"v_cvt_pk_bf16_f32 v{HP+8*t+i}, v{T+2*i}, v{T+2*i+1}")
        if t: ge(f"s_add_u32 {sHS}, {sHS}, 4096")
        for ks in range(2):
            ge(f"buffer_store_dwordx4 {q4(HP+8*t+4*ks)}, v{vH2 if t == 2 else vL16}, {WS}, {sHS} offen offset:{1024*ks} sc1", tag=f"hst{t}")
    g.ext(ge)
    st(g)
    vW2g = 6; vH = [10, 13]; vSG = 128; vTG = 129
    g(f"v_mov_b32 v{vSG}, {SY}")
    if not P["pair"]: g(f"v_mov_b32 v{vTG}, 1"); g("s_mov_b64 exec, 1"); g(f"ds_add_u32 v{vSG}, v{vTG}", tag="gs"); g("s_mov_b64 exec, -1")
    g(f"s_mov_b32 m0, {t2}")
    g(f"buffer_load_dwordx4 v{vOG}, {Q}, {sO} offen lds", tag="qt"); g(f"buffer_load_dwordx4 v{vOG}, {Q}, {t3} offen offset:1024 lds", tag="qt")
    for i in range(4): g(f"v_add_u32 v{vW2g+i}, {7168*i}, v{vB2V}")
    g(f"s_lshl_b32 {t0}, {sW}, 2"); g(f"v_add_u32 v{vSG}, {t0}, v{vSG}")
    def w2_read(tau, pl, areg):
        o = [("wvm", f"w2_{tau}")]
        for tdd in range(2):
            for ks in range(2):
                for j in range(2):
                    o.append(I(f"ds_read_b64_tr_b16 {pr(areg+tdd*8+ks*4+2*j, 'a')}, v{vB2+tdd+(2 if pl >= 4 else 0)} offset:{(pl % 4)*4096 + (16*ks+8*j)*128}", f"w2r_{tau}"))
        return o
    sDONE = "s23"
    fl_raw = [f"v_add_u32 v{vFL}, 3, v{vTC}", "s_mov_b64 exec, 1", f"buffer_store_dword v{vFL}, v{vZ}, {WS}, {sF2W} offen sc1", "s_mov_b64 exec, -1"]
    if P["flagfirst"] == 1: g.ext(flag(3))
    g(f"s_mov_b32 {sCNT}, 0"); g(f"s_mov_b32 {sDONE}, 0")
    g("L_gw:")
    g(f"ds_read_b32 v{vTG}, v{vSG} offset:16"); g(f"s_add_u32 {sCNT}, {sCNT}, 1")
    g.w0(vm=False, lg=True)
    g(f"v_cmp_ne_u32 vcc, 1, v{vTG}"); g("s_cbranch_vccz L_gw_ok")
    if P["flagfirst"] == 2:
        g(f"s_cmp_lg_u32 {sDONE}, 0"); g("s_cbranch_scc1 L_gw2")
        g.items.append(("raw", "s_waitcnt vmcnt(0)"))
        for x in fl_raw: g.items.append(("raw", x))
        g(f"s_mov_b32 {sDONE}, 1")
        g("L_gw2:")
    g("s_sleep 1"); g(f"s_cmp_lt_u32 {sCNT}, 0x40000"); g("s_cbranch_scc1 L_gw")
    g("L_gw_ok:")
    if stamps: g(f"s_sub_u32 {sCNT}, {sCNT}, 1"); cnt(g, 0)
    for tau in range(5): g.ext(w2_read(tau, PL[tau], 16*tau))
    PL2 = {6+i: PL[i] for i in range(5)}; PL2[5] = PL[5]
    for tau in range(6, 11):
        g.wlg(f"w2r_{tau-6}"); g.ext(flat(Wt(tau, PL2[tau], vW2g, sXL, sW2L_)))
        if tau == P["f2t"]: g(f"buffer_load_dword v{vPOLL}, v{vKS}, {WS}, {sF2R} offen sc1", tag="f2")
        if tau == P["flt"] and P["flagfirst"] == 0: g.ext(flag(3))
        if tau == P["flt"] and P["flagfirst"] == 2:
            g.wvm("hst2")
            g(f"s_cmp_lg_u32 {sDONE}, 0"); g("s_cbranch_scc1 L_gw3")
            for x in fl_raw: g.items.append(("raw", x))
            g("L_gw3:")
    st(g)
    f2ld = f"buffer_load_dword v{vPOLL}, v{vKS}, {WS}, {sF2R} offen sc1"
    if P["f2after"]: g.wvm(f"w2_{P['f2after']}")
    if P["f2t"] > 10: g(f2ld, tag="f2")
    vRW = 6
    g(f"v_add_u32 v{vRW}, {sXL}, v{vL16}")
    for idx in range(1, 4): g(f"v_xor_b32 v{vRW+idx}, {idx*16384}, v{vRW}")
    g(f"s_lshl_b32 {t0}, {sWh}, 11"); g(f"v_add_u32 v{vH[0]}, {t0}, v{vL16}"); g(f"v_xor_b32 v{vH[1]}, 2048, v{vH[0]}")
    g(f"s_add_u32 {t1}, {sTC}, 3")
    QR = 136; GR = vC0
    g.wvm("qt")
    for q in range(4):
        if q: g(f"v_xor_b32 v{vTG}, {16*q}, v{vOW}")
        g(f"ds_read_b64 {pr(QR+2*q)}, v{vTG if q else vOW}", tag="qr")
    retry(g, "f2", "f2", [f"v_cmp_ne_u32 vcc, {t1}, v{vPOLL}"], [f2ld], sleep=P["sl_f2"]); cnt(g, 1)
    st(g)
    NH = 4
    steps = [(t, 1) for t in range(11)] + [(t, 0) for t in range(10, -1, -1)]
    def h_load(n, ks):
        tau, ts = steps[n]
        d = Prog()
        if ks == 0: d(f"s_mov_b32 {sRH}, {tau*4096}")
        d(f"buffer_load_dwordx4 {q4(88+8*(n % NH)+4*ks)}, v{vH[ts]}, {HS}, {sRH} offen offset:{ks*1024} sc1", tag=f"h{n}_{ks}")
        return d.items
    g(f"buffer_load_dwordx2 {pr(GR)}, v{vPA}, {WS}, {sGS} offen sc1", tag="g")
    for n in range(NH):
        for ks in range(2): g.ext(h_load(n, ks))
    if P["prio2"] != P["prio"]: g(f"s_setprio {P['prio2']}")
    AB = [A2, 24, 40, 56]
    YR = 136; QF = 120
    yl = [f"buffer_load_dword v{YR+i}, v{vY}, {WS}, s{12+i} offen sc1" for i in range(8)]
    f3ld = f"buffer_load_dword v{vPOLL}, v{vKS}, {WS}, {sKO} offen sc1"
    areg = lambda tau: 16*tau if tau < 5 else 80 + 16*((tau - 5) % 2)
    def rd(tau, gen_):
        it = w2_read(tau, PL2[tau], areg(tau))
        for x in it[1:]: x.tag = f"w2r_{tau}_{gen_}"
        return it
    reads_at = {3: rd(5, 0), 4: rd(6, 0), 6: rd(7, 0), 7: rd(8, 0), 8: rd(9, 0), 9: rd(10, 0), 12: rd(8, 1), 13: rd(7, 1), 14: rd(6, 1), 15: rd(5, 1)}
    slots = []
    for n, (tau, ts) in enumerate(steps):
        it = reads_at.get(n)
        rr = [it[:3], it[3:5], it[5:7], it[7:9]] if it else [[], [], [], []]
        k = 0
        for ks in range(2):
            for tdd in range(2):
                a = AB[tdd + 2*ts]
                first = (n == 0 and ks == 0) or (n == 11 and ks == 0 and tdd == 1)
                cc = "0" if first else f"v[{a}:{a+15}]"
                s_ = [("wvm", f"h{n}_{ks}")] if tdd == 0 else []
                if k == 0: s_ += [("wlg", f"w2r_{tau}"), ("wlg", f"w2r_{tau}_{1-ts}")]
                s_.append(I(f"v_mfma_f32_32x32x16_bf16 v[{a}:{a+15}], {q4(areg(tau)+tdd*8+ks*4, 'a')}, {q4(88+8*(n % NH)+4*ks)}, {cc}"))
                if tdd == 1 and n + NH < 22: s_ += h_load(n + NH, ks)
                s_ += rr[k]
                slots.append(s_); k += 1
    eq = Prog()
    eq.wlg("qr"); eq.wvm("g")
    for q in range(4):
        unpack(eq, QF+4*q, QF+4*q+1, QR+2*q); unpack(eq, QF+4*q+2, QF+4*q+3, QR+2*q+1)
    for i in range(16): eq(f"v_mul_f32 v{QF+i}, v{GR}, v{QF+i}")
    ex = Prog()
    for q in range(1, 4): ex(f"v_xor_b32 v{vB2+q}, {16*q}, v{vOW}")
    ck3 = Prog()
    retry(ck3, "f3", "f3", [f"v_cmp_ne_u32 vcc, {sTC}, v{vPOLL}"], [f3ld], sleep=P["sl_y"]); cnt(ck3, 2)
    for x in yl: ck3(x, tag="y")
    early_w = [[I(f"ds_write_b128 v{vRW}, {q4(AB[idx]+4*q)} offset:{(idx-1)*4096 + 1024*q}", "red")] for idx in (3, 2) for q in range(4)]
    ws_ = [(groups_of(eq, 2), 8, 40), (early_w, 65, 82), ([ex.items], 70, 70),
           ([[I(f"v_and_b32 v{vKS}, 0xf0, v{vL16}"), I(f3ld, "f3")]], P["f3pos"], P["f3pos"])]
    if P["ck3"] < 88: ws_.append(([ck3.items], P["ck3"], P["ck3"]))
    g.ext(weave(slots, *ws_))
    st(g)
    e3(g, 0)
    if P["ck3"] == 88: g.ext(ck3)
    e3(g, 1)
    for q in range(4): g(f"ds_write_b128 v{vRW}, {q4(AB[1]+4*q)} offset:{1024*q}", tag="red")
    if P["ck3"] > 88: g.ext(ck3)
    g.w0(vm=False, lg=True)
    e3(g, 2)
    g("s_barrier")
    e3(g, 3)
    for idx in range(1, 4):
        for q in range(4): g(f"ds_read_b128 {q4(AB[idx]+4*q)}, v{vRW+idx} offset:{(idx-1)*4096 + 1024*q}", tag=f"rr{idx}")
    ZF = 88
    def ymul():
        g.wvm("y")
        e3(g, 4)
        for i in range(8): unpack(g, ZF+2*i, ZF+2*i+1, YR+i)
        for i in range(8): g(f"v_pk_mul_f32 {pr(QF+2*i)}, {pr(QF+2*i)}, {pr(ZF+2*i)}")
    if P["ck3"] <= 88: ymul()
    for idx in range(1, 4):
        g.wlg(f"rr{idx}")
        for i in range(8): g(f"v_pk_add_f32 {pr(A2+2*i)}, {pr(A2+2*i)}, {pr(AB[idx]+2*i)}")
    if P["ck3"] > 88: ymul()
    for i in range(8): g(f"v_pk_fma_f32 {pr(QF+2*i)}, {pr(A2+2*i)}, {pr(GR)}, {pr(QF+2*i)} op_sel:[0,1,0]")
    for i in range(8): g(f"v_cvt_pk_bf16_f32 v{ZF+i}, v{QF+2*i}, v{QF+2*i+1}")
    e3(g, 5)
    for q in range(4): g(f"ds_write_b64 v{vB2+q if q else vOW}, {pr(ZF+2*q)}", tag="ow")
    for i in range(2): g(f"ds_read_b128 {q4(24+4*i)}, v{vOR} offset:{1024*i}", tag=f"or{i}")
    of = P["outf"].replace("plain", "")
    g.wlg("or0")
    g(f"buffer_store_dwordx4 {q4(24)}, v{vOG}, {OUT}, {sO} offen {of}", tag="out")
    g.wlg("or1")
    g(f"buffer_store_dwordx4 {q4(28)}, v{vOG}, {OUT}, {t3} offen offset:1024 {of}", tag="out")
    e3(g, 6)
    if stamps and P.get("early") == 3: g.w0(vm=True, lg=True); e3(g, 7)
    dump(g, st, vL16, 1)
    g("s_endpgm")
    body = resolve(p.items + v.items)
    stG = dict(hist=[], vm=[], lg=[], smem=False)
    tailG = []
    bodyG = resolve(g.items, stG, tailG) + tailG
    hdr = [f"; @launch grid=(256,1,1) block=(512,1,1) lds={LDS_BYTES}",
           '.amdgcn_target "amdgcn-amd-amdhsa--gfx950"', ".text", f".globl {NAME}_kernel", ".p2align 8",
           f".type {NAME}_kernel,@function", f"{NAME}_kernel:", "L_codestart:"]
    ftr = ["L_codeend:", '.section .rodata,"a"', ".p2align 6", f".amdhsa_kernel {NAME}_kernel",
           "  .amdhsa_next_free_vgpr 256", "  .amdhsa_next_free_sgpr 102", "  .amdhsa_accum_offset 144",
           "  .amdhsa_group_segment_fixed_size 0", "  .amdhsa_kernarg_size 120", "  .amdhsa_user_sgpr_count 2",
           "  .amdhsa_user_sgpr_kernarg_segment_ptr 1", "  .amdhsa_system_sgpr_workgroup_id_x 1",
           "  .amdhsa_float_denorm_mode_32 3", ".end_amdhsa_kernel"]
    allb = body + bodyG
    if P.get("al", 1): allb = align_pass(hdr, allb, ftr)
    return "\n".join(hdr + allb + ftr) + "\n"

if __name__ == "__main__":
    kw = {}
    for a in sys.argv[2:]:
        if "=" in a:
            k, v = a.split("="); kw[k] = int(v) if v.lstrip("-").isdigit() else v
    open(sys.argv[1], "w").write(gen(stamps=("stamps" in sys.argv), **kw))
```

```python
import sys, struct
sys.path.insert(0, "dev")
from asmlib import *
NAME = "gated_mix__ssm_conv_h3__dense_activation_gelu__prompt"
NST = 10; NWAVES = 8

WS_KVT = 0; WS_Y = 0; WS_H = 8 << 20; WS_F = (13 << 20) + (768 << 10); WS_X = 16 << 20
EPO = WS_F; ARR = WS_F + 4096; F2 = WS_F + 98304; F1 = WS_F + 32768; F3 = WS_F + 49152; WS_G = WS_F + 65536
WS_SIZE = 16 << 20
TAGK = 0x9E3779B0
OOB = 0x80000000
XR = 0; WR = 65536; KST = 65536 + 49152 - 17680; VST = KST + 9360; U = 115200; HC = 124416; CP = 8256; CHP = 4128
SY = 157440; SHT = 157696; B1T = 158208; B2T = 158464; EPT = 158720; GWT = 161280; GWZ = 162304
EX = HC
PLACE = [x for s in range(3) for x in ([XR + w*16384 + s*4096 for w in range(4)] + [WR + s*12288 + i*4096 for i in range(3)])] + [XR + 3*4096]
ORD = [11*(j >> 2) + 3*(j & 3) + t for t in range(3) for j in range(8) if not (t == 2 and (j & 3) == 3)]
OT = WR + 3*12288
LDS_BYTES = 163840
WS = "s[28:31]"
sW, sMT1, sC1, sMT2, sNT, sFT0, sLIM, sTC, sXC, sWC = "s40", "s41", "s42", "s43", "s44", "s45", "s46", "s47", "s48", "s49"
sXL, sMTL, sW1_, sWh = "s50", "s51", "s52", "s53"
t0, t1, t2, t3 = "s56", "s57", "s58", "s59"
sCNT, sT2, sJH, sROT = "s60", "s63", "s96", "s97"
sHM = "s96"
fb = lambda x: "0x%08x" % struct.unpack("<I", struct.pack("<f", x))[0]
pr = lambda r, k="v": f"{k}[{r}:{r+1}]"
q4 = lambda r, k="v": f"{k}[{r}:{r+3}]"
flat = lambda gs: [x for g in gs for x in g]

def srd(p, base, ptr, size):
    p(f"s_mov_b32 s{base}, s{ptr}"); p(f"s_and_b32 s{base+1}, s{ptr+1}, 0xffff")
    p(f"s_mov_b32 s{base+2}, {size}"); p(f"s_mov_b32 s{base+3}, 0x20000")
def srd_off(base, ptr, off_s, size, sub=False):
    p = Prog()
    p(f"s_add_u32 s{base}, s{ptr}, {off_s}"); p(f"s_addc_u32 s{base+1}, s{ptr+1}, 0"); p(f"s_and_b32 s{base+1}, s{base+1}, 0xffff")
    p(f"s_sub_u32 s{base+2}, {size}, {off_s}" if sub else f"s_mov_b32 s{base+2}, {size}"); p(f"s_mov_b32 s{base+3}, 0x20000")
    return p.items
def unpack(p, lo, hi, src):
    p(f"v_lshlrev_b32 v{lo}, 16, v{src}"); p(f"v_and_b32 v{hi}, {sHM}, v{src}")
MAXSPIN = 0x8000
def retry(p, lab, tag, check, reloads, mask=None, sleep=1):
    p.wvm(tag)
    p(f"s_mov_b32 {sCNT}, 0")
    p(f"L_{lab}:")
    for c in check: p(c)
    p(f"s_and_b64 vcc, vcc, {mask or '-1'}")
    p(f"s_cbranch_scc0 L_{lab}_ok")
    if sleep: p(f"s_sleep {sleep}")
    for r in reloads: p.items.append(("raw", r))
    p(f"s_add_u32 {sCNT}, {sCNT}, 1")
    p(f"s_cmp_lt_u32 {sCNT}, {MAXSPIN}")
    p.items.append(("raw", "s_waitcnt vmcnt(0)"))
    p(f"s_cbranch_scc1 L_{lab}")
    p(f"L_{lab}_ok:")
def tagcheck(regs, tmp):
    o = [f"v_xor_b32 v{tmp}, {sTC}, v{regs[0]}"]
    for r in regs[1:]: o.append(f"v_bitop3_b32 v{tmp}, v{r}, {sTC}, v{tmp} bitop3:0xbe")
    o.append(f"v_cmp_ne_u32 vcc, 0, v{tmp}")
    return o

DEF = dict(pf=1, prio=2, prio2=0, vp8=3, flt=7, lag=12, sl_kv=8, sl_f2=4, sl_y=4, kvt=7, ncv=0, b8=61, bf=1, kbi=2, b0=12, b1=18, pw=0, pair=1, lvl=1, pollead=4, pre=4, nm=0, mid=1, s1i=68, sigc=-1, go=3, fsh=0, f2t=9, c3i=49, tbi=72, tbn=99, tbg=0, rawi=21, stg=2, c3=1, wq=0, bs=1, f1i=49, outf="sc1", kvi=62, w2pw=-1, f1k=3, f3pos=78, ck3=89, xf="", rot1=1, rot2=0, warmf=1, flagfirst=2, f2after=0, nh0=2, vprio=1)

DOC = """;
; One launch, 256 workgroups of 8 waves (one per CU), written by a generator script.
;   waves 0-3 ("V"): stream x / w1 / w2 tiles into LDS (LDS-DMA), long causal conv as Toeplitz MFMA
;   waves 4-7 ("G"): kv = shift-conv(k)*v (transposed), gemm1 + gelu, gemm2 (split-K in the workgroup), gate mix
; Hand-offs between workgroups (kvT, h, gate, y) go through d_ws with write-through stores, a drained
; vmcnt and a per-wave flag word; flags carry a tag derived from an epoch word in d_ws, which workgroup 0
; advances once every workgroup has read it.""".split("\n")

def gen(stamps=False, **kw):
    P = dict(DEF); P.update(kw)
    KVF = P.get("kvf", "nt").replace("plain", "")
    global MAXSPIN; MAXSPIN = P.get("maxspin", 0x8000)
    class St:
        def __init__(s): s.n = 0
        def __call__(s, pp):
            if stamps:
                pp(f"s_memtime s[{64+2*s.n}:{65+2*s.n}]", tag="stamp"); s.n += 1
        def item(s):
            i = s.n; s.n += 1
            return [I(f"s_memtime s[{64+2*i}:{65+2*i}]", "stamp")] if stamps else []
    def early2(i):
        d = Prog()
        if stamps and P.get("early") == 2:
            d("s_memtime s[98:99]"); d.w0(vm=False, lg=True); d(f"v_writelane_b32 v0, s98, {44+i}")
        return d.items
    def e3(pp, i):
        if stamps and P.get("early") == 3:
            pp("s_memtime s[98:99]"); pp.w0(vm=False, lg=True); pp(f"v_writelane_b32 v0, s98, {44+i}")
    def early(pp, i):
        if stamps and P.get("early") == 1:
            pp("s_memtime s[98:99]"); pp.w0(vm=False, lg=True); pp(f"v_writelane_b32 v0, s98, {44+i}")
    def cnt(pp, i):
        if stamps: pp(f"v_writelane_b32 v0, {sCNT}, {32+i}")
    def dump(pp, st, vL16, role):
        if not stamps: return
        pp.w0(vm=True, lg=True)
        while st.n < NST - 1: st(pp)
        pp("s_memrealtime s[98:99]"); pp.w0(vm=False, lg=True)
        for i in range(st.n): pp(f"v_writelane_b32 v0, s{64+2*i}, {i+1}")
        pp(f"v_writelane_b32 v0, s98, {st.n+1}")
        pp(f"s_lshl_b32 {t0}, s2, 3"); pp(f"s_add_u32 {t0}, {t0}, {sW}"); pp(f"s_add_u32 {t0}, {t0}, {4*role}")
        pp(f"s_lshl_b32 {t0}, {t0}, 8"); pp(f"s_add_u32 {t0}, {t0}, {14<<20}")
        pp(f"v_lshrrev_b32 v6, 2, v{vL16}")
        pp(f"buffer_store_dword v0, v6, {WS}, {t0} offen")
        if P.get("dbgout") is not None and role == 1:
            pp(f"s_cmp_lg_u32 s2, {P['dbgout']}"); pp("s_cbranch_scc1 L_nodbg"); pp(f"s_cmp_lg_u32 {sW}, 0"); pp("s_cbranch_scc1 L_nodbg")
            pp("s_load_dwordx2 s[98:99], s[0:1], 104"); pp("v_writelane_b32 v0, s100, 11"); pp.w0(vm=False, lg=True)
            pp("s_mov_b64 exec, 0xffff"); pp("global_store_dword v6, v0, s[98:99]")
            pp("L_nodbg:")
    def rot_setup(pp):
        pp(f"s_mul_i32 {sROT}, {sMTL}, 11"); pp(f"s_lshr_b32 {sROT}, {sROT}, 1"); pp(f"s_bfe_u32 {t0}, s2, 0x20001"); pp(f"s_add_u32 {sROT}, {sROT}, {t0}")
        if P["hrot"]:
            pp(f"s_mul_i32 {t0}, {sNT}, 11"); pp(f"s_lshr_b32 {t0}, {t0}, 2"); pp(f"s_add_u32 {sROT}, {sROT}, {t0}")
        pp(f"s_sub_u32 {t0}, {sROT}, 22"); pp(f"s_cmp_ge_u32 {sROT}, 22"); pp(f"s_cselect_b32 {sROT}, {t0}, {sROT}")
    p = Prog()
    uL, uHI, u3, u7, u4, uA, uB, uC, uOOB, uSP, uKV = 120, 121, 122, 123, 124, 125, 126, 127, 128, 129, 130
    vL16, vL4, vZ, vTC = 1, 2, 3, 4
    sSO, sSM, sEL, sEH = "s32", "s33", "s34", "s35"
    p("s_cmp_ge_u32 s2, 256"); p("s_cbranch_scc1 L_end")
    p(f"v_lshrrev_b32 v{uA}, 6, v0")
    p("s_load_dwordx16 s[64:79], s[0:1], 0")
    p(f"v_readfirstlane_b32 {sW}, v{uA}")
    p("s_load_dwordx8 s[80:87], s[0:1], 64"); p("s_load_dwordx2 s[92:93], s[0:1], 96"); p("s_load_dwordx2 s[28:29], s[0:1], 112")
    if stamps: p("s_memtime s[98:99]"); p("s_memrealtime s[100:101]")
    if P["pf"]:
        p("s_getpc_b64 s[60:61]"); p(f"s_and_b32 {t0}, s2, 0xf8"); p(f"v_and_b32 v{uB}, 7, v0"); p(f"v_or_b32 v{uB}, {t0}, v{uB}"); p(f"v_lshlrev_b32 v{uB}, 7, v{uB}")
        p(f"v_min_u32 v{uB}, L_codeend-L_codestart-128, v{uB}")
        p(f"s_cmp_lg_u32 {sW}, 7"); p("s_cbranch_scc1 L_npf")
        p.items.append(("raw", f"global_load_dword v131, v{uB}, s[60:61]"))
        p("L_npf:")
    p("s_mov_b32 s34, 0x50401808"); p("s_mov_b32 s35, 0x58585870"); p(f"s_lshl_b32 {t0}, {sW}, 3"); p(f"s_lshr_b64 s[34:35], s[34:35], {t0}")
    p(f"s_and_b32 {t2}, s34, 0xff"); p(f"s_load_dwordx2 s[36:37], s[0:1], {t2}")
    p(f"v_and_b32 v{uL}, 63, v0"); p(f"v_lshrrev_b32 v{u3}, 3, v{uL}"); p(f"v_and_b32 v{u7}, 7, v{uL}")
    p(f"v_lshlrev_b32 v{uKV}, 10, v{u3}"); p(f"v_lshl_add_u32 v{uKV}, v{u7}, 4, v{uKV}")
    p(f"s_and_b32 {t0}, s2, 7"); p(f"s_lshr_b32 {sMTL}, s2, 6"); p(f"s_bfe_u32 {sNT}, s2, 0x30003")
    if P.get("x_ntx"): p(f"s_xor_b32 {sNT}, {sNT}, {P['x_ntx']}")
    p(f"s_lshl_b32 {sMT2}, {t0}, 2"); p(f"s_add_u32 {sMT2}, {sMT2}, {sMTL}")
    p(f"s_lshl_b32 {sT2}, {sMT2}, 16"); p(f"s_lshl_b32 {t1}, {sNT}, 7"); p(f"s_add_u32 {sT2}, {sT2}, {t1}")
    p(f"s_and_b32 {t3}, {sW}, 3"); p(f"s_lshl_b32 s12, {t3}, 13"); p(f"s_add_u32 s12, s12, {sT2}"); p(f"s_add_u32 s13, s12, 32768")
    p(f"s_mul_i32 s14, {t3}, 1040"); p(f"s_cmp_ge_u32 {sW}, 4"); p(f"s_cselect_b32 s15, {VST-KST-1040}, 0"); p("s_add_u32 s14, s14, s15"); p(f"s_add_u32 s14, s14, {KST+1040}")
    p(f"s_mov_b32 s10, {0 if P.get('x_nokv') else 2097152}"); p("s_mov_b32 s11, 0x20000")
    p(f"s_lshl_b32 s6, {sNT}, 5"); p(f"s_add_u32 s6, s6, {sMT2}"); p(f"s_lshl_b32 s6, s6, 3"); p(f"s_add_u32 s6, s6, {sW}"); p("s_lshl_b32 s6, s6, 10")
    p(f"s_lshl_b32 s7, {sW}, 10"); p(f"s_cmp_ge_u32 {sW}, 4"); p(f"s_cselect_b32 s15, 32, 0"); p("s_add_u32 s7, s7, s15"); p(f"s_add_u32 s7, s7, {HC + 3*CP + 32}")
    p(f"s_mov_b32 s18, {0 if P.get('x_noraw') else 2097152}"); p("s_mov_b32 s19, 0x20000")
    p(f"v_lshlrev_b32 v{vL16}, 4, v{uL}"); p("s_mov_b32 m0, s14"); p(f"s_cmp_ge_u32 {sW}, 4")
    p.w0(vm=False, lg=True)
    p("s_cselect_b64 s[8:9], s[68:69], s[66:67]"); p("s_and_b32 s9, s9, 0xffff")
    p(f"buffer_load_dwordx4 v{uKV}, s[8:11], s12 offen {KVF} lds", tag="kv")
    p("s_add_u32 m0, s14, 4160"); p("s_mov_b32 s16, s72")
    p(f"buffer_load_dwordx4 v{uKV}, s[8:11], s13 offen {KVF} lds", tag="kv")
    p("s_mov_b32 m0, s7"); p("s_and_b32 s17, s73, 0xffff")
    if P["rawi"] < 0: p(f"buffer_load_dwordx4 v{vL16}, s[16:19], s6 offen {KVF} lds", tag="kv")
    p(f"s_and_b32 {sMT1}, {t0}, 6"); p(f"s_lshl_b32 {sMT1}, {sMT1}, 1"); p(f"s_add_u32 {sMT1}, {sMT1}, {sMTL}")
    if P.get("rot1", 1) == 0:
        p(f"s_lshr_b32 {sXC}, {t0}, 1"); p(f"s_add_u32 {sXC}, {sXC}, {sNT}"); p(f"s_lshl_b32 {t3}, {sMTL}, 1"); p(f"s_add_u32 {sXC}, {sXC}, {t3}")
    elif P.get("rot1", 1) == 1:
        p(f"s_lshr_b32 {sXC}, {t0}, 1"); p(f"s_lshl_b32 {t3}, {sNT}, 1"); p(f"s_add_u32 {sXC}, {sXC}, {t3}"); p(f"s_lshl_b32 {t3}, {sMTL}, 2"); p(f"s_add_u32 {sXC}, {sXC}, {t3}")
        p(f"s_and_b32 {t3}, {t0}, 1"); p(f"s_add_u32 {sXC}, {sXC}, {t3}")
    else:
        p(f"s_mov_b32 {sXC}, {t0}")
    p(f"s_and_b32 {sXC}, {sXC}, 7"); p(f"s_lshl_b32 {sXC}, {sXC}, 7")
    p(f"s_and_b32 {sJH}, {t0}, 1"); p(f"s_lshl_b32 {t0}, {sJH}, 3"); p(f"s_add_u32 {sC1}, {t0}, {sNT}")
    p(f"s_and_b32 {t3}, {sC1}, 3")
    p(f"s_lshr_b32 {t0}, {sC1}, 2"); p(f"s_mul_i32 {sFT0}, {t0}, 11"); p(f"s_mul_i32 {t0}, {t3}, 3"); p(f"s_add_u32 {sFT0}, {sFT0}, {t0}")
    p(f"s_cmp_eq_u32 {t3}, 3"); p(f"s_cselect_b32 {sLIM}, {12 if P.get('x_lim') else 8}, 12"); p(f"s_cmp_eq_u32 {sC1}, 15"); p(f"s_cselect_b32 {sLIM}, 4, {sLIM}")
    p("s_mov_b32 s38, 1024"); p(f"s_mov_b32 {sSO}, {sXC}"); p(f"s_mov_b32 {sSM}, {GWT}")
    p(f"s_cmp_eq_u32 {sW}, 5"); p(f"s_cselect_b32 {t0}, {sC1}, 0"); p(f"s_cselect_b32 {t2}, 1023, -1"); p(f"s_cmp_eq_u32 {t0}, 15"); p(f"s_cselect_b64 s[34:35], -1, 0")
    p(f"s_lshl_b32 {t0}, {sNT}, 9"); p(f"s_lshl_b32 {t3}, {sFT0}, 6")
    for (w, sz, so, dst, el) in ((1, 4096, t0, SHT, -1), (2, 2752, t3, B1T, 0xfff), (3, 1024, t1, B2T, 0xff), (4, WS_SIZE, EPO, EPT, 1)):
        p(f"s_cmp_eq_u32 {sW}, {w}")
        if sz != 1024: p(f"s_cselect_b32 s38, {sz}, s38")
        p(f"s_cselect_b32 {sSO}, {so}, {sSO}"); p(f"s_cselect_b32 {sSM}, {dst}, {sSM}"); p(f"s_cselect_b32 {sEL}, {el}, {sEL}")
    p(f"v_add_u32 v{uSP}, {sSO}, v{vL16}"); p(f"v_and_b32 v{uSP}, {t2}, v{uSP}")
    p(f"s_cmp_lg_u32 {sW}, 0"); p("s_cbranch_scc1 L_nh")
    p("s_mov_b32 s38, 2097152"); p(f"s_mov_b32 {sSM}, {KST}"); p(f"s_mov_b32 {sEH}, 0xffffff00")
    p(f"s_sub_u32 {t0}, {sT2}, 8192"); p(f"v_add_u32 v{uSP}, {t0}, v{uKV}")
    p("L_nh:")
    p("s_mov_b32 s39, 0x20000"); p("s_and_b32 s37, s37, 0xffff")
    p(f"s_mov_b32 m0, {sSM}"); p("s_mov_b64 exec, s[34:35]"); p("s_cbranch_execz L_spn")
    p.items.append(("raw", f"buffer_load_dwordx4 v{uSP}, s[36:39], 0 offen sc1 lds"))
    p("L_spn:"); p("s_mov_b64 exec, -1")
    if stamps: p("v_mov_b32 v0, 0"); p("v_writelane_b32 v0, s98, 0"); p("v_writelane_b32 v0, s100, 40")
    early(p, 0)
    if P["bs"]: p("s_barrier")
    p(f"v_lshrrev_b32 v{u4}, 4, v{uL}"); p(f"v_mov_b32 v{uOOB}, {OOB}"); p(f"v_mov_b32 v{vZ}, 0")
    p(f"s_mov_b32 s30, {WS_SIZE}"); p("s_mov_b32 s31, 0x20000"); p("s_and_b32 s29, s29, 0xffff")
    p(f"s_and_b32 {t0}, {sW}, 4"); p(f"s_and_b32 {sW}, {sW}, 3"); p(f"s_lshl_b32 {sXL}, {sW}, 14")
    p(f"s_and_b32 {sW1_}, {sW}, 1"); p(f"s_lshr_b32 {sWh}, {sW}, 1"); p(f"s_mov_b32 {sHM}, 0xffff0000")
    p(f"s_cmp_lg_u32 {t0}, 0"); p("s_cbranch_scc1 L_G")
    def startstamp(pp):
        if stamps: pp("v_mov_b32 v0, 0"); pp("v_writelane_b32 v0, s98, 0"); pp("v_writelane_b32 v0, s100, 40")
    v = Prog(); st = St()
    XS, W1, SSM, W2 = "s[4:7]", "s[20:23]", "s[16:19]", "s[24:27]"
    sWL, sW2L, sRAW, sDOFF, sD0, sD1, sKT, sYS = "s54", "s55", "s62", "s88", "s89", "s90", "s91", "s3"
    vX, vW, vW2_, vTW, vUW, vCA, vCB, vEW, vER, vEK, vZ1, vZ2, vZ0, vSY, vONE, vT = 6, 10, 13, 14, 15, 16, 17, 18, 19, 20, 21, 22, 23, 24, 25, 26
    ZR = 28; vW2 = 112
    def D(c):
        g = []; slot = c % 4
        for i in range(4):
            d = Prog()
            if i == 0:
                if c: d(f"s_add_u32 {sXC}, {sXC}, 128"); d(f"s_and_b32 {sXC}, {sXC}, 1023"); d(f"s_mul_i32 {sWC}, {sXC}, 1376")
                d(f"s_add_u32 m0, {sXL}, {XR + slot*4096}")
            d(f"buffer_load_dwordx4 v{vX+i}, {XS}, {sXC} offen offset:{1024*i} {P.get('xf', '')} lds", tag=f"c{c}")
            g.append(d.items)
        for i in range(3):
            d = Prog()
            if i == 0: d(f"s_add_u32 m0, {sWL}, {slot*12288}")
            d(f"buffer_load_dwordx4 v{vW+i}, {W1}, {sWC} offen offset:{1024*i} {P.get('wf', '')} lds", tag=f"c{c}")
            g.append(d.items)
        return g
    ORDER = [0, 3, 6, 9, 1, 4, 7, 10, 2, 5, 8]
    PL = [0, 1, 2, 4, 5, 3]
    def rotstep(d, reg, unit):
        d(f"s_add_u32 {reg}, {reg}, {unit}"); d(f"s_cmp_eq_u32 {reg}, {11*unit}"); d(f"s_cselect_b32 {reg}, 0, {reg}")
    def Wt(tau, pl, vw, sxl, sw2l):
        o = []
        for i in range(4):
            d = Prog()
            if i == 0:
                d(f"s_mov_b32 {sROT}, {ORDER[tau]*32768}")
                d(f"s_add_u32 m0, {sxl}, {XR + pl*4096}" if pl < 4 else f"s_add_u32 m0, {sw2l}, {WR + (pl-4)*4096}")
            d(f"buffer_load_dwordx4 v{vw+i}, {W2}, {sROT} offen offset:{1024*i} lds", tag=f"w2_{tau}")
            o.append(d.items)
        return o
    def rot2(pp, first):
        if P["rot2"] >= 4:
            if P["rot2"] == 4: pp(f"s_and_b32 {sROT}, {sNT}, 1"); pp(f"s_mul_i32 {sROT}, {sROT}, 5")
            else: pp(f"s_and_b32 {sROT}, {sNT}, 3"); pp(f"s_mul_i32 {sROT}, {sROT}, 11"); pp(f"s_lshr_b32 {sROT}, {sROT}, 2")
            if first: pp(f"s_add_u32 {sROT}, {sROT}, {first}")
            pp(f"s_sub_u32 {t0}, {sROT}, 11"); pp(f"s_cmp_ge_u32 {sROT}, 11"); pp(f"s_cselect_b32 {sROT}, {t0}, {sROT}")
        elif P["rot2"]:
            pp(f"s_mul_i32 {sROT}, {sMTL}, {[0, 3, 0, 1][P['rot2']]}"); pp(f"s_and_b32 {t0}, s2, 7"); pp(f"s_add_u32 {sROT}, {sROT}, {t0}")
            if first: pp(f"s_add_u32 {sROT}, {sROT}, {first}")
            for _ in range(2): pp(f"s_sub_u32 {t0}, {sROT}, 11"); pp(f"s_cmp_ge_u32 {sROT}, 11"); pp(f"s_cselect_b32 {sROT}, {t0}, {sROT}")
        else: pp(f"s_mov_b32 {sROT}, {first}")
    if P["pw"] == 3:
        v(f"s_and_b32 {t0}, s2, 7"); v(f"s_lshr_b32 {t2}, s2, 3")
        v(f"s_cmp_eq_u32 {sW}, 2"); v("s_cbranch_scc1 L_pw6"); v(f"s_cmp_eq_u32 {sW}, 3"); v("s_cbranch_scc1 L_pw7")
        v(f"s_lshl_b32 {t0}, {t0}, 18"); v(f"s_lshl_b32 {t2}, {t2}, 13"); v(f"s_add_u32 {t0}, {t0}, {t2}"); v(f"s_lshl_b32 {t2}, {sW}, 12"); v(f"s_add_u32 {t0}, {t0}, {t2}")
        v(f"v_and_b32 v{uB}, 31, v{uL}"); v(f"v_lshl_add_u32 v{uC}, v{uB}, 7, {t0}"); v("s_mov_b64 s[4:5], s[64:65]")
        v("s_branch L_pwd")
        v("L_pw6:")
        v(f"s_lshr_b32 {t0}, {t0}, 1"); v(f"s_lshl_b32 {t0}, {t0}, 5"); v(f"s_add_u32 {t0}, {t0}, {t2}"); v(f"s_mul_i32 {t0}, {t0}, {4*2752}")
        v(f"s_mul_i32 {t2}, {sJH}, 1344"); v(f"s_add_u32 {t0}, {t0}, {t2}")
        v(f"v_mul_u32_u24 v{uC}, 2752, v{u4}"); v(f"v_and_b32 v{uB}, 15, v{uL}"); v(f"v_lshlrev_b32 v{uB}, 7, v{uB}")
        v(f"v_min_u32 v{uB}, 1404, v{uB}"); v(f"v_add3_u32 v{uC}, v{uC}, v{uB}, {t0}"); v("s_mov_b64 s[4:5], s[78:79]")
        v("s_branch L_pwd")
        v("L_pw7:")
        v(f"s_mul_i32 {t0}, s2, {43*128}"); v(f"v_min_u32 v{uC}, {42 if P['w2pw'] < 0 else 0}, v{uL}"); v(f"v_lshl_add_u32 v{uC}, v{uC}, 7, {t0}"); v("s_mov_b64 s[4:5], s[82:83]")
        v("L_pwd:")
        v(f"global_load_dword v131, v{uC}, s[4:5]", tag="tch")
    v(f"v_xor_b32 v{vX}, v{u7}, v{u4}"); v(f"v_lshlrev_b32 v{vX}, 4, v{vX}"); v(f"v_lshl_add_u32 v{vX}, v{u3}, 10, v{vX}")
    v(f"v_xor_b32 v{vX+1}, 64, v{vX}"); v(f"v_add_u32 v{vX+1}, 7168, v{vX+1}"); v(f"v_add_u32 v{vX+2}, 14336, v{vX}"); v(f"v_add_u32 v{vX+3}, 14336, v{vX+1}")
    v(f"s_lshl_b32 {t2}, {sMT1}, 17"); v(f"s_lshl_b32 {t0}, {sW}, 15"); v(f"s_add_u32 {t2}, {t2}, {t0}")
    v.ext(srd_off(4, 64, t2, 0 if P.get("x_nox") else 32768))
    v.ext(flat(D(0)[:4]))
    for i in range(3):
        v(f"v_add_u32 v{uA}, {64*i}, v{uL}"); v(f"v_mul_u32_u24 v{uB}, 171, v{uA}"); v(f"v_lshrrev_b32 v{uB}, 11, v{uB}")
        v(f"v_mul_u32_u24 v{uC}, 12, v{uB}"); v(f"v_sub_u32 v{uC}, v{uA}, v{uC}")
        v(f"v_mul_u32_u24 v{uB}, 2752, v{uB}"); v(f"v_cmp_gt_u32 vcc, {sLIM}, v{uC}"); v(f"v_lshl_add_u32 v{uB}, v{uC}, 4, v{uB}")
        v(f"v_subrev_u32 v{uB}, {1024*i}, v{uB}"); v(f"v_cndmask_b32 v{vW+i}, v{uOOB}, v{uB}, vcc")
    v(f"s_mul_i32 {sWC}, {sXC}, 1376")
    v(f"s_mul_i32 {t2}, {sW}, {16*2752}"); v(f"s_add_u32 {t3}, {t3}, {t2}")
    v(f"s_mul_i32 {sWL}, {sW}, 3072"); v(f"s_add_u32 {sWL}, {sWL}, {WR}")
    v.ext(srd_off(20, 78, t3, 512*2752, sub=True))
    if P.get("x_now1"): v("s_mov_b32 s22, 0")
    v.ext(flat(D(0)[4:]))
    early(v, 1)
    m = v
    for i in range(4): m(f"v_mov_b32 v{ZR+i}, 0")
    m(f"v_add_u32 v{uA}, {GWZ}, v{vL16}"); m(f"ds_write_b128 v{uA}, {q4(ZR)}", tag="gz")
    m(f"v_mov_b32 v{vSY}, {SY}"); m(f"ds_write_b128 v{vSY}, {q4(ZR)}", tag="gz"); m(f"ds_write_b128 v{vSY}, {q4(ZR)} offset:16", tag="gz"); m(f"ds_write_b128 v{vSY}, {q4(ZR)} offset:32", tag="gz"); m(f"ds_write_b128 v{vSY}, {q4(ZR)} offset:48", tag="gz")
    m(f"s_lshl_b32 {t0}, {sW}, 2"); m(f"v_add_u32 v23, {t0}, v{vSY}"); m(f"v_mov_b32 v{vONE}, 1")
    m(f"s_lshl_b32 {t0}, {sNT}, 7"); m(f"s_lshl_b32 {t1}, {sMT2}, 2"); m(f"s_add_u32 {t0}, {t0}, {t1}")
    m(f"s_load_dword {sD0}, s[74:75], {t0}", tag="ssmD")
    m(f"s_lshl_b32 {t0}, {sNT}, 5"); m(f"s_add_u32 {t0}, {t0}, {sMT2}"); m(f"s_lshl_b32 {t0}, {t0}, 13")
    m(f"s_lshl_b32 {t1}, {sW}, 11"); m(f"s_add_u32 {sDOFF}, {t0}, {t1}"); m(f"s_lshl_b32 {t0}, {sNT}, 11"); m(f"s_lshr_b32 {t1}, {sMT2}, 3"); m(f"s_lshl_b32 {t1}, {t1}, 9"); m(f"s_add_u32 {sKT}, {t0}, {t1}"); m(f"s_add_u32 {sKT}, {sKT}, {F1}")
    m(f"s_lshl_b32 {t1}, {sW}, 9"); m(f"s_add_u32 {t0}, {t0}, {t1}"); m(f"s_lshl_b32 {t1}, {sMT2}, 4"); m(f"s_add_u32 {t0}, {t0}, {t1}"); m(f"s_add_u32 {sYS}, {t0}, {F3}")
    m(f"s_lshl_b32 {t1}, {sW1_}, 11"); m(f"s_mul_i32 {sRAW}, {sWh}, {CHP}"); m(f"s_add_u32 {sRAW}, {sRAW}, {t1}"); m(f"s_add_u32 {sRAW}, {sRAW}, {HC+32}")
    m(f"v_add_u32 v{vTW}, {sRAW}, v{vL16}")
    m(f"v_and_b32 v{uA}, 1, v{u3}")
    m(f"v_mul_u32_u24 v{vZ1}, {CHP}, v{u7}"); m(f"v_lshl_add_u32 v{vZ1}, v{uA}, 4, v{vZ1}"); m(f"v_add_u32 v{vZ1}, {HC}, v{vZ1}"); m(f"ds_write_b128 v{vZ1}, {q4(ZR)}", tag="gz")
    m(f"v_lshrrev_b32 v{uHI}, 5, v{uL}"); m(f"v_and_b32 v{uB}, 31, v{uL}")
    m(f"v_mul_u32_u24 v{vZ2}, 4608, v{uHI}"); m(f"v_lshl_add_u32 v{vZ2}, v{uB}, 4, v{vZ2}"); m(f"v_add_u32 v{vZ2}, {U}, v{vZ2}"); m(f"ds_write_b128 v{vZ2}, {q4(ZR)}", tag="gz")
    m(f"s_mul_i32 {t0}, {sWh}, 4608"); m(f"s_add_u32 {t1}, {t0}, {t1}"); m(f"s_add_u32 {t1}, {t1}, {U+512}")
    m(f"v_add_u32 v{vUW}, {t1}, v{vL16}"); m(f"v_lshlrev_b32 v{vL4}, 4, v{uB}")
    m(f"s_lshl_b32 {t1}, {sW1_}, 8"); m(f"s_sub_u32 {t0}, {t0}, {t1}"); m(f"s_add_u32 {t0}, {t0}, {U + 512 - 32 - 192}")
    m(f"v_and_b32 v{uA}, 15, v{uL}"); m(f"v_lshlrev_b32 v{uB}, 5, v{uA}"); m(f"v_lshl_add_u32 v{uB}, v{u4}, 4, v{uB}"); m(f"v_add_u32 v{vCB}, {t0}, v{uB}")
    m(f"v_and_b32 v{uB}, 1, v{u4}"); m(f"v_lshlrev_b32 v{vW2}, 2, v{uB}"); m(f"v_and_b32 v{uC}, 2, v{u4}"); m(f"v_lshl_or_b32 v{uB}, v{uC}, 2, v{uB}")
    m(f"v_xor_b32 v{uA}, v{uA}, v{uB}"); m(f"v_lshl_add_u32 v{uA}, v{u4}, 4, v{uA}"); m(f"v_lshlrev_b32 v{uA}, 4, v{uA}")
    m(f"s_lshl_b32 {t0}, {sW}, 13"); m(f"s_add_u32 {t0}, {t0}, {EX}"); m(f"v_add_u32 v{vEW}, {t0}, v{uA}")
    m(f"v_xor_b32 v{vW2}, v{vW2}, v{u7}"); m(f"v_lshlrev_b32 v{vW2}, 4, v{vW2}"); m(f"v_lshl_add_u32 v{vW2}, v{u3}, 10, v{vW2}")
    for i in range(1, 4): m(f"v_add_u32 v{vW2+i}, {7168*i}, v{vW2}")
    m(f"v_lshrrev_b32 v{uA}, 2, v{uL}"); m(f"v_and_b32 v{uB}, 1, v{uL}"); m(f"v_and_b32 v{uC}, 2, v{uL}"); m(f"v_lshl_or_b32 v{uB}, v{uC}, 2, v{uB}")
    m(f"v_xor_b32 v{uA}, v{uA}, v{uB}"); m(f"v_and_b32 v{uC}, 3, v{uL}"); m(f"v_lshl_add_u32 v{uA}, v{uC}, 4, v{uA}"); m(f"v_lshlrev_b32 v{uA}, 4, v{uA}")
    m(f"s_lshl_b32 {t0}, {sW}, 11"); m(f"s_add_u32 {t0}, {t0}, {EX}"); m(f"v_add_u32 v{vER}, {t0}, v{uA}")
    m(f"s_lshl_b32 {sW2L}, {sW}, 13"); m(f"s_lshl_b32 {t0}, {sW}, 10"); m(f"s_add_u32 {t0}, {t0}, {U+512}"); m(f"v_lshl_add_u32 v{vEK}, v{uL}, 3, {t0}")
    m(f"v_bfe_u32 v{uA}, v{uL}, 2, 2"); m(f"v_mul_u32_u24 v{uB}, {CP}, v{uA}"); m(f"v_lshl_add_u32 v{uB}, v{u4}, 4, v{uB}")
    m(f"v_lshlrev_b32 v{uC}, 3, v{uC}"); m(f"v_sub_u32 v{uB}, v{uC}, v{uB}")
    m(f"s_mul_i32 {t0}, {sWh}, {CHP}"); m(f"s_add_u32 {t0}, {t0}, {t1}"); m(f"s_add_u32 {t0}, {t0}, {HC + 3*CP + 56}"); m(f"v_add_u32 v{vCA}, {t0}, v{uB}")
    m(f"s_mul_i32 {t0}, {sW}, {11*32768}"); m(f"s_lshl_b32 {t1}, {sNT}, 7"); m(f"s_add_u32 {t1}, {t0}, {t1}")
    m.ext(srd_off(24, 82, t1, 1376*1024, sub=True))
    if P.get("x_now2", 0) & 1: m("s_mov_b32 s26, 0")
    vPW = 5
    srd(m, 8, 82, 1376*1024)
    m(f"s_lshl_b32 {t0}, s2, 2"); m(f"s_add_u32 {t0}, {t0}, {sW}"); m(f"s_mul_i32 {t0}, {t0}, {11*128}")
    m(f"v_min_u32 v{vPW}, 10, v{uL}"); m(f"v_lshl_add_u32 v{vPW}, v{vPW}, 7, {t0}")
    if P["c3"]:
        m(f"s_lshr_b32 {t0}, s2, 3"); m(f"s_lshl_b32 {t0}, {t0}, 2"); m(f"s_add_u32 {t0}, {t0}, {sW}"); m(f"s_mul_i32 {t0}, {t0}, {11*1024}"); m(f"s_add_u32 {t0}, {t0}, 384")
        m(f"v_and_b32 v{uA}, 31, v{uL}"); m(f"v_min_u32 v{uA}, 10, v{uA}"); m(f"v_lshl_add_u32 v{uA}, v{uA}, 10, {t0}")
        if P["c3i"] < 0: m(f"v_cmp_gt_u32 vcc, 32, v{uL}"); m(f"v_cndmask_b32 v{vPW}, v{uA}, v{vPW}, vcc")
        else: m(f"v_mov_b32 v13, v{uA}")
    v.w0(vm=False, lg=True)
    m(f"s_and_b32 {sD1}, {sD0}, 0xffff0000"); m(f"s_lshl_b32 {sD0}, {sD0}, 16")
    bk = Prog()
    bk.wvm("kv")
    early(bk, 2)
    bk("s_barrier")
    if P["bf"]: bk("s_barrier")
    early(bk, 3)
    bk(f"ds_read_b32 v{vT}, v{vSY} offset:{EPT-SY}", tag="ep")
    tg_ = Prog(); tg_.wlg("ep")
    tg_(f"v_readfirstlane_b32 {sTC}, v{vT}"); tg_(f"s_add_u32 {sTC}, {sTC}, {TAGK}"); tg_(f"s_and_b32 {sTC}, {sTC}, 0xfffffff0")
    def mk_tb(R0, C, vtw):
        tb = Prog()
        for r in range(2):
            tb(f"ds_read_b64 {pr(R0+8*r)}, v{vtw} offset:{3*CP + 1024*r - 8}", tag="rw"); tb(f"ds_read_b128 {q4(R0+8*r+2)}, v{vtw} offset:{3*CP + 1024*r}", tag="rw")
        tb.wlg("rw")
        for r in range(2):
            R = R0 + 8*r; c = C + 12*r
            for i in range(4):
                tb(f"v_alignbit_b32 v{c+i}, v{R+2+i}, v{R+1+i}, 16"); tb(f"v_mov_b32 v{c+4+i}, v{R+1+i}"); tb(f"v_alignbit_b32 v{c+8+i}, v{R+1+i}, v{R+i}, 16")
            for cc in range(3): tb(f"ds_write_b128 v{vtw}, {q4(c+4*cc)} offset:{(2-cc)*CP + r*1024}", tag="z")
        return tb
    tb = mk_tb(64, 80, vTW) if P["tbg"] == 0 else Prog()
    rawg = Prog()
    rawg(f"s_add_u32 m0, {sRAW}, {3*CP}")
    rawg(f"buffer_load_dwordx4 v{vL16}, {SSM}, {sDOFF} offen {KVF} lds", tag="raw")
    rawg(f"buffer_load_dwordx4 v{vL16}, {SSM}, {sDOFF} offen offset:1024 {KVF} lds", tag="raw")
    KT = 104
    kl = [f"buffer_load_dwordx4 {q4(KT+4*i)}, v{vL16}, {WS}, {sDOFF} offen offset:{1024*i} sc1" for i in range(2)]
    f1ld = f"buffer_load_dword v{vT+1}, v{vL4}, {WS}, {sKT} offen sc1"
    CACC = 32; CAf = [("a", 0), ("a", 32)]; CBf = [("a", 64), ("v", 64)]
    def conv_reads(ii):
        o = []; b = ii & 1
        for a in range(8):
            o.append(I(f"ds_read_b128 {q4(CBf[b][1]+4*a, CBf[b][0])}, v{vCB} offset:{512*a + 64*(3-ii)}", f"cv{ii}_{a}"))
            for j in range(2):
                o.append(I(f"ds_read_b64_tr_b16 {pr(CAf[b][1]+4*a+2*j, 'a')}, v{vCA} offset:{512*a + 64*ii + (8 if j == 0 else 0)}", f"cv{ii}_{a}"))
        return o
    arr1 = Prog(); arr1.w0(vm=False, lg=True)
    arr1("s_mov_b64 exec, 1"); arr1(f"ds_add_u32 v{vSY}, v{vONE} offset:4"); arr1("s_mov_b64 exec, -1")
    cslots = []
    seen = set()
    for ii in range(4):
        b = ii & 1
        rd = conv_reads(ii + 1) if ii < 3 else []
        pairs = sorted([(a, bb) for a in range(8) for bb in range(8 - a)], key=lambda x: (max(x), x))
        for k, (a, bb) in enumerate(pairs):
            t = a + bb
            cc = q4(CACC+4*t) if t in seen else "0"
            seen.add(t)
            sl = conv_reads(0) if (ii == 0 and k == 0) else []
            sl.append(("wlg", f"cv{ii}_{max(a, bb)}" if ii == 0 else f"cv{ii}_7"))
            sl.append(I(f"v_mfma_f32_16x16x32_bf16 {q4(CACC+4*t)}, {q4(CAf[b][1]+4*a, 'a')}, {q4(CBf[b][1]+4*bb, CBf[b][0])}, {cc}"))
            kk = k - (8 if ii == 0 else 0)
            if 0 <= kk < len(rd): sl.append(rd[kk])
            if ii == 3 and k == 0: sl += arr1.items
            cslots.append(sl)
    kw_ = Prog()
    kw_.wvm("kvt")
    for i in range(2): kw_(f"ds_write_b128 v{vUW}, {q4(KT+4*i)} offset:{1024*i}", tag="z")
    kw_.w0(vm=False, lg=True)
    seq = flat([D(c) for c in range(1, 8)])
    seq += flat([Wt(t, PL[t], vW2, sXL, sW2L) for t in range(6)])
    lag = P["lag"]
    bpos = [min(7*c + lag, ([99]*6 + [53, 57])[c]) for c in range(8)]
    bpos[0] = P.get("b0", bpos[0]); bpos[1] = P.get("b1", bpos[1])
    assert P["bf"] or bpos[0] <= 11
    assert P["kbi"] <= min(11, bpos[0]) and all(bpos[c] <= 7*(c + 2) for c in range(1, 8)) and bpos == sorted(set(bpos))
    bar = {bpos[c]: c for c in range(8)}
    b8 = P["b8"]; assert 57 < b8 <= 69
    kvt = P["kvt"]
    ncv = P["ncv"] if kvt < 7 else 0
    cstart = 7*(kvt + 1) + lag
    tbg = groups_of(tb, P["tbn"]); ti = 0; ci = 0
    for i, gq in enumerate(seq):
        if i == P["kbi"]: v.ext(bk)
        if i in bar:
            c = bar[i]
            if 1 <= c <= 4: v.ext(early2(2*c - 2))
            v.wvm(f"c{c}")
            if 1 <= c <= 4: v.ext(early2(2*c - 1))
            if c == kvt + 1: v.ext(kw_)
            v("s_barrier")
            if c in (0, 3, 7): st(v)
        stg = P.get("stg", 0)
        if stg and i >= P["rawi"] and (i - P["rawi"]) % 7 == 0 and (i - P["rawi"]) // 7 < stg:
            kq = (i - P["rawi"]) // 7
            v(f"s_and_b32 {t0}, {sNT}, {stg-1}"); v(f"s_cmp_lg_u32 {t0}, {kq}"); v(f"s_cbranch_scc1 L_stg{kq}")
            for x in rawg.items: v.items.append(("raw", x.text))
            v.items.append(("raw", f"buffer_load_dword v{vPW}, v{vPW}, s[8:11], 0 offen"))
            v(f"L_stg{kq}:")
        elif i == P["rawi"] and not stg: v.ext(rawg)
        if i == P["f1i"]: v(f1ld, tag="f1")
        if i == 49:
            if P["warmf"]:
                v(f"v_mov_b32 v{vT}, {sTC}"); v(f"v_add_u32 v{vT}, 8, v{vT}"); v("s_mov_b64 exec, 1")
                v(f"buffer_store_dword v{vT}, v{vZ}, {WS}, {sYS} offen sc1", tag="wf"); v("s_mov_b64 exec, -1")
        if i == P["kvi"]:
            retry(v, "f1", "f1", [f"v_cmp_ne_u32 vcc, {sTC}, v{vT+1}"], [f1ld], sleep=P["sl_kv"]); cnt(v, 0)
            for x in kl: v(x, tag="kvt")
        if i == P["c3i"] and P["c3"]: v(f"buffer_load_dword v13, v13, s[8:11], 0 offen", tag="pw")
        if i == P["w2pw"]:
            v(f"buffer_load_dword v{vPW}, v{vPW}, s[8:11], 0 offen", tag="pw")
        if i == b8:
            v("s_barrier")
            if P["vp8"]: v(f"s_setprio {P['vp8']}")
        if P["nm"] and i == P["s1i"]:
            v.wvm(f"w2_{P['nm']-1}"); v(f"ds_write_b32 v23, v{vONE} offset:48", tag="sig")
        v.ext(gq)
        if i == P["kbi"] + 2: v.ext(tg_)
        if i >= P["tbi"] and ti < len(tbg): v.ext(tbg[ti]); ti += 1
        if ncv and cstart <= i < b8:
            assert ti == len(tbg)
            upto = (ncv * (i - cstart + 1)) // (b8 - cstart)
            while ci < upto: v.ext(cslots[ci]); ci += 1
    while ti < len(tbg): v.ext(tbg[ti]); ti += 1
    def varrive(i):
        v.w0(vm=False, lg=True)
        v("s_mov_b64 exec, 1"); v(f"ds_add_u32 v{vSY}, v{vONE} offset:{4*i}"); v("s_mov_b64 exec, -1")
    def vsync(i, arrive=True, n=4):
        if arrive: varrive(i)
        v(f"s_mov_b32 {sCNT}, 0")
        v(f"L_vs{i}:")
        v(f"ds_read_b32 v{vT}, v{vSY} offset:{4*i}"); v(f"s_add_u32 {sCNT}, {sCNT}, 1")
        v.w0(vm=False, lg=True)
        v(f"v_cmp_ne_u32 vcc, {n}, v{vT}"); v(f"s_cbranch_vccz L_vs{i}_ok")
        if n == 8: v("s_sleep 1")
        v(f"s_cmp_lt_u32 {sCNT}, 0x40000"); v(f"s_cbranch_scc1 L_vs{i}")
        v(f"L_vs{i}_ok:")
    v(f"s_lshl_b32 {t0}, {sW}, 2"); v(f"v_add_u32 v{vT+1}, {t0}, v{vSY}")
    if kvt >= 7: v.ext(kw_)
    varrive(0)
    def wsig():
        v.w0(vm=True, lg=False)
        v(f"ds_write_b32 v{vT+1}, v{vONE} offset:16", tag="sig")
    if P["sigc"] == -2: wsig()
    vsync(0, arrive=False)
    v.ext(cslots[0][:24]); cslots[0] = cslots[0][24:]
    if P["sigc"] == -1: wsig()
    st(v)
    v(f"s_mov_b32 {sCNT}, 0")
    v("L_vg:")
    v(f"ds_read_b32 v{vT}, v{vT+1} offset:32"); v(f"s_add_u32 {sCNT}, {sCNT}, 1")
    v.w0(vm=False, lg=True)
    v(f"v_cmp_eq_u32 vcc, 0, v{vT}"); v("s_cbranch_vccz L_vg_ok")
    v("s_sleep 1"); v(f"s_cmp_lt_u32 {sCNT}, 0x40000"); v("s_cbranch_scc1 L_vg")
    v("L_vg_ok:")
    st(v)
    v(f"s_setprio {P['vprio']}")
    while ci < 144:
        if ci == P["sigc"]: wsig()
        v.ext(cslots[ci]); ci += 1
    e3(v, 0)
    vsync(1, arrive=False)
    e3(v, 1)
    st(v)
    for t in range(8): v(f"ds_write_b128 v{vEW}, {q4(CACC+4*t)} offset:{1024*t}", tag="ex")
    E = 64; KVr = 96; KVf = 104; YO = 120
    e3(v, 2)
    vsync(2)
    e3(v, 3)
    for tt in range(2):
        for wv in range(4): v(f"ds_read_b128 {q4(E+(tt*4+wv)*4)}, v{vER} offset:{wv*8192 + tt*1024}", tag=f"exr{tt}")
        for ch in range(2): v(f"ds_read_b64 {pr(KVr+(tt*2+ch)*2)}, v{vEK} offset:{ch*4608 + tt*512}", tag=f"exr{tt}")
    for tt in range(2):
        v.wlg(f"exr{tt}")
        for ch in range(2):
            ee = E + (tt*4+2*ch)*4; r = KVr + (tt*2+ch)*2; f = KVf + (tt*2+ch)*4
            unpack(v, f, f+1, r); unpack(v, f+2, f+3, r+1)
            for i in range(4): v(f"v_add_f32 v{ee+i}, v{ee+i}, v{ee+4+i}")
            for i in range(4): v(f"v_fma_f32 v{ee+i}, v{f+i}, {sD0 if ch == 0 else sD1}, v{ee+i}")
        for i in range(4): v(f"v_cvt_pk_bf16_f32 v{YO+4*tt+i}, v{E+tt*16+i}, v{E+tt*16+8+i}")
        v(f"buffer_store_dwordx4 {q4(YO+4*tt)}, v{vL16}, {WS}, {sDOFF} offen offset:{1024*tt} sc1", tag="yst")
    st(v)
    v(f"v_mov_b32 v{vT}, {sTC}")
    e3(v, 4)
    v.wvm("yst")
    e3(v, 5)
    v("s_mov_b64 exec, 1"); v(f"buffer_store_dword v{vT}, v{vZ}, {WS}, {sYS} offen sc1"); v("s_mov_b64 exec, -1")
    v(f"s_or_b32 {t0}, s2, {sW}"); v(f"s_cmp_lg_u32 {t0}, 0"); v("s_cbranch_scc1 L_noep")
    cl = [f"buffer_load_dword v{64+i}, v{vL16}, {WS}, {t1} offen offset:{1024*i} sc1" for i in range(4)]
    v(f"s_mov_b32 {t1}, {ARR}")
    for x in cl: v(x, tag="cn")
    ck = tagcheck([64, 65, 66, 67], vT); ck[-1] = f"v_cmp_lt_u32 vcc, 15, v{vT}"
    retry(v, "cn", "cn", ck, cl, sleep=8)
    v(f"v_mov_b32 v{vT}, {sTC}"); v(f"s_mov_b32 {t0}, {EPO}"); v("s_mov_b64 exec, 1")
    v(f"buffer_store_dword v{vT}, v{vZ}, {WS}, {t0} offen sc1"); v("s_mov_b64 exec, -1")
    v("L_noep:")
    dump(v, st, vL16, 0)
    v("L_end:"); v("s_endpgm")
    g = Prog(); st = St()
    W2 = "s[24:27]"
    K, V, SP, HS, Q, OUT = "s[8:11]", "s[12:15]", "s[36:39]", "s[36:39]", "s[4:7]", "s[32:35]"
    sKL, sKO, sHS, sF2W, sF2R, sGS, sO, sY, sKV, sXS, sXR_, sFAST = "s54", "s55", "s61", "s62", "s88", "s89", "s90", "s91", "s3", "s94", "s95", "s24"
    CK = "s[20:21]"
    vPOLL, vXA, vWA, vPA, vKS, vH2, vB2, vKV, vC0 = 5, 6, 10, 11, 12, 13, 14, 18, 22
    vGA = 142; vB2V = 143
    ACC = 24
    g("L_G:")
    if P["prio"]: g(f"s_setprio {P['prio']}")
    early(g, 1)
    g(f"v_lshrrev_b32 v{uHI}, 5, v{uL}")
    srd(g, 4, 64, 2097152); srd(g, 32, 92, 2097152)
    sW2L_, sRH, sGW = "s94", "s95", "s22"
    g(f"s_lshl_b32 {t1}, {sMT1}, 1"); g(f"s_add_u32 {t0}, {sWh}, {t1}")
    g(f"s_mul_i32 {sHS}, {t0}, 44"); g(f"s_add_u32 {sHS}, {sHS}, {sFT0}"); g(f"s_lshl_b32 {sHS}, {sHS}, 12")
    g(f"s_lshl_b32 {t1}, {sW1_}, 11"); g(f"s_add_u32 {sHS}, {sHS}, {t1}"); g(f"s_add_u32 {sHS}, {sHS}, {WS_H}")
    fs = P["fsh"]
    g(f"s_lshl_b32 {t0}, {t0}, {9+fs}"); g(f"s_lshl_b32 {t1}, {sC1}, {5+fs}"); g(f"s_add_u32 {t0}, {t0}, {t1}"); g(f"s_lshl_b32 {t1}, {sW1_}, {4+fs}"); g(f"s_add_u32 {t0}, {t0}, {t1}")
    g(f"s_add_u32 {sF2W}, {t0}, {F2}"); g(f"s_lshl_b32 {sF2R}, {sMT2}, {9+fs}"); g(f"s_add_u32 {sF2R}, {sF2R}, {F2}")
    g(f"s_mul_i32 {t0}, {sMT2}, 44"); g(f"s_mul_i32 {t1}, {sW}, 11"); g(f"s_add_u32 {t0}, {t0}, {t1}"); g(f"s_lshl_b32 {t0}, {t0}, 12"); g(f"s_add_u32 {t0}, {t0}, {WS_H}")
    g.ext(srd_off(36, 28, t0, 0 if P.get("x_noh") else 45056))
    if P.get("x_nohst"): g(f"s_mov_b32 {sHS}, {WS_SIZE}")
    g(f"s_mul_i32 {t0}, {sW}, {11*32768}"); g(f"s_lshl_b32 {t1}, {sNT}, 7"); g(f"s_add_u32 {t1}, {t0}, {t1}")
    g.ext(srd_off(24, 82, t1, 1376*1024, sub=True))
    if P.get("x_now2", 0) & 2: g("s_mov_b32 s26, 0")
    sAW, sAR = "s8", "s9"
    g(f"s_add_u32 {sAW}, {sF2W}, 16384"); g(f"s_add_u32 {sAR}, {sF2R}, 16384")
    g(f"s_lshl_b32 {sW2L_}, {sW}, 13")
    g(f"s_lshl_b32 {t2}, {sMT2}, 1"); g(f"s_add_u32 {t2}, {t2}, {sWh}")
    g(f"s_lshl_b32 {sGS}, {t2}, 8"); g(f"s_add_u32 {sGS}, {sGS}, {WS_G}")
    g(f"s_lshl_b32 {sGW}, {sMT1}, 10"); g(f"s_lshl_b32 {t1}, {sW}, 8"); g(f"s_add_u32 {sGW}, {sGW}, {t1}"); g(f"s_add_u32 {sGW}, {sGW}, {WS_G}")
    g(f"s_lshl_b32 {t1}, {sWh}, 15"); g(f"s_add_u32 {sO}, {sT2}, {t1}"); g(f"s_lshl_b32 {t1}, {sW1_}, 6"); g(f"s_add_u32 {sO}, {sO}, {t1}")
    g(f"s_lshl_b32 {sY}, {sNT}, 18"); g(f"s_lshl_b32 {t1}, {sW1_}, 17"); g(f"s_add_u32 {sY}, {sY}, {t1}")
    g(f"s_lshl_b32 {t1}, {t2}, 7"); g(f"s_add_u32 {sY}, {sY}, {t1}")
    g(f"s_lshl_b32 {t0}, {sNT}, 11"); g(f"s_lshl_b32 {t1}, {sW}, 9"); g(f"s_add_u32 {sKL}, {t0}, {t1}"); g(f"s_lshl_b32 {t1}, {sMT2}, 4"); g(f"s_add_u32 {sKL}, {sKL}, {t1}"); g(f"s_add_u32 {sKL}, {sKL}, {F1}")
    g(f"s_lshr_b32 {t1}, {t2}, 4"); g(f"s_lshl_b32 {t1}, {t1}, 9"); g(f"s_add_u32 {t0}, {t0}, {t1}"); g(f"s_lshl_b32 {t1}, {sW1_}, 8"); g(f"s_add_u32 {t0}, {t0}, {t1}"); g(f"s_add_u32 {sKO}, {t0}, {F3}")
    g(f"s_lshl_b32 {sKV}, {sNT}, 18"); g(f"s_lshl_b32 {t1}, {sW}, 16"); g(f"s_add_u32 {sKV}, {sKV}, {t1}"); g(f"s_lshl_b32 {t1}, {sMT2}, 7"); g(f"s_add_u32 {sKV}, {sKV}, {t1}")
    g(f"v_lshlrev_b32 v{vKS}, 13, v{u3}"); g(f"v_lshl_add_u32 v{vKS}, v{u7}, 4, v{vKS}")
    g(f"v_bfe_u32 v{uA}, v{uL}, 2, 2"); g(f"v_and_b32 v{uC}, 3, v{uL}"); g(f"v_lshlrev_b32 v{uC}, 3, v{uC}")
    g(f"v_and_b32 v{uB}, 1, v{u4}"); g(f"v_lshl_add_u32 v{uC}, v{uB}, 5, v{uC}")
    g(f"v_lshl_add_u32 v{vWA}, v{uHI}, 3, v{uA}"); g(f"v_mul_u32_u24 v{vWA}, 192, v{vWA}"); g(f"v_add_u32 v{vWA}, v{vWA}, v{uC}"); g(f"v_add_u32 v{vWA}, {WR}, v{vWA}")
    g(f"v_lshl_add_u32 v{vB2}, v{uHI}, 2, v{uA}"); g(f"v_lshl_add_u32 v{vB2}, v{vB2}, 7, v{uC}")
    g(f"v_and_b32 v{uA}, 2, v{uA}"); g(f"v_lshlrev_b32 v{uA}, 5, v{uA}"); g(f"v_xor_b32 v{vB2}, v{vB2}, v{uA}")
    g(f"s_lshl_b32 {t0}, {sW1_}, 6"); g(f"v_xor_b32 v{vB2}, {t0}, v{vB2}")
    g(f"s_add_u32 {t0}, {sW2L_}, {WR}"); g(f"v_add_u32 v{vB2+2}, {t0}, v{vB2}"); g(f"v_add_u32 v{vB2}, {sXL}, v{vB2}")
    g(f"v_xor_b32 v{vB2+1}, 64, v{vB2}"); g(f"v_xor_b32 v{vB2+3}, 64, v{vB2+2}")
    g(f"v_lshlrev_b32 v{uB}, 2, v{uB}"); g(f"v_xor_b32 v{uB}, v{uB}, v{u7}"); g(f"v_lshlrev_b32 v{uB}, 4, v{uB}"); g(f"v_lshl_add_u32 v{vB2V}, v{u3}, 10, v{uB}")
    g(f"v_and_b32 v{uA}, 31, v{uL}"); g(f"v_lshlrev_b32 v{vL4}, 2, v{uA}"); g(f"v_bfe_u32 v{uB}, v{uA}, 1, 3"); g(f"v_xor_b32 v{uB}, v{uB}, v{uHI}")
    g(f"v_lshlrev_b32 v{uB}, 4, v{uB}"); g(f"v_lshl_add_u32 v{uB}, v{uA}, 7, v{uB}"); g(f"v_add_u32 v{vXA}, {sXL}, v{uB}")
    for jj in range(1, 4): g(f"v_xor_b32 v{vXA+jj}, {32*jj}, v{vXA}")
    g(f"v_xor_b32 v{uB}, v{u4}, v{uL}"); g(f"v_and_b32 v{uB}, 1, v{uB}"); g(f"v_lshlrev_b32 v{uB}, 10, v{uB}")
    g(f"v_lshl_add_u32 v{uB}, v{uHI}, 4, v{uB}"); g(f"v_add_u32 v{vGA}, {GWT}, v{uB}")
    g(f"s_lshl_b32 {t0}, {sW}, 5"); g(f"s_add_u32 {t0}, {t0}, {KST}")
    g(f"v_mul_u32_u24 v{vPA}, 1040, v{u7}"); g(f"v_lshl_add_u32 v{vPA}, v{u3}, 2, v{vPA}"); g(f"v_add_u32 v{vPA}, {t0}, v{vPA}")
    C0 = -2.0 * 0.7978845608028654 * 1.4426950408889634
    C1 = C0 * 0.044715
    g(f"v_mov_b32 v{vC0}, {fb(C0)}"); g(f"v_mov_b32 v{vC0+1}, {fb(C0)}"); g(f"s_mov_b32 s20, {fb(C1)}"); g(f"s_mov_b32 s21, {fb(C1)}")
    g(f"s_cmp_gt_u32 {sLIM}, 8"); g(f"s_cselect_b64 vcc, -1, 0"); g(f"v_cndmask_b32 v{vH2}, v{uOOB}, v{vL16}, vcc")
    for r in (1, 2, 3, 5, 6, 7, 9, 10, 11, 13, 14, 15, 17, 18, 19): g(f"v_accvgpr_write_b32 a{r}, 0")
    g(f"v_cmp_eq_u32 vcc, 0, v{uHI}"); g(f"v_mov_b32 v{uA}, 0x3f80"); g(f"v_cndmask_b32 v{uA}, 0, v{uA}, vcc"); g(f"v_accvgpr_write_b32 a16, v{uA}")
    SH = 136; vS1, vS2 = 132, 133
    g(f"s_lshl_b32 {t0}, {sW}, 7"); g(f"s_add_u32 {t0}, {t0}, {SHT}"); g(f"v_lshl_add_u32 v{vS1}, v{u3}, 4, {t0}")
    g(f"v_lshrrev_b32 v{vS2}, 1, v{vL4}"); g(f"v_add_u32 v{vS2}, {B1T}, v{vS2}")
    g(f"s_lshl_b32 {t0}, {sW1_}, 6"); g(f"v_add_u32 v{uA}, {t0}, v{vS2}")
    g(f"v_mov_b32 v{vTC}, {EPT}")
    KR, VR, CF, KF, KS = 72, 83, 96, 104, 126
    early(g, 2)
    g.items.append(("raw", "s_waitcnt vmcnt(0)"))
    early(g, 3)
    g("s_barrier")
    st(g)
    g(f"ds_read_b128 {q4(SH)}, v{vS1}", tag="sh"); g(f"ds_read_b32 v{vTC}, v{vTC}", tag="sh")
    for t in range(3): g(f"ds_read_u16 a{4*t}, v{vS2} offset:{64*t}", tag="sh")
    g(f"ds_read_u16 a12, v{uA} offset:{B2T-B1T}", tag="sh")
    for i in range(11):
        off = 640 + 128*i if i < 3 else 1040 + 128*(i-3)
        g(f"ds_read_b32 v{KR+i}, v{vPA} offset:{off}", tag="pk")
    for i in range(8): g(f"ds_read_b32 v{VR+i}, v{vPA} offset:{VST-KST+128*i}", tag="pv")
    if P["bf"]: g.w0(vm=False, lg=True); g("s_barrier")
    g.wlg("sh")
    unpack(g, CF+0, CF+2, SH); unpack(g, CF+4, CF+6, SH+1); unpack(g, CF+1, CF+3, SH+2); unpack(g, CF+5, CF+7, SH+3)
    g(f"v_add_u32 v{vTC}, {TAGK}, v{vTC}"); g(f"v_and_b32 v{vTC}, 0xfffffff0, v{vTC}"); g(f"v_readfirstlane_b32 {sTC}, v{vTC}")
    g.wlg("pk")
    for i in range(11): unpack(g, KF+2*i, KF+2*i+1, KR+i)
    for i in range(8): g(f"v_pk_mul_f32 {pr(KS+2*i)}, {pr(KF+2*(i+3))}, {pr(CF)}")
    for j in range(1, 4):
        for i in range(8): g(f"v_pk_fma_f32 {pr(KS+2*i)}, {pr(KF+2*(i+3-j))}, {pr(CF+2*j)}, {pr(KS+2*i)}")
    g.wlg("pv")
    for i in range(8): unpack(g, KF+2*i, KF+2*i+1, VR+i)
    for i in range(8): g(f"v_pk_mul_f32 {pr(KS+2*i)}, {pr(KS+2*i)}, {pr(KF+2*i)}")
    for ch in range(2):
        for i in range(4): g(f"v_cvt_pk_bf16_f32 v{KF+4*ch+i}, v{KS+4*i+ch}, v{KS+4*i+2+ch}")
    g(f"s_add_u32 {t0}, {sKV}, 4096")
    early(g, 4)
    for ch in range(P.get("x_kvst", 2)):
        g(f"buffer_store_dwordx4 {q4(KF+4*ch)}, v{vKS}, {WS}, {t0 if ch else sKV} offen sc1", tag="kvs0")
    if P["tbg"] == 1:
        g(f"s_lshl_b32 {t1}, {sW1_}, 11"); g(f"s_mul_i32 {t0}, {sWh}, {CHP}"); g(f"s_add_u32 {t0}, {t0}, {t1}"); g(f"s_add_u32 {t0}, {t0}, {HC+32}")
        g(f"v_add_u32 v{uA}, {t0}, v{vL16}")
        g.ext(mk_tb(24, 40, uA))
        g.w0(vm=False, lg=True)
    A2 = 72
    for t in range(3): g(f"v_mfma_f32_32x32x16_bf16 v[{ACC+16*t}:{ACC+16*t+15}], a[{4*t}:{4*t+3}], a[16:19], 0")
    g(f"v_mfma_f32_32x32x16_bf16 v[{A2}:{A2+15}], a[12:15], a[16:19], 0")
    if P["f1k"] < 0:
        g.wvm("kvs0"); g("s_mov_b64 exec, 1"); g(f"buffer_store_dword v{vTC}, v{vZ}, {WS}, {sKL} offen sc1", tag="fl1"); g("s_mov_b64 exec, -1")
    if P["warmf"]:
        g("s_mov_b64 exec, 1"); g(f"buffer_store_dword v{vTC}, v{vZ}, {WS}, {sF2W} offen sc1", tag="wf")
        g(f"buffer_store_dword v{vTC}, v{vZ}, {WS}, {sAW} offen sc1", tag="wf"); g("s_mov_b64 exec, -1")
    g(f"s_cmp_lg_u32 {sW}, 0"); g("s_cbranch_scc1 L_noarr")
    g(f"s_lshl_b32 {t0}, s2, 4")
    g(f"s_add_u32 {t0}, {t0}, {ARR}"); g("s_mov_b64 exec, 1")
    g.items.append(("raw", f"buffer_store_dword v{vTC}, v{vZ}, {WS}, {t0} offen sc1"))
    g("s_mov_b64 exec, -1")
    g("L_noarr:")
    early(g, 5)
    g("s_barrier")
    st(g)
    FR = 64; GF = 52; GA = ACC + 32
    mid_item = st.item()
    vOW, vOR, vOG, vY = 18, 19, 20, 21
    def gemm1(gate):
        o = Prog()
        nt_ = 2 if gate else 3
        def reads(ks):
            c, jj = divmod(ks, 4); slot = c % 4; b = FR + 16*(ks % 3)
            r_ = [I(f"ds_read_b128 {q4(b, 'a')}, v{vXA+jj} offset:{slot*4096}", f"r{ks}")]
            for t in range(nt_):
                for h in range(2):
                    r_.append(I(f"ds_read_b64_tr_b16 {pr(b+4+4*t+2*h, 'a')}, v{vWA} offset:{slot*12288 + (16*jj+4*h)*192 + t*64}", f"r{ks}"))
            if gate: r_.append(I(f"ds_read_b128 {q4(GF+4*(ks%3), 'a')}, v{vGA} offset:{32*ks}", f"r{ks}"))
            return r_
        o.ext(reads(0)); o.ext(reads(1))
        slots = []
        for ks in range(32):
            b = FR + 16*(ks % 3)
            nx = ks + 2
            pre = [("wlg", f"r{ks}")]
            if nx % 4 == 0:
                pre = [("wlg", f"r{ks+1}"), I("s_barrier")]
                if nx <= 16: pre = [pre[0]] + early2(nx//2 - 2) + [pre[1]] + early2(nx//2 - 1)
            rd = reads(nx) if nx < 32 else []
            mf = [I(f"v_mfma_f32_32x32x16_bf16 v[{ACC+16*t}:{ACC+16*t+15}], {q4(b+4+4*t, 'a')}, {q4(b, 'a')}, v[{ACC+16*t}:{ACC+16*t+15}]") for t in range(nt_)]
            if gate: mf.append(I(f"v_mfma_f32_16x16x32_bf16 {q4(GA)}, {q4(GF+4*(ks%3), 'a')}, {q4(b, 'a')}, {q4(GA) if ks else 0}"))
            slots += [pre + [mf[0]] + rd[0:3], [mf[1]] + rd[3:5], [mf[2]] + rd[5:7]]
        S = lambda ks, i=0: 3*ks + i
        xhi, xa = 110, 111
        eq = Prog()
        eq(f"v_lshrrev_b32 v{xhi}, 9, v{vL16}")
        eq(f"s_lshl_b32 {t0}, {sW}, 11"); eq(f"s_add_u32 {t2}, {t0}, {OT}")
        eq(f"v_lshl_add_u32 v{vOW}, v{vL4}, 4, {t2}"); eq(f"v_lshl_add_u32 v{vOW}, v{xhi}, 3, v{vOW}"); eq(f"v_add_u32 v{vOR}, {t2}, v{vL16}")
        eq(f"v_and_b32 v{xa}, 24, v{vL4}"); eq(f"v_lshl_add_u32 v{vOW}, v{xa}, 1, v{vOW}")
        eq(f"v_lshrrev_b32 v{vOG}, 6, v{vL16}"); eq(f"v_lshrrev_b32 v{xa}, 3, v{vL16}"); eq(f"v_xor_b32 v{xa}, v{xa}, v{vL16}"); eq(f"v_and_b32 v{xa}, 48, v{xa}"); eq(f"v_lshl_add_u32 v{vOG}, v{vOG}, 10, v{xa}")
        eq(f"v_lshl_add_u32 v{vY}, v{xhi}, 14, v{vL4}")
        eq(f"v_lshlrev_b32 v{vPA}, 1, v{vL4}"); eq(f"v_and_b32 v{vKS}, 0x70, v{vL16}")
        eq(f"s_lshl_b32 {t0}, {sW}, 7"); eq(f"v_add_u32 v{vKS}, {t0}, v{vKS}"); eq(f"v_or_b32 v{xa}, 0x1e0, v{vKS}")
        eq(f"v_cmp_gt_u32 vcc, 512, v{vL16}"); eq(f"v_cndmask_b32 v{vKS}, v{xa}, v{vKS}, vcc"); eq(f"v_lshlrev_b32 v{vKS}, {fs}, v{vKS}")
        for i in range(8): eq(f"s_add_u32 s{12+i}, {sY}, {(4*(i//2)+(i%2))*8192}")
        eq(f"s_add_u32 {t3}, {sO}, {16384-1024}")
        f1 = Prog(); f1.wvm("kvs0"); f1("s_mov_b64 exec, 1"); f1(f"buffer_store_dword v{vTC}, v{vZ}, {WS}, {sKL} offen sc1", tag="fl1"); f1("s_mov_b64 exec, -1")
        streams = [(groups_of(eq), S(4), S(14))]
        if P["f1k"] >= 0: streams.append(([f1.items], S(P["f1k"], 1), S(P["f1k"], 1)))
        if stamps: streams.append(([mid_item], S(16), S(16)))
        o.ext(weave(slots, *streams))
        if gate:
            G_ = 140
            o(f"v_and_b32 v{G_}, 256, v{vL16}"); o(f"v_cmp_ne_u32 vcc, 0, v{G_}"); o(f"v_cndmask_b32 v{G_}, v{GA}, v{GA+1}, vcc")
            o(f"v_cvt_pk_bf16_f32 v{G_}, v{G_}, v{G_}"); o(f"v_and_b32 v{G_}, 0xffff0000, v{G_}")
            o(f"v_mul_f32 v{G_}, {fb(-1.4426950408889634)}, v{G_}"); o(f"v_exp_f32 v{G_}, v{G_}"); o(f"v_add_f32 v{G_}, 1.0, v{G_}"); o(f"v_rcp_f32 v{G_}, v{G_}")
            o(f"v_cvt_pk_bf16_f32 v{G_}, v{G_}, v{G_}"); o(f"v_and_b32 v{G_}, 0xffff0000, v{G_}")
            o(f"v_sub_f32 v{G_+1}, 1.0, v{G_}"); o(f"v_cvt_pk_bf16_f32 v{G_+1}, v{G_+1}, v{G_+1}"); o(f"v_and_b32 v{G_+1}, 0xffff0000, v{G_+1}")
            o("s_mov_b32 exec_hi, 0")
            o.items.append(("raw", f"buffer_store_dwordx2 {pr(G_)}, v{vPA}, {WS}, {sGW} offen sc1"))
            o("s_mov_b32 exec_hi, -1")
            o.w0(vm=False, lg=True)
        return o.items
    g(f"s_cmp_eq_u32 {sC1}, 15"); g("s_cbranch_scc1 L_gate")
    g.items.append(("fork", "L_gate", gemm1(True), "L_join"))
    g.ext(gemm1(False))
    g.items.append(("join", "L_join"))
    st(g)
    T = 88; HP = 104
    vFL = vWA
    def flag(n):
        d = Prog()
        d.wvm(f"hst{n-1}")
        d(f"v_add_u32 v{vFL}, 3, v{vTC}"); d("s_mov_b64 exec, 1"); d(f"buffer_store_dword v{vFL}, v{vZ}, {WS}, {sF2W if n == 3 else sAW} offen sc1", tag=f"flag{n}"); d("s_mov_b64 exec, -1")
        return d.items
    def w2_read(tau, pl, areg):
        o = [("wvm", f"w2_{tau}")]
        for tdd in range(2):
            for ks in range(2):
                for j in range(2):
                    o.append(I(f"ds_read_b64_tr_b16 {pr(areg+tdd*8+ks*4+2*j, 'a')}, v{vB2+tdd+(2 if pl >= 4 else 0)} offset:{(pl % 4)*4096 + (16*ks+8*j)*128}", f"w2r_{tau}"))
        return o
    PL2 = {6+i: PL[i] for i in range(5)}; PL2[5] = PL[5]
    nm = P["nm"]
    ge = Prog()
    if nm:
        for i in range(4): ge(f"v_add_u32 v{6+i}, {7168*i}, v{vB2V}")
    ge(f"s_lshl_b32 {t0}, {sW}, 2"); ge(f"s_add_u32 {t0}, {t0}, {SY}"); ge(f"v_mov_b32 v128, {t0}")
    go = P["go"]
    def gosig(k):
        if k == go: ge("ds_write_b32 v128, v128 offset:32", tag="gd")
    for t in range(3):
        a = ACC + 16*t
        pk = lambda k: not (t == 2 and k > go)
        if t == 2: gosig(0)
        if pk(1):
            for i in range(8): ge(f"v_pk_mul_f32 {pr(T+2*i)}, {pr(a+2*i)}, {pr(a+2*i)}")
            for i in range(8): ge(f"v_pk_fma_f32 {pr(T+2*i)}, {pr(T+2*i)}, {CK}, {pr(vC0)}")
            for i in range(8): ge(f"v_pk_mul_f32 {pr(T+2*i)}, {pr(T+2*i)}, {pr(a+2*i)}")
        else:
            for i in range(16): ge(f"v_mul_f32 v{T+i}, v{a+i}, v{a+i}")
            for i in range(16): ge(f"v_fma_f32 v{T+i}, v{T+i}, s20, v{vC0}")
            for i in range(16): ge(f"v_mul_f32 v{T+i}, v{T+i}, v{a+i}")
        if t == 2: gosig(1)
        if nm and t == P["mid"] + 1:
            for tau in range(6, 6 + nm): ge.wlg(f"w2r_{tau-6}"); ge.ext(flat(Wt(tau, PL2[tau], 6, sXL, sW2L_)))
        for i in range(16): ge(f"v_exp_f32 v{T+i}, v{T+i}")
        if pk(2):
            for i in range(8): ge(f"v_pk_add_f32 {pr(T+2*i)}, {pr(T+2*i)}, 1.0 op_sel_hi:[1,0]")
        else:
            for i in range(16): ge(f"v_add_f32 v{T+i}, 1.0, v{T+i}")
        if t == 2: gosig(2)
        for i in range(16): ge(f"v_rcp_f32 v{T+i}, v{T+i}")
        if pk(3):
            for i in range(8): ge(f"v_pk_mul_f32 {pr(T+2*i)}, {pr(T+2*i)}, {pr(a+2*i)}")
        else:
            for i in range(16): ge(f"v_mul_f32 v{T+i}, v{T+i}, v{a+i}")
        if t == 2: gosig(3)
        for i in range(8): ge(f"v_cvt_pk_bf16_f32 v{HP+8*t+i}, v{T+2*i}, v{T+2*i+1}")
        if t: ge(f"s_add_u32 {sHS}, {sHS}, 4096")
        if t == 2 and P["lvl"] == 1: ge.ext(flag(1))
        for ks in range(2):
            ge(f"buffer_store_dwordx4 {q4(HP+8*t+4*ks)}, v{vH2 if t == 2 else vL16}, {WS}, {sHS} offen offset:{1024*ks} sc1", tag=f"hst{t}")
        if nm and t == P["mid"]:
            ge(f"s_mov_b32 {sCNT}, 0")
            ge("L_gm:")
            ge("ds_read_b32 v129, v128 offset:48"); ge(f"s_add_u32 {sCNT}, {sCNT}, 1")
            ge.w0(vm=False, lg=True)
            ge("v_cmp_ne_u32 vcc, 1, v129"); ge("s_cbranch_vccz L_gm_ok")
            ge("s_sleep 1"); ge(f"s_cmp_lt_u32 {sCNT}, 0x40000"); ge("s_cbranch_scc1 L_gm")
            ge("L_gm_ok:")
            for tau in range(nm): ge.ext(w2_read(tau, PL[tau], 16*tau))
    g.ext(ge)
    st(g)
    vW2g = 6; vH = [10, 13]; vSG = 128; vTG = 129
    g(f"v_mov_b32 v{vSG}, {SY}")
    if not P["pair"]: g(f"v_mov_b32 v{vTG}, 1"); g("s_mov_b64 exec, 1"); g(f"ds_add_u32 v{vSG}, v{vTG}", tag="gs"); g("s_mov_b64 exec, -1")
    g(f"s_mov_b32 m0, {t2}")
    g(f"buffer_load_dwordx4 v{vOG}, {Q}, {sO} offen lds", tag="qt"); g(f"buffer_load_dwordx4 v{vOG}, {Q}, {t3} offen offset:1024 lds", tag="qt")
    if not nm:
        for i in range(4): g(f"v_add_u32 v{vW2g+i}, {7168*i}, v{vB2V}")
    g(f"s_lshl_b32 {t0}, {sW}, 2"); g(f"v_add_u32 v{vSG}, {t0}, v{vSG}")
    sDONE = "s23"
    fl_raw = [f"v_add_u32 v{vFL}, 3, v{vTC}", "s_mov_b64 exec, 1", f"buffer_store_dword v{vFL}, v{vZ}, {WS}, {sF2W} offen sc1", "s_mov_b64 exec, -1"]
    if P["lvl"] == 2: g.ext(flag(2))
    if P["flagfirst"] == 1: g.ext(flag(3))
    g(f"s_mov_b32 {sCNT}, 0"); g(f"s_mov_b32 {sDONE}, 0")
    g("L_gw:")
    g(f"ds_read_b32 v{vTG}, v{vSG} offset:16"); g(f"s_add_u32 {sCNT}, {sCNT}, 1")
    g.w0(vm=False, lg=True)
    g(f"v_cmp_ne_u32 vcc, 1, v{vTG}"); g("s_cbranch_vccz L_gw_ok")
    if P["flagfirst"] == 2:
        g(f"s_cmp_lg_u32 {sDONE}, 0"); g("s_cbranch_scc1 L_gw2")
        g.items.append(("raw", "s_waitcnt vmcnt(0)"))
        for x in fl_raw: g.items.append(("raw", x))
        g(f"s_mov_b32 {sDONE}, 1")
        g("L_gw2:")
    g("s_sleep 1"); g(f"s_cmp_lt_u32 {sCNT}, 0x40000"); g("s_cbranch_scc1 L_gw")
    g("L_gw_ok:")
    if stamps: g(f"s_sub_u32 {sCNT}, {sCNT}, 1"); cnt(g, 0)
    for tau in range(nm, 5): g.ext(w2_read(tau, PL[tau], 16*tau))
    assert P["flt"] >= 6 + nm and P["f2t"] >= 6 + nm
    for tau in range(6 + nm, 11):
        g.wlg(f"w2r_{tau-6}"); g.ext(flat(Wt(tau, PL2[tau], vW2g, sXL, sW2L_)))
        if tau == P["f2t"]: g(f"buffer_load_dword v{vPOLL}, v{vKS}, {WS}, {sAR} offen sc1", tag="f2")
        if tau == P["flt"] and P["flagfirst"] == 0: g.ext(flag(3))
        if tau == P["flt"] and P["flagfirst"] == 2:
            g.wvm("hst2")
            g(f"s_cmp_lg_u32 {sDONE}, 0"); g("s_cbranch_scc1 L_gw3")
            for x in fl_raw: g.items.append(("raw", x))
            g("L_gw3:")
    st(g)
    f2ld = f"buffer_load_dword v{vPOLL}, v{vKS}, {WS}, {sAR} offen sc1"
    f2bl = f"buffer_load_dword v{vPOLL}, v{vKS}, {WS}, {sF2R} offen sc1"
    if P["f2after"]: g.wvm(f"w2_{P['f2after']}")
    if P["f2t"] > 10: g(f2ld, tag="f2")
    vRW = 6
    g(f"v_add_u32 v{vRW}, {sXL}, v{vL16}")
    for idx in range(1, 4): g(f"v_xor_b32 v{vRW+idx}, {idx*16384}, v{vRW}")
    g(f"s_lshl_b32 {t0}, {sWh}, 11"); g(f"v_add_u32 v{vH[0]}, {t0}, v{vL16}"); g(f"v_xor_b32 v{vH[1]}, 2048, v{vH[0]}")
    g(f"s_add_u32 {t1}, {sTC}, 3")
    QR = 136; GR = vC0
    g.wvm("qt")
    for q in range(4):
        if q: g(f"v_xor_b32 v{vTG}, {16*q}, v{vOW}")
        g(f"ds_read_b64 {pr(QR+2*q)}, v{vTG if q else vOW}", tag="qr")
    retry(g, "f2", "f2", [f"v_cmp_ne_u32 vcc, {t1}, v{vPOLL}"], [f2ld], sleep=P["sl_f2"]); cnt(g, 1)
    st(g)
    NH = 4
    nA = P["pre"]
    steps = [(t, ts) for t in range(nA) for ts in (1, 0)] + [(t, 1) for t in range(nA, 11)] + [(t, 0) for t in range(10, nA - 1, -1)]
    tb_ = [n for n, (t, ts) in enumerate(steps) if t >= 4*P["lvl"]][0]
    def h_load(n, ks):
        tau, ts = steps[n]
        d = Prog()
        if ks == 0:
            if n == tb_ - P["pollead"]: d(f2bl, tag="f2b")
            if n == tb_: retry(d, "f2b", "f2b", [f"v_cmp_ne_u32 vcc, {t1}, v{vPOLL}"], [f2bl], sleep=P["sl_f2"]); cnt(d, 3)
            d(f"s_mov_b32 {sRH}, {ORDER[tau]*4096}")
        d(f"buffer_load_dwordx4 {q4(88+8*(n % NH)+4*ks)}, v{vH[ts]}, {HS}, {sRH} offen offset:{ks*1024} sc1", tag=f"h{n}_{ks}")
        return d.items
    g(f"buffer_load_dwordx2 {pr(GR)}, v{vPA}, {WS}, {sGS} offen sc1", tag="g")
    for n in range(NH):
        for ks in range(2): g.ext(h_load(n, ks))
    if P["prio2"] != P["prio"]: g(f"s_setprio {P['prio2']}")
    AB = [A2, 24, 40, 56]
    YR = 136; QF = 120
    yl = [f"buffer_load_dword v{YR+i}, v{vY}, {WS}, s{12+i} offen sc1" for i in range(8)]
    f3ld = f"buffer_load_dword v{vPOLL}, v{vKS}, {WS}, {sKO} offen sc1"
    areg = lambda tau: 16*tau if tau < 5 else 80 + 16*((tau - 5) % 2)
    def rd(tau, gen_):
        it = w2_read(tau, PL2[tau], areg(tau))
        for x in it[1:]: x.tag = f"w2r_{tau}_{gen_}"
        return it
    reads_at = {3: rd(5, 0), 4: rd(6, 0), 6: rd(7, 0), 7: rd(8, 0), 8: rd(9, 0), 9: rd(10, 0), 12: rd(8, 1), 13: rd(7, 1), 14: rd(6, 1), 15: rd(5, 1)}
    reads_at = {n + nA: x for n, x in reads_at.items()}
    seen2 = {0}
    slots = []
    for n, (tau, ts) in enumerate(steps):
        it = reads_at.get(n)
        rr = [it[:3], it[3:5], it[5:7], it[7:9]] if it else [[], [], [], []]
        k = 0
        for ks in range(2):
            for tdd in range(2):
                a = AB[tdd + 2*ts]
                first = (tdd + 2*ts) not in seen2; seen2.add(tdd + 2*ts)
                cc = "0" if first else f"v[{a}:{a+15}]"
                s_ = [("wvm", f"h{n}_{ks}")] if tdd == 0 else []
                if k == 0: s_ += [("wlg", f"w2r_{tau}"), ("wlg", f"w2r_{tau}_{1-ts}")]
                s_.append(I(f"v_mfma_f32_32x32x16_bf16 v[{a}:{a+15}], {q4(areg(tau)+tdd*8+ks*4, 'a')}, {q4(88+8*(n % NH)+4*ks)}, {cc}"))
                if tdd == 1 and n + NH < 22: s_ += h_load(n + NH, ks)
                s_ += rr[k]
                slots.append(s_); k += 1
    eq = Prog()
    eq.wlg("qr"); eq.wvm("g")
    for q in range(4):
        unpack(eq, QF+4*q, QF+4*q+1, QR+2*q); unpack(eq, QF+4*q+2, QF+4*q+3, QR+2*q+1)
    for i in range(16): eq(f"v_mul_f32 v{QF+i}, v{GR}, v{QF+i}")
    ex = Prog()
    for q in range(1, 4): ex(f"v_xor_b32 v{vB2+q}, {16*q}, v{vOW}")
    ck3 = Prog()
    retry(ck3, "f3", "f3", [f"v_cmp_ne_u32 vcc, {sTC}, v{vPOLL}"], [f3ld], sleep=P["sl_y"]); cnt(ck3, 2)
    for x in yl: ck3(x, tag="y")
    early_w = [[I(f"ds_write_b128 v{vRW}, {q4(AB[idx]+4*q)} offset:{(idx-1)*4096 + 1024*q}", "red")] for idx in (3, 2) for q in range(4)]
    ws_ = [(groups_of(eq, 2), 8, 40), (early_w, 4*(14 + nA) + 1, 86), ([ex.items], 4*(16 + nA) + 1, 4*(16 + nA) + 1),
           ([[I(f"v_and_b32 v{vKS}, 0xf0, v{vL16}"), I(f3ld, "f3")]], P["f3pos"], P["f3pos"])]
    if P["ck3"] < 88: ws_.append(([ck3.items], P["ck3"], P["ck3"]))
    g.ext(weave(slots, *ws_))
    st(g)
    e3(g, 0)
    if P["ck3"] == 88: g.ext(ck3)
    e3(g, 1)
    for q in range(4): g(f"ds_write_b128 v{vRW}, {q4(AB[1]+4*q)} offset:{1024*q}", tag="red")
    if P["ck3"] > 88: g.ext(ck3)
    g.w0(vm=False, lg=True)
    e3(g, 2)
    g("s_barrier")
    e3(g, 3)
    for idx in range(1, 4):
        for q in range(4): g(f"ds_read_b128 {q4(AB[idx]+4*q)}, v{vRW+idx} offset:{(idx-1)*4096 + 1024*q}", tag=f"rr{idx}")
    ZF = 88
    def ymul():
        g.wvm("y")
        e3(g, 4)
        for i in range(8): unpack(g, ZF+2*i, ZF+2*i+1, YR+i)
        for i in range(8): g(f"v_pk_mul_f32 {pr(QF+2*i)}, {pr(QF+2*i)}, {pr(ZF+2*i)}")
    if P["ck3"] <= 88: ymul()
    for idx in range(1, 4):
        g.wlg(f"rr{idx}")
        for i in range(8): g(f"v_pk_add_f32 {pr(A2+2*i)}, {pr(A2+2*i)}, {pr(AB[idx]+2*i)}")
    if P["ck3"] > 88: ymul()
    for i in range(8): g(f"v_pk_fma_f32 {pr(QF+2*i)}, {pr(A2+2*i)}, {pr(GR)}, {pr(QF+2*i)} op_sel:[0,1,0]")
    for i in range(8): g(f"v_cvt_pk_bf16_f32 v{ZF+i}, v{QF+2*i}, v{QF+2*i+1}")
    e3(g, 5)
    for q in range(4): g(f"ds_write_b64 v{vB2+q if q else vOW}, {pr(ZF+2*q)}", tag="ow")
    for i in range(2): g(f"ds_read_b128 {q4(24+4*i)}, v{vOR} offset:{1024*i}", tag=f"or{i}")
    of = P["outf"].replace("plain", "")
    g.wlg("or0")
    g(f"buffer_store_dwordx4 {q4(24)}, v{vOG}, {OUT}, {sO} offen {of}", tag="out")
    g.wlg("or1")
    g(f"buffer_store_dwordx4 {q4(28)}, v{vOG}, {OUT}, {t3} offen offset:1024 {of}", tag="out")
    e3(g, 6)
    if stamps and P.get("early") == 3: g.w0(vm=True, lg=True); e3(g, 7)
    dump(g, st, vL16, 1)
    g("s_endpgm")
    body = resolve(p.items + v.items)
    stG = dict(hist=[], vm=[], lg=[], smem=False)
    tailG = []
    bodyG = resolve(g.items, stG, tailG) + tailG
    ref = open("cdna_kernels/" + NAME + ".s.ref").read().split("\n") if P.get("final") else []
    top = [l for l in ref[:16]] + DOC if P.get("final") else []
    hdr = top + [f"; @launch grid=(256,1,1) block=(512,1,1) lds={LDS_BYTES}",
           '.amdgcn_target "amdgcn-amd-amdhsa--gfx950"', ".text", f".globl {NAME}_kernel", ".p2align 8",
           f".type {NAME}_kernel,@function", f"{NAME}_kernel:", "L_codestart:"]
    ftr = ["L_codeend:", '.section .rodata,"a"', ".p2align 6", f".amdhsa_kernel {NAME}_kernel",
           "  .amdhsa_next_free_vgpr 256", "  .amdhsa_next_free_sgpr 102", "  .amdhsa_accum_offset 144",
           "  .amdhsa_group_segment_fixed_size 0", "  .amdhsa_kernarg_size 120", "  .amdhsa_user_sgpr_count 2",
           "  .amdhsa_user_sgpr_kernarg_segment_ptr 1", "  .amdhsa_system_sgpr_workgroup_id_x 1",
           "  .amdhsa_float_denorm_mode_32 3", ".end_amdhsa_kernel"]
    allb = body + bodyG
    if P.get("al", 1): allb = align_pass(hdr, allb, ftr)
    return "\n".join(hdr + allb + ftr) + "\n"

if __name__ == "__main__":
    kw = {}
    for a in sys.argv[2:]:
        if "=" in a:
            k, v = a.split("="); kw[k] = int(v) if v.lstrip("-").isdigit() else v
    open(sys.argv[1], "w").write(gen(stamps=("stamps" in sys.argv), **kw))
```

```python
import sys, struct
sys.path.insert(0, "dev")
from asmlib import *
NAME = "gated_mix__ssm_conv_h3__dense_activation_gelu__prompt"
NST = 10; NWAVES = 8

WS_KVT = 0; WS_Y = 0; WS_H = 8 << 20; WS_F = (13 << 20) + (768 << 10); WS_X = 16 << 20
EPO = WS_F; ARR = WS_F + 4096; F2 = WS_F + 98304; F1 = WS_F + 32768; F3 = WS_F + 49152; WS_G = WS_F + 65536
WS_SIZE = 16 << 20
TAGK = 0x9E3779B0
OOB = 0x80000000
XR = 0; WR = 65536; KST = 65536 + 49152 - 17680; VST = KST + 9360; U = 115200; HC = 124416; CP = 8256; CHP = 4128
SY = 157440; SHT = 157696; B1T = 158208; B2T = 158464; EPT = 158720; GWT = 161280; GWZ = 162304
EX = HC
PLACE = [x for s in range(3) for x in ([XR + w*16384 + s*4096 for w in range(4)] + [WR + s*12288 + i*4096 for i in range(3)])] + [XR + 3*4096]
ORD = [11*(j >> 2) + 3*(j & 3) + t for t in range(3) for j in range(8) if not (t == 2 and (j & 3) == 3)]
OT = WR + 3*12288
LDS_BYTES = 163840
WS = "s[28:31]"
sW, sMT1, sC1, sMT2, sNT, sFT0, sLIM, sTC, sXC, sWC = "s40", "s41", "s42", "s43", "s44", "s45", "s46", "s47", "s48", "s49"
sXL, sMTL, sW1_, sWh = "s50", "s51", "s52", "s53"
t0, t1, t2, t3 = "s56", "s57", "s58", "s59"
sCNT, sT2, sJH, sROT = "s60", "s63", "s96", "s97"
sHM = "s96"
fb = lambda x: "0x%08x" % struct.unpack("<I", struct.pack("<f", x))[0]
pr = lambda r, k="v": f"{k}[{r}:{r+1}]"
q4 = lambda r, k="v": f"{k}[{r}:{r+3}]"
flat = lambda gs: [x for g in gs for x in g]

def srd(p, base, ptr, size):
    p(f"s_mov_b32 s{base}, s{ptr}"); p(f"s_and_b32 s{base+1}, s{ptr+1}, 0xffff")
    p(f"s_mov_b32 s{base+2}, {size}"); p(f"s_mov_b32 s{base+3}, 0x20000")
def srd_off(base, ptr, off_s, size, sub=False):
    p = Prog()
    p(f"s_add_u32 s{base}, s{ptr}, {off_s}"); p(f"s_addc_u32 s{base+1}, s{ptr+1}, 0"); p(f"s_and_b32 s{base+1}, s{base+1}, 0xffff")
    p(f"s_sub_u32 s{base+2}, {size}, {off_s}" if sub else f"s_mov_b32 s{base+2}, {size}"); p(f"s_mov_b32 s{base+3}, 0x20000")
    return p.items
def unpack(p, lo, hi, src):
    p(f"v_lshlrev_b32 v{lo}, 16, v{src}"); p(f"v_and_b32 v{hi}, {sHM}, v{src}")
MAXSPIN = 0x8000
def retry(p, lab, tag, check, reloads, mask=None, sleep=1):
    p.wvm(tag)
    p(f"s_mov_b32 {sCNT}, 0")
    p(f"L_{lab}:")
    for c in check: p(c)
    p(f"s_and_b64 vcc, vcc, {mask or '-1'}")
    p(f"s_cbranch_scc0 L_{lab}_ok")
    if sleep: p(f"s_sleep {sleep}")
    for r in reloads: p.items.append(("raw", r))
    p(f"s_add_u32 {sCNT}, {sCNT}, 1")
    p(f"s_cmp_lt_u32 {sCNT}, {MAXSPIN}")
    p.items.append(("raw", "s_waitcnt vmcnt(0)"))
    p(f"s_cbranch_scc1 L_{lab}")
    p(f"L_{lab}_ok:")
def tagcheck(regs, tmp):
    o = [f"v_xor_b32 v{tmp}, {sTC}, v{regs[0]}"]
    for r in regs[1:]: o.append(f"v_bitop3_b32 v{tmp}, v{r}, {sTC}, v{tmp} bitop3:0xbe")
    o.append(f"v_cmp_ne_u32 vcc, 0, v{tmp}")
    return o

DEF = dict(pf=1, prio=2, prio2=0, vp8=3, flt=7, lag=12, sl_kv=8, sl_f2=4, sl_y=4, kvt=7, ncv=0, b8=65, bf=1, kbi=2, b0=12, b1=18, pw=0, pair=1, lvl=1, pollead=4, pre=4, fx=1, fxr=6, nm=0, mid=1, s1i=68, sigc=-1, go=3, fsh=0, f2t=10, ewe=78, c3i=49, tbi=72, tbn=99, tbg=0, rawi=21, stg=2, c3=1, wq=0, bs=1, f1i=49, outf="sc1", kvi=66, w2pw=-1, f1k=3, f3pos=78, ck3=89, xf="", rot1=1, rot2=0, warmf=1, flagfirst=2, f2after=0, nh0=2, vprio=1)

DOC = """;
; One launch, 256 workgroups of 8 waves (one per CU), written by a generator script.
;   waves 0-3 ("V"): stream x / w1 / w2 tiles into LDS (LDS-DMA), long causal conv as Toeplitz MFMA
;   waves 4-7 ("G"): kv = shift-conv(k)*v (transposed), gemm1 + gelu, gemm2 (split-K in the workgroup), gate mix
; Hand-offs between workgroups (kvT, h, gate, y) go through d_ws with write-through stores, a drained
; vmcnt and a per-wave flag word; flags carry a tag derived from an epoch word in d_ws, which workgroup 0
; advances once every workgroup has read it.""".split("\n")

def gen(stamps=False, **kw):
    P = dict(DEF); P.update(kw)
    KVF = P.get("kvf", "nt").replace("plain", "")
    global MAXSPIN; MAXSPIN = P.get("maxspin", 0x8000)
    class St:
        def __init__(s): s.n = 0
        def __call__(s, pp):
            if stamps:
                pp(f"s_memtime s[{64+2*s.n}:{65+2*s.n}]", tag="stamp"); s.n += 1
        def item(s):
            i = s.n; s.n += 1
            return [I(f"s_memtime s[{64+2*i}:{65+2*i}]", "stamp")] if stamps else []
    def early2(i):
        d = Prog()
        if stamps and P.get("early") == 2:
            d("s_memtime s[98:99]"); d.w0(vm=False, lg=True); d(f"v_writelane_b32 v0, s98, {44+i}")
        return d.items
    def e3(pp, i):
        if stamps and P.get("early") == 3:
            pp("s_memtime s[98:99]"); pp.w0(vm=False, lg=True); pp(f"v_writelane_b32 v0, s98, {44+i}")
    def early(pp, i):
        if stamps and P.get("early") == 1:
            pp("s_memtime s[98:99]"); pp.w0(vm=False, lg=True); pp(f"v_writelane_b32 v0, s98, {44+i}")
    def cnt(pp, i):
        if stamps: pp(f"v_writelane_b32 v0, {sCNT}, {32+i}")
    def dump(pp, st, vL16, role):
        if not stamps: return
        pp.w0(vm=True, lg=True)
        while st.n < NST - 1: st(pp)
        pp("s_memrealtime s[98:99]"); pp.w0(vm=False, lg=True)
        for i in range(st.n): pp(f"v_writelane_b32 v0, s{64+2*i}, {i+1}")
        pp(f"v_writelane_b32 v0, s98, {st.n+1}")
        pp(f"s_lshl_b32 {t0}, s2, 3"); pp(f"s_add_u32 {t0}, {t0}, {sW}"); pp(f"s_add_u32 {t0}, {t0}, {4*role}")
        pp(f"s_lshl_b32 {t0}, {t0}, 8"); pp(f"s_add_u32 {t0}, {t0}, {14<<20}")
        pp(f"v_lshrrev_b32 v6, 2, v{vL16}")
        pp(f"buffer_store_dword v0, v6, {WS}, {t0} offen")
        if P.get("dbgout") is not None and role == 1:
            pp(f"s_cmp_lg_u32 s2, {P['dbgout']}"); pp("s_cbranch_scc1 L_nodbg"); pp(f"s_cmp_lg_u32 {sW}, 0"); pp("s_cbranch_scc1 L_nodbg")
            pp("s_load_dwordx2 s[98:99], s[0:1], 104"); pp("v_writelane_b32 v0, s100, 11"); pp.w0(vm=False, lg=True)
            pp("s_mov_b64 exec, 0xffff"); pp("global_store_dword v6, v0, s[98:99]")
            pp("L_nodbg:")
    def rot_setup(pp):
        pp(f"s_mul_i32 {sROT}, {sMTL}, 11"); pp(f"s_lshr_b32 {sROT}, {sROT}, 1"); pp(f"s_bfe_u32 {t0}, s2, 0x20001"); pp(f"s_add_u32 {sROT}, {sROT}, {t0}")
        if P["hrot"]:
            pp(f"s_mul_i32 {t0}, {sNT}, 11"); pp(f"s_lshr_b32 {t0}, {t0}, 2"); pp(f"s_add_u32 {sROT}, {sROT}, {t0}")
        pp(f"s_sub_u32 {t0}, {sROT}, 22"); pp(f"s_cmp_ge_u32 {sROT}, 22"); pp(f"s_cselect_b32 {sROT}, {t0}, {sROT}")
    p = Prog()
    uL, uHI, u3, u7, u4, uA, uB, uC, uOOB, uSP, uKV = 120, 121, 122, 123, 124, 125, 126, 127, 128, 129, 130
    vL16, vL4, vZ, vTC = 1, 2, 3, 4
    sSO, sSM, sEL, sEH = "s32", "s33", "s34", "s35"
    p("s_cmp_ge_u32 s2, 256"); p("s_cbranch_scc1 L_end")
    p(f"v_lshrrev_b32 v{uA}, 6, v0")
    p("s_load_dwordx16 s[64:79], s[0:1], 0")
    p(f"v_readfirstlane_b32 {sW}, v{uA}")
    p("s_load_dwordx8 s[80:87], s[0:1], 64"); p("s_load_dwordx2 s[92:93], s[0:1], 96"); p("s_load_dwordx2 s[28:29], s[0:1], 112")
    if stamps: p("s_memtime s[98:99]"); p("s_memrealtime s[100:101]")
    if P["pf"]:
        p("s_getpc_b64 s[60:61]"); p(f"s_and_b32 {t0}, s2, 0xf8"); p(f"v_and_b32 v{uB}, 7, v0"); p(f"v_or_b32 v{uB}, {t0}, v{uB}"); p(f"v_lshlrev_b32 v{uB}, 7, v{uB}")
        p(f"v_min_u32 v{uB}, L_codeend-L_codestart-128, v{uB}")
        p(f"s_cmp_lg_u32 {sW}, 7"); p("s_cbranch_scc1 L_npf")
        p.items.append(("raw", f"global_load_dword v131, v{uB}, s[60:61]"))
        p("L_npf:")
    p("s_mov_b32 s34, 0x50401808"); p("s_mov_b32 s35, 0x58585870"); p(f"s_lshl_b32 {t0}, {sW}, 3"); p(f"s_lshr_b64 s[34:35], s[34:35], {t0}")
    p(f"s_and_b32 {t2}, s34, 0xff"); p(f"s_load_dwordx2 s[36:37], s[0:1], {t2}")
    p(f"v_and_b32 v{uL}, 63, v0"); p(f"v_lshrrev_b32 v{u3}, 3, v{uL}"); p(f"v_and_b32 v{u7}, 7, v{uL}")
    p(f"v_lshlrev_b32 v{uKV}, 10, v{u3}"); p(f"v_lshl_add_u32 v{uKV}, v{u7}, 4, v{uKV}")
    p(f"s_and_b32 {t0}, s2, 7"); p(f"s_lshr_b32 {sMTL}, s2, 6"); p(f"s_bfe_u32 {sNT}, s2, 0x30003")
    if P.get("x_ntx"): p(f"s_xor_b32 {sNT}, {sNT}, {P['x_ntx']}")
    sJL = "s97"
    p(f"s_mov_b32 {sJL}, {sNT}")
    if P.get("m2d"):
        p(f"s_and_b32 {sMT2}, {t0}, 6"); p(f"s_lshl_b32 {sMT2}, {sMT2}, 2"); p(f"s_lshr_b32 {t1}, s2, 5"); p(f"s_add_u32 {sMT2}, {sMT2}, {t1}")
        p(f"s_and_b32 {sNT}, {sNT}, 3"); p(f"s_and_b32 {t1}, {t0}, 1"); p(f"s_lshl_b32 {t1}, {t1}, 2"); p(f"s_add_u32 {sNT}, {sNT}, {t1}")
    else:
        p(f"s_lshl_b32 {sMT2}, {t0}, 2"); p(f"s_add_u32 {sMT2}, {sMT2}, {sMTL}")
    p(f"s_lshl_b32 {sT2}, {sMT2}, 16"); p(f"s_lshl_b32 {t1}, {sNT}, 7"); p(f"s_add_u32 {sT2}, {sT2}, {t1}")
    p(f"s_and_b32 {t3}, {sW}, 3"); p(f"s_lshl_b32 s12, {t3}, 13"); p(f"s_add_u32 s12, s12, {sT2}"); p(f"s_add_u32 s13, s12, 32768")
    p(f"s_mul_i32 s14, {t3}, 1040"); p(f"s_cmp_ge_u32 {sW}, 4"); p(f"s_cselect_b32 s15, {VST-KST-1040}, 0"); p("s_add_u32 s14, s14, s15"); p(f"s_add_u32 s14, s14, {KST+1040}")
    p(f"s_mov_b32 s10, {0 if P.get('x_nokv') else 2097152}"); p("s_mov_b32 s11, 0x20000")
    p(f"s_lshl_b32 s6, {sNT}, 5"); p(f"s_add_u32 s6, s6, {sMT2}"); p(f"s_lshl_b32 s6, s6, 3"); p(f"s_add_u32 s6, s6, {sW}"); p("s_lshl_b32 s6, s6, 10")
    p(f"s_lshl_b32 s7, {sW}, 10"); p(f"s_cmp_ge_u32 {sW}, 4"); p(f"s_cselect_b32 s15, 32, 0"); p("s_add_u32 s7, s7, s15"); p(f"s_add_u32 s7, s7, {HC + 3*CP + 32}")
    p(f"s_mov_b32 s18, {0 if P.get('x_noraw') else 2097152}"); p("s_mov_b32 s19, 0x20000")
    p(f"v_lshlrev_b32 v{vL16}, 4, v{uL}"); p("s_mov_b32 m0, s14"); p(f"s_cmp_ge_u32 {sW}, 4")
    p.w0(vm=False, lg=True)
    p("s_cselect_b64 s[8:9], s[68:69], s[66:67]"); p("s_and_b32 s9, s9, 0xffff")
    p(f"buffer_load_dwordx4 v{uKV}, s[8:11], s12 offen {KVF} lds", tag="kv")
    p("s_add_u32 m0, s14, 4160"); p("s_mov_b32 s16, s72")
    p(f"buffer_load_dwordx4 v{uKV}, s[8:11], s13 offen {KVF} lds", tag="kv")
    p("s_mov_b32 m0, s7"); p("s_and_b32 s17, s73, 0xffff")
    if P["rawi"] < 0: p(f"buffer_load_dwordx4 v{vL16}, s[16:19], s6 offen {KVF} lds", tag="kv")
    p(f"s_and_b32 {sMT1}, {t0}, 6"); p(f"s_lshl_b32 {sMT1}, {sMT1}, 1"); p(f"s_add_u32 {sMT1}, {sMT1}, {sMTL}")
    if P.get("rot1", 1) == 0:
        p(f"s_lshr_b32 {sXC}, {t0}, 1"); p(f"s_add_u32 {sXC}, {sXC}, {sNT}"); p(f"s_lshl_b32 {t3}, {sMTL}, 1"); p(f"s_add_u32 {sXC}, {sXC}, {t3}")
    elif P.get("rot1", 1) == 1:
        p(f"s_lshr_b32 {sXC}, {t0}, 1"); p(f"s_lshl_b32 {t3}, {sJL}, 1"); p(f"s_add_u32 {sXC}, {sXC}, {t3}"); p(f"s_lshl_b32 {t3}, {sMTL}, 2"); p(f"s_add_u32 {sXC}, {sXC}, {t3}")
        p(f"s_and_b32 {t3}, {t0}, 1"); p(f"s_add_u32 {sXC}, {sXC}, {t3}")
    else:
        p(f"s_mov_b32 {sXC}, {t0}")
    p(f"s_and_b32 {sXC}, {sXC}, 7"); p(f"s_lshl_b32 {sXC}, {sXC}, 7")
    p(f"s_and_b32 {sJH}, {t0}, 1"); p(f"s_lshl_b32 {t0}, {sJH}, 3"); p(f"s_add_u32 {sC1}, {t0}, {sJL}")
    p(f"s_and_b32 {t3}, {sC1}, 3")
    p(f"s_lshr_b32 {t0}, {sC1}, 2"); p(f"s_mul_i32 {sFT0}, {t0}, 11"); p(f"s_mul_i32 {t0}, {t3}, 3"); p(f"s_add_u32 {sFT0}, {sFT0}, {t0}")
    p(f"s_cmp_eq_u32 {t3}, 3"); p(f"s_cselect_b32 {sLIM}, {12 if P.get('x_lim') else 8}, 12"); p(f"s_cmp_eq_u32 {sC1}, 15"); p(f"s_cselect_b32 {sLIM}, 4, {sLIM}")
    p("s_mov_b32 s38, 1024"); p(f"s_mov_b32 {sSO}, {sXC}"); p(f"s_mov_b32 {sSM}, {GWT}")
    p(f"s_cmp_eq_u32 {sW}, 5"); p(f"s_cselect_b32 {t0}, {sC1}, 0"); p(f"s_cselect_b32 {t2}, 1023, -1"); p(f"s_cmp_eq_u32 {t0}, 15"); p(f"s_cselect_b64 s[34:35], -1, 0")
    p(f"s_lshl_b32 {t0}, {sNT}, 9"); p(f"s_lshl_b32 {t3}, {sFT0}, 6")
    for (w, sz, so, dst, el) in ((1, 4096, t0, SHT, -1), (2, 2752, t3, B1T, 0xfff), (3, 1024, t1, B2T, 0xff), (4, WS_SIZE, EPO, EPT, 1)):
        p(f"s_cmp_eq_u32 {sW}, {w}")
        if sz != 1024: p(f"s_cselect_b32 s38, {sz}, s38")
        p(f"s_cselect_b32 {sSO}, {so}, {sSO}"); p(f"s_cselect_b32 {sSM}, {dst}, {sSM}"); p(f"s_cselect_b32 {sEL}, {el}, {sEL}")
    p(f"v_add_u32 v{uSP}, {sSO}, v{vL16}"); p(f"v_and_b32 v{uSP}, {t2}, v{uSP}")
    p(f"s_cmp_lg_u32 {sW}, 0"); p("s_cbranch_scc1 L_nh")
    p("s_mov_b32 s38, 2097152"); p(f"s_mov_b32 {sSM}, {KST}"); p(f"s_mov_b32 {sEH}, 0xffffff00")
    p(f"s_sub_u32 {t0}, {sT2}, 8192"); p(f"v_add_u32 v{uSP}, {t0}, v{uKV}")
    p("L_nh:")
    p("s_mov_b32 s39, 0x20000"); p("s_and_b32 s37, s37, 0xffff")
    p(f"s_mov_b32 m0, {sSM}"); p("s_mov_b64 exec, s[34:35]"); p("s_cbranch_execz L_spn")
    p.items.append(("raw", f"buffer_load_dwordx4 v{uSP}, s[36:39], 0 offen sc1 lds"))
    p("L_spn:"); p("s_mov_b64 exec, -1")
    if stamps: p("v_mov_b32 v0, 0"); p("v_writelane_b32 v0, s98, 0"); p("v_writelane_b32 v0, s100, 40")
    early(p, 0)
    if P["bs"]: p("s_barrier")
    p(f"v_lshrrev_b32 v{u4}, 4, v{uL}"); p(f"v_mov_b32 v{uOOB}, {OOB}"); p(f"v_mov_b32 v{vZ}, 0")
    p(f"s_mov_b32 s30, {WS_SIZE}"); p("s_mov_b32 s31, 0x20000"); p("s_and_b32 s29, s29, 0xffff")
    p(f"s_and_b32 {t0}, {sW}, 4"); p(f"s_and_b32 {sW}, {sW}, 3"); p(f"s_lshl_b32 {sXL}, {sW}, 14")
    p(f"s_and_b32 {sW1_}, {sW}, 1"); p(f"s_lshr_b32 {sWh}, {sW}, 1"); p(f"s_mov_b32 {sHM}, 0xffff0000")
    p(f"s_cmp_lg_u32 {t0}, 0"); p("s_cbranch_scc1 L_G")
    def startstamp(pp):
        if stamps: pp("v_mov_b32 v0, 0"); pp("v_writelane_b32 v0, s98, 0"); pp("v_writelane_b32 v0, s100, 40")
    v = Prog(); st = St()
    XS, W1, SSM, W2 = "s[4:7]", "s[20:23]", "s[16:19]", "s[24:27]"
    sWL, sW2L, sRAW, sDOFF, sD0, sD1, sKT, sYS = "s54", "s55", "s62", "s88", "s89", "s90", "s91", "s3"
    vX, vW, vW2_, vTW, vUW, vCA, vCB, vEW, vER, vEK, vZ1, vZ2, vZ0, vSY, vONE, vT = 6, 10, 13, 14, 15, 16, 17, 18, 19, 20, 21, 22, 23, 24, 25, 26
    ZR = 28; vW2 = 112
    def D(c):
        g = []; slot = c % 4
        for i in range(4):
            d = Prog()
            if i == 0:
                if c: d(f"s_add_u32 {sXC}, {sXC}, 128"); d(f"s_and_b32 {sXC}, {sXC}, 1023"); d(f"s_mul_i32 {sWC}, {sXC}, 1376")
                d(f"s_add_u32 m0, {sXL}, {XR + slot*4096}")
            d(f"buffer_load_dwordx4 v{vX+i}, {XS}, {sXC} offen offset:{1024*i} {P.get('xf', '')} lds", tag=f"c{c}")
            g.append(d.items)
        for i in range(3):
            d = Prog()
            if i == 0: d(f"s_add_u32 m0, {sWL}, {slot*12288}")
            d(f"buffer_load_dwordx4 v{vW+i}, {W1}, {sWC} offen offset:{1024*i} {P.get('wf', '')} lds", tag=f"c{c}")
            g.append(d.items)
        return g
    ORDER = [0, 3, 6, 9, 1, 4, 7, 10, 2, 5, 8]
    PL = [0, 1, 2, 4, 5, 3]
    def rotstep(d, reg, unit):
        d(f"s_add_u32 {reg}, {reg}, {unit}"); d(f"s_cmp_eq_u32 {reg}, {11*unit}"); d(f"s_cselect_b32 {reg}, 0, {reg}")
    def Wt(tau, pl, vw, sxl, sw2l):
        o = []
        for i in range(4):
            d = Prog()
            if i == 0:
                d(f"s_mov_b32 {sROT}, {ORDER[tau]*32768}")
                d(f"s_add_u32 m0, {sxl}, {XR + pl*4096}" if pl < 4 else f"s_add_u32 m0, {sw2l}, {WR + (pl-4)*4096}")
            d(f"buffer_load_dwordx4 v{vw+i}, {W2}, {sROT} offen offset:{1024*i} lds", tag=f"w2_{tau}")
            o.append(d.items)
        return o
    def rot2(pp, first):
        if P["rot2"] >= 4:
            if P["rot2"] == 4: pp(f"s_and_b32 {sROT}, {sNT}, 1"); pp(f"s_mul_i32 {sROT}, {sROT}, 5")
            else: pp(f"s_and_b32 {sROT}, {sNT}, 3"); pp(f"s_mul_i32 {sROT}, {sROT}, 11"); pp(f"s_lshr_b32 {sROT}, {sROT}, 2")
            if first: pp(f"s_add_u32 {sROT}, {sROT}, {first}")
            pp(f"s_sub_u32 {t0}, {sROT}, 11"); pp(f"s_cmp_ge_u32 {sROT}, 11"); pp(f"s_cselect_b32 {sROT}, {t0}, {sROT}")
        elif P["rot2"]:
            pp(f"s_mul_i32 {sROT}, {sMTL}, {[0, 3, 0, 1][P['rot2']]}"); pp(f"s_and_b32 {t0}, s2, 7"); pp(f"s_add_u32 {sROT}, {sROT}, {t0}")
            if first: pp(f"s_add_u32 {sROT}, {sROT}, {first}")
            for _ in range(2): pp(f"s_sub_u32 {t0}, {sROT}, 11"); pp(f"s_cmp_ge_u32 {sROT}, 11"); pp(f"s_cselect_b32 {sROT}, {t0}, {sROT}")
        else: pp(f"s_mov_b32 {sROT}, {first}")
    if P["pw"] == 3:
        v(f"s_and_b32 {t0}, s2, 7"); v(f"s_lshr_b32 {t2}, s2, 3")
        v(f"s_cmp_eq_u32 {sW}, 2"); v("s_cbranch_scc1 L_pw6"); v(f"s_cmp_eq_u32 {sW}, 3"); v("s_cbranch_scc1 L_pw7")
        v(f"s_lshl_b32 {t0}, {t0}, 18"); v(f"s_lshl_b32 {t2}, {t2}, 13"); v(f"s_add_u32 {t0}, {t0}, {t2}"); v(f"s_lshl_b32 {t2}, {sW}, 12"); v(f"s_add_u32 {t0}, {t0}, {t2}")
        v(f"v_and_b32 v{uB}, 31, v{uL}"); v(f"v_lshl_add_u32 v{uC}, v{uB}, 7, {t0}"); v("s_mov_b64 s[4:5], s[64:65]")
        v("s_branch L_pwd")
        v("L_pw6:")
        v(f"s_lshr_b32 {t0}, {t0}, 1"); v(f"s_lshl_b32 {t0}, {t0}, 5"); v(f"s_add_u32 {t0}, {t0}, {t2}"); v(f"s_mul_i32 {t0}, {t0}, {4*2752}")
        v(f"s_mul_i32 {t2}, {sJH}, 1344"); v(f"s_add_u32 {t0}, {t0}, {t2}")
        v(f"v_mul_u32_u24 v{uC}, 2752, v{u4}"); v(f"v_and_b32 v{uB}, 15, v{uL}"); v(f"v_lshlrev_b32 v{uB}, 7, v{uB}")
        v(f"v_min_u32 v{uB}, 1404, v{uB}"); v(f"v_add3_u32 v{uC}, v{uC}, v{uB}, {t0}"); v("s_mov_b64 s[4:5], s[78:79]")
        v("s_branch L_pwd")
        v("L_pw7:")
        v(f"s_mul_i32 {t0}, s2, {43*128}"); v(f"v_min_u32 v{uC}, {42 if P['w2pw'] < 0 else 0}, v{uL}"); v(f"v_lshl_add_u32 v{uC}, v{uC}, 7, {t0}"); v("s_mov_b64 s[4:5], s[82:83]")
        v("L_pwd:")
        v(f"global_load_dword v131, v{uC}, s[4:5]", tag="tch")
    v(f"v_xor_b32 v{vX}, v{u7}, v{u4}"); v(f"v_lshlrev_b32 v{vX}, 4, v{vX}"); v(f"v_lshl_add_u32 v{vX}, v{u3}, 10, v{vX}")
    v(f"v_xor_b32 v{vX+1}, 64, v{vX}"); v(f"v_add_u32 v{vX+1}, 7168, v{vX+1}"); v(f"v_add_u32 v{vX+2}, 14336, v{vX}"); v(f"v_add_u32 v{vX+3}, 14336, v{vX+1}")
    v(f"s_lshl_b32 {t2}, {sMT1}, 17"); v(f"s_lshl_b32 {t0}, {sW}, 15"); v(f"s_add_u32 {t2}, {t2}, {t0}")
    v.ext(srd_off(4, 64, t2, 0 if P.get("x_nox") else 32768))
    v.ext(flat(D(0)[:4]))
    for i in range(3):
        v(f"v_add_u32 v{uA}, {64*i}, v{uL}"); v(f"v_mul_u32_u24 v{uB}, 171, v{uA}"); v(f"v_lshrrev_b32 v{uB}, 11, v{uB}")
        v(f"v_mul_u32_u24 v{uC}, 12, v{uB}"); v(f"v_sub_u32 v{uC}, v{uA}, v{uC}")
        v(f"v_mul_u32_u24 v{uB}, 2752, v{uB}"); v(f"v_cmp_gt_u32 vcc, {sLIM}, v{uC}"); v(f"v_lshl_add_u32 v{uB}, v{uC}, 4, v{uB}")
        v(f"v_subrev_u32 v{uB}, {1024*i}, v{uB}"); v(f"v_cndmask_b32 v{vW+i}, v{uOOB}, v{uB}, vcc")
    v(f"s_mul_i32 {sWC}, {sXC}, 1376")
    v(f"s_mul_i32 {t2}, {sW}, {16*2752}"); v(f"s_add_u32 {t3}, {t3}, {t2}")
    v(f"s_mul_i32 {sWL}, {sW}, 3072"); v(f"s_add_u32 {sWL}, {sWL}, {WR}")
    v.ext(srd_off(20, 78, t3, 512*2752, sub=True))
    if P.get("x_now1"): v("s_mov_b32 s22, 0")
    v.ext(flat(D(0)[4:]))
    early(v, 1)
    m = v
    for i in range(4): m(f"v_mov_b32 v{ZR+i}, 0")
    m(f"v_add_u32 v{uA}, {GWZ}, v{vL16}"); m(f"ds_write_b128 v{uA}, {q4(ZR)}", tag="gz")
    m(f"v_mov_b32 v{vSY}, {SY}"); m(f"ds_write_b128 v{vSY}, {q4(ZR)}", tag="gz"); m(f"ds_write_b128 v{vSY}, {q4(ZR)} offset:16", tag="gz"); m(f"ds_write_b128 v{vSY}, {q4(ZR)} offset:32", tag="gz"); m(f"ds_write_b128 v{vSY}, {q4(ZR)} offset:48", tag="gz")
    m(f"s_lshl_b32 {t0}, {sW}, 2"); m(f"v_add_u32 v23, {t0}, v{vSY}"); m(f"v_mov_b32 v{vONE}, 1")
    m(f"s_lshl_b32 {t0}, {sNT}, 7"); m(f"s_lshl_b32 {t1}, {sMT2}, 2"); m(f"s_add_u32 {t0}, {t0}, {t1}")
    m(f"s_load_dword {sD0}, s[74:75], {t0}", tag="ssmD")
    m(f"s_lshl_b32 {t0}, {sNT}, 5"); m(f"s_add_u32 {t0}, {t0}, {sMT2}"); m(f"s_lshl_b32 {t0}, {t0}, 13")
    m(f"s_lshl_b32 {t1}, {sW}, 11"); m(f"s_add_u32 {sDOFF}, {t0}, {t1}"); m(f"s_lshl_b32 {t0}, {sNT}, 11"); m(f"s_lshr_b32 {t1}, {sMT2}, 3"); m(f"s_lshl_b32 {t1}, {t1}, 9"); m(f"s_add_u32 {sKT}, {t0}, {t1}"); m(f"s_add_u32 {sKT}, {sKT}, {F1}")
    m(f"s_lshl_b32 {t1}, {sW}, 9"); m(f"s_add_u32 {t0}, {t0}, {t1}"); m(f"s_lshl_b32 {t1}, {sMT2}, 4"); m(f"s_add_u32 {t0}, {t0}, {t1}"); m(f"s_add_u32 {sYS}, {t0}, {F3}")
    m(f"s_lshl_b32 {t1}, {sW1_}, 11"); m(f"s_mul_i32 {sRAW}, {sWh}, {CHP}"); m(f"s_add_u32 {sRAW}, {sRAW}, {t1}"); m(f"s_add_u32 {sRAW}, {sRAW}, {HC+32}")
    m(f"v_add_u32 v{vTW}, {sRAW}, v{vL16}")
    m(f"v_and_b32 v{uA}, 1, v{u3}")
    m(f"v_mul_u32_u24 v{vZ1}, {CHP}, v{u7}"); m(f"v_lshl_add_u32 v{vZ1}, v{uA}, 4, v{vZ1}"); m(f"v_add_u32 v{vZ1}, {HC}, v{vZ1}"); m(f"ds_write_b128 v{vZ1}, {q4(ZR)}", tag="gz")
    m(f"v_lshrrev_b32 v{uHI}, 5, v{uL}"); m(f"v_and_b32 v{uB}, 31, v{uL}")
    m(f"v_mul_u32_u24 v{vZ2}, 4608, v{uHI}"); m(f"v_lshl_add_u32 v{vZ2}, v{uB}, 4, v{vZ2}"); m(f"v_add_u32 v{vZ2}, {U}, v{vZ2}"); m(f"ds_write_b128 v{vZ2}, {q4(ZR)}", tag="gz")
    m(f"s_mul_i32 {t0}, {sWh}, 4608"); m(f"s_add_u32 {t1}, {t0}, {t1}"); m(f"s_add_u32 {t1}, {t1}, {U+512}")
    m(f"v_add_u32 v{vUW}, {t1}, v{vL16}"); m(f"v_lshlrev_b32 v{vL4}, 4, v{uB}")
    m(f"s_lshl_b32 {t1}, {sW1_}, 8"); m(f"s_sub_u32 {t0}, {t0}, {t1}"); m(f"s_add_u32 {t0}, {t0}, {U + 512 - 32 - 192}")
    m(f"v_and_b32 v{uA}, 15, v{uL}"); m(f"v_lshlrev_b32 v{uB}, 5, v{uA}"); m(f"v_lshl_add_u32 v{uB}, v{u4}, 4, v{uB}"); m(f"v_add_u32 v{vCB}, {t0}, v{uB}")
    m(f"v_and_b32 v{uB}, 1, v{u4}"); m(f"v_lshlrev_b32 v{vW2}, 2, v{uB}"); m(f"v_and_b32 v{uC}, 2, v{u4}"); m(f"v_lshl_or_b32 v{uB}, v{uC}, 2, v{uB}")
    m(f"v_xor_b32 v{uA}, v{uA}, v{uB}"); m(f"v_lshl_add_u32 v{uA}, v{u4}, 4, v{uA}"); m(f"v_lshlrev_b32 v{uA}, 4, v{uA}")
    m(f"s_lshl_b32 {t0}, {sW}, 13"); m(f"s_add_u32 {t0}, {t0}, {EX}"); m(f"v_add_u32 v{vEW}, {t0}, v{uA}")
    m(f"v_xor_b32 v{vW2}, v{vW2}, v{u7}"); m(f"v_lshlrev_b32 v{vW2}, 4, v{vW2}"); m(f"v_lshl_add_u32 v{vW2}, v{u3}, 10, v{vW2}")
    for i in range(1, 4): m(f"v_add_u32 v{vW2+i}, {7168*i}, v{vW2}")
    m(f"v_lshrrev_b32 v{uA}, 2, v{uL}"); m(f"v_and_b32 v{uB}, 1, v{uL}"); m(f"v_and_b32 v{uC}, 2, v{uL}"); m(f"v_lshl_or_b32 v{uB}, v{uC}, 2, v{uB}")
    m(f"v_xor_b32 v{uA}, v{uA}, v{uB}"); m(f"v_and_b32 v{uC}, 3, v{uL}"); m(f"v_lshl_add_u32 v{uA}, v{uC}, 4, v{uA}"); m(f"v_lshlrev_b32 v{uA}, 4, v{uA}")
    m(f"s_lshl_b32 {t0}, {sW}, 11"); m(f"s_add_u32 {t0}, {t0}, {EX}"); m(f"v_add_u32 v{vER}, {t0}, v{uA}")
    m(f"s_lshl_b32 {sW2L}, {sW}, 13"); m(f"s_lshl_b32 {t0}, {sW}, 10"); m(f"s_add_u32 {t0}, {t0}, {U+512}"); m(f"v_lshl_add_u32 v{vEK}, v{uL}, 3, {t0}")
    m(f"v_bfe_u32 v{uA}, v{uL}, 2, 2"); m(f"v_mul_u32_u24 v{uB}, {CP}, v{uA}"); m(f"v_lshl_add_u32 v{uB}, v{u4}, 4, v{uB}")
    m(f"v_lshlrev_b32 v{uC}, 3, v{uC}"); m(f"v_sub_u32 v{uB}, v{uC}, v{uB}")
    m(f"s_mul_i32 {t0}, {sWh}, {CHP}"); m(f"s_add_u32 {t0}, {t0}, {t1}"); m(f"s_add_u32 {t0}, {t0}, {HC + 3*CP + 56}"); m(f"v_add_u32 v{vCA}, {t0}, v{uB}")
    m(f"s_mul_i32 {t0}, {sW}, {11*32768}"); m(f"s_lshl_b32 {t1}, {sNT}, 7"); m(f"s_add_u32 {t1}, {t0}, {t1}")
    m.ext(srd_off(24, 82, t1, 1376*1024, sub=True))
    if P.get("x_now2", 0) & 1: m("s_mov_b32 s26, 0")
    vPW = 5
    srd(m, 8, 82, 1376*1024)
    m(f"s_lshl_b32 {t0}, s2, 2"); m(f"s_add_u32 {t0}, {t0}, {sW}"); m(f"s_mul_i32 {t0}, {t0}, {11*128}")
    m(f"v_min_u32 v{vPW}, 10, v{uL}"); m(f"v_lshl_add_u32 v{vPW}, v{vPW}, 7, {t0}")
    if P.get("pwl2"):
        reg = vPW if P["pwl2"] == 1 else 13
        m(f"s_lshr_b32 {t0}, s2, 3"); m(f"s_lshl_b32 {t0}, {t0}, 2"); m(f"s_add_u32 {t0}, {t0}, {sW}"); m(f"s_mul_i32 {t0}, {t0}, {11*1024}")
        m(f"s_and_b32 {t1}, s2, 1"); m(f"s_lshl_b32 {t1}, {t1}, 9"); m(f"s_add_u32 {t0}, {t0}, {t1}")
        m(f"v_min_u32 v{uA}, 43, v{uL}"); m(f"v_lshrrev_b32 v{uB}, 2, v{uA}"); m(f"v_and_b32 v{uA}, 3, v{uA}"); m(f"v_lshlrev_b32 v{uA}, 7, v{uA}")
        m(f"v_lshl_add_u32 v{uA}, v{uB}, 10, v{uA}"); m(f"v_add_u32 v{reg}, {t0}, v{uA}")
    elif P["c3"]:
        m(f"s_lshr_b32 {t0}, s2, 3"); m(f"s_lshl_b32 {t0}, {t0}, 2"); m(f"s_add_u32 {t0}, {t0}, {sW}"); m(f"s_mul_i32 {t0}, {t0}, {11*1024}"); m(f"s_add_u32 {t0}, {t0}, 384")
        m(f"v_and_b32 v{uA}, 31, v{uL}"); m(f"v_min_u32 v{uA}, 10, v{uA}"); m(f"v_lshl_add_u32 v{uA}, v{uA}, 10, {t0}")
        if P["c3i"] < 0: m(f"v_cmp_gt_u32 vcc, 32, v{uL}"); m(f"v_cndmask_b32 v{vPW}, v{uA}, v{vPW}, vcc")
        else: m(f"v_mov_b32 v13, v{uA}")
    v.w0(vm=False, lg=True)
    m(f"s_and_b32 {sD1}, {sD0}, 0xffff0000"); m(f"s_lshl_b32 {sD0}, {sD0}, 16")
    bk = Prog()
    bk.wvm("kv")
    early(bk, 2)
    bk("s_barrier")
    if P["bf"]: bk("s_barrier")
    early(bk, 3)
    bk(f"ds_read_b32 v{vT}, v{vSY} offset:{EPT-SY}", tag="ep")
    tg_ = Prog(); tg_.wlg("ep")
    tg_(f"v_readfirstlane_b32 {sTC}, v{vT}"); tg_(f"s_add_u32 {sTC}, {sTC}, {TAGK}"); tg_(f"s_and_b32 {sTC}, {sTC}, 0xfffffff0")
    def mk_tb(R0, C, vtw):
        tb = Prog()
        for r in range(2):
            tb(f"ds_read_b64 {pr(R0+8*r)}, v{vtw} offset:{3*CP + 1024*r - 8}", tag="rw"); tb(f"ds_read_b128 {q4(R0+8*r+2)}, v{vtw} offset:{3*CP + 1024*r}", tag="rw")
        tb.wlg("rw")
        for r in range(2):
            R = R0 + 8*r; c = C + 12*r
            for i in range(4):
                tb(f"v_alignbit_b32 v{c+i}, v{R+2+i}, v{R+1+i}, 16"); tb(f"v_mov_b32 v{c+4+i}, v{R+1+i}"); tb(f"v_alignbit_b32 v{c+8+i}, v{R+1+i}, v{R+i}, 16")
            for cc in range(3): tb(f"ds_write_b128 v{vtw}, {q4(c+4*cc)} offset:{(2-cc)*CP + r*1024}", tag="z")
        return tb
    tb = mk_tb(64, 80, vTW) if P["tbg"] == 0 else Prog()
    rawg = Prog()
    rawg(f"s_add_u32 m0, {sRAW}, {3*CP}")
    rawg(f"buffer_load_dwordx4 v{vL16}, {SSM}, {sDOFF} offen {KVF} lds", tag="raw")
    rawg(f"buffer_load_dwordx4 v{vL16}, {SSM}, {sDOFF} offen offset:1024 {KVF} lds", tag="raw")
    KT = 104
    kl = [f"buffer_load_dwordx4 {q4(KT+4*i)}, v{vL16}, {WS}, {sDOFF} offen offset:{1024*i} sc1" for i in range(2)]
    f1ld = f"buffer_load_dword v{vT+1}, v{vL4}, {WS}, {sKT} offen sc1"
    CACC = 32; CAf = [("a", 0), ("a", 32)]; CBf = [("a", 64), ("v", 64)]
    def conv_reads(ii):
        o = []; b = ii & 1
        for a in range(8):
            o.append(I(f"ds_read_b128 {q4(CBf[b][1]+4*a, CBf[b][0])}, v{vCB} offset:{512*a + 64*(3-ii)}", f"cv{ii}_{a}"))
            for j in range(2):
                o.append(I(f"ds_read_b64_tr_b16 {pr(CAf[b][1]+4*a+2*j, 'a')}, v{vCA} offset:{512*a + 64*ii + (8 if j == 0 else 0)}", f"cv{ii}_{a}"))
        return o
    arr1 = Prog(); arr1.w0(vm=False, lg=True)
    arr1("s_mov_b64 exec, 1"); arr1(f"ds_add_u32 v{vSY}, v{vONE} offset:4"); arr1("s_mov_b64 exec, -1")
    cslots = []
    seen = set()
    for ii in range(4):
        b = ii & 1
        rd = conv_reads(ii + 1) if ii < 3 else []
        pairs = sorted([(a, bb) for a in range(8) for bb in range(8 - a)], key=lambda x: (max(x), x))
        if ii == 3 and P["fx"]: pairs = sorted(pairs, key=lambda x: (x[0] + x[1], x))
        for k, (a, bb) in enumerate(pairs):
            t = a + bb
            cc = q4(CACC+4*t) if t in seen else "0"
            seen.add(t)
            sl = conv_reads(0) if (ii == 0 and k == 0) else []
            sl.append(("wlg", f"cv{ii}_{max(a, bb)}" if ii == 0 else f"cv{ii}_7"))
            sl.append(I(f"v_mfma_f32_16x16x32_bf16 {q4(CACC+4*t)}, {q4(CAf[b][1]+4*a, 'a')}, {q4(CBf[b][1]+4*bb, CBf[b][0])}, {cc}"))
            kk = k - (8 if ii == 0 else 0)
            if 0 <= kk < len(rd): sl.append(rd[kk])
            if ii == 3 and k == 0: sl += arr1.items
            cslots.append(sl)
    kw_ = Prog()
    kw_.wvm("kvt")
    for i in range(2): kw_(f"ds_write_b128 v{vUW}, {q4(KT+4*i)} offset:{1024*i}", tag="z")
    kw_.w0(vm=False, lg=True)
    seq = flat([D(c) for c in range(1, 8)])
    seq += flat([Wt(t, PL[t], vW2, sXL, sW2L) for t in range(6)])
    lag = P["lag"]
    bpos = [min(7*c + lag, ([99]*6 + [53, 57])[c]) for c in range(8)]
    bpos[0] = P.get("b0", bpos[0]); bpos[1] = P.get("b1", bpos[1])
    assert P["bf"] or bpos[0] <= 11
    assert P["kbi"] <= min(11, bpos[0]) and all(bpos[c] <= 7*(c + 2) for c in range(1, 8)) and bpos == sorted(set(bpos))
    bar = {bpos[c]: c for c in range(8)}
    b8 = P["b8"]; assert 57 < b8 <= 69
    kvt = P["kvt"]
    ncv = P["ncv"] if kvt < 7 else 0
    cstart = 7*(kvt + 1) + lag
    tbg = groups_of(tb, P["tbn"]); ti = 0; ci = 0
    for i, gq in enumerate(seq):
        if i == P["kbi"]: v.ext(bk)
        if i in bar:
            c = bar[i]
            if 1 <= c <= 4: v.ext(early2(2*c - 2))
            v.wvm(f"c{c}")
            if 1 <= c <= 4: v.ext(early2(2*c - 1))
            if c == kvt + 1: v.ext(kw_)
            v("s_barrier")
            if c in (0, 3, 7): st(v)
        stg = P.get("stg", 0)
        if stg and i >= P["rawi"] and (i - P["rawi"]) % 7 == 0 and (i - P["rawi"]) // 7 < stg:
            kq = (i - P["rawi"]) // 7
            v(f"s_and_b32 {t0}, {sNT}, {stg-1}"); v(f"s_cmp_lg_u32 {t0}, {kq}"); v(f"s_cbranch_scc1 L_stg{kq}")
            for x in rawg.items: v.items.append(("raw", x.text))
            if not P.get("nopw"): v.items.append(("raw", f"buffer_load_dword v{vPW}, v{vPW}, s[8:11], 0 offen"))
            v(f"L_stg{kq}:")
        elif i == P["rawi"] and not stg: v.ext(rawg)
        if i == P["f1i"]: v(f1ld, tag="f1")
        if i == 49:
            if P["warmf"]:
                v(f"v_mov_b32 v{vT}, {sTC}"); v(f"v_add_u32 v{vT}, 8, v{vT}"); v("s_mov_b64 exec, 1")
                v(f"buffer_store_dword v{vT}, v{vZ}, {WS}, {sYS} offen sc1", tag="wf"); v("s_mov_b64 exec, -1")
        if i == P["kvi"]:
            retry(v, "f1", "f1", [f"v_cmp_ne_u32 vcc, {sTC}, v{vT+1}"], [f1ld], sleep=P["sl_kv"]); cnt(v, 0)
            for x in kl: v(x, tag="kvt")
        if i == P["c3i"] and P["c3"]: v(f"buffer_load_dword v13, v13, s[8:11], 0 offen", tag="pw")
        if i == P["w2pw"]:
            v(f"buffer_load_dword v{vPW}, v{vPW}, s[8:11], 0 offen", tag="pw")
        if i == b8:
            v("s_barrier")
            if P["vp8"]: v(f"s_setprio {P['vp8']}")
        if P["nm"] and i == P["s1i"]:
            v.wvm(f"w2_{P['nm']-1}"); v(f"ds_write_b32 v23, v{vONE} offset:48", tag="sig")
        v.ext(gq)
        if i == P["kbi"] + 2: v.ext(tg_)
        if i >= P["tbi"] and ti < len(tbg): v.ext(tbg[ti]); ti += 1
        if ncv and cstart <= i < b8:
            assert ti == len(tbg)
            upto = (ncv * (i - cstart + 1)) // (b8 - cstart)
            while ci < upto: v.ext(cslots[ci]); ci += 1
    while ti < len(tbg): v.ext(tbg[ti]); ti += 1
    def varrive(i):
        v.w0(vm=False, lg=True)
        v("s_mov_b64 exec, 1"); v(f"ds_add_u32 v{vSY}, v{vONE} offset:{4*i}"); v("s_mov_b64 exec, -1")
    def vsync(i, arrive=True, n=4):
        if arrive: varrive(i)
        v(f"s_mov_b32 {sCNT}, 0")
        v(f"L_vs{i}:")
        v(f"ds_read_b32 v{vT}, v{vSY} offset:{4*i}"); v(f"s_add_u32 {sCNT}, {sCNT}, 1")
        v.w0(vm=False, lg=True)
        v(f"v_cmp_ne_u32 vcc, {n}, v{vT}"); v(f"s_cbranch_vccz L_vs{i}_ok")
        if n == 8: v("s_sleep 1")
        v(f"s_cmp_lt_u32 {sCNT}, 0x40000"); v(f"s_cbranch_scc1 L_vs{i}")
        v(f"L_vs{i}_ok:")
    v(f"s_lshl_b32 {t0}, {sW}, 2"); v(f"v_add_u32 v{vT+1}, {t0}, v{vSY}")
    if kvt >= 7: v.ext(kw_)
    varrive(0)
    def wsig():
        v.w0(vm=True, lg=False)
        v(f"ds_write_b32 v{vT+1}, v{vONE} offset:16", tag="sig")
    if P["sigc"] == -2: wsig()
    vsync(0, arrive=False)
    v.ext(cslots[0][:24]); cslots[0] = cslots[0][24:]
    if P["sigc"] == -1: wsig()
    st(v)
    v(f"s_mov_b32 {sCNT}, 0")
    v("L_vg:")
    v(f"ds_read_b32 v{vT}, v{vT+1} offset:32"); v(f"s_add_u32 {sCNT}, {sCNT}, 1")
    v.w0(vm=False, lg=True)
    v(f"v_cmp_eq_u32 vcc, 0, v{vT}"); v("s_cbranch_vccz L_vg_ok")
    v("s_sleep 1"); v(f"s_cmp_lt_u32 {sCNT}, 0x40000"); v("s_cbranch_scc1 L_vg")
    v("L_vg_ok:")
    st(v)
    v(f"s_setprio {P['vprio']}")
    E = 64; KVr = 96; KVf = 104; YO = 120
    side = {}
    if P["fx"]:
        kd = Prog()
        for tt in range(2):
            for ch in range(2): kd(f"ds_read_b64 {pr(KVr+(tt*2+ch)*2)}, v{vEK} offset:{ch*4608 + tt*512}", tag="kdr")
        for n_, x in enumerate(kd.items): side[36 + 26 + n_] = [x]
        kd = Prog()
        for tt in range(2):
            for ch in range(2):
                r = KVr + (tt*2+ch)*2; f = KVf + (tt*2+ch)*4
                unpack(kd, f, f+1, r); unpack(kd, f+2, f+3, r+1)
        for n_, x in enumerate(groups_of(kd, 2)): side[72 + 26 + n_] = ([("wlg", "kdr")] if n_ == 0 else []) + x
        ck = Prog()
        ck.w0(vm=False, lg=True)
        ck(f"s_mov_b32 {sCNT}, 0")
        ck("L_vs1:")
        ck(f"v_cmp_ne_u32 vcc, 4, v{vT}"); ck("s_cbranch_vccz L_vs1_ok")
        ck.items.append(("raw", f"ds_read_b32 v{vT}, v{vSY} offset:4")); ck(f"s_add_u32 {sCNT}, {sCNT}, 1")
        ck.items.append(("raw", "s_waitcnt lgkmcnt(0)"))
        ck(f"s_cmp_lt_u32 {sCNT}, 0x40000"); ck("s_cbranch_scc1 L_vs1")
        ck("L_vs1_ok:")
        side[108 + P["fxr"]] = [I(f"ds_read_b32 v{vT}, v{vSY} offset:4", "s1")]
        side[108 + P["fxr"] + 7] = ck.items
        done = 0; pos = 108 + P["fxr"] + 7
        late_w = []
        for t in range(8):
            done += t + 1
            w_ = I(f"ds_write_b128 v{vEW}, {q4(CACC+4*t)} offset:{1024*t}", "ex")
            pos = max(pos + 2, 108 + done + 6)
            if pos < 144: side.setdefault(pos, []).append(w_)
            else: late_w.append(w_)
    while ci < 144:
        if ci == P["sigc"]: wsig()
        if ci == P.get("vupc", -1): v(f"s_setprio 3")
        v.ext(cslots[ci]); v.ext(side.get(ci, [])); ci += 1
    if P.get("vp2") is not None: v(f"s_setprio {P['vp2']}")
    e3(v, 0)
    if not P["fx"]: vsync(1, arrive=False)
    e3(v, 1)
    st(v)
    if P["fx"]: v.ext(late_w)
    else:
        for t in range(8): v(f"ds_write_b128 v{vEW}, {q4(CACC+4*t)} offset:{1024*t}", tag="ex")
    e3(v, 2)
    vsync(2)
    e3(v, 3)
    for tt in range(2):
        for wv in range(4): v(f"ds_read_b128 {q4(E+(tt*4+wv)*4)}, v{vER} offset:{wv*8192 + tt*1024}", tag=f"exr{tt}")
        if not P["fx"]:
            for ch in range(2): v(f"ds_read_b64 {pr(KVr+(tt*2+ch)*2)}, v{vEK} offset:{ch*4608 + tt*512}", tag=f"exr{tt}")
    for tt in range(2):
        v.wlg(f"exr{tt}")
        for ch in range(2):
            ee = E + (tt*4+2*ch)*4; r = KVr + (tt*2+ch)*2; f = KVf + (tt*2+ch)*4
            if not P["fx"]: unpack(v, f, f+1, r); unpack(v, f+2, f+3, r+1)
            for i in range(4): v(f"v_add_f32 v{ee+i}, v{ee+i}, v{ee+4+i}")
            for i in range(4): v(f"v_fma_f32 v{ee+i}, v{f+i}, {sD0 if ch == 0 else sD1}, v{ee+i}")
        for i in range(4): v(f"v_cvt_pk_bf16_f32 v{YO+4*tt+i}, v{E+tt*16+i}, v{E+tt*16+8+i}")
        v(f"buffer_store_dwordx4 {q4(YO+4*tt)}, v{vL16}, {WS}, {sDOFF} offen offset:{1024*tt} sc1", tag="yst")
    st(v)
    v(f"v_mov_b32 v{vT}, {sTC}")
    e3(v, 4)
    v.wvm("yst")
    e3(v, 5)
    v("s_mov_b64 exec, 1"); v(f"buffer_store_dword v{vT}, v{vZ}, {WS}, {sYS} offen sc1"); v("s_mov_b64 exec, -1")
    v(f"s_or_b32 {t0}, s2, {sW}"); v(f"s_cmp_lg_u32 {t0}, 0"); v("s_cbranch_scc1 L_noep")
    cl = [f"buffer_load_dword v{64+i}, v{vL16}, {WS}, {t1} offen offset:{1024*i} sc1" for i in range(4)]
    v(f"s_mov_b32 {t1}, {ARR}")
    for x in cl: v(x, tag="cn")
    ck = tagcheck([64, 65, 66, 67], vT); ck[-1] = f"v_cmp_lt_u32 vcc, 15, v{vT}"
    retry(v, "cn", "cn", ck, cl, sleep=8)
    v(f"v_mov_b32 v{vT}, {sTC}"); v(f"s_mov_b32 {t0}, {EPO}"); v("s_mov_b64 exec, 1")
    v(f"buffer_store_dword v{vT}, v{vZ}, {WS}, {t0} offen sc1"); v("s_mov_b64 exec, -1")
    v("L_noep:")
    dump(v, st, vL16, 0)
    v("L_end:"); v("s_endpgm")
    g = Prog(); st = St()
    W2 = "s[24:27]"
    K, V, SP, HS, Q, OUT = "s[8:11]", "s[12:15]", "s[36:39]", "s[36:39]", "s[4:7]", "s[32:35]"
    sKL, sKO, sHS, sF2W, sF2R, sGS, sO, sY, sKV, sXS, sXR_, sFAST = "s54", "s55", "s61", "s62", "s88", "s89", "s90", "s91", "s3", "s94", "s95", "s24"
    CK = "s[20:21]"
    vPOLL, vXA, vWA, vPA, vKS, vH2, vB2, vKV, vC0 = 5, 6, 10, 11, 12, 13, 14, 18, 22
    vGA = 142; vB2V = 143
    ACC = 24
    g("L_G:")
    if P["prio"]: g(f"s_setprio {P['prio']}")
    early(g, 1)
    g(f"v_lshrrev_b32 v{uHI}, 5, v{uL}")
    srd(g, 4, 64, 2097152); srd(g, 32, 92, 2097152)
    sW2L_, sRH, sGW = "s94", "s95", "s22"
    g(f"s_lshl_b32 {t1}, {sMT1}, 1"); g(f"s_add_u32 {t0}, {sWh}, {t1}")
    g(f"s_mul_i32 {sHS}, {t0}, 44"); g(f"s_add_u32 {sHS}, {sHS}, {sFT0}"); g(f"s_lshl_b32 {sHS}, {sHS}, 12")
    g(f"s_lshl_b32 {t1}, {sW1_}, 11"); g(f"s_add_u32 {sHS}, {sHS}, {t1}"); g(f"s_add_u32 {sHS}, {sHS}, {WS_H}")
    fs = P["fsh"]
    g(f"s_lshl_b32 {t0}, {t0}, {9+fs}"); g(f"s_lshl_b32 {t1}, {sC1}, {5+fs}"); g(f"s_add_u32 {t0}, {t0}, {t1}"); g(f"s_lshl_b32 {t1}, {sW1_}, {4+fs}"); g(f"s_add_u32 {t0}, {t0}, {t1}")
    g(f"s_add_u32 {sF2W}, {t0}, {F2}"); g(f"s_lshl_b32 {sF2R}, {sMT2}, {9+fs}"); g(f"s_add_u32 {sF2R}, {sF2R}, {F2}")
    g(f"s_mul_i32 {t0}, {sMT2}, 44"); g(f"s_mul_i32 {t1}, {sW}, 11"); g(f"s_add_u32 {t0}, {t0}, {t1}"); g(f"s_lshl_b32 {t0}, {t0}, 12"); g(f"s_add_u32 {t0}, {t0}, {WS_H}")
    g.ext(srd_off(36, 28, t0, 0 if P.get("x_noh") else 45056))
    if P.get("x_nohst"): g(f"s_mov_b32 {sHS}, {WS_SIZE}")
    g(f"s_mul_i32 {t0}, {sW}, {11*32768}"); g(f"s_lshl_b32 {t1}, {sNT}, 7"); g(f"s_add_u32 {t1}, {t0}, {t1}")
    g.ext(srd_off(24, 82, t1, 1376*1024, sub=True))
    if P.get("x_now2", 0) & 2: g("s_mov_b32 s26, 0")
    sAW, sAR = "s8", "s9"
    g(f"s_add_u32 {sAW}, {sF2W}, 16384"); g(f"s_add_u32 {sAR}, {sF2R}, 16384")
    g(f"s_lshl_b32 {sW2L_}, {sW}, 13")
    g(f"s_lshl_b32 {t2}, {sMT2}, 1"); g(f"s_add_u32 {t2}, {t2}, {sWh}")
    g(f"s_lshl_b32 {sGS}, {t2}, 8"); g(f"s_add_u32 {sGS}, {sGS}, {WS_G}")
    g(f"s_lshl_b32 {sGW}, {sMT1}, 10"); g(f"s_lshl_b32 {t1}, {sW}, 8"); g(f"s_add_u32 {sGW}, {sGW}, {t1}"); g(f"s_add_u32 {sGW}, {sGW}, {WS_G}")
    g(f"s_lshl_b32 {t1}, {sWh}, 15"); g(f"s_add_u32 {sO}, {sT2}, {t1}"); g(f"s_lshl_b32 {t1}, {sW1_}, 6"); g(f"s_add_u32 {sO}, {sO}, {t1}")
    g(f"s_lshl_b32 {sY}, {sNT}, 18"); g(f"s_lshl_b32 {t1}, {sW1_}, 17"); g(f"s_add_u32 {sY}, {sY}, {t1}")
    g(f"s_lshl_b32 {t1}, {t2}, 7"); g(f"s_add_u32 {sY}, {sY}, {t1}")
    g(f"s_lshl_b32 {t0}, {sNT}, 11"); g(f"s_lshl_b32 {t1}, {sW}, 9"); g(f"s_add_u32 {sKL}, {t0}, {t1}"); g(f"s_lshl_b32 {t1}, {sMT2}, 4"); g(f"s_add_u32 {sKL}, {sKL}, {t1}"); g(f"s_add_u32 {sKL}, {sKL}, {F1}")
    g(f"s_lshr_b32 {t1}, {t2}, 4"); g(f"s_lshl_b32 {t1}, {t1}, 9"); g(f"s_add_u32 {t0}, {t0}, {t1}"); g(f"s_lshl_b32 {t1}, {sW1_}, 8"); g(f"s_add_u32 {t0}, {t0}, {t1}"); g(f"s_add_u32 {sKO}, {t0}, {F3}")
    g(f"s_lshl_b32 {sKV}, {sNT}, 18"); g(f"s_lshl_b32 {t1}, {sW}, 16"); g(f"s_add_u32 {sKV}, {sKV}, {t1}"); g(f"s_lshl_b32 {t1}, {sMT2}, 7"); g(f"s_add_u32 {sKV}, {sKV}, {t1}")
    g(f"v_lshlrev_b32 v{vKS}, 13, v{u3}"); g(f"v_lshl_add_u32 v{vKS}, v{u7}, 4, v{vKS}")
    g(f"v_bfe_u32 v{uA}, v{uL}, 2, 2"); g(f"v_and_b32 v{uC}, 3, v{uL}"); g(f"v_lshlrev_b32 v{uC}, 3, v{uC}")
    g(f"v_and_b32 v{uB}, 1, v{u4}"); g(f"v_lshl_add_u32 v{uC}, v{uB}, 5, v{uC}")
    g(f"v_lshl_add_u32 v{vWA}, v{uHI}, 3, v{uA}"); g(f"v_mul_u32_u24 v{vWA}, 192, v{vWA}"); g(f"v_add_u32 v{vWA}, v{vWA}, v{uC}"); g(f"v_add_u32 v{vWA}, {WR}, v{vWA}")
    g(f"v_lshl_add_u32 v{vB2}, v{uHI}, 2, v{uA}"); g(f"v_lshl_add_u32 v{vB2}, v{vB2}, 7, v{uC}")
    g(f"v_and_b32 v{uA}, 2, v{uA}"); g(f"v_lshlrev_b32 v{uA}, 5, v{uA}"); g(f"v_xor_b32 v{vB2}, v{vB2}, v{uA}")
    g(f"s_lshl_b32 {t0}, {sW1_}, 6"); g(f"v_xor_b32 v{vB2}, {t0}, v{vB2}")
    g(f"s_add_u32 {t0}, {sW2L_}, {WR}"); g(f"v_add_u32 v{vB2+2}, {t0}, v{vB2}"); g(f"v_add_u32 v{vB2}, {sXL}, v{vB2}")
    g(f"v_xor_b32 v{vB2+1}, 64, v{vB2}"); g(f"v_xor_b32 v{vB2+3}, 64, v{vB2+2}")
    g(f"v_lshlrev_b32 v{uB}, 2, v{uB}"); g(f"v_xor_b32 v{uB}, v{uB}, v{u7}"); g(f"v_lshlrev_b32 v{uB}, 4, v{uB}"); g(f"v_lshl_add_u32 v{vB2V}, v{u3}, 10, v{uB}")
    g(f"v_and_b32 v{uA}, 31, v{uL}"); g(f"v_lshlrev_b32 v{vL4}, 2, v{uA}"); g(f"v_bfe_u32 v{uB}, v{uA}, 1, 3"); g(f"v_xor_b32 v{uB}, v{uB}, v{uHI}")
    g(f"v_lshlrev_b32 v{uB}, 4, v{uB}"); g(f"v_lshl_add_u32 v{uB}, v{uA}, 7, v{uB}"); g(f"v_add_u32 v{vXA}, {sXL}, v{uB}")
    for jj in range(1, 4): g(f"v_xor_b32 v{vXA+jj}, {32*jj}, v{vXA}")
    g(f"v_xor_b32 v{uB}, v{u4}, v{uL}"); g(f"v_and_b32 v{uB}, 1, v{uB}"); g(f"v_lshlrev_b32 v{uB}, 10, v{uB}")
    g(f"v_lshl_add_u32 v{uB}, v{uHI}, 4, v{uB}"); g(f"v_add_u32 v{vGA}, {GWT}, v{uB}")
    g(f"s_lshl_b32 {t0}, {sW}, 5"); g(f"s_add_u32 {t0}, {t0}, {KST}")
    g(f"v_mul_u32_u24 v{vPA}, 1040, v{u7}"); g(f"v_lshl_add_u32 v{vPA}, v{u3}, 2, v{vPA}"); g(f"v_add_u32 v{vPA}, {t0}, v{vPA}")
    C0 = -2.0 * 0.7978845608028654 * 1.4426950408889634
    C1 = C0 * 0.044715
    g(f"v_mov_b32 v{vC0}, {fb(C0)}"); g(f"v_mov_b32 v{vC0+1}, {fb(C0)}"); g(f"s_mov_b32 s20, {fb(C1)}"); g(f"s_mov_b32 s21, {fb(C1)}")
    g(f"s_cmp_gt_u32 {sLIM}, 8"); g(f"s_cselect_b64 vcc, -1, 0"); g(f"v_cndmask_b32 v{vH2}, v{uOOB}, v{vL16}, vcc")
    for r in (1, 2, 3, 5, 6, 7, 9, 10, 11, 13, 14, 15, 17, 18, 19): g(f"v_accvgpr_write_b32 a{r}, 0")
    g(f"v_cmp_eq_u32 vcc, 0, v{uHI}"); g(f"v_mov_b32 v{uA}, 0x3f80"); g(f"v_cndmask_b32 v{uA}, 0, v{uA}, vcc"); g(f"v_accvgpr_write_b32 a16, v{uA}")
    SH = 136; vS1, vS2 = 132, 133
    g(f"s_lshl_b32 {t0}, {sW}, 7"); g(f"s_add_u32 {t0}, {t0}, {SHT}"); g(f"v_lshl_add_u32 v{vS1}, v{u3}, 4, {t0}")
    g(f"v_lshrrev_b32 v{vS2}, 1, v{vL4}"); g(f"v_add_u32 v{vS2}, {B1T}, v{vS2}")
    g(f"s_lshl_b32 {t0}, {sW1_}, 6"); g(f"v_add_u32 v{uA}, {t0}, v{vS2}")
    g(f"v_mov_b32 v{vTC}, {EPT}")
    KR, VR, CF, KF, KS = 72, 83, 96, 104, 126
    early(g, 2)
    g.items.append(("raw", "s_waitcnt vmcnt(0)"))
    early(g, 3)
    g("s_barrier")
    st(g)
    g(f"ds_read_b128 {q4(SH)}, v{vS1}", tag="sh"); g(f"ds_read_b32 v{vTC}, v{vTC}", tag="sh")
    for t in range(3): g(f"ds_read_u16 a{4*t}, v{vS2} offset:{64*t}", tag="sh")
    g(f"ds_read_u16 a12, v{uA} offset:{B2T-B1T}", tag="sh")
    for i in range(11):
        off = 640 + 128*i if i < 3 else 1040 + 128*(i-3)
        g(f"ds_read_b32 v{KR+i}, v{vPA} offset:{off}", tag="pk")
    for i in range(8): g(f"ds_read_b32 v{VR+i}, v{vPA} offset:{VST-KST+128*i}", tag="pv")
    if P["bf"]: g.w0(vm=False, lg=True); g("s_barrier")
    g.wlg("sh")
    unpack(g, CF+0, CF+2, SH); unpack(g, CF+4, CF+6, SH+1); unpack(g, CF+1, CF+3, SH+2); unpack(g, CF+5, CF+7, SH+3)
    g(f"v_add_u32 v{vTC}, {TAGK}, v{vTC}"); g(f"v_and_b32 v{vTC}, 0xfffffff0, v{vTC}"); g(f"v_readfirstlane_b32 {sTC}, v{vTC}")
    g.wlg("pk")
    for i in range(11): unpack(g, KF+2*i, KF+2*i+1, KR+i)
    for i in range(8): g(f"v_pk_mul_f32 {pr(KS+2*i)}, {pr(KF+2*(i+3))}, {pr(CF)}")
    for j in range(1, 4):
        for i in range(8): g(f"v_pk_fma_f32 {pr(KS+2*i)}, {pr(KF+2*(i+3-j))}, {pr(CF+2*j)}, {pr(KS+2*i)}")
    g.wlg("pv")
    for i in range(8): unpack(g, KF+2*i, KF+2*i+1, VR+i)
    for i in range(8): g(f"v_pk_mul_f32 {pr(KS+2*i)}, {pr(KS+2*i)}, {pr(KF+2*i)}")
    for ch in range(2):
        for i in range(4): g(f"v_cvt_pk_bf16_f32 v{KF+4*ch+i}, v{KS+4*i+ch}, v{KS+4*i+2+ch}")
    g(f"s_add_u32 {t0}, {sKV}, 4096")
    early(g, 4)
    for ch in range(P.get("x_kvst", 2)):
        g(f"buffer_store_dwordx4 {q4(KF+4*ch)}, v{vKS}, {WS}, {t0 if ch else sKV} offen sc1", tag="kvs0")
    if P["tbg"] == 1:
        g(f"s_lshl_b32 {t1}, {sW1_}, 11"); g(f"s_mul_i32 {t0}, {sWh}, {CHP}"); g(f"s_add_u32 {t0}, {t0}, {t1}"); g(f"s_add_u32 {t0}, {t0}, {HC+32}")
        g(f"v_add_u32 v{uA}, {t0}, v{vL16}")
        g.ext(mk_tb(24, 40, uA))
        g.w0(vm=False, lg=True)
    A2 = 72
    for t in range(3): g(f"v_mfma_f32_32x32x16_bf16 v[{ACC+16*t}:{ACC+16*t+15}], a[{4*t}:{4*t+3}], a[16:19], 0")
    g(f"v_mfma_f32_32x32x16_bf16 v[{A2}:{A2+15}], a[12:15], a[16:19], 0")
    if P["f1k"] < 0:
        g.wvm("kvs0"); g("s_mov_b64 exec, 1"); g(f"buffer_store_dword v{vTC}, v{vZ}, {WS}, {sKL} offen sc1", tag="fl1"); g("s_mov_b64 exec, -1")
    if P["warmf"]:
        g("s_mov_b64 exec, 1"); g(f"buffer_store_dword v{vTC}, v{vZ}, {WS}, {sF2W} offen sc1", tag="wf")
        g(f"buffer_store_dword v{vTC}, v{vZ}, {WS}, {sAW} offen sc1", tag="wf"); g("s_mov_b64 exec, -1")
    g(f"s_cmp_lg_u32 {sW}, 0"); g("s_cbranch_scc1 L_noarr")
    g(f"s_lshl_b32 {t0}, s2, 4")
    g(f"s_add_u32 {t0}, {t0}, {ARR}"); g("s_mov_b64 exec, 1")
    g.items.append(("raw", f"buffer_store_dword v{vTC}, v{vZ}, {WS}, {t0} offen sc1"))
    g("s_mov_b64 exec, -1")
    g("L_noarr:")
    early(g, 5)
    g("s_barrier")
    st(g)
    FR = 64; GF = 52; GA = ACC + 32
    mid_item = st.item()
    vOW, vOR, vOG, vY = 18, 19, 20, 21
    def gemm1(gate):
        o = Prog()
        nt_ = 2 if gate else 3
        def reads(ks):
            c, jj = divmod(ks, 4); slot = c % 4; b = FR + 16*(ks % 3)
            r_ = [I(f"ds_read_b128 {q4(b, 'a')}, v{vXA+jj} offset:{slot*4096}", f"r{ks}")]
            for t in range(nt_):
                for h in range(2):
                    r_.append(I(f"ds_read_b64_tr_b16 {pr(b+4+4*t+2*h, 'a')}, v{vWA} offset:{slot*12288 + (16*jj+4*h)*192 + t*64}", f"r{ks}"))
            if gate: r_.append(I(f"ds_read_b128 {q4(GF+4*(ks%3), 'a')}, v{vGA} offset:{32*ks}", f"r{ks}"))
            return r_
        o.ext(reads(0)); o.ext(reads(1))
        slots = []
        for ks in range(32):
            b = FR + 16*(ks % 3)
            nx = ks + 2
            pre = [("wlg", f"r{ks}")]
            if nx % 4 == 0:
                pre = [("wlg", f"r{ks+1}"), I("s_barrier")]
                if nx <= 16: pre = [pre[0]] + early2(nx//2 - 2) + [pre[1]] + early2(nx//2 - 1)
            rd = reads(nx) if nx < 32 else []
            mf = [I(f"v_mfma_f32_32x32x16_bf16 v[{ACC+16*t}:{ACC+16*t+15}], {q4(b+4+4*t, 'a')}, {q4(b, 'a')}, v[{ACC+16*t}:{ACC+16*t+15}]") for t in range(nt_)]
            if gate: mf.append(I(f"v_mfma_f32_16x16x32_bf16 {q4(GA)}, {q4(GF+4*(ks%3), 'a')}, {q4(b, 'a')}, {q4(GA) if ks else 0}"))
            slots += [pre + [mf[0]] + rd[0:3], [mf[1]] + rd[3:5], [mf[2]] + rd[5:7]]
        S = lambda ks, i=0: 3*ks + i
        xhi, xa = 110, 111
        eq = Prog()
        eq(f"v_lshrrev_b32 v{xhi}, 9, v{vL16}")
        eq(f"s_lshl_b32 {t0}, {sW}, 11"); eq(f"s_add_u32 {t2}, {t0}, {OT}")
        eq(f"v_lshl_add_u32 v{vOW}, v{vL4}, 4, {t2}"); eq(f"v_lshl_add_u32 v{vOW}, v{xhi}, 3, v{vOW}"); eq(f"v_add_u32 v{vOR}, {t2}, v{vL16}")
        eq(f"v_and_b32 v{xa}, 24, v{vL4}"); eq(f"v_lshl_add_u32 v{vOW}, v{xa}, 1, v{vOW}")
        eq(f"v_lshrrev_b32 v{vOG}, 6, v{vL16}"); eq(f"v_lshrrev_b32 v{xa}, 3, v{vL16}"); eq(f"v_xor_b32 v{xa}, v{xa}, v{vL16}"); eq(f"v_and_b32 v{xa}, 48, v{xa}"); eq(f"v_lshl_add_u32 v{vOG}, v{vOG}, 10, v{xa}")
        eq(f"v_lshl_add_u32 v{vY}, v{xhi}, 14, v{vL4}")
        eq(f"v_lshlrev_b32 v{vPA}, 1, v{vL4}"); eq(f"v_and_b32 v{vKS}, 0x70, v{vL16}")
        eq(f"s_lshl_b32 {t0}, {sW}, 7"); eq(f"v_add_u32 v{vKS}, {t0}, v{vKS}"); eq(f"v_or_b32 v{xa}, 0x1e0, v{vKS}")
        eq(f"v_cmp_gt_u32 vcc, 512, v{vL16}"); eq(f"v_cndmask_b32 v{vKS}, v{xa}, v{vKS}, vcc"); eq(f"v_lshlrev_b32 v{vKS}, {fs}, v{vKS}")
        for i in range(8): eq(f"s_add_u32 s{12+i}, {sY}, {(4*(i//2)+(i%2))*8192}")
        eq(f"s_add_u32 {t3}, {sO}, {16384-1024}")
        f1 = Prog(); f1.wvm("kvs0"); f1("s_mov_b64 exec, 1"); f1(f"buffer_store_dword v{vTC}, v{vZ}, {WS}, {sKL} offen sc1", tag="fl1"); f1("s_mov_b64 exec, -1")
        streams = [(groups_of(eq), S(4), S(14))]
        if P["f1k"] >= 0: streams.append(([f1.items], S(P["f1k"], 1), S(P["f1k"], 1)))
        if stamps: streams.append(([mid_item], S(16), S(16)))
        o.ext(weave(slots, *streams))
        if gate:
            G_ = 140
            o(f"v_and_b32 v{G_}, 256, v{vL16}"); o(f"v_cmp_ne_u32 vcc, 0, v{G_}"); o(f"v_cndmask_b32 v{G_}, v{GA}, v{GA+1}, vcc")
            o(f"v_cvt_pk_bf16_f32 v{G_}, v{G_}, v{G_}"); o(f"v_and_b32 v{G_}, 0xffff0000, v{G_}")
            o(f"v_mul_f32 v{G_}, {fb(-1.4426950408889634)}, v{G_}"); o(f"v_exp_f32 v{G_}, v{G_}"); o(f"v_add_f32 v{G_}, 1.0, v{G_}"); o(f"v_rcp_f32 v{G_}, v{G_}")
            o(f"v_cvt_pk_bf16_f32 v{G_}, v{G_}, v{G_}"); o(f"v_and_b32 v{G_}, 0xffff0000, v{G_}")
            o(f"v_sub_f32 v{G_+1}, 1.0, v{G_}"); o(f"v_cvt_pk_bf16_f32 v{G_+1}, v{G_+1}, v{G_+1}"); o(f"v_and_b32 v{G_+1}, 0xffff0000, v{G_+1}")
            o("s_mov_b32 exec_hi, 0")
            o.items.append(("raw", f"buffer_store_dwordx2 {pr(G_)}, v{vPA}, {WS}, {sGW} offen sc1"))
            o("s_mov_b32 exec_hi, -1")
            o.w0(vm=False, lg=True)
        return o.items
    g(f"s_cmp_eq_u32 {sC1}, 15"); g("s_cbranch_scc1 L_gate")
    g.items.append(("fork", "L_gate", gemm1(True), "L_join"))
    g.ext(gemm1(False))
    g.items.append(("join", "L_join"))
    st(g)
    T = 88; HP = 104
    vFL = vWA
    def flag(n):
        d = Prog()
        d.wvm(f"hst{n-1}")
        d(f"v_add_u32 v{vFL}, 3, v{vTC}"); d("s_mov_b64 exec, 1"); d(f"buffer_store_dword v{vFL}, v{vZ}, {WS}, {sF2W if n == 3 else sAW} offen sc1", tag=f"flag{n}"); d("s_mov_b64 exec, -1")
        return d.items
    def w2_read(tau, pl, areg):
        o = [("wvm", f"w2_{tau}")]
        for tdd in range(2):
            for ks in range(2):
                for j in range(2):
                    o.append(I(f"ds_read_b64_tr_b16 {pr(areg+tdd*8+ks*4+2*j, 'a')}, v{vB2+tdd+(2 if pl >= 4 else 0)} offset:{(pl % 4)*4096 + (16*ks+8*j)*128}", f"w2r_{tau}"))
        return o
    PL2 = {6+i: PL[i] for i in range(5)}; PL2[5] = PL[5]
    nm = P["nm"]
    ge = Prog()
    if nm:
        for i in range(4): ge(f"v_add_u32 v{6+i}, {7168*i}, v{vB2V}")
    ge(f"s_lshl_b32 {t0}, {sW}, 2"); ge(f"s_add_u32 {t0}, {t0}, {SY}"); ge(f"v_mov_b32 v128, {t0}")
    go = P["go"]
    def gosig(k):
        if k == go: ge("ds_write_b32 v128, v128 offset:32", tag="gd")
    for t in range(3):
        a = ACC + 16*t
        pk = lambda k: not (t == 2 and k > go)
        if t == 2: gosig(0)
        if pk(1):
            for i in range(8): ge(f"v_pk_mul_f32 {pr(T+2*i)}, {pr(a+2*i)}, {pr(a+2*i)}")
            for i in range(8): ge(f"v_pk_fma_f32 {pr(T+2*i)}, {pr(T+2*i)}, {CK}, {pr(vC0)}")
            for i in range(8): ge(f"v_pk_mul_f32 {pr(T+2*i)}, {pr(T+2*i)}, {pr(a+2*i)}")
        else:
            for i in range(16): ge(f"v_mul_f32 v{T+i}, v{a+i}, v{a+i}")
            for i in range(16): ge(f"v_fma_f32 v{T+i}, v{T+i}, s20, v{vC0}")
            for i in range(16): ge(f"v_mul_f32 v{T+i}, v{T+i}, v{a+i}")
        if t == 2: gosig(1)
        if nm and t == P["mid"] + 1:
            for tau in range(6, 6 + nm): ge.wlg(f"w2r_{tau-6}"); ge.ext(flat(Wt(tau, PL2[tau], 6, sXL, sW2L_)))
        for i in range(16): ge(f"v_exp_f32 v{T+i}, v{T+i}")
        if pk(2):
            for i in range(8): ge(f"v_pk_add_f32 {pr(T+2*i)}, {pr(T+2*i)}, 1.0 op_sel_hi:[1,0]")
        else:
            for i in range(16): ge(f"v_add_f32 v{T+i}, 1.0, v{T+i}")
        if t == 2: gosig(2)
        for i in range(16): ge(f"v_rcp_f32 v{T+i}, v{T+i}")
        if pk(3):
            for i in range(8): ge(f"v_pk_mul_f32 {pr(T+2*i)}, {pr(T+2*i)}, {pr(a+2*i)}")
        else:
            for i in range(16): ge(f"v_mul_f32 v{T+i}, v{T+i}, v{a+i}")
        if t == 2: gosig(3)
        for i in range(8): ge(f"v_cvt_pk_bf16_f32 v{HP+8*t+i}, v{T+2*i}, v{T+2*i+1}")
        if t: ge(f"s_add_u32 {sHS}, {sHS}, 4096")
        if t == 2 and P["lvl"] == 1: ge.ext(flag(1))
        for ks in range(2):
            ge(f"buffer_store_dwordx4 {q4(HP+8*t+4*ks)}, v{vH2 if t == 2 else vL16}, {WS}, {sHS} offen offset:{1024*ks} sc1", tag=f"hst{t}")
        if nm and t == P["mid"]:
            ge(f"s_mov_b32 {sCNT}, 0")
            ge("L_gm:")
            ge("ds_read_b32 v129, v128 offset:48"); ge(f"s_add_u32 {sCNT}, {sCNT}, 1")
            ge.w0(vm=False, lg=True)
            ge("v_cmp_ne_u32 vcc, 1, v129"); ge("s_cbranch_vccz L_gm_ok")
            ge("s_sleep 1"); ge(f"s_cmp_lt_u32 {sCNT}, 0x40000"); ge("s_cbranch_scc1 L_gm")
            ge("L_gm_ok:")
            for tau in range(nm): ge.ext(w2_read(tau, PL[tau], 16*tau))
    g.ext(ge)
    st(g)
    vW2g = 6; vH = [10, 13]; vSG = 128; vTG = 129
    g(f"v_mov_b32 v{vSG}, {SY}")
    if not P["pair"]: g(f"v_mov_b32 v{vTG}, 1"); g("s_mov_b64 exec, 1"); g(f"ds_add_u32 v{vSG}, v{vTG}", tag="gs"); g("s_mov_b64 exec, -1")
    g(f"s_mov_b32 m0, {t2}")
    g(f"buffer_load_dwordx4 v{vOG}, {Q}, {sO} offen lds", tag="qt"); g(f"buffer_load_dwordx4 v{vOG}, {Q}, {t3} offen offset:1024 lds", tag="qt")
    if not nm:
        for i in range(4): g(f"v_add_u32 v{vW2g+i}, {7168*i}, v{vB2V}")
    g(f"s_lshl_b32 {t0}, {sW}, 2"); g(f"v_add_u32 v{vSG}, {t0}, v{vSG}")
    sDONE = "s23"
    fl_raw = [f"v_add_u32 v{vFL}, 3, v{vTC}", "s_mov_b64 exec, 1", f"buffer_store_dword v{vFL}, v{vZ}, {WS}, {sF2W} offen sc1", "s_mov_b64 exec, -1"]
    if P["lvl"] == 2: g.ext(flag(2))
    if P["flagfirst"] == 1: g.ext(flag(3))
    g(f"s_mov_b32 {sCNT}, 0"); g(f"s_mov_b32 {sDONE}, 0")
    g("L_gw:")
    g(f"ds_read_b32 v{vTG}, v{vSG} offset:16"); g(f"s_add_u32 {sCNT}, {sCNT}, 1")
    g.w0(vm=False, lg=True)
    g(f"v_cmp_ne_u32 vcc, 1, v{vTG}"); g("s_cbranch_vccz L_gw_ok")
    if P["flagfirst"] == 2:
        g(f"s_cmp_lg_u32 {sDONE}, 0"); g("s_cbranch_scc1 L_gw2")
        g.items.append(("raw", "s_waitcnt vmcnt(0)"))
        for x in fl_raw: g.items.append(("raw", x))
        g(f"s_mov_b32 {sDONE}, 1")
        g("L_gw2:")
    g("s_sleep 1"); g(f"s_cmp_lt_u32 {sCNT}, 0x40000"); g("s_cbranch_scc1 L_gw")
    g("L_gw_ok:")
    if stamps: g(f"s_sub_u32 {sCNT}, {sCNT}, 1"); cnt(g, 0)
    for tau in range(nm, 5): g.ext(w2_read(tau, PL[tau], 16*tau))
    assert P["flt"] >= 6 + nm and P["f2t"] >= 6 + nm
    for tau in range(6 + nm, 11):
        g.wlg(f"w2r_{tau-6}"); g.ext(flat(Wt(tau, PL2[tau], vW2g, sXL, sW2L_)))
        if tau == P["f2t"]: g(f"buffer_load_dword v{vPOLL}, v{vKS}, {WS}, {sAR} offen sc1", tag="f2")
        if tau == P["flt"] and P["flagfirst"] == 0: g.ext(flag(3))
        if tau == P["flt"] and P["flagfirst"] == 2:
            g.wvm("hst2")
            g(f"s_cmp_lg_u32 {sDONE}, 0"); g("s_cbranch_scc1 L_gw3")
            for x in fl_raw: g.items.append(("raw", x))
            g("L_gw3:")
    st(g)
    f2ld = f"buffer_load_dword v{vPOLL}, v{vKS}, {WS}, {sAR} offen sc1"
    f2bl = f"buffer_load_dword v{vPOLL}, v{vKS}, {WS}, {sF2R} offen sc1"
    if P["f2after"]: g.wvm(f"w2_{P['f2after']}")
    if P["f2t"] > 10: g(f2ld, tag="f2")
    vRW = 6
    g(f"v_add_u32 v{vRW}, {sXL}, v{vL16}")
    for idx in range(1, 4): g(f"v_xor_b32 v{vRW+idx}, {idx*16384}, v{vRW}")
    g(f"s_lshl_b32 {t0}, {sWh}, 11"); g(f"v_add_u32 v{vH[0]}, {t0}, v{vL16}"); g(f"v_xor_b32 v{vH[1]}, 2048, v{vH[0]}")
    g(f"s_add_u32 {t1}, {sTC}, 3")
    QR = 136; GR = vC0
    g.wvm("qt")
    for q in range(4):
        if q: g(f"v_xor_b32 v{vTG}, {16*q}, v{vOW}")
        g(f"ds_read_b64 {pr(QR+2*q)}, v{vTG if q else vOW}", tag="qr")
    retry(g, "f2", "f2", [f"v_cmp_ne_u32 vcc, {t1}, v{vPOLL}"], [f2ld], sleep=P["sl_f2"]); cnt(g, 1)
    st(g)
    NH = P.get('nh', 4); ND = P.get('nd', NH)
    nA = P["pre"]
    steps = [(t, ts) for t in range(nA) for ts in (1, 0)] + [(t, 1) for t in range(nA, 11)] + [(t, 0) for t in range(10, nA - 1, -1)]
    tb_ = [n for n, (t, ts) in enumerate(steps) if t >= 4*P["lvl"]][0]
    def h_load(n, ks):
        tau, ts = steps[n]
        d = Prog()
        if ks == 0:
            if n == tb_ - P["pollead"]: d(f2bl, tag="f2b")
            if n == tb_: retry(d, "f2b", "f2b", [f"v_cmp_ne_u32 vcc, {t1}, v{vPOLL}"], [f2bl], sleep=P["sl_f2"]); cnt(d, 3)
            d(f"s_mov_b32 {sRH}, {ORDER[tau]*4096}")
        d(f"buffer_load_dwordx4 {q4(88+8*(n % NH)+4*ks)}, v{vH[ts]}, {HS}, {sRH} offen offset:{ks*1024} sc1", tag=f"h{n}_{ks}")
        return d.items
    g(f"buffer_load_dwordx2 {pr(GR)}, v{vPA}, {WS}, {sGS} offen sc1", tag="g")
    for n in range(ND):
        for ks in range(2): g.ext(h_load(n, ks))
    if P["prio2"] != P["prio"]: g(f"s_setprio {P['prio2']}")
    AB = [A2, 24, 40, 56]
    YR = 136; QF = 120
    yl = [f"buffer_load_dword v{YR+i}, v{vY}, {WS}, s{12+i} offen sc1" for i in range(8)]
    f3ld = f"buffer_load_dword v{vPOLL}, v{vKS}, {WS}, {sKO} offen sc1"
    once = P.get("once", 1) and nA == 4
    areg = lambda tau: 16*tau if tau < 5 else 80 + 16*((tau - 5) % 2)
    if once: areg = lambda tau: 16*tau if tau < 7 else 16*(tau - 7)
    def rd(tau, gen_):
        it = w2_read(tau, PL2[tau], areg(tau))
        for x in it[1:]: x.tag = f"w2r_{tau}_{gen_}"
        return it
    reads_at = {3: rd(5, 0), 4: rd(6, 0), 6: rd(7, 0), 7: rd(8, 0), 8: rd(9, 0), 9: rd(10, 0), 12: rd(8, 1), 13: rd(7, 1), 14: rd(6, 1), 15: rd(5, 1)}
    reads_at = {n + nA: x for n, x in reads_at.items()}
    if once:
        g.ext(rd(5, 0))
        reads_at = {1: rd(6, 0), 3: rd(7, 0), 5: rd(8, 0), 7: rd(9, 0), 9: rd(10, 0)}
    seen2 = {0}
    slots = []
    for n, (tau, ts) in enumerate(steps):
        it = reads_at.get(n)
        rr = [it[:3], it[3:5], it[5:7], it[7:9]] if it else [[], [], [], []]
        k = 0
        for ks in range(2):
            for tdd in range(2):
                a = AB[tdd + 2*ts]
                first = (tdd + 2*ts) not in seen2; seen2.add(tdd + 2*ts)
                cc = "0" if first else f"v[{a}:{a+15}]"
                s_ = [("wvm", f"h{n}_{ks}")] if tdd == 0 else []
                if k == 0: s_ += [("wlg", f"w2r_{tau}"), ("wlg", f"w2r_{tau}_{1-ts}")]
                s_.append(I(f"v_mfma_f32_32x32x16_bf16 v[{a}:{a+15}], {q4(areg(tau)+tdd*8+ks*4, 'a')}, {q4(88+8*(n % NH)+4*ks)}, {cc}"))
                if tdd == 1 and n + ND < 22: s_ += h_load(n + ND, ks)
                s_ += rr[k]
                slots.append(s_); k += 1
    eq = Prog()
    eq.wlg("qr"); eq.wvm("g")
    for q in range(4):
        unpack(eq, QF+4*q, QF+4*q+1, QR+2*q); unpack(eq, QF+4*q+2, QF+4*q+3, QR+2*q+1)
    for i in range(16): eq(f"v_mul_f32 v{QF+i}, v{GR}, v{QF+i}")
    ex = Prog()
    for q in range(1, 4): ex(f"v_xor_b32 v{vB2+q}, {16*q}, v{vOW}")
    ck3 = Prog()
    retry(ck3, "f3", "f3", [f"v_cmp_ne_u32 vcc, {sTC}, v{vPOLL}"], [f3ld], sleep=P["sl_y"]); cnt(ck3, 2)
    for x in yl: ck3(x, tag="y")
    early_w = [[I(f"ds_write_b128 v{vRW}, {q4(AB[idx]+4*q)} offset:{(idx-1)*4096 + 1024*q}", "red")] for idx in (3, 2) for q in range(4)]
    ws_ = [(groups_of(eq, 1), 24, 60) if NH == 4 else (groups_of(eq, 3), 73, 86), (early_w, 62, P.get("ewe", 84)) if once else (early_w, 4*(14 + nA) + 1, 86), ([ex.items], 4*(16 + nA) + 1, 4*(16 + nA) + 1),
           ([[I(f"v_and_b32 v{vKS}, 0xf0, v{vL16}"), I(f3ld, "f3")]], P["f3pos"], P["f3pos"])]
    XST = [82, 84, 86, 92, 10, 4]
    if stamps and P.get("early") == 4:
        for r_, sl in zip(XST, (0, 16, 32, 48, 64, 80)): ws_.append(([[("raw", f"s_memtime s[{r_}:{r_+1}]")]], sl, sl))
    if P["ck3"] < 88: ws_.append(([ck3.items], P["ck3"], P["ck3"]))
    g.ext(weave(slots, *ws_))
    st(g)
    e3(g, 0)
    if P["ck3"] == 88: g.ext(ck3)
    e3(g, 1)
    for q in range(4): g(f"ds_write_b128 v{vRW}, {q4(AB[1]+4*q)} offset:{1024*q}", tag="red")
    if P["ck3"] > 88: g.ext(ck3)
    g.w0(vm=False, lg=True)
    e3(g, 2)
    g("s_barrier")
    e3(g, 3)
    for idx in range(1, 4):
        for q in range(4): g(f"ds_read_b128 {q4(AB[idx]+4*q)}, v{vRW+idx} offset:{(idx-1)*4096 + 1024*q}", tag=f"rr{idx}")
    ZF = 88
    def ymul():
        g.wvm("y")
        e3(g, 4)
        for i in range(8): unpack(g, ZF+2*i, ZF+2*i+1, YR+i)
        for i in range(8): g(f"v_pk_mul_f32 {pr(QF+2*i)}, {pr(QF+2*i)}, {pr(ZF+2*i)}")
    if P["ck3"] <= 88: ymul()
    for idx in range(1, 4):
        g.wlg(f"rr{idx}")
        for i in range(8): g(f"v_pk_add_f32 {pr(A2+2*i)}, {pr(A2+2*i)}, {pr(AB[idx]+2*i)}")
    if P["ck3"] > 88: ymul()
    for i in range(8): g(f"v_pk_fma_f32 {pr(QF+2*i)}, {pr(A2+2*i)}, {pr(GR)}, {pr(QF+2*i)} op_sel:[0,1,0]")
    for i in range(8): g(f"v_cvt_pk_bf16_f32 v{ZF+i}, v{QF+2*i}, v{QF+2*i+1}")
    e3(g, 5)
    for q in range(4): g(f"ds_write_b64 v{vB2+q if q else vOW}, {pr(ZF+2*q)}", tag="ow")
    for i in range(2): g(f"ds_read_b128 {q4(24+4*i)}, v{vOR} offset:{1024*i}", tag=f"or{i}")
    of = P["outf"].replace("plain", "")
    g.wlg("or0")
    g(f"buffer_store_dwordx4 {q4(24)}, v{vOG}, {OUT}, {sO} offen {of}", tag="out")
    g.wlg("or1")
    g(f"buffer_store_dwordx4 {q4(28)}, v{vOG}, {OUT}, {t3} offen offset:1024 {of}", tag="out")
    if stamps and P.get("early") == 4:
        g.w0(vm=False, lg=True)
        for i_, r_ in enumerate(XST): g(f"v_writelane_b32 v0, s{r_}, {44+i_}")
    e3(g, 6)
    if stamps and P.get("early") == 3: g.w0(vm=True, lg=True); e3(g, 7)
    dump(g, st, vL16, 1)
    g("s_endpgm")
    body = resolve(p.items + v.items)
    stG = dict(hist=[], vm=[], lg=[], smem=False)
    tailG = []
    bodyG = resolve(g.items, stG, tailG) + tailG
    ref = open("cdna_kernels/" + NAME + ".s.ref").read().split("\n") if P.get("final") else []
    top = [l for l in ref[:16]] + DOC if P.get("final") else []
    hdr = top + [f"; @launch grid=(256,1,1) block=(512,1,1) lds={LDS_BYTES}",
           '.amdgcn_target "amdgcn-amd-amdhsa--gfx950"', ".text", f".globl {NAME}_kernel", ".p2align 8",
           f".type {NAME}_kernel,@function", f"{NAME}_kernel:", "L_codestart:"]
    ftr = ["L_codeend:", '.section .rodata,"a"', ".p2align 6", f".amdhsa_kernel {NAME}_kernel",
           "  .amdhsa_next_free_vgpr 256", "  .amdhsa_next_free_sgpr 102", "  .amdhsa_accum_offset 144",
           "  .amdhsa_group_segment_fixed_size 0", "  .amdhsa_kernarg_size 120", "  .amdhsa_user_sgpr_count 2",
           "  .amdhsa_user_sgpr_kernarg_segment_ptr 1", "  .amdhsa_system_sgpr_workgroup_id_x 1",
           "  .amdhsa_float_denorm_mode_32 3", ".end_amdhsa_kernel"]
    allb = body + bodyG
    if P.get("al", 1): allb = align_pass(hdr, allb, ftr)
    return "\n".join(hdr + allb + ftr) + "\n"

if __name__ == "__main__":
    kw = {}
    for a in sys.argv[2:]:
        if "=" in a:
            k, v = a.split("="); kw[k] = int(v) if v.lstrip("-").isdigit() else v
    open(sys.argv[1], "w").write(gen(stamps=("stamps" in sys.argv), **kw))
```

```python
import sys, struct
sys.path.insert(0, "dev")
from asmlib import *
NAME = "gated_mix__ssm_conv_h3__dense_activation_gelu__prompt"
NST = 10; NWAVES = 8

WS_KVT = 0; WS_Y = 0; WS_H = 8 << 20; WS_F = (13 << 20) + (768 << 10); WS_X = 16 << 20
EPO = WS_F; ARR = WS_F + 4096; F2 = WS_F + 98304; F1 = WS_F + 32768; F3 = WS_F + 49152; WS_G = WS_F + 65536
WS_SIZE = 16 << 20
TAGK = 0x9E3779B0
OOB = 0x80000000
XR = 0; WR = 65536; KST = 65536 + 49152 - 17680; VST = KST + 9360; U = 115200; HC = 124416; CP = 8256; CHP = 4128
SY = 157440; SHT = 157696; B1T = 158208; B2T = 158464; EPT = 158720; GWT = 161280; GWZ = 162304
EX = HC
PLACE = [x for s in range(3) for x in ([XR + w*16384 + s*4096 for w in range(4)] + [WR + s*12288 + i*4096 for i in range(3)])] + [XR + 3*4096]
ORD = [11*(j >> 2) + 3*(j & 3) + t for t in range(3) for j in range(8) if not (t == 2 and (j & 3) == 3)]
OT = WR + 3*12288
LDS_BYTES = 163840
WS = "s[28:31]"
sW, sMT1, sC1, sMT2, sNT, sFT0, sLIM, sTC, sXC, sWC = "s40", "s41", "s42", "s43", "s44", "s45", "s46", "s47", "s48", "s49"
sXL, sMTL, sW1_, sWh = "s50", "s51", "s52", "s53"
t0, t1, t2, t3 = "s56", "s57", "s58", "s59"
sCNT, sT2, sJH, sROT = "s60", "s63", "s96", "s97"
sHM = "s96"
fb = lambda x: "0x%08x" % struct.unpack("<I", struct.pack("<f", x))[0]
pr = lambda r, k="v": f"{k}[{r}:{r+1}]"
q4 = lambda r, k="v": f"{k}[{r}:{r+3}]"
flat = lambda gs: [x for g in gs for x in g]

def srd(p, base, ptr, size):
    p(f"s_mov_b32 s{base}, s{ptr}"); p(f"s_and_b32 s{base+1}, s{ptr+1}, 0xffff")
    p(f"s_mov_b32 s{base+2}, {size}"); p(f"s_mov_b32 s{base+3}, 0x20000")
def srd_off(base, ptr, off_s, size, sub=False):
    p = Prog()
    p(f"s_add_u32 s{base}, s{ptr}, {off_s}"); p(f"s_addc_u32 s{base+1}, s{ptr+1}, 0"); p(f"s_and_b32 s{base+1}, s{base+1}, 0xffff")
    p(f"s_sub_u32 s{base+2}, {size}, {off_s}" if sub else f"s_mov_b32 s{base+2}, {size}"); p(f"s_mov_b32 s{base+3}, 0x20000")
    return p.items
def unpack(p, lo, hi, src):
    p(f"v_lshlrev_b32 v{lo}, 16, v{src}"); p(f"v_and_b32 v{hi}, {sHM}, v{src}")
MAXSPIN = 0x8000
def retry(p, lab, tag, check, reloads, mask=None, sleep=1):
    p.wvm(tag)
    p(f"s_mov_b32 {sCNT}, 0")
    p(f"L_{lab}:")
    for c in check: p(c)
    p(f"s_and_b64 vcc, vcc, {mask or '-1'}")
    p(f"s_cbranch_scc0 L_{lab}_ok")
    if sleep: p(f"s_sleep {sleep}")
    for r in reloads: p.items.append(("raw", r))
    p(f"s_add_u32 {sCNT}, {sCNT}, 1")
    p(f"s_cmp_lt_u32 {sCNT}, {MAXSPIN}")
    p.items.append(("raw", "s_waitcnt vmcnt(0)"))
    p(f"s_cbranch_scc1 L_{lab}")
    p(f"L_{lab}_ok:")
def tagcheck(regs, tmp):
    o = [f"v_xor_b32 v{tmp}, {sTC}, v{regs[0]}"]
    for r in regs[1:]: o.append(f"v_bitop3_b32 v{tmp}, v{r}, {sTC}, v{tmp} bitop3:0xbe")
    o.append(f"v_cmp_ne_u32 vcc, 0, v{tmp}")
    return o

DEF = dict(pf=1, prio=2, prio2=0, vp8=3, flt=7, lag=14, sl_kv=8, sl_f2=4, sl_y=4, kvt=7, ncv=0, b8=69, bf=1, kbi=5, b0=12, b1=18, pw=0, pair=1, lvl=1, pollead=2, pre=4, fx=1, fxr=6, nm=0, mid=1, s1i=68, sigc=-1, go=3, fsh=0, f2t=10, ewe=78, qpos=72, c3i=49, tbi=72, tbn=99, tbg=0, rawi=28, stg=0, c3=1, wq=0, bs=1, f1i=49, outf="sc1", kvi=70, w2pw=28, f1k=8, f3pos=78, ck3=89, xf="", rot1=1, rot2=0, warmf=0, flagfirst=2, f2after=0, nh0=2, vprio=1)

DOC = """;
; One launch, 256 workgroups of 8 waves (one per CU), written by a generator script.
;   waves 0-3 ("V"): stream x / w1 / w2 tiles into LDS (LDS-DMA), long causal conv as Toeplitz MFMA
;   waves 4-7 ("G"): kv = shift-conv(k)*v (transposed), gemm1 + gelu, gemm2 (split-K in the workgroup), gate mix
; Hand-offs between workgroups (kvT, h, gate, y) go through d_ws with write-through stores, a drained
; vmcnt and a per-wave flag word; flags carry a tag derived from an epoch word in d_ws, which workgroup 0
; advances once every workgroup has read it.""".split("\n")

def gen(stamps=False, **kw):
    P = dict(DEF); P.update(kw)
    KVF = P.get("kvf", "nt").replace("plain", "")
    global MAXSPIN; MAXSPIN = P.get("maxspin", 0x8000)
    class St:
        def __init__(s): s.n = 0
        def __call__(s, pp):
            if stamps:
                pp(f"s_memtime s[{64+2*s.n}:{65+2*s.n}]", tag="stamp"); s.n += 1
        def item(s):
            i = s.n; s.n += 1
            return [I(f"s_memtime s[{64+2*i}:{65+2*i}]", "stamp")] if stamps else []
    def early2(i):
        d = Prog()
        if stamps and P.get("early") == 2:
            d("s_memtime s[98:99]"); d.w0(vm=False, lg=True); d(f"v_writelane_b32 v0, s98, {44+i}")
        return d.items
    def e3(pp, i):
        if stamps and P.get("early") == 3:
            pp("s_memtime s[98:99]"); pp.w0(vm=False, lg=True); pp(f"v_writelane_b32 v0, s98, {44+i}")
    def early(pp, i):
        if stamps and P.get("early") == 1:
            pp("s_memtime s[98:99]"); pp.w0(vm=False, lg=True); pp(f"v_writelane_b32 v0, s98, {44+i}")
    def cnt(pp, i):
        if stamps: pp(f"v_writelane_b32 v0, {sCNT}, {32+i}")
    def dump(pp, st, vL16, role):
        if not stamps and P.get("lite"):
            pp.w0(vm=True, lg=True); pp("s_memrealtime s[98:99]"); pp.w0(vm=False, lg=True)
            pp("v_mov_b32 v6, s100"); pp("v_mov_b32 v7, s98")
            pp(f"s_lshl_b32 {t0}, s2, 3"); pp(f"s_add_u32 {t0}, {t0}, {sW}"); pp(f"s_add_u32 {t0}, {t0}, {4*role}")
            pp(f"s_lshl_b32 {t0}, {t0}, 3"); pp(f"s_add_u32 {t0}, {t0}, {14<<20}"); pp("s_mov_b64 exec, 1")
            pp(f"buffer_store_dwordx2 v[6:7], v3, {WS}, {t0} offen")
        if not stamps: return
        pp.w0(vm=True, lg=True)
        while st.n < NST - 1: st(pp)
        pp("s_memrealtime s[98:99]"); pp.w0(vm=False, lg=True)
        for i in range(st.n): pp(f"v_writelane_b32 v0, s{64+2*i}, {i+1}")
        pp(f"v_writelane_b32 v0, s98, {st.n+1}")
        pp(f"s_lshl_b32 {t0}, s2, 3"); pp(f"s_add_u32 {t0}, {t0}, {sW}"); pp(f"s_add_u32 {t0}, {t0}, {4*role}")
        pp(f"s_lshl_b32 {t0}, {t0}, 8"); pp(f"s_add_u32 {t0}, {t0}, {14<<20}")
        pp(f"v_lshrrev_b32 v6, 2, v{vL16}")
        pp(f"buffer_store_dword v0, v6, {WS}, {t0} offen")
        if P.get("dbgout") is not None and role == 1:
            pp(f"s_cmp_lg_u32 s2, {P['dbgout']}"); pp("s_cbranch_scc1 L_nodbg"); pp(f"s_cmp_lg_u32 {sW}, 0"); pp("s_cbranch_scc1 L_nodbg")
            pp("s_load_dwordx2 s[98:99], s[0:1], 104"); pp("v_writelane_b32 v0, s100, 11"); pp.w0(vm=False, lg=True)
            pp("s_mov_b64 exec, 0xffff"); pp("global_store_dword v6, v0, s[98:99]")
            pp("L_nodbg:")
    def rot_setup(pp):
        pp(f"s_mul_i32 {sROT}, {sMTL}, 11"); pp(f"s_lshr_b32 {sROT}, {sROT}, 1"); pp(f"s_bfe_u32 {t0}, s2, 0x20001"); pp(f"s_add_u32 {sROT}, {sROT}, {t0}")
        if P["hrot"]:
            pp(f"s_mul_i32 {t0}, {sNT}, 11"); pp(f"s_lshr_b32 {t0}, {t0}, 2"); pp(f"s_add_u32 {sROT}, {sROT}, {t0}")
        pp(f"s_sub_u32 {t0}, {sROT}, 22"); pp(f"s_cmp_ge_u32 {sROT}, 22"); pp(f"s_cselect_b32 {sROT}, {t0}, {sROT}")
    p = Prog()
    uL, uHI, u3, u7, u4, uA, uB, uC, uOOB, uSP, uKV = 120, 121, 122, 123, 124, 125, 126, 127, 128, 129, 130
    vL16, vL4, vZ, vTC = 1, 2, 3, 4
    sSO, sSM, sEL, sEH = "s32", "s33", "s34", "s35"
    p("s_cmp_ge_u32 s2, 256"); p("s_cbranch_scc1 L_end")
    p(f"v_lshrrev_b32 v{uA}, 6, v0")
    p("s_load_dwordx16 s[64:79], s[0:1], 0")
    p(f"v_readfirstlane_b32 {sW}, v{uA}")
    p("s_load_dwordx8 s[80:87], s[0:1], 64"); p("s_load_dwordx2 s[92:93], s[0:1], 96"); p("s_load_dwordx2 s[28:29], s[0:1], 112")
    if stamps: p("s_memtime s[98:99]"); p("s_memrealtime s[100:101]")
    elif P.get("lite"): p("s_memrealtime s[100:101]")
    if P["pf"]:
        p("s_getpc_b64 s[60:61]"); p(f"s_and_b32 {t0}, s2, 0xf8"); p(f"v_and_b32 v{uB}, 7, v0"); p(f"v_or_b32 v{uB}, {t0}, v{uB}"); p(f"v_lshlrev_b32 v{uB}, 7, v{uB}")
        p(f"v_min_u32 v{uB}, L_codeend-L_codestart-128, v{uB}")
        p(f"s_cmp_lg_u32 {sW}, 7"); p("s_cbranch_scc1 L_npf")
        p.items.append(("raw", f"global_load_dword v131, v{uB}, s[60:61]"))
        p("L_npf:")
    p("s_mov_b32 s34, 0x50401808"); p("s_mov_b32 s35, 0x58585870"); p(f"s_lshl_b32 {t0}, {sW}, 3"); p(f"s_lshr_b64 s[34:35], s[34:35], {t0}")
    p(f"s_and_b32 {t2}, s34, 0xff"); p(f"s_load_dwordx2 s[36:37], s[0:1], {t2}")
    p(f"v_and_b32 v{uL}, 63, v0"); p(f"v_lshrrev_b32 v{u3}, 3, v{uL}"); p(f"v_and_b32 v{u7}, 7, v{uL}")
    p(f"v_lshlrev_b32 v{uKV}, 10, v{u3}"); p(f"v_lshl_add_u32 v{uKV}, v{u7}, 4, v{uKV}")
    p(f"s_and_b32 {t0}, s2, 7"); p(f"s_lshr_b32 {sMTL}, s2, 6"); p(f"s_bfe_u32 {sNT}, s2, 0x30003")
    if P.get("late"):
        p(f"s_bfe_u32 {sMTL}, s2, 0x20003"); p(f"s_lshr_b32 {t1}, s2, 5"); p(f"s_lshl_b32 {t1}, {t1}, 2")
        p(f"s_lshr_b32 {sNT}, {hex(P['late'])}, {t1}"); p(f"s_and_b32 {sNT}, {sNT}, 7")
    if P.get("x_ntx"): p(f"s_xor_b32 {sNT}, {sNT}, {P['x_ntx']}")
    sJL = "s97"
    p(f"s_mov_b32 {sJL}, {sNT}")
    if P.get("m2d"):
        p(f"s_and_b32 {sMT2}, {t0}, 6"); p(f"s_lshl_b32 {sMT2}, {sMT2}, 2"); p(f"s_lshr_b32 {t1}, s2, 5"); p(f"s_add_u32 {sMT2}, {sMT2}, {t1}")
        p(f"s_and_b32 {sNT}, {sNT}, 3"); p(f"s_and_b32 {t1}, {t0}, 1"); p(f"s_lshl_b32 {t1}, {t1}, 2"); p(f"s_add_u32 {sNT}, {sNT}, {t1}")
    else:
        p(f"s_lshl_b32 {sMT2}, {t0}, 2"); p(f"s_add_u32 {sMT2}, {sMT2}, {sMTL}")
    p(f"s_lshl_b32 {sT2}, {sMT2}, 16"); p(f"s_lshl_b32 {t1}, {sNT}, 7"); p(f"s_add_u32 {sT2}, {sT2}, {t1}")
    p(f"s_and_b32 {t3}, {sW}, 3"); p(f"s_lshl_b32 s12, {t3}, 13"); p(f"s_add_u32 s12, s12, {sT2}"); p(f"s_add_u32 s13, s12, 32768")
    p(f"s_mul_i32 s14, {t3}, 1040"); p(f"s_cmp_ge_u32 {sW}, 4"); p(f"s_cselect_b32 s15, {VST-KST-1040}, 0"); p("s_add_u32 s14, s14, s15"); p(f"s_add_u32 s14, s14, {KST+1040}")
    p(f"s_mov_b32 s10, {0 if P.get('x_nokv') else 2097152}"); p("s_mov_b32 s11, 0x20000")
    if P["rawi"] < 0:
        p(f"s_lshl_b32 s6, {sNT}, 5"); p(f"s_add_u32 s6, s6, {sMT2}"); p(f"s_lshl_b32 s6, s6, 3"); p(f"s_add_u32 s6, s6, {sW}"); p("s_lshl_b32 s6, s6, 10")
        p(f"s_lshl_b32 s7, {sW}, 10"); p(f"s_cmp_ge_u32 {sW}, 4"); p(f"s_cselect_b32 s15, 32, 0"); p("s_add_u32 s7, s7, s15"); p(f"s_add_u32 s7, s7, {HC + 3*CP + 32}")
    p(f"s_mov_b32 s18, {0 if P.get('x_noraw') else 2097152}"); p("s_mov_b32 s19, 0x20000")
    p(f"v_lshlrev_b32 v{vL16}, 4, v{uL}"); p("s_mov_b32 m0, s14"); p(f"s_cmp_ge_u32 {sW}, 4")
    p.w0(vm=False, lg=True)
    p("s_cselect_b64 s[8:9], s[68:69], s[66:67]"); p("s_and_b32 s9, s9, 0xffff")
    p(f"buffer_load_dwordx4 v{uKV}, s[8:11], s12 offen {KVF} lds", tag="kv")
    p("s_add_u32 m0, s14, 4160"); p("s_mov_b32 s16, s72")
    p(f"buffer_load_dwordx4 v{uKV}, s[8:11], s13 offen {KVF} lds", tag="kv")
    if P["rawi"] < 0: p("s_mov_b32 m0, s7")
    p("s_and_b32 s17, s73, 0xffff")
    if P["rawi"] < 0: p(f"buffer_load_dwordx4 v{vL16}, s[16:19], s6 offen {KVF} lds", tag="kv")
    p(f"s_and_b32 {sMT1}, {t0}, 6"); p(f"s_lshl_b32 {sMT1}, {sMT1}, 1"); p(f"s_add_u32 {sMT1}, {sMT1}, {sMTL}")
    if P.get("rot1", 1) == 0:
        p(f"s_lshr_b32 {sXC}, {t0}, 1"); p(f"s_add_u32 {sXC}, {sXC}, {sNT}"); p(f"s_lshl_b32 {t3}, {sMTL}, 1"); p(f"s_add_u32 {sXC}, {sXC}, {t3}")
    elif P.get("rot1", 1) == 1:
        p(f"s_lshr_b32 {sXC}, {t0}, 1"); p(f"s_lshl_b32 {t3}, {sJL}, 1"); p(f"s_add_u32 {sXC}, {sXC}, {t3}"); p(f"s_lshl_b32 {t3}, {sMTL}, 2"); p(f"s_add_u32 {sXC}, {sXC}, {t3}")
        p(f"s_and_b32 {t3}, {t0}, 1"); p(f"s_add_u32 {sXC}, {sXC}, {t3}")
    else:
        p(f"s_mov_b32 {sXC}, {t0}")
    p(f"s_and_b32 {sXC}, {sXC}, 7"); p(f"s_lshl_b32 {sXC}, {sXC}, 7")
    p(f"s_and_b32 {sJH}, {t0}, 1"); p(f"s_lshl_b32 {t0}, {sJH}, 3"); p(f"s_add_u32 {sC1}, {t0}, {sJL}")
    p(f"s_and_b32 {t3}, {sC1}, 3")
    p(f"s_lshr_b32 {t0}, {sC1}, 2"); p(f"s_mul_i32 {sFT0}, {t0}, 11"); p(f"s_mul_i32 {t0}, {t3}, 3"); p(f"s_add_u32 {sFT0}, {sFT0}, {t0}")
    p(f"s_cmp_eq_u32 {t3}, 3"); p(f"s_cselect_b32 {sLIM}, {12 if P.get('x_lim') else 8}, 12"); p(f"s_cmp_eq_u32 {sC1}, 15"); p(f"s_cselect_b32 {sLIM}, 4, {sLIM}")
    p("s_mov_b32 s38, 1024"); p(f"s_mov_b32 {sSO}, {sXC}"); p(f"s_mov_b32 {sSM}, {GWT}")
    p(f"s_cmp_eq_u32 {sW}, 5"); p(f"s_cselect_b32 {t0}, {sC1}, 0"); p(f"s_cselect_b32 {t2}, 1023, -1"); p(f"s_cmp_eq_u32 {t0}, 15"); p(f"s_cselect_b64 s[34:35], -1, 0")
    p(f"s_lshl_b32 {t0}, {sNT}, 9"); p(f"s_lshl_b32 {t3}, {sFT0}, 6")
    for (w, sz, so, dst, el) in ((1, 4096, t0, SHT, -1), (2, 2752, t3, B1T, 0xfff), (3, 1024, t1, B2T, 0xff), (4, WS_SIZE, EPO, EPT, 1)):
        p(f"s_cmp_eq_u32 {sW}, {w}")
        if sz != 1024: p(f"s_cselect_b32 s38, {sz}, s38")
        p(f"s_cselect_b32 {sSO}, {so}, {sSO}"); p(f"s_cselect_b32 {sSM}, {dst}, {sSM}"); p(f"s_cselect_b32 {sEL}, {el}, {sEL}")
    p(f"v_add_u32 v{uSP}, {sSO}, v{vL16}"); p(f"v_and_b32 v{uSP}, {t2}, v{uSP}")
    p(f"s_cmp_lg_u32 {sW}, 0"); p("s_cbranch_scc1 L_nh")
    p("s_mov_b32 s38, 2097152"); p(f"s_mov_b32 {sSM}, {KST}"); p(f"s_mov_b32 {sEH}, 0xffffff00")
    p(f"s_sub_u32 {t0}, {sT2}, 8192"); p(f"v_add_u32 v{uSP}, {t0}, v{uKV}")
    p("L_nh:")
    p("s_mov_b32 s39, 0x20000"); p("s_and_b32 s37, s37, 0xffff")
    p(f"s_mov_b32 m0, {sSM}"); p("s_mov_b64 exec, s[34:35]"); p("s_cbranch_execz L_spn")
    p.items.append(("raw", f"buffer_load_dwordx4 v{uSP}, s[36:39], 0 offen sc1 lds"))
    p("L_spn:"); p("s_mov_b64 exec, -1")
    if stamps: p("v_mov_b32 v0, 0"); p("v_writelane_b32 v0, s98, 0"); p("v_writelane_b32 v0, s100, 40")
    early(p, 0)
    if P["bs"]: p("s_barrier")
    p(f"v_lshrrev_b32 v{u4}, 4, v{uL}"); p(f"v_mov_b32 v{uOOB}, {OOB}"); p(f"v_mov_b32 v{vZ}, 0")
    p(f"s_mov_b32 s30, {WS_SIZE}"); p("s_mov_b32 s31, 0x20000"); p("s_and_b32 s29, s29, 0xffff")
    p(f"s_and_b32 {t0}, {sW}, 4"); p(f"s_and_b32 {sW}, {sW}, 3"); p(f"s_lshl_b32 {sXL}, {sW}, 14")
    p(f"s_and_b32 {sW1_}, {sW}, 1"); p(f"s_lshr_b32 {sWh}, {sW}, 1"); p(f"s_mov_b32 {sHM}, 0xffff0000")
    p(f"s_cmp_lg_u32 {t0}, 0"); p("s_cbranch_scc1 L_G")
    def startstamp(pp):
        if stamps: pp("v_mov_b32 v0, 0"); pp("v_writelane_b32 v0, s98, 0"); pp("v_writelane_b32 v0, s100, 40")
    v = Prog(); st = St()
    XS, W1, SSM, W2 = "s[4:7]", "s[20:23]", "s[16:19]", "s[24:27]"
    sWL, sW2L, sRAW, sDOFF, sD0, sD1, sKT, sYS = "s54", "s55", "s62", "s88", "s89", "s90", "s91", "s3"
    vX, vW, vW2_, vTW, vUW, vCA, vCB, vEW, vER, vEK, vZ1, vZ2, vZ0, vSY, vONE, vT = 6, 10, 13, 14, 15, 16, 17, 18, 19, 20, 21, 22, 23, 24, 25, 26
    ZR = 28; vW2 = 112
    def D(c):
        g = []; slot = c % 4
        for i in range(4):
            d = Prog()
            if i == 0:
                if c: d(f"s_add_u32 {sXC}, {sXC}, 128"); d(f"s_and_b32 {sXC}, {sXC}, 1023"); d(f"s_mul_i32 {sWC}, {sXC}, 1376")
                d(f"s_add_u32 m0, {sXL}, {XR + slot*4096}")
            d(f"buffer_load_dwordx4 v{vX+i}, {XS}, {sXC} offen offset:{1024*i} {P.get('xf', '')} lds", tag=f"c{c}")
            g.append(d.items)
        for i in range(3):
            d = Prog()
            if i == 0: d(f"s_add_u32 m0, {sWL}, {slot*12288}")
            d(f"buffer_load_dwordx4 v{vW+i}, {W1}, {sWC} offen offset:{1024*i} {P.get('wf', '')} lds", tag=f"c{c}")
            g.append(d.items)
        return g
    ORDER = [0, 3, 6, 9, 1, 4, 7, 10, 2, 5, 8]
    PL = [0, 1, 2, 4, 5, 3]
    def rotstep(d, reg, unit):
        d(f"s_add_u32 {reg}, {reg}, {unit}"); d(f"s_cmp_eq_u32 {reg}, {11*unit}"); d(f"s_cselect_b32 {reg}, 0, {reg}")
    def Wt(tau, pl, vw, sxl, sw2l):
        o = []
        for i in range(4):
            d = Prog()
            if i == 0:
                d(f"s_mov_b32 {sROT}, {ORDER[tau]*32768}")
                d(f"s_add_u32 m0, {sxl}, {XR + pl*4096}" if pl < 4 else f"s_add_u32 m0, {sw2l}, {WR + (pl-4)*4096}")
            d(f"buffer_load_dwordx4 v{vw+i}, {W2}, {sROT} offen offset:{1024*i} lds", tag=f"w2_{tau}")
            o.append(d.items)
        return o
    def rot2(pp, first):
        if P["rot2"] >= 4:
            if P["rot2"] == 4: pp(f"s_and_b32 {sROT}, {sNT}, 1"); pp(f"s_mul_i32 {sROT}, {sROT}, 5")
            else: pp(f"s_and_b32 {sROT}, {sNT}, 3"); pp(f"s_mul_i32 {sROT}, {sROT}, 11"); pp(f"s_lshr_b32 {sROT}, {sROT}, 2")
            if first: pp(f"s_add_u32 {sROT}, {sROT}, {first}")
            pp(f"s_sub_u32 {t0}, {sROT}, 11"); pp(f"s_cmp_ge_u32 {sROT}, 11"); pp(f"s_cselect_b32 {sROT}, {t0}, {sROT}")
        elif P["rot2"]:
            pp(f"s_mul_i32 {sROT}, {sMTL}, {[0, 3, 0, 1][P['rot2']]}"); pp(f"s_and_b32 {t0}, s2, 7"); pp(f"s_add_u32 {sROT}, {sROT}, {t0}")
            if first: pp(f"s_add_u32 {sROT}, {sROT}, {first}")
            for _ in range(2): pp(f"s_sub_u32 {t0}, {sROT}, 11"); pp(f"s_cmp_ge_u32 {sROT}, 11"); pp(f"s_cselect_b32 {sROT}, {t0}, {sROT}")
        else: pp(f"s_mov_b32 {sROT}, {first}")
    if P["pw"] == 3:
        v(f"s_and_b32 {t0}, s2, 7"); v(f"s_lshr_b32 {t2}, s2, 3")
        v(f"s_cmp_eq_u32 {sW}, 2"); v("s_cbranch_scc1 L_pw6"); v(f"s_cmp_eq_u32 {sW}, 3"); v("s_cbranch_scc1 L_pw7")
        v(f"s_lshl_b32 {t0}, {t0}, 18"); v(f"s_lshl_b32 {t2}, {t2}, 13"); v(f"s_add_u32 {t0}, {t0}, {t2}"); v(f"s_lshl_b32 {t2}, {sW}, 12"); v(f"s_add_u32 {t0}, {t0}, {t2}")
        v(f"v_and_b32 v{uB}, 31, v{uL}"); v(f"v_lshl_add_u32 v{uC}, v{uB}, 7, {t0}"); v("s_mov_b64 s[4:5], s[64:65]")
        v("s_branch L_pwd")
        v("L_pw6:")
        v(f"s_lshr_b32 {t0}, {t0}, 1"); v(f"s_lshl_b32 {t0}, {t0}, 5"); v(f"s_add_u32 {t0}, {t0}, {t2}"); v(f"s_mul_i32 {t0}, {t0}, {4*2752}")
        v(f"s_mul_i32 {t2}, {sJH}, 1344"); v(f"s_add_u32 {t0}, {t0}, {t2}")
        v(f"v_mul_u32_u24 v{uC}, 2752, v{u4}"); v(f"v_and_b32 v{uB}, 15, v{uL}"); v(f"v_lshlrev_b32 v{uB}, 7, v{uB}")
        v(f"v_min_u32 v{uB}, 1404, v{uB}"); v(f"v_add3_u32 v{uC}, v{uC}, v{uB}, {t0}"); v("s_mov_b64 s[4:5], s[78:79]")
        v("s_branch L_pwd")
        v("L_pw7:")
        v(f"s_mul_i32 {t0}, s2, {43*128}"); v(f"v_min_u32 v{uC}, {42 if P['w2pw'] < 0 else 0}, v{uL}"); v(f"v_lshl_add_u32 v{uC}, v{uC}, 7, {t0}"); v("s_mov_b64 s[4:5], s[82:83]")
        v("L_pwd:")
        v(f"global_load_dword v131, v{uC}, s[4:5]", tag="tch")
    v(f"v_xor_b32 v{vX}, v{u7}, v{u4}"); v(f"v_lshlrev_b32 v{vX}, 4, v{vX}"); v(f"v_lshl_add_u32 v{vX}, v{u3}, 10, v{vX}")
    v(f"v_xor_b32 v{vX+1}, 64, v{vX}"); v(f"v_add_u32 v{vX+1}, 7168, v{vX+1}"); v(f"v_add_u32 v{vX+2}, 14336, v{vX}"); v(f"v_add_u32 v{vX+3}, 14336, v{vX+1}")
    v(f"s_lshl_b32 {t2}, {sMT1}, 17"); v(f"s_lshl_b32 {t0}, {sW}, 15"); v(f"s_add_u32 {t2}, {t2}, {t0}")
    v.ext(srd_off(4, 64, t2, 0 if P.get("x_nox") else 32768))
    v.ext(flat(D(0)[:4]))
    for i in range(3):
        v(f"v_add_u32 v{uA}, {64*i}, v{uL}"); v(f"v_mul_u32_u24 v{uB}, 171, v{uA}"); v(f"v_lshrrev_b32 v{uB}, 11, v{uB}")
        v(f"v_mul_u32_u24 v{uC}, 12, v{uB}"); v(f"v_sub_u32 v{uC}, v{uA}, v{uC}")
        v(f"v_mul_u32_u24 v{uB}, 2752, v{uB}"); v(f"v_cmp_gt_u32 vcc, {sLIM}, v{uC}"); v(f"v_lshl_add_u32 v{uB}, v{uC}, 4, v{uB}")
        v(f"v_subrev_u32 v{uB}, {1024*i}, v{uB}"); v(f"v_cndmask_b32 v{vW+i}, v{uOOB}, v{uB}, vcc")
    v(f"s_mul_i32 {sWC}, {sXC}, 1376")
    v(f"s_mul_i32 {t2}, {sW}, {16*2752}"); v(f"s_add_u32 {t3}, {t3}, {t2}")
    v(f"s_mul_i32 {sWL}, {sW}, 3072"); v(f"s_add_u32 {sWL}, {sWL}, {WR}")
    v.ext(srd_off(20, 78, t3, 512*2752, sub=True))
    if P.get("x_now1"): v("s_mov_b32 s22, 0")
    v.ext(flat(D(0)[4:]))
    early(v, 1)
    m = v
    for i in range(4): m(f"v_mov_b32 v{ZR+i}, 0")
    m(f"v_add_u32 v{uA}, {GWZ}, v{vL16}"); m(f"ds_write_b128 v{uA}, {q4(ZR)}", tag="gz")
    m(f"v_mov_b32 v{vSY}, {SY}"); m(f"ds_write_b128 v{vSY}, {q4(ZR)}", tag="gz"); m(f"ds_write_b128 v{vSY}, {q4(ZR)} offset:16", tag="gz"); m(f"ds_write_b128 v{vSY}, {q4(ZR)} offset:32", tag="gz"); m(f"ds_write_b128 v{vSY}, {q4(ZR)} offset:48", tag="gz")
    m(f"s_lshl_b32 {t0}, {sW}, 2"); m(f"v_add_u32 v23, {t0}, v{vSY}"); m(f"v_mov_b32 v{vONE}, 1")
    m(f"s_lshl_b32 {t0}, {sNT}, 7"); m(f"s_lshl_b32 {t1}, {sMT2}, 2"); m(f"s_add_u32 {t0}, {t0}, {t1}")
    m(f"s_load_dword {sD0}, s[74:75], {t0}", tag="ssmD")
    m(f"s_lshl_b32 {t0}, {sNT}, 5"); m(f"s_add_u32 {t0}, {t0}, {sMT2}"); m(f"s_lshl_b32 {t0}, {t0}, 13")
    m(f"s_lshl_b32 {t1}, {sW}, 11"); m(f"s_add_u32 {sDOFF}, {t0}, {t1}"); m(f"s_lshl_b32 {t0}, {sNT}, 11"); m(f"s_lshr_b32 {t1}, {sMT2}, 3"); m(f"s_lshl_b32 {t1}, {t1}, 9"); m(f"s_add_u32 {sKT}, {t0}, {t1}"); m(f"s_add_u32 {sKT}, {sKT}, {F1}")
    m(f"s_lshl_b32 {t1}, {sW}, 9"); m(f"s_add_u32 {t0}, {t0}, {t1}"); m(f"s_lshl_b32 {t1}, {sMT2}, 4"); m(f"s_add_u32 {t0}, {t0}, {t1}"); m(f"s_add_u32 {sYS}, {t0}, {F3}")
    m(f"s_lshl_b32 {t1}, {sW1_}, 11"); m(f"s_mul_i32 {sRAW}, {sWh}, {CHP}"); m(f"s_add_u32 {sRAW}, {sRAW}, {t1}"); m(f"s_add_u32 {sRAW}, {sRAW}, {HC+32}")
    m(f"v_add_u32 v{vTW}, {sRAW}, v{vL16}")
    m(f"v_and_b32 v{uA}, 1, v{u3}")
    m(f"v_mul_u32_u24 v{vZ1}, {CHP}, v{u7}"); m(f"v_lshl_add_u32 v{vZ1}, v{uA}, 4, v{vZ1}"); m(f"v_add_u32 v{vZ1}, {HC}, v{vZ1}"); m(f"ds_write_b128 v{vZ1}, {q4(ZR)}", tag="gz")
    m(f"v_lshrrev_b32 v{uHI}, 5, v{uL}"); m(f"v_and_b32 v{uB}, 31, v{uL}")
    m(f"v_mul_u32_u24 v{vZ2}, 4608, v{uHI}"); m(f"v_lshl_add_u32 v{vZ2}, v{uB}, 4, v{vZ2}"); m(f"v_add_u32 v{vZ2}, {U}, v{vZ2}"); m(f"ds_write_b128 v{vZ2}, {q4(ZR)}", tag="gz")
    m(f"s_mul_i32 {t0}, {sWh}, 4608"); m(f"s_add_u32 {t1}, {t0}, {t1}"); m(f"s_add_u32 {t1}, {t1}, {U+512}")
    m(f"v_add_u32 v{vUW}, {t1}, v{vL16}"); m(f"v_lshlrev_b32 v{vL4}, 4, v{uB}")
    m(f"s_lshl_b32 {t1}, {sW1_}, 8"); m(f"s_sub_u32 {t0}, {t0}, {t1}"); m(f"s_add_u32 {t0}, {t0}, {U + 512 - 32 - 192}")
    m(f"v_and_b32 v{uA}, 15, v{uL}"); m(f"v_lshlrev_b32 v{uB}, 5, v{uA}"); m(f"v_lshl_add_u32 v{uB}, v{u4}, 4, v{uB}"); m(f"v_add_u32 v{vCB}, {t0}, v{uB}")
    m(f"v_and_b32 v{uB}, 1, v{u4}"); m(f"v_lshlrev_b32 v{vW2}, 2, v{uB}"); m(f"v_and_b32 v{uC}, 2, v{u4}"); m(f"v_lshl_or_b32 v{uB}, v{uC}, 2, v{uB}")
    m(f"v_xor_b32 v{uA}, v{uA}, v{uB}"); m(f"v_lshl_add_u32 v{uA}, v{u4}, 4, v{uA}"); m(f"v_lshlrev_b32 v{uA}, 4, v{uA}")
    m(f"s_lshl_b32 {t0}, {sW}, 13"); m(f"s_add_u32 {t0}, {t0}, {EX}"); m(f"v_add_u32 v{vEW}, {t0}, v{uA}")
    m(f"v_xor_b32 v{vW2}, v{vW2}, v{u7}"); m(f"v_lshlrev_b32 v{vW2}, 4, v{vW2}"); m(f"v_lshl_add_u32 v{vW2}, v{u3}, 10, v{vW2}")
    for i in range(1, 4): m(f"v_add_u32 v{vW2+i}, {7168*i}, v{vW2}")
    m(f"v_lshrrev_b32 v{uA}, 2, v{uL}"); m(f"v_and_b32 v{uB}, 1, v{uL}"); m(f"v_and_b32 v{uC}, 2, v{uL}"); m(f"v_lshl_or_b32 v{uB}, v{uC}, 2, v{uB}")
    m(f"v_xor_b32 v{uA}, v{uA}, v{uB}"); m(f"v_and_b32 v{uC}, 3, v{uL}"); m(f"v_lshl_add_u32 v{uA}, v{uC}, 4, v{uA}"); m(f"v_lshlrev_b32 v{uA}, 4, v{uA}")
    m(f"s_lshl_b32 {t0}, {sW}, 11"); m(f"s_add_u32 {t0}, {t0}, {EX}"); m(f"v_add_u32 v{vER}, {t0}, v{uA}")
    m(f"s_lshl_b32 {sW2L}, {sW}, 13"); m(f"s_lshl_b32 {t0}, {sW}, 10"); m(f"s_add_u32 {t0}, {t0}, {U+512}"); m(f"v_lshl_add_u32 v{vEK}, v{uL}, 3, {t0}")
    m(f"v_bfe_u32 v{uA}, v{uL}, 2, 2"); m(f"v_mul_u32_u24 v{uB}, {CP}, v{uA}"); m(f"v_lshl_add_u32 v{uB}, v{u4}, 4, v{uB}")
    m(f"v_lshlrev_b32 v{uC}, 3, v{uC}"); m(f"v_sub_u32 v{uB}, v{uC}, v{uB}")
    m(f"s_mul_i32 {t0}, {sWh}, {CHP}"); m(f"s_add_u32 {t0}, {t0}, {t1}"); m(f"s_add_u32 {t0}, {t0}, {HC + 3*CP + 56}"); m(f"v_add_u32 v{vCA}, {t0}, v{uB}")
    m(f"s_mul_i32 {t0}, {sW}, {11*32768}"); m(f"s_lshl_b32 {t1}, {sNT}, 7"); m(f"s_add_u32 {t1}, {t0}, {t1}")
    m.ext(srd_off(24, 82, t1, 1376*1024, sub=True))
    if P.get("x_now2", 0) & 1: m("s_mov_b32 s26, 0")
    vPW = 5
    srd(m, 8, 82, 1376*1024)
    m(f"s_lshl_b32 {t0}, s2, 2"); m(f"s_add_u32 {t0}, {t0}, {sW}"); m(f"s_mul_i32 {t0}, {t0}, {11*128}")
    if P.get("spw"): m(f"s_mov_b32 s12, {t0}"); m(f"s_add_u32 s14, {sDOFF}, {64*P.get('gpr', 0)}")
    m(f"v_min_u32 v{vPW}, 10, v{uL}"); m(f"v_lshl_add_u32 v{vPW}, v{vPW}, 7, {t0}")
    if P.get("pwl2"):
        reg = vPW if P["pwl2"] == 1 else 13
        m(f"s_lshr_b32 {t0}, s2, 3"); m(f"s_lshl_b32 {t0}, {t0}, 2"); m(f"s_add_u32 {t0}, {t0}, {sW}"); m(f"s_mul_i32 {t0}, {t0}, {11*1024}")
        m(f"s_and_b32 {t1}, s2, 1"); m(f"s_lshl_b32 {t1}, {t1}, 9"); m(f"s_add_u32 {t0}, {t0}, {t1}")
        m(f"v_min_u32 v{uA}, 43, v{uL}"); m(f"v_lshrrev_b32 v{uB}, 2, v{uA}"); m(f"v_and_b32 v{uA}, 3, v{uA}"); m(f"v_lshlrev_b32 v{uA}, 7, v{uA}")
        m(f"v_lshl_add_u32 v{uA}, v{uB}, 10, v{uA}"); m(f"v_add_u32 v{reg}, {t0}, v{uA}")
    elif P["c3"]:
        m(f"s_lshr_b32 {t0}, s2, 3"); m(f"s_lshl_b32 {t0}, {t0}, 2"); m(f"s_add_u32 {t0}, {t0}, {sW}"); m(f"s_mul_i32 {t0}, {t0}, {11*1024}"); m(f"s_add_u32 {t0}, {t0}, 384")
        m(f"v_and_b32 v{uA}, 31, v{uL}"); m(f"v_min_u32 v{uA}, 10, v{uA}"); m(f"v_lshl_add_u32 v{uA}, v{uA}, 10, {t0}")
        if P["c3i"] < 0: m(f"v_cmp_gt_u32 vcc, 32, v{uL}"); m(f"v_cndmask_b32 v{vPW}, v{uA}, v{vPW}, vcc")
        else: m(f"v_mov_b32 v13, v{uA}")
    v.w0(vm=False, lg=True)
    m(f"s_and_b32 {sD1}, {sD0}, 0xffff0000"); m(f"s_lshl_b32 {sD0}, {sD0}, 16")
    bk = Prog()
    bk.wvm("kv")
    early(bk, 2)
    bk("s_barrier")
    if P["bf"]: bk("s_barrier")
    early(bk, 3)
    bk(f"ds_read_b32 v{vT}, v{vSY} offset:{EPT-SY}", tag="ep")
    tg_ = Prog(); tg_.wlg("ep")
    tg_(f"v_readfirstlane_b32 {sTC}, v{vT}"); tg_(f"s_add_u32 {sTC}, {sTC}, {TAGK}"); tg_(f"s_and_b32 {sTC}, {sTC}, 0xfffffff0")
    def mk_tb(R0, C, vtw):
        tb = Prog()
        for r in range(2):
            tb(f"ds_read_b64 {pr(R0+8*r)}, v{vtw} offset:{3*CP + 1024*r - 8}", tag="rw"); tb(f"ds_read_b128 {q4(R0+8*r+2)}, v{vtw} offset:{3*CP + 1024*r}", tag="rw")
        tb.wlg("rw")
        for r in range(2):
            R = R0 + 8*r; c = C + 12*r
            for i in range(4):
                tb(f"v_alignbit_b32 v{c+i}, v{R+2+i}, v{R+1+i}, 16"); tb(f"v_mov_b32 v{c+4+i}, v{R+1+i}"); tb(f"v_alignbit_b32 v{c+8+i}, v{R+1+i}, v{R+i}, 16")
            for cc in range(3): tb(f"ds_write_b128 v{vtw}, {q4(c+4*cc)} offset:{(2-cc)*CP + r*1024}", tag="z")
        return tb
    tb = mk_tb(64, 80, vTW) if P["tbg"] == 0 else Prog()
    rawg = Prog()
    rawg(f"s_add_u32 m0, {sRAW}, {3*CP}")
    rawg(f"buffer_load_dwordx4 v{vL16}, {SSM}, {sDOFF} offen {KVF} lds", tag="raw")
    rawg(f"buffer_load_dwordx4 v{vL16}, {SSM}, {sDOFF} offen offset:1024 {KVF} lds", tag="raw")
    KT = 104
    kl = [f"buffer_load_dwordx4 {q4(KT+4*i)}, v{vL16}, {WS}, {sDOFF} offen offset:{1024*i} sc1" for i in range(2)]
    f1ld = f"buffer_load_dword v{vT+1}, v{vL4}, {WS}, {sKT} offen sc1"
    CACC = 32; CAf = [("a", 0), ("a", 32)]; CBf = [("a", 64), ("v", 64)]
    def conv_reads(ii):
        o = []; b = ii & 1
        for a in range(8):
            o.append(I(f"ds_read_b128 {q4(CBf[b][1]+4*a, CBf[b][0])}, v{vCB} offset:{512*a + 64*(3-ii)}", f"cv{ii}_{a}"))
            for j in range(2):
                o.append(I(f"ds_read_b64_tr_b16 {pr(CAf[b][1]+4*a+2*j, 'a')}, v{vCA} offset:{512*a + 64*ii + (8 if j == 0 else 0)}", f"cv{ii}_{a}"))
        return o
    arr1 = Prog(); arr1.w0(vm=False, lg=True)
    arr1("s_mov_b64 exec, 1"); arr1(f"ds_add_u32 v{vSY}, v{vONE} offset:4"); arr1("s_mov_b64 exec, -1")
    cslots = []
    seen = set()
    for ii in range(4):
        b = ii & 1
        rd = conv_reads(ii + 1) if ii < 3 else []
        pairs = sorted([(a, bb) for a in range(8) for bb in range(8 - a)], key=lambda x: (max(x), x))
        if ii == 3 and P["fx"]: pairs = sorted(pairs, key=lambda x: (x[0] + x[1], x))
        for k, (a, bb) in enumerate(pairs):
            t = a + bb
            cc = q4(CACC+4*t) if t in seen else "0"
            seen.add(t)
            sl = conv_reads(0) if (ii == 0 and k == 0) else []
            sl.append(("wlg", f"cv{ii}_{max(a, bb)}" if ii == 0 else f"cv{ii}_7"))
            sl.append(I(f"v_mfma_f32_16x16x32_bf16 {q4(CACC+4*t)}, {q4(CAf[b][1]+4*a, 'a')}, {q4(CBf[b][1]+4*bb, CBf[b][0])}, {cc}"))
            kk = k - (8 if ii == 0 else 0)
            if 0 <= kk < len(rd): sl.append(rd[kk])
            if ii == 3 and k == 0: sl += arr1.items
            cslots.append(sl)
    kw_ = Prog()
    kw_.wvm("kvt")
    for i in range(2): kw_(f"ds_write_b128 v{vUW}, {q4(KT+4*i)} offset:{1024*i}", tag="z")
    kw_.w0(vm=False, lg=True)
    seq = flat([D(c) for c in range(1, 8)])
    seq += flat([Wt(t, PL[t], vW2, sXL, sW2L) for t in range(6)])
    lag = P["lag"]
    bpos = [min(7*c + lag, ([99]*6 + [53, 57])[c]) for c in range(8)]
    bpos[0] = P.get("b0", bpos[0]); bpos[1] = P.get("b1", bpos[1])
    assert P["bf"] or bpos[0] <= 11
    assert P["kbi"] <= min(11, bpos[0]) and all(bpos[c] <= 7*(c + 2) for c in range(1, 8)) and bpos == sorted(set(bpos))
    bar = {bpos[c]: c for c in range(8)}
    b8 = P["b8"]; assert 57 < b8 <= 69
    kvt = P["kvt"]
    ncv = P["ncv"] if kvt < 7 else 0
    cstart = 7*(kvt + 1) + lag
    sw_ = [["s_buffer_load_dword s13, s[8:11], s12", "s_add_u32 s12, s12, 64"] for _ in range(22)]
    sr_ = [["s_buffer_load_dword s13, s[16:19], s14", "s_add_u32 s14, s14, 64"] for _ in range(32 - P.get("gpr", 0))]
    sq = {0: sw_, 1: sr_ + sw_, 2: sw_ + sr_, 3: sr_}[P.get("spr", 0)]
    tbg = groups_of(tb, P["tbn"]); ti = 0; ci = 0
    for i, gq in enumerate(seq):
        if i == P["kbi"]: v.ext(bk)
        if i in bar:
            c = bar[i]
            if 1 <= c <= 4: v.ext(early2(2*c - 2))
            v.wvm(f"c{c}")
            if 1 <= c <= 4: v.ext(early2(2*c - 1))
            if c == kvt + 1: v.ext(kw_)
            v("s_barrier")
            if c in (0, 3, 7): st(v)
        stg = P.get("stg", 0)
        if stg and i >= P["rawi"] and (i - P["rawi"]) % 7 == 0 and (i - P["rawi"]) // 7 < stg:
            kq = (i - P["rawi"]) // 7
            v(f"s_and_b32 {t0}, {sNT}, {stg-1}"); v(f"s_cmp_lg_u32 {t0}, {kq}"); v(f"s_cbranch_scc1 L_stg{kq}")
            for x in rawg.items: v.items.append(("raw", x.text))
            if not P.get("nopw"): v.items.append(("raw", f"buffer_load_dword v{vPW}, v{vPW}, s[8:11], 0 offen"))
            v(f"L_stg{kq}:")
        elif i == P["rawi"] and not stg: v.ext(rawg)
        if i == P["f1i"]: v(f1ld, tag="f1")
        if i == 49:
            if P["warmf"]:
                v(f"v_mov_b32 v{vT}, {sTC}"); v(f"v_add_u32 v{vT}, 8, v{vT}"); v("s_mov_b64 exec, 1")
                v(f"buffer_store_dword v{vT}, v{vZ}, {WS}, {sYS} offen sc1", tag="wf"); v("s_mov_b64 exec, -1")
        if i == P["kvi"]:
            retry(v, "f1", "f1", [f"v_cmp_ne_u32 vcc, {sTC}, v{vT+1}"], [f1ld], sleep=P["sl_kv"]); cnt(v, 0)
            for x in kl: v(x, tag="kvt")
        if i == P["c3i"] and P["c3"]: v(f"buffer_load_dword v13, v13, s[8:11], 0 offen", tag="pw")
        if i == P["w2pw"]:
            v(f"buffer_load_dword v{vPW}, v{vPW}, s[8:11], 0 offen", tag="pw")
        if i == b8:
            assert P["rawi"] <= 42 or not P.get("stg")
            v.wvm("raw")
            v("s_barrier")
            if P["vp8"]: v(f"s_setprio {P['vp8']}")
        if P["nm"] and i == P["s1i"]:
            v.wvm(f"w2_{P['nm']-1}"); v(f"ds_write_b32 v23, v{vONE} offset:48", tag="sig")
        v.ext(gq)
        if i == P["kbi"] + 2: v.ext(tg_)
        if P.get("spw") and i >= P["kbi"] + 2:
            for q_ in range(P["spw"]):
                if sq:
                    for x in sq.pop(0): v(x, tag="spw")
        if i >= P["tbi"] and ti < len(tbg): v.ext(tbg[ti]); ti += 1
        if ncv and cstart <= i < b8:
            assert ti == len(tbg)
            upto = (ncv * (i - cstart + 1)) // (b8 - cstart)
            while ci < upto: v.ext(cslots[ci]); ci += 1
    while ti < len(tbg): v.ext(tbg[ti]); ti += 1
    def varrive(i):
        v.w0(vm=False, lg=True)
        v("s_mov_b64 exec, 1"); v(f"ds_add_u32 v{vSY}, v{vONE} offset:{4*i}"); v("s_mov_b64 exec, -1")
    def vsync(i, arrive=True, n=4):
        if arrive: varrive(i)
        v(f"s_mov_b32 {sCNT}, 0")
        v(f"L_vs{i}:")
        v(f"ds_read_b32 v{vT}, v{vSY} offset:{4*i}"); v(f"s_add_u32 {sCNT}, {sCNT}, 1")
        v.w0(vm=False, lg=True)
        v(f"v_cmp_ne_u32 vcc, {n}, v{vT}"); v(f"s_cbranch_vccz L_vs{i}_ok")
        if n == 8: v("s_sleep 1")
        v(f"s_cmp_lt_u32 {sCNT}, 0x40000"); v(f"s_cbranch_scc1 L_vs{i}")
        v(f"L_vs{i}_ok:")
    v(f"s_lshl_b32 {t0}, {sW}, 2"); v(f"v_add_u32 v{vT+1}, {t0}, v{vSY}")
    if kvt >= 7: v.ext(kw_)
    varrive(0)
    def wsig():
        v.w0(vm=True, lg=False)
        v(f"ds_write_b32 v{vT+1}, v{vONE} offset:16", tag="sig")
    if P["sigc"] == -2: wsig()
    vsync(0, arrive=False)
    v.ext(cslots[0][:24]); cslots[0] = cslots[0][24:]
    if P["sigc"] == -1: wsig()
    st(v)
    v(f"s_mov_b32 {sCNT}, 0")
    v("L_vg:")
    v(f"ds_read_b32 v{vT}, v{vT+1} offset:32"); v(f"s_add_u32 {sCNT}, {sCNT}, 1")
    v.w0(vm=False, lg=True)
    v(f"v_cmp_eq_u32 vcc, 0, v{vT}"); v("s_cbranch_vccz L_vg_ok")
    v("s_sleep 1"); v(f"s_cmp_lt_u32 {sCNT}, 0x40000"); v("s_cbranch_scc1 L_vg")
    v("L_vg_ok:")
    st(v)
    v(f"s_setprio {P['vprio']}")
    E = 64; KVr = 96; KVf = 104; YO = 120
    side = {}
    if P["fx"]:
        kd = Prog()
        for tt in range(2):
            for ch in range(2): kd(f"ds_read_b64 {pr(KVr+(tt*2+ch)*2)}, v{vEK} offset:{ch*4608 + tt*512}", tag="kdr")
        for n_, x in enumerate(kd.items): side[36 + 26 + n_] = [x]
        kd = Prog()
        for tt in range(2):
            for ch in range(2):
                r = KVr + (tt*2+ch)*2; f = KVf + (tt*2+ch)*4
                unpack(kd, f, f+1, r); unpack(kd, f+2, f+3, r+1)
        for n_, x in enumerate(groups_of(kd, 2)): side[72 + 26 + n_] = ([("wlg", "kdr")] if n_ == 0 else []) + x
        ck = Prog()
        ck.w0(vm=False, lg=True)
        ck(f"s_mov_b32 {sCNT}, 0")
        ck("L_vs1:")
        ck(f"v_cmp_ne_u32 vcc, 4, v{vT}"); ck("s_cbranch_vccz L_vs1_ok")
        ck.items.append(("raw", f"ds_read_b32 v{vT}, v{vSY} offset:4")); ck(f"s_add_u32 {sCNT}, {sCNT}, 1")
        ck.items.append(("raw", "s_waitcnt lgkmcnt(0)"))
        ck(f"s_cmp_lt_u32 {sCNT}, 0x40000"); ck("s_cbranch_scc1 L_vs1")
        ck("L_vs1_ok:")
        side[108 + P["fxr"]] = [I(f"ds_read_b32 v{vT}, v{vSY} offset:4", "s1")]
        side[108 + P["fxr"] + 7] = ck.items
        done = 0; pos = 108 + P["fxr"] + 7
        late_w = []
        for t in range(8):
            done += t + 1
            w_ = I(f"ds_write_b128 v{vEW}, {q4(CACC+4*t)} offset:{1024*t}", "ex")
            pos = max(pos + 2, 108 + done + 6)
            if pos < 144: side.setdefault(pos, []).append(w_)
            else: late_w.append(w_)
    while ci < 144:
        if ci == P["sigc"]: wsig()
        if ci == P.get("vupc", -1): v(f"s_setprio 3")
        v.ext(cslots[ci]); v.ext(side.get(ci, [])); ci += 1
    if P.get("vp2") is not None: v(f"s_setprio {P['vp2']}")
    e3(v, 0)
    if not P["fx"]: vsync(1, arrive=False)
    e3(v, 1)
    st(v)
    if P["fx"]: v.ext(late_w)
    else:
        for t in range(8): v(f"ds_write_b128 v{vEW}, {q4(CACC+4*t)} offset:{1024*t}", tag="ex")
    e3(v, 2)
    vsync(2)
    e3(v, 3)
    for tt in range(2):
        for wv in range(4): v(f"ds_read_b128 {q4(E+(tt*4+wv)*4)}, v{vER} offset:{wv*8192 + tt*1024}", tag=f"exr{tt}")
        if not P["fx"]:
            for ch in range(2): v(f"ds_read_b64 {pr(KVr+(tt*2+ch)*2)}, v{vEK} offset:{ch*4608 + tt*512}", tag=f"exr{tt}")
    for tt in range(2):
        v.wlg(f"exr{tt}")
        for ch in range(2):
            ee = E + (tt*4+2*ch)*4; r = KVr + (tt*2+ch)*2; f = KVf + (tt*2+ch)*4
            if not P["fx"]: unpack(v, f, f+1, r); unpack(v, f+2, f+3, r+1)
            for i in range(4): v(f"v_add_f32 v{ee+i}, v{ee+i}, v{ee+4+i}")
            for i in range(4): v(f"v_fma_f32 v{ee+i}, v{f+i}, {sD0 if ch == 0 else sD1}, v{ee+i}")
        for i in range(4): v(f"v_cvt_pk_bf16_f32 v{YO+4*tt+i}, v{E+tt*16+i}, v{E+tt*16+8+i}")
        v(f"buffer_store_dwordx4 {q4(YO+4*tt)}, v{vL16}, {WS}, {sDOFF} offen offset:{1024*tt} sc1", tag="yst")
    st(v)
    v(f"v_mov_b32 v{vT}, {sTC}")
    e3(v, 4)
    v.wvm("yst")
    e3(v, 5)
    v("s_mov_b64 exec, 1"); v(f"buffer_store_dword v{vT}, v{vZ}, {WS}, {sYS} offen sc1"); v("s_mov_b64 exec, -1")
    v(f"s_or_b32 {t0}, s2, {sW}"); v(f"s_cmp_lg_u32 {t0}, 0"); v("s_cbranch_scc1 L_noep")
    cl = [f"buffer_load_dword v{64+i}, v{vL16}, {WS}, {t1} offen offset:{1024*i} sc1" for i in range(4)]
    v(f"s_mov_b32 {t1}, {ARR}")
    for x in cl: v(x, tag="cn")
    ck = tagcheck([64, 65, 66, 67], vT); ck[-1] = f"v_cmp_lt_u32 vcc, 15, v{vT}"
    retry(v, "cn", "cn", ck, cl, sleep=8)
    v(f"v_mov_b32 v{vT}, {sTC}"); v(f"s_mov_b32 {t0}, {EPO}"); v("s_mov_b64 exec, 1")
    v(f"buffer_store_dword v{vT}, v{vZ}, {WS}, {t0} offen sc1"); v("s_mov_b64 exec, -1")
    v("L_noep:")
    dump(v, st, vL16, 0)
    v("L_end:"); v("s_endpgm")
    g = Prog(); st = St()
    W2 = "s[24:27]"
    K, V, SP, HS, Q, OUT = "s[8:11]", "s[12:15]", "s[36:39]", "s[36:39]", "s[4:7]", "s[32:35]"
    sKL, sKO, sHS, sF2W, sF2R, sGS, sO, sY, sKV, sXS, sXR_, sFAST = "s54", "s55", "s61", "s62", "s88", "s89", "s90", "s91", "s3", "s94", "s95", "s24"
    CK = "s[20:21]"
    vPOLL, vXA, vWA, vPA, vKS, vH2, vB2, vKV, vC0 = 5, 6, 10, 11, 12, 13, 14, 18, 22
    vGA = 142; vB2V = 143
    ACC = 24
    g("L_G:")
    if P["prio"]: g(f"s_setprio {P['prio']}")
    if P.get("gpr"):
        g(f"s_lshl_b32 {t0}, {sNT}, 5"); g(f"s_add_u32 {t0}, {t0}, {sMT2}"); g(f"s_lshl_b32 {t0}, {t0}, 13"); g(f"s_lshl_b32 {t1}, {sW}, 11"); g(f"s_add_u32 {t0}, {t0}, {t1}")
        for q_ in range(P["gpr"]): g(f"s_buffer_load_dword s13, s[16:19], {t0}", tag="spw"); g(f"s_add_u32 {t0}, {t0}, 64")
    early(g, 1)
    g(f"v_lshrrev_b32 v{uHI}, 5, v{uL}")
    srd(g, 4, 64, 2097152); srd(g, 32, 92, 2097152)
    sW2L_, sRH, sGW = "s94", "s95", "s22"
    g(f"s_lshl_b32 {t1}, {sMT1}, 1"); g(f"s_add_u32 {t0}, {sWh}, {t1}")
    g(f"s_mul_i32 {sHS}, {t0}, 44"); g(f"s_add_u32 {sHS}, {sHS}, {sFT0}"); g(f"s_lshl_b32 {sHS}, {sHS}, 12")
    g(f"s_lshl_b32 {t1}, {sW1_}, 11"); g(f"s_add_u32 {sHS}, {sHS}, {t1}"); g(f"s_add_u32 {sHS}, {sHS}, {WS_H}")
    fs = P["fsh"]
    g(f"s_lshl_b32 {t0}, {t0}, {9+fs}"); g(f"s_lshl_b32 {t1}, {sC1}, {5+fs}"); g(f"s_add_u32 {t0}, {t0}, {t1}"); g(f"s_lshl_b32 {t1}, {sW1_}, {4+fs}"); g(f"s_add_u32 {t0}, {t0}, {t1}")
    g(f"s_add_u32 {sF2W}, {t0}, {F2}"); g(f"s_lshl_b32 {sF2R}, {sMT2}, {9+fs}"); g(f"s_add_u32 {sF2R}, {sF2R}, {F2}")
    g(f"s_mul_i32 {t0}, {sMT2}, 44"); g(f"s_mul_i32 {t1}, {sW}, 11"); g(f"s_add_u32 {t0}, {t0}, {t1}"); g(f"s_lshl_b32 {t0}, {t0}, 12"); g(f"s_add_u32 {t0}, {t0}, {WS_H}")
    g.ext(srd_off(36, 28, t0, 0 if P.get("x_noh") else 45056))
    if P.get("x_nohst"): g(f"s_mov_b32 {sHS}, {WS_SIZE}")
    g(f"s_mul_i32 {t0}, {sW}, {11*32768}"); g(f"s_lshl_b32 {t1}, {sNT}, 7"); g(f"s_add_u32 {t1}, {t0}, {t1}")
    g.ext(srd_off(24, 82, t1, 1376*1024, sub=True))
    if P.get("x_now2", 0) & 2: g("s_mov_b32 s26, 0")
    sAW, sAR = "s8", "s9"
    aoff = 16384 if P["fsh"] == 0 else -(16384 << P["fsh"]) - 98304
    g(f"s_add_u32 {sAW}, {sF2W}, {aoff & 0xffffffff}"); g(f"s_add_u32 {sAR}, {sF2R}, {aoff & 0xffffffff}")
    g(f"s_lshl_b32 {sW2L_}, {sW}, 13")
    g(f"s_lshl_b32 {t2}, {sMT2}, 1"); g(f"s_add_u32 {t2}, {t2}, {sWh}")
    g(f"s_lshl_b32 {sGS}, {t2}, 8"); g(f"s_add_u32 {sGS}, {sGS}, {WS_G}")
    g(f"s_lshl_b32 {sGW}, {sMT1}, 10"); g(f"s_lshl_b32 {t1}, {sW}, 8"); g(f"s_add_u32 {sGW}, {sGW}, {t1}"); g(f"s_add_u32 {sGW}, {sGW}, {WS_G}")
    g(f"s_lshl_b32 {t1}, {sWh}, 15"); g(f"s_add_u32 {sO}, {sT2}, {t1}"); g(f"s_lshl_b32 {t1}, {sW1_}, 6"); g(f"s_add_u32 {sO}, {sO}, {t1}")
    g(f"s_lshl_b32 {sY}, {sNT}, 18"); g(f"s_lshl_b32 {t1}, {sW1_}, 17"); g(f"s_add_u32 {sY}, {sY}, {t1}")
    g(f"s_lshl_b32 {t1}, {t2}, 7"); g(f"s_add_u32 {sY}, {sY}, {t1}")
    g(f"s_lshl_b32 {t0}, {sNT}, 11"); g(f"s_lshl_b32 {t1}, {sW}, 9"); g(f"s_add_u32 {sKL}, {t0}, {t1}"); g(f"s_lshl_b32 {t1}, {sMT2}, 4"); g(f"s_add_u32 {sKL}, {sKL}, {t1}"); g(f"s_add_u32 {sKL}, {sKL}, {F1}")
    g(f"s_lshr_b32 {t1}, {t2}, 4"); g(f"s_lshl_b32 {t1}, {t1}, 9"); g(f"s_add_u32 {t0}, {t0}, {t1}"); g(f"s_lshl_b32 {t1}, {sW1_}, 8"); g(f"s_add_u32 {t0}, {t0}, {t1}"); g(f"s_add_u32 {sKO}, {t0}, {F3}")
    g(f"s_lshl_b32 {sKV}, {sNT}, 18"); g(f"s_lshl_b32 {t1}, {sW}, 16"); g(f"s_add_u32 {sKV}, {sKV}, {t1}"); g(f"s_lshl_b32 {t1}, {sMT2}, 7"); g(f"s_add_u32 {sKV}, {sKV}, {t1}")
    g(f"v_lshlrev_b32 v{vKS}, 13, v{u3}"); g(f"v_lshl_add_u32 v{vKS}, v{u7}, 4, v{vKS}")
    g(f"v_bfe_u32 v{uA}, v{uL}, 2, 2"); g(f"v_and_b32 v{uC}, 3, v{uL}"); g(f"v_lshlrev_b32 v{uC}, 3, v{uC}")
    g(f"v_and_b32 v{uB}, 1, v{u4}"); g(f"v_lshl_add_u32 v{uC}, v{uB}, 5, v{uC}")
    g(f"v_lshl_add_u32 v{vWA}, v{uHI}, 3, v{uA}"); g(f"v_mul_u32_u24 v{vWA}, 192, v{vWA}"); g(f"v_add_u32 v{vWA}, v{vWA}, v{uC}"); g(f"v_add_u32 v{vWA}, {WR}, v{vWA}")
    g(f"v_lshl_add_u32 v{vB2}, v{uHI}, 2, v{uA}"); g(f"v_lshl_add_u32 v{vB2}, v{vB2}, 7, v{uC}")
    g(f"v_and_b32 v{uA}, 2, v{uA}"); g(f"v_lshlrev_b32 v{uA}, 5, v{uA}"); g(f"v_xor_b32 v{vB2}, v{vB2}, v{uA}")
    g(f"s_lshl_b32 {t0}, {sW1_}, 6"); g(f"v_xor_b32 v{vB2}, {t0}, v{vB2}")
    g(f"s_add_u32 {t0}, {sW2L_}, {WR}"); g(f"v_add_u32 v{vB2+2}, {t0}, v{vB2}"); g(f"v_add_u32 v{vB2}, {sXL}, v{vB2}")
    g(f"v_xor_b32 v{vB2+1}, 64, v{vB2}"); g(f"v_xor_b32 v{vB2+3}, 64, v{vB2+2}")
    g(f"v_lshlrev_b32 v{uB}, 2, v{uB}"); g(f"v_xor_b32 v{uB}, v{uB}, v{u7}"); g(f"v_lshlrev_b32 v{uB}, 4, v{uB}"); g(f"v_lshl_add_u32 v{vB2V}, v{u3}, 10, v{uB}")
    g(f"v_and_b32 v{uA}, 31, v{uL}"); g(f"v_lshlrev_b32 v{vL4}, 2, v{uA}"); g(f"v_bfe_u32 v{uB}, v{uA}, 1, 3"); g(f"v_xor_b32 v{uB}, v{uB}, v{uHI}")
    g(f"v_lshlrev_b32 v{uB}, 4, v{uB}"); g(f"v_lshl_add_u32 v{uB}, v{uA}, 7, v{uB}"); g(f"v_add_u32 v{vXA}, {sXL}, v{uB}")
    for jj in range(1, 4): g(f"v_xor_b32 v{vXA+jj}, {32*jj}, v{vXA}")
    g(f"v_xor_b32 v{uB}, v{u4}, v{uL}"); g(f"v_and_b32 v{uB}, 1, v{uB}"); g(f"v_lshlrev_b32 v{uB}, 10, v{uB}")
    g(f"v_lshl_add_u32 v{uB}, v{uHI}, 4, v{uB}"); g(f"v_add_u32 v{vGA}, {GWT}, v{uB}")
    g(f"s_lshl_b32 {t0}, {sW}, 5"); g(f"s_add_u32 {t0}, {t0}, {KST}")
    g(f"v_mul_u32_u24 v{vPA}, 1040, v{u7}"); g(f"v_lshl_add_u32 v{vPA}, v{u3}, 2, v{vPA}"); g(f"v_add_u32 v{vPA}, {t0}, v{vPA}")
    C0 = -2.0 * 0.7978845608028654 * 1.4426950408889634
    C1 = C0 * 0.044715
    g(f"v_mov_b32 v{vC0}, {fb(C0)}"); g(f"v_mov_b32 v{vC0+1}, {fb(C0)}"); g(f"s_mov_b32 s20, {fb(C1)}"); g(f"s_mov_b32 s21, {fb(C1)}")
    g(f"s_cmp_gt_u32 {sLIM}, 8"); g(f"s_cselect_b64 vcc, -1, 0"); g(f"v_cndmask_b32 v{vH2}, v{uOOB}, v{vL16}, vcc")
    for r in (1, 2, 3, 5, 6, 7, 9, 10, 11, 13, 14, 15, 17, 18, 19): g(f"v_accvgpr_write_b32 a{r}, 0")
    g(f"v_cmp_eq_u32 vcc, 0, v{uHI}"); g(f"v_mov_b32 v{uA}, 0x3f80"); g(f"v_cndmask_b32 v{uA}, 0, v{uA}, vcc"); g(f"v_accvgpr_write_b32 a16, v{uA}")
    SH = 136; vS1, vS2 = 132, 133
    g(f"s_lshl_b32 {t0}, {sW}, 7"); g(f"s_add_u32 {t0}, {t0}, {SHT}"); g(f"v_lshl_add_u32 v{vS1}, v{u3}, 4, {t0}")
    g(f"v_lshrrev_b32 v{vS2}, 1, v{vL4}"); g(f"v_add_u32 v{vS2}, {B1T}, v{vS2}")
    g(f"s_lshl_b32 {t0}, {sW1_}, 6"); g(f"v_add_u32 v{uA}, {t0}, v{vS2}")
    g(f"v_mov_b32 v{vTC}, {EPT}")
    KR, VR, CF, KF, KS = 72, 83, 96, 104, 126
    early(g, 2)
    g.items.append(("raw", "s_waitcnt vmcnt(0)"))
    early(g, 3)
    g("s_barrier")
    st(g)
    g(f"ds_read_b128 {q4(SH)}, v{vS1}", tag="sh"); g(f"ds_read_b32 v{vTC}, v{vTC}", tag="sh")
    for t in range(3): g(f"ds_read_u16 a{4*t}, v{vS2} offset:{64*t}", tag="sh")
    g(f"ds_read_u16 a12, v{uA} offset:{B2T-B1T}", tag="sh")
    for i in range(11):
        off = 640 + 128*i if i < 3 else 1040 + 128*(i-3)
        g(f"ds_read_b32 v{KR+i}, v{vPA} offset:{off}", tag="pk")
    for i in range(8): g(f"ds_read_b32 v{VR+i}, v{vPA} offset:{VST-KST+128*i}", tag="pv")
    if P["bf"]: g.w0(vm=False, lg=True); g("s_barrier")
    g.wlg("sh")
    unpack(g, CF+0, CF+2, SH); unpack(g, CF+4, CF+6, SH+1); unpack(g, CF+1, CF+3, SH+2); unpack(g, CF+5, CF+7, SH+3)
    g(f"v_add_u32 v{vTC}, {TAGK}, v{vTC}"); g(f"v_and_b32 v{vTC}, 0xfffffff0, v{vTC}"); g(f"v_readfirstlane_b32 {sTC}, v{vTC}")
    g.wlg("pk")
    for i in range(11): unpack(g, KF+2*i, KF+2*i+1, KR+i)
    for i in range(8): g(f"v_pk_mul_f32 {pr(KS+2*i)}, {pr(KF+2*(i+3))}, {pr(CF)}")
    for j in range(1, 4):
        for i in range(8): g(f"v_pk_fma_f32 {pr(KS+2*i)}, {pr(KF+2*(i+3-j))}, {pr(CF+2*j)}, {pr(KS+2*i)}")
    g.wlg("pv")
    for i in range(8): unpack(g, KF+2*i, KF+2*i+1, VR+i)
    for i in range(8): g(f"v_pk_mul_f32 {pr(KS+2*i)}, {pr(KS+2*i)}, {pr(KF+2*i)}")
    for ch in range(2):
        for i in range(4): g(f"v_cvt_pk_bf16_f32 v{KF+4*ch+i}, v{KS+4*i+ch}, v{KS+4*i+2+ch}")
    g(f"s_add_u32 {t0}, {sKV}, 4096")
    early(g, 4)
    for ch in range(P.get("x_kvst", 2)):
        g(f"buffer_store_dwordx4 {q4(KF+4*ch)}, v{vKS}, {WS}, {t0 if ch else sKV} offen sc1", tag="kvs0")
    if P["tbg"] == 1:
        g(f"s_lshl_b32 {t1}, {sW1_}, 11"); g(f"s_mul_i32 {t0}, {sWh}, {CHP}"); g(f"s_add_u32 {t0}, {t0}, {t1}"); g(f"s_add_u32 {t0}, {t0}, {HC+32}")
        g(f"v_add_u32 v{uA}, {t0}, v{vL16}")
        g.ext(mk_tb(24, 40, uA))
        g.w0(vm=False, lg=True)
    A2 = 72
    for t in range(3): g(f"v_mfma_f32_32x32x16_bf16 v[{ACC+16*t}:{ACC+16*t+15}], a[{4*t}:{4*t+3}], a[16:19], 0")
    g(f"v_mfma_f32_32x32x16_bf16 v[{A2}:{A2+15}], a[12:15], a[16:19], 0")
    if P["f1k"] < 0:
        g.wvm("kvs0"); g("s_mov_b64 exec, 1"); g(f"buffer_store_dword v{vTC}, v{vZ}, {WS}, {sKL} offen sc1", tag="fl1"); g("s_mov_b64 exec, -1")
    if P["warmf"]:
        g("s_mov_b64 exec, 1"); g(f"buffer_store_dword v{vTC}, v{vZ}, {WS}, {sF2W} offen sc1", tag="wf")
        g(f"buffer_store_dword v{vTC}, v{vZ}, {WS}, {sAW} offen sc1", tag="wf"); g("s_mov_b64 exec, -1")
    g(f"s_cmp_lg_u32 {sW}, 0"); g("s_cbranch_scc1 L_noarr")
    g(f"s_lshl_b32 {t0}, s2, 4")
    g(f"s_add_u32 {t0}, {t0}, {ARR}"); g("s_mov_b64 exec, 1")
    g.items.append(("raw", f"buffer_store_dword v{vTC}, v{vZ}, {WS}, {t0} offen sc1"))
    g("s_mov_b64 exec, -1")
    g("L_noarr:")
    early(g, 5)
    g("s_barrier")
    st(g)
    FR = 64; GF = 52; GA = ACC + 32
    mid_item = st.item()
    vOW, vOR, vOG, vY = 18, 19, 20, 21
    def gemm1(gate):
        o = Prog()
        nt_ = 2 if gate else 3
        def reads(ks):
            c, jj = divmod(ks, 4); slot = c % 4; b = FR + 16*(ks % 3)
            r_ = [I(f"ds_read_b128 {q4(b, 'a')}, v{vXA+jj} offset:{slot*4096}", f"r{ks}")]
            for t in range(nt_):
                for h in range(2):
                    r_.append(I(f"ds_read_b64_tr_b16 {pr(b+4+4*t+2*h, 'a')}, v{vWA} offset:{slot*12288 + (16*jj+4*h)*192 + t*64}", f"r{ks}"))
            if gate: r_.append(I(f"ds_read_b128 {q4(GF+4*(ks%3), 'a')}, v{vGA} offset:{32*ks}", f"r{ks}"))
            return r_
        o.ext(reads(0)); o.ext(reads(1))
        slots = []
        for ks in range(32):
            b = FR + 16*(ks % 3)
            nx = ks + 2
            pre = [("wlg", f"r{ks}")]
            if nx % 4 == 0:
                pre = [("wlg", f"r{ks+1}"), I("s_barrier")]
                if nx <= 16: pre = [pre[0]] + early2(nx//2 - 2) + [pre[1]] + early2(nx//2 - 1)
            rd = reads(nx) if nx < 32 else []
            mf = [I(f"v_mfma_f32_32x32x16_bf16 v[{ACC+16*t}:{ACC+16*t+15}], {q4(b+4+4*t, 'a')}, {q4(b, 'a')}, v[{ACC+16*t}:{ACC+16*t+15}]") for t in range(nt_)]
            if gate: mf.append(I(f"v_mfma_f32_16x16x32_bf16 {q4(GA)}, {q4(GF+4*(ks%3), 'a')}, {q4(b, 'a')}, {q4(GA) if ks else 0}"))
            slots += [pre + [mf[0]] + rd[0:3], [mf[1]] + rd[3:5], [mf[2]] + rd[5:7]]
        S = lambda ks, i=0: 3*ks + i
        xhi, xa = 110, 111
        eq = Prog()
        eq(f"v_lshrrev_b32 v{xhi}, 9, v{vL16}")
        eq(f"s_lshl_b32 {t0}, {sW}, 11"); eq(f"s_add_u32 {t2}, {t0}, {OT}")
        eq(f"v_lshl_add_u32 v{vOW}, v{vL4}, 4, {t2}"); eq(f"v_lshl_add_u32 v{vOW}, v{xhi}, 3, v{vOW}"); eq(f"v_add_u32 v{vOR}, {t2}, v{vL16}")
        eq(f"v_and_b32 v{xa}, 24, v{vL4}"); eq(f"v_lshl_add_u32 v{vOW}, v{xa}, 1, v{vOW}")
        eq(f"v_lshrrev_b32 v{vOG}, 6, v{vL16}"); eq(f"v_lshrrev_b32 v{xa}, 3, v{vL16}"); eq(f"v_xor_b32 v{xa}, v{xa}, v{vL16}"); eq(f"v_and_b32 v{xa}, 48, v{xa}"); eq(f"v_lshl_add_u32 v{vOG}, v{vOG}, 10, v{xa}")
        eq(f"v_lshl_add_u32 v{vY}, v{xhi}, 14, v{vL4}")
        eq(f"v_lshlrev_b32 v{vPA}, 1, v{vL4}"); eq(f"v_and_b32 v{vKS}, 0x70, v{vL16}")
        eq(f"s_lshl_b32 {t0}, {sW}, 7"); eq(f"v_add_u32 v{vKS}, {t0}, v{vKS}"); eq(f"v_or_b32 v{xa}, 0x1e0, v{vKS}")
        eq(f"v_cmp_gt_u32 vcc, 512, v{vL16}"); eq(f"v_cndmask_b32 v{vKS}, v{xa}, v{vKS}, vcc"); eq(f"v_lshlrev_b32 v{vKS}, {fs}, v{vKS}")
        for i in range(8): eq(f"s_add_u32 s{12+i}, {sY}, {(4*(i//2)+(i%2))*8192}")
        eq(f"s_add_u32 {t3}, {sO}, {16384-1024}")
        f1 = Prog(); f1.wvm("kvs0"); f1("s_mov_b64 exec, 1"); f1(f"buffer_store_dword v{vTC}, v{vZ}, {WS}, {sKL} offen sc1", tag="fl1"); f1("s_mov_b64 exec, -1")
        streams = [(groups_of(eq), S(4), S(14))]
        if P["f1k"] >= 0: streams.append(([f1.items], S(P["f1k"], 1), S(P["f1k"], 1)))
        if stamps: streams.append(([mid_item], S(16), S(16)))
        o.ext(weave(slots, *streams))
        if gate:
            G_ = 140
            o(f"v_and_b32 v{G_}, 256, v{vL16}"); o(f"v_cmp_ne_u32 vcc, 0, v{G_}"); o(f"v_cndmask_b32 v{G_}, v{GA}, v{GA+1}, vcc")
            o(f"v_cvt_pk_bf16_f32 v{G_}, v{G_}, v{G_}"); o(f"v_and_b32 v{G_}, 0xffff0000, v{G_}")
            o(f"v_mul_f32 v{G_}, {fb(-1.4426950408889634)}, v{G_}"); o(f"v_exp_f32 v{G_}, v{G_}"); o(f"v_add_f32 v{G_}, 1.0, v{G_}"); o(f"v_rcp_f32 v{G_}, v{G_}")
            o(f"v_cvt_pk_bf16_f32 v{G_}, v{G_}, v{G_}"); o(f"v_and_b32 v{G_}, 0xffff0000, v{G_}")
            o(f"v_sub_f32 v{G_+1}, 1.0, v{G_}"); o(f"v_cvt_pk_bf16_f32 v{G_+1}, v{G_+1}, v{G_+1}"); o(f"v_and_b32 v{G_+1}, 0xffff0000, v{G_+1}")
            o("s_mov_b32 exec_hi, 0")
            o.items.append(("raw", f"buffer_store_dwordx2 {pr(G_)}, v{vPA}, {WS}, {sGW} offen sc1"))
            o("s_mov_b32 exec_hi, -1")
            o.w0(vm=False, lg=True)
        return o.items
    g(f"s_cmp_eq_u32 {sC1}, 15"); g("s_cbranch_scc1 L_gate")
    g.items.append(("fork", "L_gate", gemm1(True), "L_join"))
    g.ext(gemm1(False))
    g.items.append(("join", "L_join"))
    st(g)
    T = 88; HP = 104
    vFL = vWA
    def flag(n):
        d = Prog()
        d.wvm(f"hst{n-1}")
        d(f"v_add_u32 v{vFL}, 3, v{vTC}"); d("s_mov_b64 exec, 1"); d(f"buffer_store_dword v{vFL}, v{vZ}, {WS}, {sF2W if n == 3 else sAW} offen sc1", tag=f"flag{n}"); d("s_mov_b64 exec, -1")
        return d.items
    def w2_read(tau, pl, areg):
        o = [("wvm", f"w2_{tau}")]
        for tdd in range(2):
            for ks in range(2):
                for j in range(2):
                    o.append(I(f"ds_read_b64_tr_b16 {pr(areg+tdd*8+ks*4+2*j, 'a')}, v{vB2+tdd+(2 if pl >= 4 else 0)} offset:{(pl % 4)*4096 + (16*ks+8*j)*128}", f"w2r_{tau}"))
        return o
    PL2 = {6+i: PL[i] for i in range(5)}; PL2[5] = PL[5]
    nm = P["nm"]
    ge = Prog()
    if nm:
        for i in range(4): ge(f"v_add_u32 v{6+i}, {7168*i}, v{vB2V}")
    ge(f"s_lshl_b32 {t0}, {sW}, 2"); ge(f"s_add_u32 {t0}, {t0}, {SY}"); ge(f"v_mov_b32 v128, {t0}")
    go = P["go"]
    def gosig(k):
        if k == go: ge("ds_write_b32 v128, v128 offset:32", tag="gd")
    for t in range(3):
        a = ACC + 16*t
        pk = lambda k: not (t == 2 and k > go)
        if t == 2: gosig(0)
        if pk(1):
            for i in range(8): ge(f"v_pk_mul_f32 {pr(T+2*i)}, {pr(a+2*i)}, {pr(a+2*i)}")
            for i in range(8): ge(f"v_pk_fma_f32 {pr(T+2*i)}, {pr(T+2*i)}, {CK}, {pr(vC0)}")
            for i in range(8): ge(f"v_pk_mul_f32 {pr(T+2*i)}, {pr(T+2*i)}, {pr(a+2*i)}")
        else:
            for i in range(16): ge(f"v_mul_f32 v{T+i}, v{a+i}, v{a+i}")
            for i in range(16): ge(f"v_fma_f32 v{T+i}, v{T+i}, s20, v{vC0}")
            for i in range(16): ge(f"v_mul_f32 v{T+i}, v{T+i}, v{a+i}")
        if t == 2: gosig(1)
        if nm and t == P["mid"] + 1:
            for tau in range(6, 6 + nm): ge.wlg(f"w2r_{tau-6}"); ge.ext(flat(Wt(tau, PL2[tau], 6, sXL, sW2L_)))
        for i in range(16): ge(f"v_exp_f32 v{T+i}, v{T+i}")
        if pk(2):
            for i in range(8): ge(f"v_pk_add_f32 {pr(T+2*i)}, {pr(T+2*i)}, 1.0 op_sel_hi:[1,0]")
        else:
            for i in range(16): ge(f"v_add_f32 v{T+i}, 1.0, v{T+i}")
        if t == 2: gosig(2)
        for i in range(16): ge(f"v_rcp_f32 v{T+i}, v{T+i}")
        if pk(3):
            for i in range(8): ge(f"v_pk_mul_f32 {pr(T+2*i)}, {pr(T+2*i)}, {pr(a+2*i)}")
        else:
            for i in range(16): ge(f"v_mul_f32 v{T+i}, v{T+i}, v{a+i}")
        if t == 2: gosig(3)
        for i in range(8): ge(f"v_cvt_pk_bf16_f32 v{HP+8*t+i}, v{T+2*i}, v{T+2*i+1}")
        if t: ge(f"s_add_u32 {sHS}, {sHS}, 4096")
        if t == 2 and P["lvl"] == 1: ge.ext(flag(1))
        for ks in range(2):
            ge(f"buffer_store_dwordx4 {q4(HP+8*t+4*ks)}, v{vH2 if t == 2 else vL16}, {WS}, {sHS} offen offset:{1024*ks} sc1", tag=f"hst{t}")
        if nm and t == P["mid"]:
            ge(f"s_mov_b32 {sCNT}, 0")
            ge("L_gm:")
            ge("ds_read_b32 v129, v128 offset:48"); ge(f"s_add_u32 {sCNT}, {sCNT}, 1")
            ge.w0(vm=False, lg=True)
            ge("v_cmp_ne_u32 vcc, 1, v129"); ge("s_cbranch_vccz L_gm_ok")
            ge("s_sleep 1"); ge(f"s_cmp_lt_u32 {sCNT}, 0x40000"); ge("s_cbranch_scc1 L_gm")
            ge("L_gm_ok:")
            for tau in range(nm): ge.ext(w2_read(tau, PL[tau], 16*tau))
    g.ext(ge)
    st(g)
    vW2g = 6; vH = [10, 13]; vSG = 128; vTG = 129
    g(f"v_mov_b32 v{vSG}, {SY}")
    if not P["pair"]: g(f"v_mov_b32 v{vTG}, 1"); g("s_mov_b64 exec, 1"); g(f"ds_add_u32 v{vSG}, v{vTG}", tag="gs"); g("s_mov_b64 exec, -1")
    qd = Prog()
    qd(f"s_mov_b32 m0, {t2}")
    qd(f"buffer_load_dwordx4 v{vOG}, {Q}, {sO} offen lds", tag="qt"); qd(f"buffer_load_dwordx4 v{vOG}, {Q}, {t3} offen offset:1024 lds", tag="qt")
    qlate = P.get("qpos", 0)
    if not qlate: g.ext(qd)
    if not nm:
        for i in range(4): g(f"v_add_u32 v{vW2g+i}, {7168*i}, v{vB2V}")
    g(f"s_lshl_b32 {t0}, {sW}, 2"); g(f"v_add_u32 v{vSG}, {t0}, v{vSG}")
    sDONE = "s23"
    fl_raw = [f"v_add_u32 v{vFL}, 3, v{vTC}", "s_mov_b64 exec, 1", f"buffer_store_dword v{vFL}, v{vZ}, {WS}, {sF2W} offen sc1", "s_mov_b64 exec, -1"]
    if P["lvl"] == 2: g.ext(flag(2))
    if P["flagfirst"] == 1: g.ext(flag(3))
    g(f"s_mov_b32 {sCNT}, 0"); g(f"s_mov_b32 {sDONE}, 0")
    g("L_gw:")
    g(f"ds_read_b32 v{vTG}, v{vSG} offset:16"); g(f"s_add_u32 {sCNT}, {sCNT}, 1")
    g.w0(vm=False, lg=True)
    g(f"v_cmp_ne_u32 vcc, 1, v{vTG}"); g("s_cbranch_vccz L_gw_ok")
    if P["flagfirst"] == 2:
        g(f"s_cmp_lg_u32 {sDONE}, 0"); g("s_cbranch_scc1 L_gw2")
        g.items.append(("raw", "s_waitcnt vmcnt(0)"))
        for x in fl_raw: g.items.append(("raw", x))
        g(f"s_mov_b32 {sDONE}, 1")
        g("L_gw2:")
    g("s_sleep 1"); g(f"s_cmp_lt_u32 {sCNT}, 0x40000"); g("s_cbranch_scc1 L_gw")
    g("L_gw_ok:")
    if stamps: g(f"s_sub_u32 {sCNT}, {sCNT}, 1"); cnt(g, 0)
    for tau in range(nm, 5): g.ext(w2_read(tau, PL[tau], 16*tau))
    assert P["flt"] >= 6 + nm and P["f2t"] >= 6 + nm
    for tau in range(6 + nm, 11):
        g.wlg(f"w2r_{tau-6}"); g.ext(flat(Wt(tau, PL2[tau], vW2g, sXL, sW2L_)))
        if tau == P["f2t"]: g(f"buffer_load_dword v{vPOLL}, v{vKS}, {WS}, {sAR} offen sc1", tag="f2")
        if tau == P["flt"] and P["flagfirst"] == 0: g.ext(flag(3))
        if tau == P["flt"] and P["flagfirst"] == 2:
            g.wvm("hst2")
            g(f"s_cmp_lg_u32 {sDONE}, 0"); g("s_cbranch_scc1 L_gw3")
            for x in fl_raw: g.items.append(("raw", x))
            g("L_gw3:")
    st(g)
    f2ld = f"buffer_load_dword v{vPOLL}, v{vKS}, {WS}, {sAR} offen sc1"
    f2bl = f"buffer_load_dword v{vPOLL}, v{vKS}, {WS}, {sF2R} offen sc1"
    if P["f2after"]: g.wvm(f"w2_{P['f2after']}")
    if P["f2t"] > 10: g(f2ld, tag="f2")
    vRW = 6
    g(f"v_add_u32 v{vRW}, {sXL}, v{vL16}")
    for idx in range(1, 4): g(f"v_xor_b32 v{vRW+idx}, {idx*16384}, v{vRW}")
    g(f"s_lshl_b32 {t0}, {sWh}, 11"); g(f"v_add_u32 v{vH[0]}, {t0}, v{vL16}"); g(f"v_xor_b32 v{vH[1]}, 2048, v{vH[0]}")
    g(f"s_add_u32 {t1}, {sTC}, 3")
    QR = 136; GR = vC0
    if not qlate:
        g.wvm("qt")
        for q in range(4):
            if q: g(f"v_xor_b32 v{vTG}, {16*q}, v{vOW}")
            g(f"ds_read_b64 {pr(QR+2*q)}, v{vTG if q else vOW}", tag="qr")
    else: QR = 112
    retry(g, "f2", "f2", [f"v_cmp_ne_u32 vcc, {t1}, v{vPOLL}"], [f2ld], sleep=P["sl_f2"]); cnt(g, 1)
    st(g)
    NH = P.get('nh', 4); ND = P.get('nd', NH)
    nA = P["pre"]
    steps = [(t, ts) for t in range(nA) for ts in (1, 0)] + [(t, 1) for t in range(nA, 11)] + [(t, 0) for t in range(10, nA - 1, -1)]
    tb_ = [n for n, (t, ts) in enumerate(steps) if t >= 4*P["lvl"]][0]
    def h_load(n, ks):
        tau, ts = steps[n]
        d = Prog()
        if ks == 0:
            if n == tb_ - P["pollead"]: d(f2bl, tag="f2b")
            if n == tb_: retry(d, "f2b", "f2b", [f"v_cmp_ne_u32 vcc, {t1}, v{vPOLL}"], [f2bl], sleep=P["sl_f2"]); cnt(d, 3)
            d(f"s_mov_b32 {sRH}, {ORDER[tau]*4096}")
        d(f"buffer_load_dwordx4 {q4(88+8*(n % NH)+4*ks)}, v{vH[ts]}, {HS}, {sRH} offen offset:{ks*1024} sc1", tag=f"h{n}_{ks}")
        return d.items
    g(f"buffer_load_dwordx2 {pr(GR)}, v{vPA}, {WS}, {sGS} offen sc1", tag="g")
    for n in range(ND):
        for ks in range(2): g.ext(h_load(n, ks))
    if P["prio2"] != P["prio"]: g(f"s_setprio {P['prio2']}")
    AB = [A2, 24, 40, 56]
    YR = 136; QF = 120
    yl = [f"buffer_load_dword v{YR+i}, v{vY}, {WS}, s{12+i} offen sc1" for i in range(8)]
    f3ld = f"buffer_load_dword v{vPOLL}, v{vKS}, {WS}, {sKO} offen sc1"
    once = P.get("once", 1) and nA == 4
    areg = lambda tau: 16*tau if tau < 5 else 80 + 16*((tau - 5) % 2)
    if once: areg = lambda tau: 16*tau if tau < 7 else 16*(tau - 7)
    def rd(tau, gen_):
        it = w2_read(tau, PL2[tau], areg(tau))
        for x in it[1:]: x.tag = f"w2r_{tau}_{gen_}"
        return it
    reads_at = {3: rd(5, 0), 4: rd(6, 0), 6: rd(7, 0), 7: rd(8, 0), 8: rd(9, 0), 9: rd(10, 0), 12: rd(8, 1), 13: rd(7, 1), 14: rd(6, 1), 15: rd(5, 1)}
    reads_at = {n + nA: x for n, x in reads_at.items()}
    if once:
        g.ext(rd(5, 0))
        reads_at = {1: rd(6, 0), 3: rd(7, 0), 5: rd(8, 0), 7: rd(9, 0), 9: rd(10, 0)}
    seen2 = {0}
    slots = []
    for n, (tau, ts) in enumerate(steps):
        it = reads_at.get(n)
        rr = [it[:3], it[3:5], it[5:7], it[7:9]] if it else [[], [], [], []]
        k = 0
        for ks in range(2):
            for tdd in range(2):
                a = AB[tdd + 2*ts]
                first = (tdd + 2*ts) not in seen2; seen2.add(tdd + 2*ts)
                cc = "0" if first else f"v[{a}:{a+15}]"
                s_ = [("wvm", f"h{n}_{ks}")] if tdd == 0 else []
                if k == 0: s_ += [("wlg", f"w2r_{tau}"), ("wlg", f"w2r_{tau}_{1-ts}")]
                s_.append(I(f"v_mfma_f32_32x32x16_bf16 v[{a}:{a+15}], {q4(areg(tau)+tdd*8+ks*4, 'a')}, {q4(88+8*(n % NH)+4*ks)}, {cc}"))
                if tdd == 1 and n + ND < 22: s_ += h_load(n + ND, ks)
                s_ += rr[k]
                slots.append(s_); k += 1
    eq = Prog()
    eq.wlg("qr"); eq.wvm("g")
    for q in range(4):
        unpack(eq, QF+4*q, QF+4*q+1, QR+2*q); unpack(eq, QF+4*q+2, QF+4*q+3, QR+2*q+1)
    for i in range(16): eq(f"v_mul_f32 v{QF+i}, v{GR}, v{QF+i}")
    ex = Prog()
    for q in range(1, 4): ex(f"v_xor_b32 v{vB2+q}, {16*q}, v{vOW}")
    ck3 = Prog()
    retry(ck3, "f3", "f3", [f"v_cmp_ne_u32 vcc, {sTC}, v{vPOLL}"], [f3ld], sleep=P["sl_y"]); cnt(ck3, 2)
    for x in yl: ck3(x, tag="y")
    early_w = [[I(f"ds_write_b128 v{vRW}, {q4(AB[idx]+4*q)} offset:{(idx-1)*4096 + 1024*q}", "red")] for idx in (3, 2) for q in range(4)]
    ws_ = [([qd.items], qlate, qlate) if qlate else (groups_of(eq, 1), 24, 60) if NH == 4 else (groups_of(eq, 3), 73, 86), (early_w, 62, P.get("ewe", 84)) if once else (early_w, 4*(14 + nA) + 1, 86), ([ex.items], 4*(16 + nA) + 1, 4*(16 + nA) + 1),
           ([[I(f"v_and_b32 v{vKS}, 0xf0, v{vL16}"), I(f3ld, "f3")]], P["f3pos"], P["f3pos"])]
    XST = [82, 84, 86, 92, 10, 4]
    if stamps and P.get("early") == 4:
        for r_, sl in zip(XST, (0, 16, 32, 48, 64, 80)): ws_.append(([[("raw", f"s_memtime s[{r_}:{r_+1}]")]], sl, sl))
    if P["ck3"] < 88: ws_.append(([ck3.items], P["ck3"], P["ck3"]))
    g.ext(weave(slots, *ws_))
    st(g)
    e3(g, 0)
    if P["ck3"] == 88: g.ext(ck3)
    e3(g, 1)
    for q in range(4): g(f"ds_write_b128 v{vRW}, {q4(AB[1]+4*q)} offset:{1024*q}", tag="red")
    if qlate:
        g.wvm("qt")
        for q in range(4): g(f"ds_read_b64 {pr(QR+2*q)}, v{vB2+q if q else vOW}", tag="qr")
    if P["ck3"] > 88: g.ext(ck3)
    g.w0(vm=False, lg=True)
    e3(g, 2)
    g("s_barrier")
    e3(g, 3)
    for idx in range(1, 4):
        for q in range(4): g(f"ds_read_b128 {q4(AB[idx]+4*q)}, v{vRW+idx} offset:{(idx-1)*4096 + 1024*q}", tag=f"rr{idx}")
    if qlate:
        for q in range(4):
            unpack(g, QF+4*q, QF+4*q+1, QR+2*q); unpack(g, QF+4*q+2, QF+4*q+3, QR+2*q+1)
        for i in range(8): g(f"v_pk_mul_f32 {pr(QF+2*i)}, {pr(QF+2*i)}, {pr(GR)} op_sel_hi:[1,0]")
    ZF = 88
    def ymul():
        g.wvm("y")
        e3(g, 4)
        for i in range(8): unpack(g, ZF+2*i, ZF+2*i+1, YR+i)
        for i in range(8): g(f"v_pk_mul_f32 {pr(QF+2*i)}, {pr(QF+2*i)}, {pr(ZF+2*i)}")
    if P["ck3"] <= 88: ymul()
    for idx in range(1, 4):
        g.wlg(f"rr{idx}")
        for i in range(8): g(f"v_pk_add_f32 {pr(A2+2*i)}, {pr(A2+2*i)}, {pr(AB[idx]+2*i)}")
    if P["ck3"] > 88: ymul()
    for i in range(8): g(f"v_pk_fma_f32 {pr(QF+2*i)}, {pr(A2+2*i)}, {pr(GR)}, {pr(QF+2*i)} op_sel:[0,1,0]")
    for i in range(8): g(f"v_cvt_pk_bf16_f32 v{ZF+i}, v{QF+2*i}, v{QF+2*i+1}")
    e3(g, 5)
    for q in range(4): g(f"ds_write_b64 v{vB2+q if q else vOW}, {pr(ZF+2*q)}", tag="ow")
    for i in range(2): g(f"ds_read_b128 {q4(24+4*i)}, v{vOR} offset:{1024*i}", tag=f"or{i}")
    of = P["outf"].replace("plain", "")
    g.wlg("or0")
    g(f"buffer_store_dwordx4 {q4(24)}, v{vOG}, {OUT}, {sO} offen {of}", tag="out")
    g.wlg("or1")
    g(f"buffer_store_dwordx4 {q4(28)}, v{vOG}, {OUT}, {t3} offen offset:1024 {of}", tag="out")
    if stamps and P.get("early") == 4:
        g.w0(vm=False, lg=True)
        for i_, r_ in enumerate(XST): g(f"v_writelane_b32 v0, s{r_}, {44+i_}")
    e3(g, 6)
    if stamps and P.get("early") == 3: g.w0(vm=True, lg=True); e3(g, 7)
    dump(g, st, vL16, 1)
    g("s_endpgm")
    body = resolve(p.items + v.items)
    stG = dict(hist=[], vm=[], lg=[], smem=False)
    tailG = []
    bodyG = resolve(g.items, stG, tailG) + tailG
    ref = open("cdna_kernels/" + NAME + ".s.ref").read().split("\n") if P.get("final") else []
    top = [l for l in ref[:16]] + DOC if P.get("final") else []
    hdr = top + [f"; @launch grid=(256,1,1) block=(512,1,1) lds={LDS_BYTES}",
           '.amdgcn_target "amdgcn-amd-amdhsa--gfx950"', ".text", f".globl {NAME}_kernel", ".p2align 8",
           f".type {NAME}_kernel,@function", f"{NAME}_kernel:", "L_codestart:"]
    ftr = ["L_codeend:", '.section .rodata,"a"', ".p2align 6", f".amdhsa_kernel {NAME}_kernel",
           "  .amdhsa_next_free_vgpr 256", "  .amdhsa_next_free_sgpr 102", "  .amdhsa_accum_offset 144",
           "  .amdhsa_group_segment_fixed_size 0", "  .amdhsa_kernarg_size 120", "  .amdhsa_user_sgpr_count 2",
           "  .amdhsa_user_sgpr_kernarg_segment_ptr 1", "  .amdhsa_system_sgpr_workgroup_id_x 1",
           "  .amdhsa_float_denorm_mode_32 3", ".end_amdhsa_kernel"]
    allb = body + bodyG
    ab_ = str(P.get("abl", ""))
    if ab_:
        gi = allb.index("L_G:"); ji = allb.index("L_join:")
        def sub(lo, hi, pat):
            for q_ in range(lo, hi):
                if re.search(pat, allb[q_]) and not allb[q_].rstrip().endswith(", 0"): allb[q_] = "    s_nop 0"
        ei = [q_ for q_ in range(ji, len(allb)) if allb[q_].strip() == "s_endpgm"][0]
        if "c" in ab_: sub(0, gi, "v_mfma")
        if "h" in ab_:
            k_ = [q_ for q_ in range(gi) if "v_mfma" in allb[q_]]
            for q_ in k_[8::2]: allb[q_] = "    s_nop 0"
        if "t" in ab_: sub(ji, ei, "v_exp_f32|v_rcp_f32")
        if "g" in ab_: sub(ji, ji + 300, "v_exp_f32|v_rcp_f32|v_pk_")
        if "1" in ab_: sub(gi, ji, "v_mfma"); sub(ei, len(allb), "v_mfma")
        if "2" in ab_: sub(ji, ei, "v_mfma")
    if P.get("al", 1): allb = align_pass(hdr, allb, ftr)
    return "\n".join(hdr + allb + ftr) + "\n"

if __name__ == "__main__":
    kw = {}
    for a in sys.argv[2:]:
        if "=" in a:
            k, v = a.split("="); kw[k] = int(v) if v.lstrip("-").isdigit() else v
    open(sys.argv[1], "w").write(gen(stamps=("stamps" in sys.argv), **kw))
```

```python
import sys, struct
sys.path.insert(0, "dev")
from asmlib import *
NAME = "gated_mix__ssm_conv_h3__dense_activation_gelu__prompt"
NST = 10; NWAVES = 8

WS_KVT = 0; WS_Y = 0; WS_H = 8 << 20; WS_F = (13 << 20) + (768 << 10); WS_X = 16 << 20
EPO = WS_F; ARR = WS_F + 4096; F2 = WS_F + 98304; F1 = WS_F + 32768; F3 = WS_F + 49152; WS_G = WS_F + 65536
WS_SIZE = 16 << 20
TAGK = 0x9E3779B0
OOB = 0x80000000
XR = 0; WR = 65536; KST = 65536 + 49152 - 17680; VST = KST + 9360; U = 115200; HC = 124416; CP = 8256; CHP = 4128
SY = 157440; SHT = 157696; B1T = 158208; B2T = 158464; EPT = 158720; GWT = 161280; GWZ = 162304
EX = HC
PLACE = [x for s in range(3) for x in ([XR + w*16384 + s*4096 for w in range(4)] + [WR + s*12288 + i*4096 for i in range(3)])] + [XR + 3*4096]
ORD = [11*(j >> 2) + 3*(j & 3) + t for t in range(3) for j in range(8) if not (t == 2 and (j & 3) == 3)]
OT = WR + 3*12288
LDS_BYTES = 163840
WS = "s[28:31]"
sW, sMT1, sC1, sMT2, sNT, sFT0, sLIM, sTC, sXC, sWC = "s40", "s41", "s42", "s43", "s44", "s45", "s46", "s47", "s48", "s49"
sXL, sMTL, sW1_, sWh = "s50", "s51", "s52", "s53"
t0, t1, t2, t3 = "s56", "s57", "s58", "s59"
sCNT, sT2, sJH, sROT = "s60", "s63", "s96", "s97"
sHM = "s96"
fb = lambda x: "0x%08x" % struct.unpack("<I", struct.pack("<f", x))[0]
pr = lambda r, k="v": f"{k}[{r}:{r+1}]"
q4 = lambda r, k="v": f"{k}[{r}:{r+3}]"
flat = lambda gs: [x for g in gs for x in g]

def srd(p, base, ptr, size):
    p(f"s_mov_b32 s{base}, s{ptr}"); p(f"s_and_b32 s{base+1}, s{ptr+1}, 0xffff")
    p(f"s_mov_b32 s{base+2}, {size}"); p(f"s_mov_b32 s{base+3}, 0x20000")
def srd_off(base, ptr, off_s, size, sub=False):
    p = Prog()
    p(f"s_add_u32 s{base}, s{ptr}, {off_s}"); p(f"s_addc_u32 s{base+1}, s{ptr+1}, 0"); p(f"s_and_b32 s{base+1}, s{base+1}, 0xffff")
    p(f"s_sub_u32 s{base+2}, {size}, {off_s}" if sub else f"s_mov_b32 s{base+2}, {size}"); p(f"s_mov_b32 s{base+3}, 0x20000")
    return p.items
def unpack(p, lo, hi, src):
    p(f"v_lshlrev_b32 v{lo}, 16, v{src}"); p(f"v_and_b32 v{hi}, {sHM}, v{src}")
MAXSPIN = 0x8000
def retry(p, lab, tag, check, reloads, mask=None, sleep=1):
    p.wvm(tag)
    p(f"s_mov_b32 {sCNT}, 0")
    p(f"L_{lab}:")
    for c in check: p(c)
    p(f"s_and_b64 vcc, vcc, {mask or '-1'}")
    p(f"s_cbranch_scc0 L_{lab}_ok")
    if sleep: p(f"s_sleep {sleep}")
    for r in reloads: p.items.append(("raw", r))
    p(f"s_add_u32 {sCNT}, {sCNT}, 1")
    p(f"s_cmp_lt_u32 {sCNT}, {MAXSPIN}")
    p.items.append(("raw", "s_waitcnt vmcnt(0)"))
    p(f"s_cbranch_scc1 L_{lab}")
    p(f"L_{lab}_ok:")
def tagcheck(regs, tmp):
    o = [f"v_xor_b32 v{tmp}, {sTC}, v{regs[0]}"]
    for r in regs[1:]: o.append(f"v_bitop3_b32 v{tmp}, v{r}, {sTC}, v{tmp} bitop3:0xbe")
    o.append(f"v_cmp_ne_u32 vcc, 0, v{tmp}")
    return o

DEF = dict(pf=1, prio=2, prio2=0, vp8=3, flt=7, lag=14, sl_kv=8, sl_f2=4, sl_y=4, kvt=7, ncv=0, b8=69, bf=1, kbi=5, b0=12, b1=18, pw=0, pair=1, lvl=1, pollead=2, pre=4, fx=1, fxr=6, nm=0, mid=1, s1i=68, sigc=-1, go=3, fsh=0, f2t=10, ewe=78, qpos=72, c3i=49, tbi=72, tbn=99, tbg=0, rawi=28, stg=0, c3=1, wq=0, bs=1, f1i=49, outf="sc1", kvi=70, w2pw=28, f1k=8, f3pos=78, ck3=89, xf="", rot1=1, rot2=0, warmf=0, flagfirst=2, f2after=0, nh0=2, vprio=1)

DOC = """;
; One launch, 256 workgroups of 8 waves (one per CU), written by a generator script.
;   waves 0-3 ("V"): stream x / w1 / w2 tiles into LDS (LDS-DMA), long causal conv as Toeplitz MFMA
;   waves 4-7 ("G"): kv = shift-conv(k)*v (transposed), gemm1 + gelu, gemm2 (split-K in the workgroup), gate mix
; Hand-offs between workgroups (kvT, h, gate, y) go through d_ws with write-through stores, a drained
; vmcnt and a per-wave flag word; flags carry a tag derived from an epoch word in d_ws, which workgroup 0
; advances once every workgroup has read it.""".split("\n")

def gen(stamps=False, **kw):
    P = dict(DEF); P.update(kw)
    KVF = P.get("kvf", "nt").replace("plain", "")
    global MAXSPIN; MAXSPIN = P.get("maxspin", 0x8000)
    class St:
        def __init__(s): s.n = 0
        def __call__(s, pp):
            if stamps:
                pp(f"s_memtime s[{64+2*s.n}:{65+2*s.n}]", tag="stamp"); s.n += 1
        def item(s):
            i = s.n; s.n += 1
            return [I(f"s_memtime s[{64+2*i}:{65+2*i}]", "stamp")] if stamps else []
    def early2(i):
        d = Prog()
        if stamps and P.get("early") == 2:
            d("s_memtime s[98:99]"); d.w0(vm=False, lg=True); d(f"v_writelane_b32 v0, s98, {44+i}")
        return d.items
    def e3(pp, i):
        if stamps and P.get("early") == 3:
            pp("s_memtime s[98:99]"); pp.w0(vm=False, lg=True); pp(f"v_writelane_b32 v0, s98, {44+i}")
    def early(pp, i):
        if stamps and P.get("early") == 1:
            pp("s_memtime s[98:99]"); pp.w0(vm=False, lg=True); pp(f"v_writelane_b32 v0, s98, {44+i}")
    def cnt(pp, i):
        if stamps: pp(f"v_writelane_b32 v0, {sCNT}, {32+i}")
    def dump(pp, st, vL16, role):
        if not stamps and P.get("lite"):
            pp.w0(vm=True, lg=True); pp("s_memrealtime s[98:99]"); pp.w0(vm=False, lg=True)
            pp("v_mov_b32 v6, s100"); pp("v_mov_b32 v7, s98")
            pp(f"s_lshl_b32 {t0}, s2, 3"); pp(f"s_add_u32 {t0}, {t0}, {sW}"); pp(f"s_add_u32 {t0}, {t0}, {4*role}")
            pp(f"s_lshl_b32 {t0}, {t0}, 3"); pp(f"s_add_u32 {t0}, {t0}, {14<<20}"); pp("s_mov_b64 exec, 1")
            pp(f"buffer_store_dwordx2 v[6:7], v3, {WS}, {t0} offen")
        if not stamps: return
        pp.w0(vm=True, lg=True)
        while st.n < NST - 1: st(pp)
        pp("s_memrealtime s[98:99]"); pp.w0(vm=False, lg=True)
        for i in range(st.n): pp(f"v_writelane_b32 v0, s{64+2*i}, {i+1}")
        pp(f"v_writelane_b32 v0, s98, {st.n+1}")
        pp(f"s_lshl_b32 {t0}, s2, 3"); pp(f"s_add_u32 {t0}, {t0}, {sW}"); pp(f"s_add_u32 {t0}, {t0}, {4*role}")
        pp(f"s_lshl_b32 {t0}, {t0}, 8"); pp(f"s_add_u32 {t0}, {t0}, {14<<20}")
        pp(f"v_lshrrev_b32 v6, 2, v{vL16}")
        pp(f"buffer_store_dword v0, v6, {WS}, {t0} offen")
        if P.get("dbgout") is not None and role == 1:
            pp(f"s_cmp_lg_u32 s2, {P['dbgout']}"); pp("s_cbranch_scc1 L_nodbg"); pp(f"s_cmp_lg_u32 {sW}, 0"); pp("s_cbranch_scc1 L_nodbg")
            pp("s_load_dwordx2 s[98:99], s[0:1], 104"); pp("v_writelane_b32 v0, s100, 11"); pp.w0(vm=False, lg=True)
            pp("s_mov_b64 exec, 0xffff"); pp("global_store_dword v6, v0, s[98:99]")
            pp("L_nodbg:")
    def rot_setup(pp):
        pp(f"s_mul_i32 {sROT}, {sMTL}, 11"); pp(f"s_lshr_b32 {sROT}, {sROT}, 1"); pp(f"s_bfe_u32 {t0}, s2, 0x20001"); pp(f"s_add_u32 {sROT}, {sROT}, {t0}")
        if P["hrot"]:
            pp(f"s_mul_i32 {t0}, {sNT}, 11"); pp(f"s_lshr_b32 {t0}, {t0}, 2"); pp(f"s_add_u32 {sROT}, {sROT}, {t0}")
        pp(f"s_sub_u32 {t0}, {sROT}, 22"); pp(f"s_cmp_ge_u32 {sROT}, 22"); pp(f"s_cselect_b32 {sROT}, {t0}, {sROT}")
    p = Prog()
    uL, uHI, u3, u7, u4, uA, uB, uC, uOOB, uSP, uKV = 120, 121, 122, 123, 124, 125, 126, 127, 128, 129, 130
    vL16, vL4, vZ, vTC = 1, 2, 3, 4
    sSO, sSM, sEL, sEH = "s32", "s33", "s34", "s35"
    p("s_cmp_ge_u32 s2, 256"); p("s_cbranch_scc1 L_end")
    p(f"v_lshrrev_b32 v{uA}, 6, v0")
    p("s_load_dwordx16 s[64:79], s[0:1], 0")
    p(f"v_readfirstlane_b32 {sW}, v{uA}")
    p("s_load_dwordx8 s[80:87], s[0:1], 64"); p("s_load_dwordx2 s[92:93], s[0:1], 96"); p("s_load_dwordx2 s[28:29], s[0:1], 112")
    if stamps: p("s_memtime s[98:99]"); p("s_memrealtime s[100:101]")
    elif P.get("lite"): p("s_memrealtime s[100:101]")
    if P["pf"]:
        p("s_getpc_b64 s[60:61]"); p(f"s_and_b32 {t0}, s2, 0xf8"); p(f"v_and_b32 v{uB}, 7, v0"); p(f"v_or_b32 v{uB}, {t0}, v{uB}"); p(f"v_lshlrev_b32 v{uB}, 7, v{uB}")
        p(f"v_min_u32 v{uB}, L_codeend-L_codestart-128, v{uB}")
        p(f"s_cmp_lg_u32 {sW}, 7"); p("s_cbranch_scc1 L_npf")
        p.items.append(("raw", f"global_load_dword v131, v{uB}, s[60:61]"))
        p("L_npf:")
    p("s_mov_b32 s34, 0x50401808"); p("s_mov_b32 s35, 0x58585870"); p(f"s_lshl_b32 {t0}, {sW}, 3"); p(f"s_lshr_b64 s[34:35], s[34:35], {t0}")
    p(f"s_and_b32 {t2}, s34, 0xff"); p(f"s_load_dwordx2 s[36:37], s[0:1], {t2}")
    p(f"v_and_b32 v{uL}, 63, v0"); p(f"v_lshrrev_b32 v{u3}, 3, v{uL}"); p(f"v_and_b32 v{u7}, 7, v{uL}")
    p(f"v_lshlrev_b32 v{uKV}, 10, v{u3}"); p(f"v_lshl_add_u32 v{uKV}, v{u7}, 4, v{uKV}")
    p(f"s_and_b32 {t0}, s2, 7"); p(f"s_lshr_b32 {sMTL}, s2, 6"); p(f"s_bfe_u32 {sNT}, s2, 0x30003")
    if P.get("late"):
        p(f"s_bfe_u32 {sMTL}, s2, 0x20003"); p(f"s_lshr_b32 {t1}, s2, 5"); p(f"s_lshl_b32 {t1}, {t1}, 2")
        p(f"s_lshr_b32 {sNT}, {hex(P['late'])}, {t1}"); p(f"s_and_b32 {sNT}, {sNT}, 7")
    if P.get("x_ntx"): p(f"s_xor_b32 {sNT}, {sNT}, {P['x_ntx']}")
    sJL = "s97"
    p(f"s_mov_b32 {sJL}, {sNT}")
    if P.get("m2d"):
        p(f"s_and_b32 {sMT2}, {t0}, 6"); p(f"s_lshl_b32 {sMT2}, {sMT2}, 2"); p(f"s_lshr_b32 {t1}, s2, 5"); p(f"s_add_u32 {sMT2}, {sMT2}, {t1}")
        p(f"s_and_b32 {sNT}, {sNT}, 3"); p(f"s_and_b32 {t1}, {t0}, 1"); p(f"s_lshl_b32 {t1}, {t1}, 2"); p(f"s_add_u32 {sNT}, {sNT}, {t1}")
    else:
        p(f"s_lshl_b32 {sMT2}, {t0}, 2"); p(f"s_add_u32 {sMT2}, {sMT2}, {sMTL}")
    p(f"s_lshl_b32 {sT2}, {sMT2}, 16"); p(f"s_lshl_b32 {t1}, {sNT}, 7"); p(f"s_add_u32 {sT2}, {sT2}, {t1}")
    p(f"s_and_b32 {t3}, {sW}, 3"); p(f"s_lshl_b32 s12, {t3}, 13"); p(f"s_add_u32 s12, s12, {sT2}"); p(f"s_add_u32 s13, s12, 32768")
    p(f"s_mul_i32 s14, {t3}, 1040"); p(f"s_cmp_ge_u32 {sW}, 4"); p(f"s_cselect_b32 s15, {VST-KST-1040}, 0"); p("s_add_u32 s14, s14, s15"); p(f"s_add_u32 s14, s14, {KST+1040}")
    p(f"s_mov_b32 s10, {0 if P.get('x_nokv') else 2097152}"); p("s_mov_b32 s11, 0x20000")
    if P["rawi"] < 0:
        p(f"s_lshl_b32 s6, {sNT}, 5"); p(f"s_add_u32 s6, s6, {sMT2}"); p(f"s_lshl_b32 s6, s6, 3"); p(f"s_add_u32 s6, s6, {sW}"); p("s_lshl_b32 s6, s6, 10")
        p(f"s_lshl_b32 s7, {sW}, 10"); p(f"s_cmp_ge_u32 {sW}, 4"); p(f"s_cselect_b32 s15, 32, 0"); p("s_add_u32 s7, s7, s15"); p(f"s_add_u32 s7, s7, {HC + 3*CP + 32}")
    p(f"s_mov_b32 s18, {0 if P.get('x_noraw') else 2097152}"); p("s_mov_b32 s19, 0x20000")
    p(f"v_lshlrev_b32 v{vL16}, 4, v{uL}"); p("s_mov_b32 m0, s14"); p(f"s_cmp_ge_u32 {sW}, 4")
    p.w0(vm=False, lg=True)
    p("s_cselect_b64 s[8:9], s[68:69], s[66:67]"); p("s_and_b32 s9, s9, 0xffff")
    p(f"buffer_load_dwordx4 v{uKV}, s[8:11], s12 offen {KVF} lds", tag="kv")
    p("s_add_u32 m0, s14, 4160"); p("s_mov_b32 s16, s72")
    p(f"buffer_load_dwordx4 v{uKV}, s[8:11], s13 offen {KVF} lds", tag="kv")
    if P["rawi"] < 0: p("s_mov_b32 m0, s7")
    p("s_and_b32 s17, s73, 0xffff")
    if P["rawi"] < 0: p(f"buffer_load_dwordx4 v{vL16}, s[16:19], s6 offen {KVF} lds", tag="kv")
    p(f"s_and_b32 {sMT1}, {t0}, 6"); p(f"s_lshl_b32 {sMT1}, {sMT1}, 1"); p(f"s_add_u32 {sMT1}, {sMT1}, {sMTL}")
    if P.get("rot1", 1) == 0:
        p(f"s_lshr_b32 {sXC}, {t0}, 1"); p(f"s_add_u32 {sXC}, {sXC}, {sNT}"); p(f"s_lshl_b32 {t3}, {sMTL}, 1"); p(f"s_add_u32 {sXC}, {sXC}, {t3}")
    elif P.get("rot1", 1) == 1:
        p(f"s_lshr_b32 {sXC}, {t0}, 1"); p(f"s_lshl_b32 {t3}, {sJL}, 1"); p(f"s_add_u32 {sXC}, {sXC}, {t3}"); p(f"s_lshl_b32 {t3}, {sMTL}, 2"); p(f"s_add_u32 {sXC}, {sXC}, {t3}")
        p(f"s_and_b32 {t3}, {t0}, 1"); p(f"s_add_u32 {sXC}, {sXC}, {t3}")
    else:
        p(f"s_mov_b32 {sXC}, {t0}")
    p(f"s_and_b32 {sXC}, {sXC}, 7"); p(f"s_lshl_b32 {sXC}, {sXC}, 7")
    p(f"s_and_b32 {sJH}, {t0}, 1"); p(f"s_lshl_b32 {t0}, {sJH}, 3"); p(f"s_add_u32 {sC1}, {t0}, {sJL}")
    p(f"s_and_b32 {t3}, {sC1}, 3")
    p(f"s_lshr_b32 {t0}, {sC1}, 2"); p(f"s_mul_i32 {sFT0}, {t0}, 11"); p(f"s_mul_i32 {t0}, {t3}, 3"); p(f"s_add_u32 {sFT0}, {sFT0}, {t0}")
    p(f"s_cmp_eq_u32 {t3}, 3"); p(f"s_cselect_b32 {sLIM}, {12 if P.get('x_lim') else 8}, 12"); p(f"s_cmp_eq_u32 {sC1}, 15"); p(f"s_cselect_b32 {sLIM}, 4, {sLIM}")
    p("s_mov_b32 s38, 1024"); p(f"s_mov_b32 {sSO}, {sXC}"); p(f"s_mov_b32 {sSM}, {GWT}")
    p(f"s_cmp_eq_u32 {sW}, 5"); p(f"s_cselect_b32 {t0}, {sC1}, 0"); p(f"s_cselect_b32 {t2}, 1023, -1"); p(f"s_cmp_eq_u32 {t0}, 15"); p(f"s_cselect_b64 s[34:35], -1, 0")
    p(f"s_lshl_b32 {t0}, {sNT}, 9"); p(f"s_lshl_b32 {t3}, {sFT0}, 6")
    for (w, sz, so, dst, el) in ((1, 4096, t0, SHT, -1), (2, 2752, t3, B1T, 0xfff), (3, 1024, t1, B2T, 0xff), (4, WS_SIZE, EPO, EPT, 1)):
        p(f"s_cmp_eq_u32 {sW}, {w}")
        if sz != 1024: p(f"s_cselect_b32 s38, {sz}, s38")
        p(f"s_cselect_b32 {sSO}, {so}, {sSO}"); p(f"s_cselect_b32 {sSM}, {dst}, {sSM}"); p(f"s_cselect_b32 {sEL}, {el}, {sEL}")
    p(f"v_add_u32 v{uSP}, {sSO}, v{vL16}"); p(f"v_and_b32 v{uSP}, {t2}, v{uSP}")
    p(f"s_cmp_lg_u32 {sW}, 0"); p("s_cbranch_scc1 L_nh")
    p("s_mov_b32 s38, 2097152"); p(f"s_mov_b32 {sSM}, {KST}"); p(f"s_mov_b32 {sEH}, 0xffffff00")
    p(f"s_sub_u32 {t0}, {sT2}, 8192"); p(f"v_add_u32 v{uSP}, {t0}, v{uKV}")
    p("L_nh:")
    p("s_mov_b32 s39, 0x20000"); p("s_and_b32 s37, s37, 0xffff")
    p(f"s_mov_b32 m0, {sSM}"); p("s_mov_b64 exec, s[34:35]"); p("s_cbranch_execz L_spn")
    p.items.append(("raw", f"buffer_load_dwordx4 v{uSP}, s[36:39], 0 offen sc1 lds"))
    p("L_spn:"); p("s_mov_b64 exec, -1")
    if stamps: p("v_mov_b32 v0, 0"); p("v_writelane_b32 v0, s98, 0"); p("v_writelane_b32 v0, s100, 40")
    early(p, 0)
    if P["bs"]: p("s_barrier")
    p(f"v_lshrrev_b32 v{u4}, 4, v{uL}"); p(f"v_mov_b32 v{uOOB}, {OOB}"); p(f"v_mov_b32 v{vZ}, 0")
    p(f"s_mov_b32 s30, {WS_SIZE}"); p("s_mov_b32 s31, 0x20000"); p("s_and_b32 s29, s29, 0xffff")
    p(f"s_and_b32 {t0}, {sW}, 4"); p(f"s_and_b32 {sW}, {sW}, 3"); p(f"s_lshl_b32 {sXL}, {sW}, 14")
    p(f"s_and_b32 {sW1_}, {sW}, 1"); p(f"s_lshr_b32 {sWh}, {sW}, 1"); p(f"s_mov_b32 {sHM}, 0xffff0000")
    p(f"s_cmp_lg_u32 {t0}, 0"); p("s_cbranch_scc1 L_G")
    def startstamp(pp):
        if stamps: pp("v_mov_b32 v0, 0"); pp("v_writelane_b32 v0, s98, 0"); pp("v_writelane_b32 v0, s100, 40")
    v = Prog(); st = St()
    XS, W1, SSM, W2 = "s[4:7]", "s[20:23]", "s[16:19]", "s[24:27]"
    sWL, sW2L, sRAW, sDOFF, sD0, sD1, sKT, sYS = "s54", "s55", "s62", "s88", "s89", "s90", "s91", "s3"
    vX, vW, vW2_, vTW, vUW, vCA, vCB, vEW, vER, vEK, vZ1, vZ2, vZ0, vSY, vONE, vT = 6, 10, 13, 14, 15, 16, 17, 18, 19, 20, 21, 22, 23, 24, 25, 26
    ZR = 28; vW2 = 112
    def D(c):
        g = []; slot = c % 4
        for i in range(4):
            d = Prog()
            if i == 0:
                if c: d(f"s_add_u32 {sXC}, {sXC}, 128"); d(f"s_and_b32 {sXC}, {sXC}, 1023"); d(f"s_mul_i32 {sWC}, {sXC}, 1376")
                d(f"s_add_u32 m0, {sXL}, {XR + slot*4096}")
            d(f"buffer_load_dwordx4 v{vX+i}, {XS}, {sXC} offen offset:{1024*i} {P.get('xf', '')} lds", tag=f"c{c}")
            g.append(d.items)
        for i in range(3):
            d = Prog()
            if i == 0: d(f"s_add_u32 m0, {sWL}, {slot*12288}")
            d(f"buffer_load_dwordx4 v{vW+i}, {W1}, {sWC} offen offset:{1024*i} {P.get('wf', '')} lds", tag=f"c{c}")
            g.append(d.items)
        return g
    ORDER = [0, 3, 6, 9, 1, 4, 7, 10, 2, 5, 8]
    PL = [0, 1, 2, 4, 5, 3]
    def rotstep(d, reg, unit):
        d(f"s_add_u32 {reg}, {reg}, {unit}"); d(f"s_cmp_eq_u32 {reg}, {11*unit}"); d(f"s_cselect_b32 {reg}, 0, {reg}")
    def Wt(tau, pl, vw, sxl, sw2l):
        o = []
        for i in range(4):
            d = Prog()
            if i == 0:
                d(f"s_mov_b32 {sROT}, {ORDER[tau]*32768}")
                d(f"s_add_u32 m0, {sxl}, {XR + pl*4096}" if pl < 4 else f"s_add_u32 m0, {sw2l}, {WR + (pl-4)*4096}")
            d(f"buffer_load_dwordx4 v{vw+i}, {W2}, {sROT} offen offset:{1024*i} lds", tag=f"w2_{tau}")
            o.append(d.items)
        return o
    def rot2(pp, first):
        if P["rot2"] >= 4:
            if P["rot2"] == 4: pp(f"s_and_b32 {sROT}, {sNT}, 1"); pp(f"s_mul_i32 {sROT}, {sROT}, 5")
            else: pp(f"s_and_b32 {sROT}, {sNT}, 3"); pp(f"s_mul_i32 {sROT}, {sROT}, 11"); pp(f"s_lshr_b32 {sROT}, {sROT}, 2")
            if first: pp(f"s_add_u32 {sROT}, {sROT}, {first}")
            pp(f"s_sub_u32 {t0}, {sROT}, 11"); pp(f"s_cmp_ge_u32 {sROT}, 11"); pp(f"s_cselect_b32 {sROT}, {t0}, {sROT}")
        elif P["rot2"]:
            pp(f"s_mul_i32 {sROT}, {sMTL}, {[0, 3, 0, 1][P['rot2']]}"); pp(f"s_and_b32 {t0}, s2, 7"); pp(f"s_add_u32 {sROT}, {sROT}, {t0}")
            if first: pp(f"s_add_u32 {sROT}, {sROT}, {first}")
            for _ in range(2): pp(f"s_sub_u32 {t0}, {sROT}, 11"); pp(f"s_cmp_ge_u32 {sROT}, 11"); pp(f"s_cselect_b32 {sROT}, {t0}, {sROT}")
        else: pp(f"s_mov_b32 {sROT}, {first}")
    if P["pw"] == 3:
        v(f"s_and_b32 {t0}, s2, 7"); v(f"s_lshr_b32 {t2}, s2, 3")
        v(f"s_cmp_eq_u32 {sW}, 2"); v("s_cbranch_scc1 L_pw6"); v(f"s_cmp_eq_u32 {sW}, 3"); v("s_cbranch_scc1 L_pw7")
        v(f"s_lshl_b32 {t0}, {t0}, 18"); v(f"s_lshl_b32 {t2}, {t2}, 13"); v(f"s_add_u32 {t0}, {t0}, {t2}"); v(f"s_lshl_b32 {t2}, {sW}, 12"); v(f"s_add_u32 {t0}, {t0}, {t2}")
        v(f"v_and_b32 v{uB}, 31, v{uL}"); v(f"v_lshl_add_u32 v{uC}, v{uB}, 7, {t0}"); v("s_mov_b64 s[4:5], s[64:65]")
        v("s_branch L_pwd")
        v("L_pw6:")
        v(f"s_lshr_b32 {t0}, {t0}, 1"); v(f"s_lshl_b32 {t0}, {t0}, 5"); v(f"s_add_u32 {t0}, {t0}, {t2}"); v(f"s_mul_i32 {t0}, {t0}, {4*2752}")
        v(f"s_mul_i32 {t2}, {sJH}, 1344"); v(f"s_add_u32 {t0}, {t0}, {t2}")
        v(f"v_mul_u32_u24 v{uC}, 2752, v{u4}"); v(f"v_and_b32 v{uB}, 15, v{uL}"); v(f"v_lshlrev_b32 v{uB}, 7, v{uB}")
        v(f"v_min_u32 v{uB}, 1404, v{uB}"); v(f"v_add3_u32 v{uC}, v{uC}, v{uB}, {t0}"); v("s_mov_b64 s[4:5], s[78:79]")
        v("s_branch L_pwd")
        v("L_pw7:")
        v(f"s_mul_i32 {t0}, s2, {43*128}"); v(f"v_min_u32 v{uC}, {42 if P['w2pw'] < 0 else 0}, v{uL}"); v(f"v_lshl_add_u32 v{uC}, v{uC}, 7, {t0}"); v("s_mov_b64 s[4:5], s[82:83]")
        v("L_pwd:")
        v(f"global_load_dword v131, v{uC}, s[4:5]", tag="tch")
    v(f"v_xor_b32 v{vX}, v{u7}, v{u4}"); v(f"v_lshlrev_b32 v{vX}, 4, v{vX}"); v(f"v_lshl_add_u32 v{vX}, v{u3}, 10, v{vX}")
    v(f"v_xor_b32 v{vX+1}, 64, v{vX}"); v(f"v_add_u32 v{vX+1}, 7168, v{vX+1}"); v(f"v_add_u32 v{vX+2}, 14336, v{vX}"); v(f"v_add_u32 v{vX+3}, 14336, v{vX+1}")
    v(f"s_lshl_b32 {t2}, {sMT1}, 17"); v(f"s_lshl_b32 {t0}, {sW}, 15"); v(f"s_add_u32 {t2}, {t2}, {t0}")
    v.ext(srd_off(4, 64, t2, 0 if P.get("x_nox") else 32768))
    v.ext(flat(D(0)[:4]))
    for i in range(3):
        v(f"v_add_u32 v{uA}, {64*i}, v{uL}"); v(f"v_mul_u32_u24 v{uB}, 171, v{uA}"); v(f"v_lshrrev_b32 v{uB}, 11, v{uB}")
        v(f"v_mul_u32_u24 v{uC}, 12, v{uB}"); v(f"v_sub_u32 v{uC}, v{uA}, v{uC}")
        v(f"v_mul_u32_u24 v{uB}, 2752, v{uB}"); v(f"v_cmp_gt_u32 vcc, {sLIM}, v{uC}"); v(f"v_lshl_add_u32 v{uB}, v{uC}, 4, v{uB}")
        v(f"v_subrev_u32 v{uB}, {1024*i}, v{uB}"); v(f"v_cndmask_b32 v{vW+i}, v{uOOB}, v{uB}, vcc")
    v(f"s_mul_i32 {sWC}, {sXC}, 1376")
    v(f"s_mul_i32 {t2}, {sW}, {16*2752}"); v(f"s_add_u32 {t3}, {t3}, {t2}")
    v(f"s_mul_i32 {sWL}, {sW}, 3072"); v(f"s_add_u32 {sWL}, {sWL}, {WR}")
    v.ext(srd_off(20, 78, t3, 512*2752, sub=True))
    if P.get("x_now1"): v("s_mov_b32 s22, 0")
    v.ext(flat(D(0)[4:]))
    early(v, 1)
    m = v
    for i in range(4): m(f"v_mov_b32 v{ZR+i}, 0")
    m(f"v_add_u32 v{uA}, {GWZ}, v{vL16}"); m(f"ds_write_b128 v{uA}, {q4(ZR)}", tag="gz")
    m(f"v_mov_b32 v{vSY}, {SY}"); m(f"ds_write_b128 v{vSY}, {q4(ZR)}", tag="gz"); m(f"ds_write_b128 v{vSY}, {q4(ZR)} offset:16", tag="gz"); m(f"ds_write_b128 v{vSY}, {q4(ZR)} offset:32", tag="gz"); m(f"ds_write_b128 v{vSY}, {q4(ZR)} offset:48", tag="gz")
    m(f"s_lshl_b32 {t0}, {sW}, 2"); m(f"v_add_u32 v23, {t0}, v{vSY}"); m(f"v_mov_b32 v{vONE}, 1")
    m(f"s_lshl_b32 {t0}, {sNT}, 7"); m(f"s_lshl_b32 {t1}, {sMT2}, 2"); m(f"s_add_u32 {t0}, {t0}, {t1}")
    m(f"s_load_dword {sD0}, s[74:75], {t0}", tag="ssmD")
    m(f"s_lshl_b32 {t0}, {sNT}, 5"); m(f"s_add_u32 {t0}, {t0}, {sMT2}"); m(f"s_lshl_b32 {t0}, {t0}, 13")
    m(f"s_lshl_b32 {t1}, {sW}, 11"); m(f"s_add_u32 {sDOFF}, {t0}, {t1}"); m(f"s_lshl_b32 {t0}, {sNT}, 11"); m(f"s_lshr_b32 {t1}, {sMT2}, 3"); m(f"s_lshl_b32 {t1}, {t1}, 9"); m(f"s_add_u32 {sKT}, {t0}, {t1}"); m(f"s_add_u32 {sKT}, {sKT}, {F1}")
    m(f"s_lshl_b32 {t1}, {sW}, 9"); m(f"s_add_u32 {t0}, {t0}, {t1}"); m(f"s_lshl_b32 {t1}, {sMT2}, 4"); m(f"s_add_u32 {t0}, {t0}, {t1}"); m(f"s_add_u32 {sYS}, {t0}, {F3}")
    m(f"s_lshl_b32 {t1}, {sW1_}, 11"); m(f"s_mul_i32 {sRAW}, {sWh}, {CHP}"); m(f"s_add_u32 {sRAW}, {sRAW}, {t1}"); m(f"s_add_u32 {sRAW}, {sRAW}, {HC+32}")
    m(f"v_add_u32 v{vTW}, {sRAW}, v{vL16}")
    m(f"v_and_b32 v{uA}, 1, v{u3}")
    m(f"v_mul_u32_u24 v{vZ1}, {CHP}, v{u7}"); m(f"v_lshl_add_u32 v{vZ1}, v{uA}, 4, v{vZ1}"); m(f"v_add_u32 v{vZ1}, {HC}, v{vZ1}"); m(f"ds_write_b128 v{vZ1}, {q4(ZR)}", tag="gz")
    m(f"v_lshrrev_b32 v{uHI}, 5, v{uL}"); m(f"v_and_b32 v{uB}, 31, v{uL}")
    m(f"v_mul_u32_u24 v{vZ2}, 4608, v{uHI}"); m(f"v_lshl_add_u32 v{vZ2}, v{uB}, 4, v{vZ2}"); m(f"v_add_u32 v{vZ2}, {U}, v{vZ2}"); m(f"ds_write_b128 v{vZ2}, {q4(ZR)}", tag="gz")
    m(f"s_mul_i32 {t0}, {sWh}, 4608"); m(f"s_add_u32 {t1}, {t0}, {t1}"); m(f"s_add_u32 {t1}, {t1}, {U+512}")
    m(f"v_add_u32 v{vUW}, {t1}, v{vL16}"); m(f"v_lshlrev_b32 v{vL4}, 4, v{uB}")
    m(f"s_lshl_b32 {t1}, {sW1_}, 8"); m(f"s_sub_u32 {t0}, {t0}, {t1}"); m(f"s_add_u32 {t0}, {t0}, {U + 512 - 32 - 192}")
    m(f"v_and_b32 v{uA}, 15, v{uL}"); m(f"v_lshlrev_b32 v{uB}, 5, v{uA}"); m(f"v_lshl_add_u32 v{uB}, v{u4}, 4, v{uB}"); m(f"v_add_u32 v{vCB}, {t0}, v{uB}")
    m(f"v_and_b32 v{uB}, 1, v{u4}"); m(f"v_lshlrev_b32 v{vW2}, 2, v{uB}"); m(f"v_and_b32 v{uC}, 2, v{u4}"); m(f"v_lshl_or_b32 v{uB}, v{uC}, 2, v{uB}")
    m(f"v_xor_b32 v{uA}, v{uA}, v{uB}"); m(f"v_lshl_add_u32 v{uA}, v{u4}, 4, v{uA}"); m(f"v_lshlrev_b32 v{uA}, 4, v{uA}")
    m(f"s_lshl_b32 {t0}, {sW}, 13"); m(f"s_add_u32 {t0}, {t0}, {EX}"); m(f"v_add_u32 v{vEW}, {t0}, v{uA}")
    m(f"v_xor_b32 v{vW2}, v{vW2}, v{u7}"); m(f"v_lshlrev_b32 v{vW2}, 4, v{vW2}"); m(f"v_lshl_add_u32 v{vW2}, v{u3}, 10, v{vW2}")
    for i in range(1, 4): m(f"v_add_u32 v{vW2+i}, {7168*i}, v{vW2}")
    m(f"v_lshrrev_b32 v{uA}, 2, v{uL}"); m(f"v_and_b32 v{uB}, 1, v{uL}"); m(f"v_and_b32 v{uC}, 2, v{uL}"); m(f"v_lshl_or_b32 v{uB}, v{uC}, 2, v{uB}")
    m(f"v_xor_b32 v{uA}, v{uA}, v{uB}"); m(f"v_and_b32 v{uC}, 3, v{uL}"); m(f"v_lshl_add_u32 v{uA}, v{uC}, 4, v{uA}"); m(f"v_lshlrev_b32 v{uA}, 4, v{uA}")
    m(f"s_lshl_b32 {t0}, {sW}, 11"); m(f"s_add_u32 {t0}, {t0}, {EX}"); m(f"v_add_u32 v{vER}, {t0}, v{uA}")
    m(f"s_lshl_b32 {sW2L}, {sW}, 13"); m(f"s_lshl_b32 {t0}, {sW}, 10"); m(f"s_add_u32 {t0}, {t0}, {U+512}"); m(f"v_lshl_add_u32 v{vEK}, v{uL}, 3, {t0}")
    m(f"v_bfe_u32 v{uA}, v{uL}, 2, 2"); m(f"v_mul_u32_u24 v{uB}, {CP}, v{uA}"); m(f"v_lshl_add_u32 v{uB}, v{u4}, 4, v{uB}")
    m(f"v_lshlrev_b32 v{uC}, 3, v{uC}"); m(f"v_sub_u32 v{uB}, v{uC}, v{uB}")
    m(f"s_mul_i32 {t0}, {sWh}, {CHP}"); m(f"s_add_u32 {t0}, {t0}, {t1}"); m(f"s_add_u32 {t0}, {t0}, {HC + 3*CP + 56}"); m(f"v_add_u32 v{vCA}, {t0}, v{uB}")
    m(f"s_mul_i32 {t0}, {sW}, {11*32768}"); m(f"s_lshl_b32 {t1}, {sNT}, 7"); m(f"s_add_u32 {t1}, {t0}, {t1}")
    m.ext(srd_off(24, 82, t1, 1376*1024, sub=True))
    if P.get("x_now2", 0) & 1: m("s_mov_b32 s26, 0")
    vPW = 5
    srd(m, 8, 82, 1376*1024)
    m(f"s_lshl_b32 {t0}, s2, 2"); m(f"s_add_u32 {t0}, {t0}, {sW}"); m(f"s_mul_i32 {t0}, {t0}, {11*128}")
    if P.get("spw"): m(f"s_mov_b32 s12, {t0}"); m(f"s_add_u32 s14, {sDOFF}, {64*P.get('gpr', 0)}")
    m(f"v_min_u32 v{vPW}, 10, v{uL}"); m(f"v_lshl_add_u32 v{vPW}, v{vPW}, 7, {t0}")
    if P.get("pwl2"):
        reg = vPW if P["pwl2"] == 1 else 13
        m(f"s_lshr_b32 {t0}, s2, 3"); m(f"s_lshl_b32 {t0}, {t0}, 2"); m(f"s_add_u32 {t0}, {t0}, {sW}"); m(f"s_mul_i32 {t0}, {t0}, {11*1024}")
        m(f"s_and_b32 {t1}, s2, 1"); m(f"s_lshl_b32 {t1}, {t1}, 9"); m(f"s_add_u32 {t0}, {t0}, {t1}")
        m(f"v_min_u32 v{uA}, 43, v{uL}"); m(f"v_lshrrev_b32 v{uB}, 2, v{uA}"); m(f"v_and_b32 v{uA}, 3, v{uA}"); m(f"v_lshlrev_b32 v{uA}, 7, v{uA}")
        m(f"v_lshl_add_u32 v{uA}, v{uB}, 10, v{uA}"); m(f"v_add_u32 v{reg}, {t0}, v{uA}")
    elif P["c3"]:
        m(f"s_lshr_b32 {t0}, s2, 3"); m(f"s_lshl_b32 {t0}, {t0}, 2"); m(f"s_add_u32 {t0}, {t0}, {sW}"); m(f"s_mul_i32 {t0}, {t0}, {11*1024}"); m(f"s_add_u32 {t0}, {t0}, 384")
        m(f"v_and_b32 v{uA}, 31, v{uL}"); m(f"v_min_u32 v{uA}, 10, v{uA}"); m(f"v_lshl_add_u32 v{uA}, v{uA}, 10, {t0}")
        if P["c3i"] < 0: m(f"v_cmp_gt_u32 vcc, 32, v{uL}"); m(f"v_cndmask_b32 v{vPW}, v{uA}, v{vPW}, vcc")
        else: m(f"v_mov_b32 v13, v{uA}")
    v.w0(vm=False, lg=True)
    m(f"s_and_b32 {sD1}, {sD0}, 0xffff0000"); m(f"s_lshl_b32 {sD0}, {sD0}, 16")
    bk = Prog()
    bk.wvm("kv")
    early(bk, 2)
    bk("s_barrier")
    if P["bf"]: bk("s_barrier")
    early(bk, 3)
    bk(f"ds_read_b32 v{vT}, v{vSY} offset:{EPT-SY}", tag="ep")
    tg_ = Prog(); tg_.wlg("ep")
    tg_(f"v_readfirstlane_b32 {sTC}, v{vT}"); tg_(f"s_add_u32 {sTC}, {sTC}, {TAGK}"); tg_(f"s_and_b32 {sTC}, {sTC}, 0xfffffff0")
    def mk_tb(R0, C, vtw):
        tb = Prog()
        for r in range(2):
            tb(f"ds_read_b64 {pr(R0+8*r)}, v{vtw} offset:{3*CP + 1024*r - 8}", tag="rw"); tb(f"ds_read_b128 {q4(R0+8*r+2)}, v{vtw} offset:{3*CP + 1024*r}", tag="rw")
        tb.wlg("rw")
        for r in range(2):
            R = R0 + 8*r; c = C + 12*r
            for i in range(4):
                tb(f"v_alignbit_b32 v{c+i}, v{R+2+i}, v{R+1+i}, 16"); tb(f"v_mov_b32 v{c+4+i}, v{R+1+i}"); tb(f"v_alignbit_b32 v{c+8+i}, v{R+1+i}, v{R+i}, 16")
            for cc in range(3): tb(f"ds_write_b128 v{vtw}, {q4(c+4*cc)} offset:{(2-cc)*CP + r*1024}", tag="z")
        return tb
    tb = mk_tb(64, 80, vTW) if P["tbg"] == 0 else Prog()
    rawg = Prog()
    rawg(f"s_add_u32 m0, {sRAW}, {3*CP}")
    rawg(f"buffer_load_dwordx4 v{vL16}, {SSM}, {sDOFF} offen {KVF} lds", tag="raw")
    rawg(f"buffer_load_dwordx4 v{vL16}, {SSM}, {sDOFF} offen offset:1024 {KVF} lds", tag="raw")
    KT = 104
    kl = [f"buffer_load_dwordx4 {q4(KT+4*i)}, v{vL16}, {WS}, {sDOFF} offen offset:{1024*i} sc1" for i in range(2)]
    f1ld = f"buffer_load_dword v{vT+1}, v{vL4}, {WS}, {sKT} offen sc1"
    CACC = 32; CAf = [("a", 0), ("a", 32)]; CBf = [("a", 64), ("v", 64)]
    def conv_reads(ii):
        o = []; b = ii & 1
        for a in range(8):
            o.append(I(f"ds_read_b128 {q4(CBf[b][1]+4*a, CBf[b][0])}, v{vCB} offset:{512*a + 64*(3-ii)}", f"cv{ii}_{a}"))
            for j in range(2):
                o.append(I(f"ds_read_b64_tr_b16 {pr(CAf[b][1]+4*a+2*j, 'a')}, v{vCA} offset:{512*a + 64*ii + (8 if j == 0 else 0)}", f"cv{ii}_{a}"))
        return o
    arr1 = Prog(); arr1.w0(vm=False, lg=True)
    arr1("s_mov_b64 exec, 1"); arr1(f"ds_add_u32 v{vSY}, v{vONE} offset:4"); arr1("s_mov_b64 exec, -1")
    cslots = []
    seen = set()
    for ii in range(4):
        b = ii & 1
        rd = conv_reads(ii + 1) if ii < 3 else []
        pairs = sorted([(a, bb) for a in range(8) for bb in range(8 - a)], key=lambda x: (max(x), x))
        if ii == 3 and P["fx"]: pairs = sorted(pairs, key=lambda x: (x[0] + x[1], x))
        for k, (a, bb) in enumerate(pairs):
            t = a + bb
            cc = q4(CACC+4*t) if t in seen else "0"
            seen.add(t)
            sl = conv_reads(0) if (ii == 0 and k == 0) else []
            sl.append(("wlg", f"cv{ii}_{max(a, bb)}" if ii == 0 else f"cv{ii}_7"))
            sl.append(I(f"v_mfma_f32_16x16x32_bf16 {q4(CACC+4*t)}, {q4(CAf[b][1]+4*a, 'a')}, {q4(CBf[b][1]+4*bb, CBf[b][0])}, {cc}"))
            kk = k - (8 if ii == 0 else 0)
            if 0 <= kk < len(rd): sl.append(rd[kk])
            if ii == 3 and k == 0: sl += arr1.items
            cslots.append(sl)
    kw_ = Prog()
    kw_.wvm("kvt")
    for i in range(2): kw_(f"ds_write_b128 v{vUW}, {q4(KT+4*i)} offset:{1024*i}", tag="z")
    kw_.w0(vm=False, lg=True)
    seq = flat([D(c) for c in range(1, 8)])
    seq += flat([Wt(t, PL[t], vW2, sXL, sW2L) for t in range(6)])
    lag = P["lag"]
    bpos = [min(7*c + lag, ([99]*6 + [53, 57])[c]) for c in range(8)]
    bpos[0] = P.get("b0", bpos[0]); bpos[1] = P.get("b1", bpos[1])
    assert P["bf"] or bpos[0] <= 11
    assert P["kbi"] <= min(11, bpos[0]) and all(bpos[c] <= 7*(c + 2) for c in range(1, 8)) and bpos == sorted(set(bpos))
    bar = {bpos[c]: c for c in range(8)}
    b8 = P["b8"]; assert 57 < b8 <= 69
    kvt = P["kvt"]
    ncv = P["ncv"] if kvt < 7 else 0
    cstart = 7*(kvt + 1) + lag
    sw_ = [["s_buffer_load_dword s13, s[8:11], s12", "s_add_u32 s12, s12, 64"] for _ in range(22)]
    sr_ = [["s_buffer_load_dword s13, s[16:19], s14", "s_add_u32 s14, s14, 64"] for _ in range(32 - P.get("gpr", 0))]
    sq = {0: sw_, 1: sr_ + sw_, 2: sw_ + sr_, 3: sr_}[P.get("spr", 0)]
    tbg = groups_of(tb, P["tbn"]); ti = 0; ci = 0
    for i, gq in enumerate(seq):
        if i == P["kbi"]: v.ext(bk)
        if i in bar:
            c = bar[i]
            if 1 <= c <= 4: v.ext(early2(2*c - 2))
            v.wvm(f"c{c}")
            if 1 <= c <= 4: v.ext(early2(2*c - 1))
            if c == kvt + 1: v.ext(kw_)
            v("s_barrier")
            if c in (0, 3, 7): st(v)
        stg = P.get("stg", 0)
        if stg and i >= P["rawi"] and (i - P["rawi"]) % 7 == 0 and (i - P["rawi"]) // 7 < stg:
            kq = (i - P["rawi"]) // 7
            v(f"s_and_b32 {t0}, {sNT}, {stg-1}"); v(f"s_cmp_lg_u32 {t0}, {kq}"); v(f"s_cbranch_scc1 L_stg{kq}")
            for x in rawg.items: v.items.append(("raw", x.text))
            if not P.get("nopw"): v.items.append(("raw", f"buffer_load_dword v{vPW}, v{vPW}, s[8:11], 0 offen"))
            v(f"L_stg{kq}:")
        elif i == P["rawi"] and not stg: v.ext(rawg)
        if i == P["f1i"]: v(f1ld, tag="f1")
        if i == 49:
            if P["warmf"]:
                v(f"v_mov_b32 v{vT}, {sTC}"); v(f"v_add_u32 v{vT}, 8, v{vT}"); v("s_mov_b64 exec, 1")
                v(f"buffer_store_dword v{vT}, v{vZ}, {WS}, {sYS} offen sc1", tag="wf"); v("s_mov_b64 exec, -1")
        if i == P["kvi"]:
            retry(v, "f1", "f1", [f"v_cmp_ne_u32 vcc, {sTC}, v{vT+1}"], [f1ld], sleep=P["sl_kv"]); cnt(v, 0)
            for x in kl: v(x, tag="kvt")
        if i == P["c3i"] and P["c3"]: v(f"buffer_load_dword v13, v13, s[8:11], 0 offen", tag="pw")
        if i == P["w2pw"]:
            v(f"buffer_load_dword v{vPW}, v{vPW}, s[8:11], 0 offen", tag="pw")
        if i == b8:
            assert P["rawi"] <= 42 or not P.get("stg")
            v.wvm("raw")
            v("s_barrier")
            if P["vp8"]: v(f"s_setprio {P['vp8']}")
        if P["nm"] and i == P["s1i"]:
            v.wvm(f"w2_{P['nm']-1}"); v(f"ds_write_b32 v23, v{vONE} offset:48", tag="sig")
        v.ext(gq)
        if i == P["kbi"] + 2: v.ext(tg_)
        if P.get("spw") and i >= P["kbi"] + 2:
            for q_ in range(P["spw"]):
                if sq:
                    for x in sq.pop(0): v(x, tag="spw")
        if i >= P["tbi"] and ti < len(tbg): v.ext(tbg[ti]); ti += 1
        if ncv and cstart <= i < b8:
            assert ti == len(tbg)
            upto = (ncv * (i - cstart + 1)) // (b8 - cstart)
            while ci < upto: v.ext(cslots[ci]); ci += 1
    es = P.get("es", 0)
    def esig(): v.wvm("w2_4"); v(f"ds_write_b32 v23, v{vONE} offset:48", tag="sig")
    if es == 1: esig()
    while ti < len(tbg): v.ext(tbg[ti]); ti += 1
    if es == 2: esig()
    def varrive(i):
        v.w0(vm=False, lg=True)
        v("s_mov_b64 exec, 1"); v(f"ds_add_u32 v{vSY}, v{vONE} offset:{4*i}"); v("s_mov_b64 exec, -1")
    def vsync(i, arrive=True, n=4):
        if arrive: varrive(i)
        v(f"s_mov_b32 {sCNT}, 0")
        v(f"L_vs{i}:")
        v(f"ds_read_b32 v{vT}, v{vSY} offset:{4*i}"); v(f"s_add_u32 {sCNT}, {sCNT}, 1")
        v.w0(vm=False, lg=True)
        v(f"v_cmp_ne_u32 vcc, {n}, v{vT}"); v(f"s_cbranch_vccz L_vs{i}_ok")
        if n == 8: v("s_sleep 1")
        v(f"s_cmp_lt_u32 {sCNT}, 0x40000"); v(f"s_cbranch_scc1 L_vs{i}")
        v(f"L_vs{i}_ok:")
    v(f"s_lshl_b32 {t0}, {sW}, 2"); v(f"v_add_u32 v{vT+1}, {t0}, v{vSY}")
    if kvt >= 7: v.ext(kw_)
    varrive(0)
    def wsig():
        v.w0(vm=True, lg=False)
        v(f"ds_write_b32 v{vT+1}, v{vONE} offset:16", tag="sig")
    if P["sigc"] == -2: wsig()
    vsync(0, arrive=False)
    v.ext(cslots[0][:24]); cslots[0] = cslots[0][24:]
    if P["sigc"] == -1: wsig()
    st(v)
    v(f"s_mov_b32 {sCNT}, 0")
    v("L_vg:")
    v(f"ds_read_b32 v{vT}, v{vT+1} offset:32"); v(f"s_add_u32 {sCNT}, {sCNT}, 1")
    v.w0(vm=False, lg=True)
    v(f"v_cmp_eq_u32 vcc, 0, v{vT}"); v("s_cbranch_vccz L_vg_ok")
    v("s_sleep 1"); v(f"s_cmp_lt_u32 {sCNT}, 0x40000"); v("s_cbranch_scc1 L_vg")
    v("L_vg_ok:")
    st(v)
    v(f"s_setprio {P['vprio']}")
    E = 64; KVr = 96; KVf = 104; YO = 120
    side = {}
    if P["fx"]:
        kd = Prog()
        for tt in range(2):
            for ch in range(2): kd(f"ds_read_b64 {pr(KVr+(tt*2+ch)*2)}, v{vEK} offset:{ch*4608 + tt*512}", tag="kdr")
        for n_, x in enumerate(kd.items): side[36 + 26 + n_] = [x]
        kd = Prog()
        for tt in range(2):
            for ch in range(2):
                r = KVr + (tt*2+ch)*2; f = KVf + (tt*2+ch)*4
                unpack(kd, f, f+1, r); unpack(kd, f+2, f+3, r+1)
        for n_, x in enumerate(groups_of(kd, 2)): side[72 + 26 + n_] = ([("wlg", "kdr")] if n_ == 0 else []) + x
        ck = Prog()
        ck.w0(vm=False, lg=True)
        ck(f"s_mov_b32 {sCNT}, 0")
        ck("L_vs1:")
        ck(f"v_cmp_ne_u32 vcc, 4, v{vT}"); ck("s_cbranch_vccz L_vs1_ok")
        ck.items.append(("raw", f"ds_read_b32 v{vT}, v{vSY} offset:4")); ck(f"s_add_u32 {sCNT}, {sCNT}, 1")
        ck.items.append(("raw", "s_waitcnt lgkmcnt(0)"))
        ck(f"s_cmp_lt_u32 {sCNT}, 0x40000"); ck("s_cbranch_scc1 L_vs1")
        ck("L_vs1_ok:")
        side[108 + P["fxr"]] = [I(f"ds_read_b32 v{vT}, v{vSY} offset:4", "s1")]
        side[108 + P["fxr"] + 7] = ck.items
        done = 0; pos = 108 + P["fxr"] + 7
        late_w = []
        for t in range(8):
            done += t + 1
            w_ = I(f"ds_write_b128 v{vEW}, {q4(CACC+4*t)} offset:{1024*t}", "ex")
            pos = max(pos + 2, 108 + done + 6)
            if pos < 144: side.setdefault(pos, []).append(w_)
            else: late_w.append(w_)
    while ci < 144:
        if ci == P["sigc"]: wsig()
        if ci == P.get("vupc", -1): v(f"s_setprio 3")
        v.ext(cslots[ci]); v.ext(side.get(ci, [])); ci += 1
    if P.get("vp2") is not None: v(f"s_setprio {P['vp2']}")
    e3(v, 0)
    if not P["fx"]: vsync(1, arrive=False)
    e3(v, 1)
    st(v)
    if P["fx"]: v.ext(late_w)
    else:
        for t in range(8): v(f"ds_write_b128 v{vEW}, {q4(CACC+4*t)} offset:{1024*t}", tag="ex")
    e3(v, 2)
    vsync(2)
    e3(v, 3)
    for tt in range(2):
        for wv in range(4): v(f"ds_read_b128 {q4(E+(tt*4+wv)*4)}, v{vER} offset:{wv*8192 + tt*1024}", tag=f"exr{tt}")
        if not P["fx"]:
            for ch in range(2): v(f"ds_read_b64 {pr(KVr+(tt*2+ch)*2)}, v{vEK} offset:{ch*4608 + tt*512}", tag=f"exr{tt}")
    for tt in range(2):
        v.wlg(f"exr{tt}")
        for ch in range(2):
            ee = E + (tt*4+2*ch)*4; r = KVr + (tt*2+ch)*2; f = KVf + (tt*2+ch)*4
            if not P["fx"]: unpack(v, f, f+1, r); unpack(v, f+2, f+3, r+1)
            for i in range(4): v(f"v_add_f32 v{ee+i}, v{ee+i}, v{ee+4+i}")
            for i in range(4): v(f"v_fma_f32 v{ee+i}, v{f+i}, {sD0 if ch == 0 else sD1}, v{ee+i}")
        for i in range(4): v(f"v_cvt_pk_bf16_f32 v{YO+4*tt+i}, v{E+tt*16+i}, v{E+tt*16+8+i}")
        v(f"buffer_store_dwordx4 {q4(YO+4*tt)}, v{vL16}, {WS}, {sDOFF} offen offset:{1024*tt} sc1", tag="yst")
    st(v)
    v(f"v_mov_b32 v{vT}, {sTC}")
    e3(v, 4)
    v.wvm("yst")
    e3(v, 5)
    v("s_mov_b64 exec, 1"); v(f"buffer_store_dword v{vT}, v{vZ}, {WS}, {sYS} offen sc1"); v("s_mov_b64 exec, -1")
    v(f"s_or_b32 {t0}, s2, {sW}"); v(f"s_cmp_lg_u32 {t0}, 0"); v("s_cbranch_scc1 L_noep")
    cl = [f"buffer_load_dword v{64+i}, v{vL16}, {WS}, {t1} offen offset:{1024*i} sc1" for i in range(4)]
    v(f"s_mov_b32 {t1}, {ARR}")
    for x in cl: v(x, tag="cn")
    ck = tagcheck([64, 65, 66, 67], vT); ck[-1] = f"v_cmp_lt_u32 vcc, 15, v{vT}"
    retry(v, "cn", "cn", ck, cl, sleep=8)
    v(f"v_mov_b32 v{vT}, {sTC}"); v(f"s_mov_b32 {t0}, {EPO}"); v("s_mov_b64 exec, 1")
    v(f"buffer_store_dword v{vT}, v{vZ}, {WS}, {t0} offen sc1"); v("s_mov_b64 exec, -1")
    v("L_noep:")
    dump(v, st, vL16, 0)
    v("L_end:"); v("s_endpgm")
    g = Prog(); st = St()
    W2 = "s[24:27]"
    K, V, SP, HS, Q, OUT = "s[8:11]", "s[12:15]", "s[36:39]", "s[36:39]", "s[4:7]", "s[32:35]"
    sKL, sKO, sHS, sF2W, sF2R, sGS, sO, sY, sKV, sXS, sXR_, sFAST = "s54", "s55", "s61", "s62", "s88", "s89", "s90", "s91", "s3", "s94", "s95", "s24"
    CK = "s[20:21]"
    vPOLL, vXA, vWA, vPA, vKS, vH2, vB2, vKV, vC0 = 5, 6, 10, 11, 12, 13, 14, 18, 22
    vGA = 142; vB2V = 143
    ACC = 24
    g("L_G:")
    if P["prio"]: g(f"s_setprio {P['prio']}")
    if P.get("gpr"):
        g(f"s_lshl_b32 {t0}, {sNT}, 5"); g(f"s_add_u32 {t0}, {t0}, {sMT2}"); g(f"s_lshl_b32 {t0}, {t0}, 13"); g(f"s_lshl_b32 {t1}, {sW}, 11"); g(f"s_add_u32 {t0}, {t0}, {t1}")
        for q_ in range(P["gpr"]): g(f"s_buffer_load_dword s13, s[16:19], {t0}", tag="spw"); g(f"s_add_u32 {t0}, {t0}, 64")
    early(g, 1)
    g(f"v_lshrrev_b32 v{uHI}, 5, v{uL}")
    srd(g, 4, 64, 2097152); srd(g, 32, 92, 2097152)
    sW2L_, sRH, sGW = "s94", "s95", "s22"
    g(f"s_lshl_b32 {t1}, {sMT1}, 1"); g(f"s_add_u32 {t0}, {sWh}, {t1}")
    g(f"s_mul_i32 {sHS}, {t0}, 44"); g(f"s_add_u32 {sHS}, {sHS}, {sFT0}"); g(f"s_lshl_b32 {sHS}, {sHS}, 12")
    g(f"s_lshl_b32 {t1}, {sW1_}, 11"); g(f"s_add_u32 {sHS}, {sHS}, {t1}"); g(f"s_add_u32 {sHS}, {sHS}, {WS_H}")
    fs = P["fsh"]
    g(f"s_lshl_b32 {t0}, {t0}, {9+fs}"); g(f"s_lshl_b32 {t1}, {sC1}, {5+fs}"); g(f"s_add_u32 {t0}, {t0}, {t1}"); g(f"s_lshl_b32 {t1}, {sW1_}, {4+fs}"); g(f"s_add_u32 {t0}, {t0}, {t1}")
    g(f"s_add_u32 {sF2W}, {t0}, {F2}"); g(f"s_lshl_b32 {sF2R}, {sMT2}, {9+fs}"); g(f"s_add_u32 {sF2R}, {sF2R}, {F2}")
    g(f"s_mul_i32 {t0}, {sMT2}, 44"); g(f"s_mul_i32 {t1}, {sW}, 11"); g(f"s_add_u32 {t0}, {t0}, {t1}"); g(f"s_lshl_b32 {t0}, {t0}, 12"); g(f"s_add_u32 {t0}, {t0}, {WS_H}")
    g.ext(srd_off(36, 28, t0, 0 if P.get("x_noh") else 45056))
    if P.get("x_nohst"): g(f"s_mov_b32 {sHS}, {WS_SIZE}")
    g(f"s_mul_i32 {t0}, {sW}, {11*32768}"); g(f"s_lshl_b32 {t1}, {sNT}, 7"); g(f"s_add_u32 {t1}, {t0}, {t1}")
    g.ext(srd_off(24, 82, t1, 1376*1024, sub=True))
    if P.get("x_now2", 0) & 2: g("s_mov_b32 s26, 0")
    sAW, sAR = "s8", "s9"
    aoff = 16384 if P["fsh"] == 0 else -(16384 << P["fsh"]) - 98304
    g(f"s_add_u32 {sAW}, {sF2W}, {aoff & 0xffffffff}"); g(f"s_add_u32 {sAR}, {sF2R}, {aoff & 0xffffffff}")
    g(f"s_lshl_b32 {sW2L_}, {sW}, 13")
    g(f"s_lshl_b32 {t2}, {sMT2}, 1"); g(f"s_add_u32 {t2}, {t2}, {sWh}")
    g(f"s_lshl_b32 {sGS}, {t2}, 8"); g(f"s_add_u32 {sGS}, {sGS}, {WS_G}")
    g(f"s_lshl_b32 {sGW}, {sMT1}, 10"); g(f"s_lshl_b32 {t1}, {sW}, 8"); g(f"s_add_u32 {sGW}, {sGW}, {t1}"); g(f"s_add_u32 {sGW}, {sGW}, {WS_G}")
    g(f"s_lshl_b32 {t1}, {sWh}, 15"); g(f"s_add_u32 {sO}, {sT2}, {t1}"); g(f"s_lshl_b32 {t1}, {sW1_}, 6"); g(f"s_add_u32 {sO}, {sO}, {t1}")
    g(f"s_lshl_b32 {sY}, {sNT}, 18"); g(f"s_lshl_b32 {t1}, {sW1_}, 17"); g(f"s_add_u32 {sY}, {sY}, {t1}")
    g(f"s_lshl_b32 {t1}, {t2}, 7"); g(f"s_add_u32 {sY}, {sY}, {t1}")
    g(f"s_lshl_b32 {t0}, {sNT}, 11"); g(f"s_lshl_b32 {t1}, {sW}, 9"); g(f"s_add_u32 {sKL}, {t0}, {t1}"); g(f"s_lshl_b32 {t1}, {sMT2}, 4"); g(f"s_add_u32 {sKL}, {sKL}, {t1}"); g(f"s_add_u32 {sKL}, {sKL}, {F1}")
    g(f"s_lshr_b32 {t1}, {t2}, 4"); g(f"s_lshl_b32 {t1}, {t1}, 9"); g(f"s_add_u32 {t0}, {t0}, {t1}"); g(f"s_lshl_b32 {t1}, {sW1_}, 8"); g(f"s_add_u32 {t0}, {t0}, {t1}"); g(f"s_add_u32 {sKO}, {t0}, {F3}")
    g(f"s_lshl_b32 {sKV}, {sNT}, 18"); g(f"s_lshl_b32 {t1}, {sW}, 16"); g(f"s_add_u32 {sKV}, {sKV}, {t1}"); g(f"s_lshl_b32 {t1}, {sMT2}, 7"); g(f"s_add_u32 {sKV}, {sKV}, {t1}")
    g(f"v_lshlrev_b32 v{vKS}, 13, v{u3}"); g(f"v_lshl_add_u32 v{vKS}, v{u7}, 4, v{vKS}")
    g(f"v_bfe_u32 v{uA}, v{uL}, 2, 2"); g(f"v_and_b32 v{uC}, 3, v{uL}"); g(f"v_lshlrev_b32 v{uC}, 3, v{uC}")
    g(f"v_and_b32 v{uB}, 1, v{u4}"); g(f"v_lshl_add_u32 v{uC}, v{uB}, 5, v{uC}")
    g(f"v_lshl_add_u32 v{vWA}, v{uHI}, 3, v{uA}"); g(f"v_mul_u32_u24 v{vWA}, 192, v{vWA}"); g(f"v_add_u32 v{vWA}, v{vWA}, v{uC}"); g(f"v_add_u32 v{vWA}, {WR}, v{vWA}")
    g(f"v_lshl_add_u32 v{vB2}, v{uHI}, 2, v{uA}"); g(f"v_lshl_add_u32 v{vB2}, v{vB2}, 7, v{uC}")
    g(f"v_and_b32 v{uA}, 2, v{uA}"); g(f"v_lshlrev_b32 v{uA}, 5, v{uA}"); g(f"v_xor_b32 v{vB2}, v{vB2}, v{uA}")
    g(f"s_lshl_b32 {t0}, {sW1_}, 6"); g(f"v_xor_b32 v{vB2}, {t0}, v{vB2}")
    g(f"s_add_u32 {t0}, {sW2L_}, {WR}"); g(f"v_add_u32 v{vB2+2}, {t0}, v{vB2}"); g(f"v_add_u32 v{vB2}, {sXL}, v{vB2}")
    g(f"v_xor_b32 v{vB2+1}, 64, v{vB2}"); g(f"v_xor_b32 v{vB2+3}, 64, v{vB2+2}")
    g(f"v_lshlrev_b32 v{uB}, 2, v{uB}"); g(f"v_xor_b32 v{uB}, v{uB}, v{u7}"); g(f"v_lshlrev_b32 v{uB}, 4, v{uB}"); g(f"v_lshl_add_u32 v{vB2V}, v{u3}, 10, v{uB}")
    g(f"v_and_b32 v{uA}, 31, v{uL}"); g(f"v_lshlrev_b32 v{vL4}, 2, v{uA}"); g(f"v_bfe_u32 v{uB}, v{uA}, 1, 3"); g(f"v_xor_b32 v{uB}, v{uB}, v{uHI}")
    g(f"v_lshlrev_b32 v{uB}, 4, v{uB}"); g(f"v_lshl_add_u32 v{uB}, v{uA}, 7, v{uB}"); g(f"v_add_u32 v{vXA}, {sXL}, v{uB}")
    for jj in range(1, 4): g(f"v_xor_b32 v{vXA+jj}, {32*jj}, v{vXA}")
    g(f"v_xor_b32 v{uB}, v{u4}, v{uL}"); g(f"v_and_b32 v{uB}, 1, v{uB}"); g(f"v_lshlrev_b32 v{uB}, 10, v{uB}")
    g(f"v_lshl_add_u32 v{uB}, v{uHI}, 4, v{uB}"); g(f"v_add_u32 v{vGA}, {GWT}, v{uB}")
    g(f"s_lshl_b32 {t0}, {sW}, 5"); g(f"s_add_u32 {t0}, {t0}, {KST}")
    g(f"v_mul_u32_u24 v{vPA}, 1040, v{u7}"); g(f"v_lshl_add_u32 v{vPA}, v{u3}, 2, v{vPA}"); g(f"v_add_u32 v{vPA}, {t0}, v{vPA}")
    C0 = -2.0 * 0.7978845608028654 * 1.4426950408889634
    C1 = C0 * 0.044715
    g(f"v_mov_b32 v{vC0}, {fb(C0)}"); g(f"v_mov_b32 v{vC0+1}, {fb(C0)}"); g(f"s_mov_b32 s20, {fb(C1)}"); g(f"s_mov_b32 s21, {fb(C1)}")
    g(f"s_cmp_gt_u32 {sLIM}, 8"); g(f"s_cselect_b64 vcc, -1, 0"); g(f"v_cndmask_b32 v{vH2}, v{uOOB}, v{vL16}, vcc")
    for r in (1, 2, 3, 5, 6, 7, 9, 10, 11, 13, 14, 15, 17, 18, 19): g(f"v_accvgpr_write_b32 a{r}, 0")
    g(f"v_cmp_eq_u32 vcc, 0, v{uHI}"); g(f"v_mov_b32 v{uA}, 0x3f80"); g(f"v_cndmask_b32 v{uA}, 0, v{uA}, vcc"); g(f"v_accvgpr_write_b32 a16, v{uA}")
    SH = 136; vS1, vS2 = 132, 133
    g(f"s_lshl_b32 {t0}, {sW}, 7"); g(f"s_add_u32 {t0}, {t0}, {SHT}"); g(f"v_lshl_add_u32 v{vS1}, v{u3}, 4, {t0}")
    g(f"v_lshrrev_b32 v{vS2}, 1, v{vL4}"); g(f"v_add_u32 v{vS2}, {B1T}, v{vS2}")
    g(f"s_lshl_b32 {t0}, {sW1_}, 6"); g(f"v_add_u32 v{uA}, {t0}, v{vS2}")
    g(f"v_mov_b32 v{vTC}, {EPT}")
    KR, VR, CF, KF, KS = 72, 83, 96, 104, 126
    early(g, 2)
    g.items.append(("raw", "s_waitcnt vmcnt(0)"))
    early(g, 3)
    g("s_barrier")
    st(g)
    g(f"ds_read_b128 {q4(SH)}, v{vS1}", tag="sh"); g(f"ds_read_b32 v{vTC}, v{vTC}", tag="sh")
    for t in range(3): g(f"ds_read_u16 a{4*t}, v{vS2} offset:{64*t}", tag="sh")
    g(f"ds_read_u16 a12, v{uA} offset:{B2T-B1T}", tag="sh")
    for i in range(11):
        off = 640 + 128*i if i < 3 else 1040 + 128*(i-3)
        g(f"ds_read_b32 v{KR+i}, v{vPA} offset:{off}", tag="pk")
    for i in range(8): g(f"ds_read_b32 v{VR+i}, v{vPA} offset:{VST-KST+128*i}", tag="pv")
    if P["bf"]: g.w0(vm=False, lg=True); g("s_barrier")
    g.wlg("sh")
    unpack(g, CF+0, CF+2, SH); unpack(g, CF+4, CF+6, SH+1); unpack(g, CF+1, CF+3, SH+2); unpack(g, CF+5, CF+7, SH+3)
    g(f"v_add_u32 v{vTC}, {TAGK}, v{vTC}"); g(f"v_and_b32 v{vTC}, 0xfffffff0, v{vTC}"); g(f"v_readfirstlane_b32 {sTC}, v{vTC}")
    g.wlg("pk")
    for i in range(11): unpack(g, KF+2*i, KF+2*i+1, KR+i)
    for i in range(8): g(f"v_pk_mul_f32 {pr(KS+2*i)}, {pr(KF+2*(i+3))}, {pr(CF)}")
    for j in range(1, 4):
        for i in range(8): g(f"v_pk_fma_f32 {pr(KS+2*i)}, {pr(KF+2*(i+3-j))}, {pr(CF+2*j)}, {pr(KS+2*i)}")
    g.wlg("pv")
    for i in range(8): unpack(g, KF+2*i, KF+2*i+1, VR+i)
    for i in range(8): g(f"v_pk_mul_f32 {pr(KS+2*i)}, {pr(KS+2*i)}, {pr(KF+2*i)}")
    for ch in range(2):
        for i in range(4): g(f"v_cvt_pk_bf16_f32 v{KF+4*ch+i}, v{KS+4*i+ch}, v{KS+4*i+2+ch}")
    g(f"s_add_u32 {t0}, {sKV}, 4096")
    early(g, 4)
    for ch in range(P.get("x_kvst", 2)):
        g(f"buffer_store_dwordx4 {q4(KF+4*ch)}, v{vKS}, {WS}, {t0 if ch else sKV} offen sc1", tag="kvs0")
    if P["tbg"] == 1:
        g(f"s_lshl_b32 {t1}, {sW1_}, 11"); g(f"s_mul_i32 {t0}, {sWh}, {CHP}"); g(f"s_add_u32 {t0}, {t0}, {t1}"); g(f"s_add_u32 {t0}, {t0}, {HC+32}")
        g(f"v_add_u32 v{uA}, {t0}, v{vL16}")
        g.ext(mk_tb(24, 40, uA))
        g.w0(vm=False, lg=True)
    A2 = 72
    for t in range(3): g(f"v_mfma_f32_32x32x16_bf16 v[{ACC+16*t}:{ACC+16*t+15}], a[{4*t}:{4*t+3}], a[16:19], 0")
    g(f"v_mfma_f32_32x32x16_bf16 v[{A2}:{A2+15}], a[12:15], a[16:19], 0")
    if P["f1k"] < 0:
        g.wvm("kvs0"); g("s_mov_b64 exec, 1"); g(f"buffer_store_dword v{vTC}, v{vZ}, {WS}, {sKL} offen sc1", tag="fl1"); g("s_mov_b64 exec, -1")
    if P["warmf"]:
        g("s_mov_b64 exec, 1"); g(f"buffer_store_dword v{vTC}, v{vZ}, {WS}, {sF2W} offen sc1", tag="wf")
        g(f"buffer_store_dword v{vTC}, v{vZ}, {WS}, {sAW} offen sc1", tag="wf"); g("s_mov_b64 exec, -1")
    g(f"s_cmp_lg_u32 {sW}, 0"); g("s_cbranch_scc1 L_noarr")
    g(f"s_lshl_b32 {t0}, s2, 4")
    g(f"s_add_u32 {t0}, {t0}, {ARR}"); g("s_mov_b64 exec, 1")
    g.items.append(("raw", f"buffer_store_dword v{vTC}, v{vZ}, {WS}, {t0} offen sc1"))
    g("s_mov_b64 exec, -1")
    g("L_noarr:")
    early(g, 5)
    g("s_barrier")
    st(g)
    FR = 64; GF = 52; GA = ACC + 32
    mid_item = st.item()
    vOW, vOR, vOG, vY = 18, 19, 20, 21
    def gemm1(gate):
        o = Prog()
        nt_ = 2 if gate else 3
        def reads(ks):
            c, jj = divmod(ks, 4); slot = c % 4; b = FR + 16*(ks % 3)
            r_ = [I(f"ds_read_b128 {q4(b, 'a')}, v{vXA+jj} offset:{slot*4096}", f"r{ks}")]
            for t in range(nt_):
                for h in range(2):
                    r_.append(I(f"ds_read_b64_tr_b16 {pr(b+4+4*t+2*h, 'a')}, v{vWA} offset:{slot*12288 + (16*jj+4*h)*192 + t*64}", f"r{ks}"))
            if gate: r_.append(I(f"ds_read_b128 {q4(GF+4*(ks%3), 'a')}, v{vGA} offset:{32*ks}", f"r{ks}"))
            return r_
        o.ext(reads(0)); o.ext(reads(1))
        slots = []
        for ks in range(32):
            b = FR + 16*(ks % 3)
            nx = ks + 2
            pre = [("wlg", f"r{ks}")]
            if nx % 4 == 0:
                pre = [("wlg", f"r{ks+1}"), I("s_barrier")]
                if nx <= 16: pre = [pre[0]] + early2(nx//2 - 2) + [pre[1]] + early2(nx//2 - 1)
            rd = reads(nx) if nx < 32 else []
            mf = [I(f"v_mfma_f32_32x32x16_bf16 v[{ACC+16*t}:{ACC+16*t+15}], {q4(b+4+4*t, 'a')}, {q4(b, 'a')}, v[{ACC+16*t}:{ACC+16*t+15}]") for t in range(nt_)]
            if gate: mf.append(I(f"v_mfma_f32_16x16x32_bf16 {q4(GA)}, {q4(GF+4*(ks%3), 'a')}, {q4(b, 'a')}, {q4(GA) if ks else 0}"))
            slots += [pre + [mf[0]] + rd[0:3], [mf[1]] + rd[3:5], [mf[2]] + rd[5:7]]
        S = lambda ks, i=0: 3*ks + i
        xhi, xa = 110, 111
        eq = Prog()
        eq(f"v_lshrrev_b32 v{xhi}, 9, v{vL16}")
        eq(f"s_lshl_b32 {t0}, {sW}, 11"); eq(f"s_add_u32 {t2}, {t0}, {OT}")
        eq(f"v_lshl_add_u32 v{vOW}, v{vL4}, 4, {t2}"); eq(f"v_lshl_add_u32 v{vOW}, v{xhi}, 3, v{vOW}"); eq(f"v_add_u32 v{vOR}, {t2}, v{vL16}")
        eq(f"v_and_b32 v{xa}, 24, v{vL4}"); eq(f"v_lshl_add_u32 v{vOW}, v{xa}, 1, v{vOW}")
        eq(f"v_lshrrev_b32 v{vOG}, 6, v{vL16}"); eq(f"v_lshrrev_b32 v{xa}, 3, v{vL16}"); eq(f"v_xor_b32 v{xa}, v{xa}, v{vL16}"); eq(f"v_and_b32 v{xa}, 48, v{xa}"); eq(f"v_lshl_add_u32 v{vOG}, v{vOG}, 10, v{xa}")
        eq(f"v_lshl_add_u32 v{vY}, v{xhi}, 14, v{vL4}")
        eq(f"v_lshlrev_b32 v{vPA}, 1, v{vL4}"); eq(f"v_and_b32 v{vKS}, 0x70, v{vL16}")
        eq(f"s_lshl_b32 {t0}, {sW}, 7"); eq(f"v_add_u32 v{vKS}, {t0}, v{vKS}"); eq(f"v_or_b32 v{xa}, 0x1e0, v{vKS}")
        eq(f"v_cmp_gt_u32 vcc, 512, v{vL16}"); eq(f"v_cndmask_b32 v{vKS}, v{xa}, v{vKS}, vcc"); eq(f"v_lshlrev_b32 v{vKS}, {fs}, v{vKS}")
        for i in range(8): eq(f"s_add_u32 s{12+i}, {sY}, {(4*(i//2)+(i%2))*8192}")
        eq(f"s_add_u32 {t3}, {sO}, {16384-1024}")
        f1 = Prog(); f1.wvm("kvs0"); f1("s_mov_b64 exec, 1"); f1(f"buffer_store_dword v{vTC}, v{vZ}, {WS}, {sKL} offen sc1", tag="fl1"); f1("s_mov_b64 exec, -1")
        streams = [(groups_of(eq), S(4), S(14))]
        if P["f1k"] >= 0: streams.append(([f1.items], S(P["f1k"], 1), S(P["f1k"], 1)))
        if stamps: streams.append(([mid_item], S(16), S(16)))
        o.ext(weave(slots, *streams))
        if gate:
            G_ = 140
            o(f"v_and_b32 v{G_}, 256, v{vL16}"); o(f"v_cmp_ne_u32 vcc, 0, v{G_}"); o(f"v_cndmask_b32 v{G_}, v{GA}, v{GA+1}, vcc")
            o(f"v_cvt_pk_bf16_f32 v{G_}, v{G_}, v{G_}"); o(f"v_and_b32 v{G_}, 0xffff0000, v{G_}")
            o(f"v_mul_f32 v{G_}, {fb(-1.4426950408889634)}, v{G_}"); o(f"v_exp_f32 v{G_}, v{G_}"); o(f"v_add_f32 v{G_}, 1.0, v{G_}"); o(f"v_rcp_f32 v{G_}, v{G_}")
            o(f"v_cvt_pk_bf16_f32 v{G_}, v{G_}, v{G_}"); o(f"v_and_b32 v{G_}, 0xffff0000, v{G_}")
            o(f"v_sub_f32 v{G_+1}, 1.0, v{G_}"); o(f"v_cvt_pk_bf16_f32 v{G_+1}, v{G_+1}, v{G_+1}"); o(f"v_and_b32 v{G_+1}, 0xffff0000, v{G_+1}")
            o("s_mov_b32 exec_hi, 0")
            o.items.append(("raw", f"buffer_store_dwordx2 {pr(G_)}, v{vPA}, {WS}, {sGW} offen sc1"))
            o("s_mov_b32 exec_hi, -1")
            o.w0(vm=False, lg=True)
        return o.items
    g(f"s_cmp_eq_u32 {sC1}, 15"); g("s_cbranch_scc1 L_gate")
    g.items.append(("fork", "L_gate", gemm1(True), "L_join"))
    g.ext(gemm1(False))
    g.items.append(("join", "L_join"))
    st(g)
    T = 88; HP = 104
    vFL = vWA
    def flag(n):
        d = Prog()
        d.wvm(f"hst{n-1}")
        d(f"v_add_u32 v{vFL}, 3, v{vTC}"); d("s_mov_b64 exec, 1"); d(f"buffer_store_dword v{vFL}, v{vZ}, {WS}, {sF2W if n == 3 else sAW} offen sc1", tag=f"flag{n}"); d("s_mov_b64 exec, -1")
        return d.items
    def w2_read(tau, pl, areg):
        o = [("wvm", f"w2_{tau}")]
        for tdd in range(2):
            for ks in range(2):
                for j in range(2):
                    o.append(I(f"ds_read_b64_tr_b16 {pr(areg+tdd*8+ks*4+2*j, 'a')}, v{vB2+tdd+(2 if pl >= 4 else 0)} offset:{(pl % 4)*4096 + (16*ks+8*j)*128}", f"w2r_{tau}"))
        return o
    PL2 = {6+i: PL[i] for i in range(5)}; PL2[5] = PL[5]
    nm = P["nm"]
    ge = Prog()
    if nm:
        for i in range(4): ge(f"v_add_u32 v{6+i}, {7168*i}, v{vB2V}")
    ge(f"s_lshl_b32 {t0}, {sW}, 2"); ge(f"s_add_u32 {t0}, {t0}, {SY}"); ge(f"v_mov_b32 v128, {t0}")
    go = P["go"]
    def gosig(k):
        if k == go: ge("ds_write_b32 v128, v128 offset:32", tag="gd")
    for t in range(3):
        a = ACC + 16*t
        pk = lambda k: not (t == 2 and k > go)
        if t == 2: gosig(0)
        if pk(1):
            for i in range(8): ge(f"v_pk_mul_f32 {pr(T+2*i)}, {pr(a+2*i)}, {pr(a+2*i)}")
            for i in range(8): ge(f"v_pk_fma_f32 {pr(T+2*i)}, {pr(T+2*i)}, {CK}, {pr(vC0)}")
            for i in range(8): ge(f"v_pk_mul_f32 {pr(T+2*i)}, {pr(T+2*i)}, {pr(a+2*i)}")
        else:
            for i in range(16): ge(f"v_mul_f32 v{T+i}, v{a+i}, v{a+i}")
            for i in range(16): ge(f"v_fma_f32 v{T+i}, v{T+i}, s20, v{vC0}")
            for i in range(16): ge(f"v_mul_f32 v{T+i}, v{T+i}, v{a+i}")
        if t == 2: gosig(1)
        if nm and t == P["mid"] + 1:
            for tau in range(6, 6 + nm): ge.wlg(f"w2r_{tau-6}"); ge.ext(flat(Wt(tau, PL2[tau], 6, sXL, sW2L_)))
        for i in range(16): ge(f"v_exp_f32 v{T+i}, v{T+i}")
        if pk(2):
            for i in range(8): ge(f"v_pk_add_f32 {pr(T+2*i)}, {pr(T+2*i)}, 1.0 op_sel_hi:[1,0]")
        else:
            for i in range(16): ge(f"v_add_f32 v{T+i}, 1.0, v{T+i}")
        if t == 2: gosig(2)
        for i in range(16): ge(f"v_rcp_f32 v{T+i}, v{T+i}")
        if pk(3):
            for i in range(8): ge(f"v_pk_mul_f32 {pr(T+2*i)}, {pr(T+2*i)}, {pr(a+2*i)}")
        else:
            for i in range(16): ge(f"v_mul_f32 v{T+i}, v{T+i}, v{a+i}")
        if t == 2: gosig(3)
        for i in range(8): ge(f"v_cvt_pk_bf16_f32 v{HP+8*t+i}, v{T+2*i}, v{T+2*i+1}")
        if t: ge(f"s_add_u32 {sHS}, {sHS}, 4096")
        if t == 2 and P["lvl"] == 1: ge.ext(flag(1))
        for ks in range(2):
            ge(f"buffer_store_dwordx4 {q4(HP+8*t+4*ks)}, v{vH2 if t == 2 else vL16}, {WS}, {sHS} offen offset:{1024*ks} sc1", tag=f"hst{t}")
        if nm and t == P["mid"]:
            ge(f"s_mov_b32 {sCNT}, 0")
            ge("L_gm:")
            ge("ds_read_b32 v129, v128 offset:48"); ge(f"s_add_u32 {sCNT}, {sCNT}, 1")
            ge.w0(vm=False, lg=True)
            ge("v_cmp_ne_u32 vcc, 1, v129"); ge("s_cbranch_vccz L_gm_ok")
            ge("s_sleep 1"); ge(f"s_cmp_lt_u32 {sCNT}, 0x40000"); ge("s_cbranch_scc1 L_gm")
            ge("L_gm_ok:")
            for tau in range(nm): ge.ext(w2_read(tau, PL[tau], 16*tau))
    g.ext(ge)
    st(g)
    vW2g = 6; vH = [10, 13]; vSG = 128; vTG = 129
    g(f"v_mov_b32 v{vSG}, {SY}")
    if not P["pair"]: g(f"v_mov_b32 v{vTG}, 1"); g("s_mov_b64 exec, 1"); g(f"ds_add_u32 v{vSG}, v{vTG}", tag="gs"); g("s_mov_b64 exec, -1")
    qd = Prog()
    qd(f"s_mov_b32 m0, {t2}")
    qd(f"buffer_load_dwordx4 v{vOG}, {Q}, {sO} offen lds", tag="qt"); qd(f"buffer_load_dwordx4 v{vOG}, {Q}, {t3} offen offset:1024 lds", tag="qt")
    qlate = P.get("qpos", 0)
    if not qlate: g.ext(qd)
    if not nm:
        for i in range(4): g(f"v_add_u32 v{vW2g+i}, {7168*i}, v{vB2V}")
    g(f"s_lshl_b32 {t0}, {sW}, 2"); g(f"v_add_u32 v{vSG}, {t0}, v{vSG}")
    sDONE = "s23"
    fl_raw = [f"v_add_u32 v{vFL}, 3, v{vTC}", "s_mov_b64 exec, 1", f"buffer_store_dword v{vFL}, v{vZ}, {WS}, {sF2W} offen sc1", "s_mov_b64 exec, -1"]
    if P["lvl"] == 2: g.ext(flag(2))
    if P["flagfirst"] == 1: g.ext(flag(3))
    g(f"s_mov_b32 {sCNT}, 0"); g(f"s_mov_b32 {sDONE}, 0")
    g("L_gw:")
    g(f"ds_read_b32 v{vTG}, v{vSG} offset:{48 if P.get('es') else 16}"); g(f"s_add_u32 {sCNT}, {sCNT}, 1")
    g.w0(vm=False, lg=True)
    g(f"v_cmp_ne_u32 vcc, 1, v{vTG}"); g("s_cbranch_vccz L_gw_ok")
    if P["flagfirst"] == 2:
        g(f"s_cmp_lg_u32 {sDONE}, 0"); g("s_cbranch_scc1 L_gw2")
        g.items.append(("raw", "s_waitcnt vmcnt(0)"))
        for x in fl_raw: g.items.append(("raw", x))
        g(f"s_mov_b32 {sDONE}, 1")
        g("L_gw2:")
    g("s_sleep 1"); g(f"s_cmp_lt_u32 {sCNT}, 0x40000"); g("s_cbranch_scc1 L_gw")
    g("L_gw_ok:")
    if stamps: g(f"s_sub_u32 {sCNT}, {sCNT}, 1"); cnt(g, 0)
    for tau in range(nm, 5): g.ext(w2_read(tau, PL[tau], 16*tau))
    assert P["flt"] >= 6 + nm and P["f2t"] >= 6 + nm
    for tau in range(6 + nm, 11):
        g.wlg(f"w2r_{tau-6}"); g.ext(flat(Wt(tau, PL2[tau], vW2g, sXL, sW2L_)))
        if tau == P["f2t"]: g(f"buffer_load_dword v{vPOLL}, v{vKS}, {WS}, {sAR} offen sc1", tag="f2")
        if tau == P["flt"] and P["flagfirst"] == 0: g.ext(flag(3))
        if tau == P["flt"] and P["flagfirst"] == 2:
            g.wvm("hst2")
            g(f"s_cmp_lg_u32 {sDONE}, 0"); g("s_cbranch_scc1 L_gw3")
            for x in fl_raw: g.items.append(("raw", x))
            g("L_gw3:")
    st(g)
    f2ld = f"buffer_load_dword v{vPOLL}, v{vKS}, {WS}, {sAR} offen sc1"
    f2bl = f"buffer_load_dword v{vPOLL}, v{vKS}, {WS}, {sF2R} offen sc1"
    if P["f2after"]: g.wvm(f"w2_{P['f2after']}")
    if P["f2t"] > 10: g(f2ld, tag="f2")
    vRW = 6
    g(f"v_add_u32 v{vRW}, {sXL}, v{vL16}")
    for idx in range(1, 4): g(f"v_xor_b32 v{vRW+idx}, {idx*16384}, v{vRW}")
    g(f"s_lshl_b32 {t0}, {sWh}, 11"); g(f"v_add_u32 v{vH[0]}, {t0}, v{vL16}"); g(f"v_xor_b32 v{vH[1]}, 2048, v{vH[0]}")
    g(f"s_add_u32 {t1}, {sTC}, 3")
    if P.get("es"):
        g(f"s_mov_b32 {sCNT}, 0")
        g("L_g5:")
        g(f"ds_read_b32 v{vTG}, v{vSG} offset:16"); g(f"s_add_u32 {sCNT}, {sCNT}, 1")
        g.w0(vm=False, lg=True)
        g(f"v_cmp_ne_u32 vcc, 1, v{vTG}"); g("s_cbranch_vccz L_g5_ok")
        g("s_sleep 1"); g(f"s_cmp_lt_u32 {sCNT}, 0x40000"); g("s_cbranch_scc1 L_g5")
        g("L_g5_ok:")
    QR = 136; GR = vC0
    if not qlate:
        g.wvm("qt")
        for q in range(4):
            if q: g(f"v_xor_b32 v{vTG}, {16*q}, v{vOW}")
            g(f"ds_read_b64 {pr(QR+2*q)}, v{vTG if q else vOW}", tag="qr")
    else: QR = 112
    retry(g, "f2", "f2", [f"v_cmp_ne_u32 vcc, {t1}, v{vPOLL}"], [f2ld], sleep=P["sl_f2"]); cnt(g, 1)
    st(g)
    NH = P.get('nh', 4); ND = P.get('nd', NH)
    nA = P["pre"]
    steps = [(t, ts) for t in range(nA) for ts in (1, 0)] + [(t, 1) for t in range(nA, 11)] + [(t, 0) for t in range(10, nA - 1, -1)]
    tb_ = [n for n, (t, ts) in enumerate(steps) if t >= 4*P["lvl"]][0]
    def h_load(n, ks):
        tau, ts = steps[n]
        d = Prog()
        if ks == 0:
            if n == tb_ - P["pollead"]: d(f2bl, tag="f2b")
            if n == tb_: retry(d, "f2b", "f2b", [f"v_cmp_ne_u32 vcc, {t1}, v{vPOLL}"], [f2bl], sleep=P["sl_f2"]); cnt(d, 3)
            d(f"s_mov_b32 {sRH}, {ORDER[tau]*4096}")
        d(f"buffer_load_dwordx4 {q4(88+8*(n % NH)+4*ks)}, v{vH[ts]}, {HS}, {sRH} offen offset:{ks*1024} sc1", tag=f"h{n}_{ks}")
        return d.items
    g(f"buffer_load_dwordx2 {pr(GR)}, v{vPA}, {WS}, {sGS} offen sc1", tag="g")
    for n in range(ND):
        for ks in range(2): g.ext(h_load(n, ks))
    if P["prio2"] != P["prio"]: g(f"s_setprio {P['prio2']}")
    AB = [A2, 24, 40, 56]
    YR = 136; QF = 120
    yl = [f"buffer_load_dword v{YR+i}, v{vY}, {WS}, s{12+i} offen sc1" for i in range(8)]
    f3ld = f"buffer_load_dword v{vPOLL}, v{vKS}, {WS}, {sKO} offen sc1"
    once = P.get("once", 1) and nA == 4
    areg = lambda tau: 16*tau if tau < 5 else 80 + 16*((tau - 5) % 2)
    if once: areg = lambda tau: 16*tau if tau < 7 else 16*(tau - 7)
    def rd(tau, gen_):
        it = w2_read(tau, PL2[tau], areg(tau))
        for x in it[1:]: x.tag = f"w2r_{tau}_{gen_}"
        return it
    reads_at = {3: rd(5, 0), 4: rd(6, 0), 6: rd(7, 0), 7: rd(8, 0), 8: rd(9, 0), 9: rd(10, 0), 12: rd(8, 1), 13: rd(7, 1), 14: rd(6, 1), 15: rd(5, 1)}
    reads_at = {n + nA: x for n, x in reads_at.items()}
    if once:
        g.ext(rd(5, 0))
        reads_at = {1: rd(6, 0), 3: rd(7, 0), 5: rd(8, 0), 7: rd(9, 0), 9: rd(10, 0)}
    seen2 = {0}
    slots = []
    for n, (tau, ts) in enumerate(steps):
        it = reads_at.get(n)
        rr = [it[:3], it[3:5], it[5:7], it[7:9]] if it else [[], [], [], []]
        k = 0
        for ks in range(2):
            for tdd in range(2):
                a = AB[tdd + 2*ts]
                first = (tdd + 2*ts) not in seen2; seen2.add(tdd + 2*ts)
                cc = "0" if first else f"v[{a}:{a+15}]"
                s_ = [("wvm", f"h{n}_{ks}")] if tdd == 0 else []
                if k == 0: s_ += [("wlg", f"w2r_{tau}"), ("wlg", f"w2r_{tau}_{1-ts}")]
                s_.append(I(f"v_mfma_f32_32x32x16_bf16 v[{a}:{a+15}], {q4(areg(tau)+tdd*8+ks*4, 'a')}, {q4(88+8*(n % NH)+4*ks)}, {cc}"))
                if tdd == 1 and n + ND < 22: s_ += h_load(n + ND, ks)
                s_ += rr[k]
                slots.append(s_); k += 1
    eq = Prog()
    eq.wlg("qr"); eq.wvm("g")
    for q in range(4):
        unpack(eq, QF+4*q, QF+4*q+1, QR+2*q); unpack(eq, QF+4*q+2, QF+4*q+3, QR+2*q+1)
    for i in range(16): eq(f"v_mul_f32 v{QF+i}, v{GR}, v{QF+i}")
    ex = Prog()
    for q in range(1, 4): ex(f"v_xor_b32 v{vB2+q}, {16*q}, v{vOW}")
    ck3 = Prog()
    retry(ck3, "f3", "f3", [f"v_cmp_ne_u32 vcc, {sTC}, v{vPOLL}"], [f3ld], sleep=P["sl_y"]); cnt(ck3, 2)
    for x in yl: ck3(x, tag="y")
    early_w = [[I(f"ds_write_b128 v{vRW}, {q4(AB[idx]+4*q)} offset:{(idx-1)*4096 + 1024*q}", "red")] for idx in (3, 2) for q in range(4)]
    ws_ = [([qd.items], qlate, qlate) if qlate else (groups_of(eq, 1), 24, 60) if NH == 4 else (groups_of(eq, 3), 73, 86), (early_w, 62, P.get("ewe", 84)) if once else (early_w, 4*(14 + nA) + 1, 86), ([ex.items], 4*(16 + nA) + 1, 4*(16 + nA) + 1),
           ([[I(f"v_and_b32 v{vKS}, 0xf0, v{vL16}"), I(f3ld, "f3")]], P["f3pos"], P["f3pos"])]
    XST = [82, 84, 86, 92, 10, 4]
    if stamps and P.get("early") == 4:
        for r_, sl in zip(XST, (0, 16, 32, 48, 64, 80)): ws_.append(([[("raw", f"s_memtime s[{r_}:{r_+1}]")]], sl, sl))
    if P["ck3"] < 88: ws_.append(([ck3.items], P["ck3"], P["ck3"]))
    g.ext(weave(slots, *ws_))
    st(g)
    e3(g, 0)
    if P["ck3"] == 88: g.ext(ck3)
    e3(g, 1)
    for q in range(4): g(f"ds_write_b128 v{vRW}, {q4(AB[1]+4*q)} offset:{1024*q}", tag="red")
    if qlate:
        g.wvm("qt")
        for q in range(4): g(f"ds_read_b64 {pr(QR+2*q)}, v{vB2+q if q else vOW}", tag="qr")
    if P["ck3"] > 88: g.ext(ck3)
    g.w0(vm=False, lg=True)
    e3(g, 2)
    g("s_barrier")
    e3(g, 3)
    for idx in range(1, 4):
        for q in range(4): g(f"ds_read_b128 {q4(AB[idx]+4*q)}, v{vRW+idx} offset:{(idx-1)*4096 + 1024*q}", tag=f"rr{idx}")
    if qlate:
        for q in range(4):
            unpack(g, QF+4*q, QF+4*q+1, QR+2*q); unpack(g, QF+4*q+2, QF+4*q+3, QR+2*q+1)
        for i in range(8): g(f"v_pk_mul_f32 {pr(QF+2*i)}, {pr(QF+2*i)}, {pr(GR)} op_sel_hi:[1,0]")
    ZF = 88
    def ymul():
        g.wvm("y")
        e3(g, 4)
        for i in range(8): unpack(g, ZF+2*i, ZF+2*i+1, YR+i)
        for i in range(8): g(f"v_pk_mul_f32 {pr(QF+2*i)}, {pr(QF+2*i)}, {pr(ZF+2*i)}")
    if P["ck3"] <= 88: ymul()
    for idx in range(1, 4):
        g.wlg(f"rr{idx}")
        for i in range(8): g(f"v_pk_add_f32 {pr(A2+2*i)}, {pr(A2+2*i)}, {pr(AB[idx]+2*i)}")
    if P["ck3"] > 88: ymul()
    for i in range(8): g(f"v_pk_fma_f32 {pr(QF+2*i)}, {pr(A2+2*i)}, {pr(GR)}, {pr(QF+2*i)} op_sel:[0,1,0]")
    for i in range(8): g(f"v_cvt_pk_bf16_f32 v{ZF+i}, v{QF+2*i}, v{QF+2*i+1}")
    e3(g, 5)
    for q in range(4): g(f"ds_write_b64 v{vB2+q if q else vOW}, {pr(ZF+2*q)}", tag="ow")
    for i in range(2): g(f"ds_read_b128 {q4(24+4*i)}, v{vOR} offset:{1024*i}", tag=f"or{i}")
    of = P["outf"].replace("plain", "")
    g.wlg("or0")
    g(f"buffer_store_dwordx4 {q4(24)}, v{vOG}, {OUT}, {sO} offen {of}", tag="out")
    g.wlg("or1")
    g(f"buffer_store_dwordx4 {q4(28)}, v{vOG}, {OUT}, {t3} offen offset:1024 {of}", tag="out")
    if stamps and P.get("early") == 4:
        g.w0(vm=False, lg=True)
        for i_, r_ in enumerate(XST): g(f"v_writelane_b32 v0, s{r_}, {44+i_}")
    e3(g, 6)
    if stamps and P.get("early") == 3: g.w0(vm=True, lg=True); e3(g, 7)
    dump(g, st, vL16, 1)
    g("s_endpgm")
    body = resolve(p.items + v.items)
    stG = dict(hist=[], vm=[], lg=[], smem=False)
    tailG = []
    bodyG = resolve(g.items, stG, tailG) + tailG
    ref = open("cdna_kernels/" + NAME + ".s.ref").read().split("\n") if P.get("final") else []
    top = [l for l in ref[:16]] + DOC if P.get("final") else []
    hdr = top + [f"; @launch grid=(256,1,1) block=(512,1,1) lds={LDS_BYTES}",
           '.amdgcn_target "amdgcn-amd-amdhsa--gfx950"', ".text", f".globl {NAME}_kernel", ".p2align 8",
           f".type {NAME}_kernel,@function", f"{NAME}_kernel:", "L_codestart:"]
    ftr = ["L_codeend:", '.section .rodata,"a"', ".p2align 6", f".amdhsa_kernel {NAME}_kernel",
           "  .amdhsa_next_free_vgpr 256", "  .amdhsa_next_free_sgpr 102", "  .amdhsa_accum_offset 144",
           "  .amdhsa_group_segment_fixed_size 0", "  .amdhsa_kernarg_size 120", "  .amdhsa_user_sgpr_count 2",
           "  .amdhsa_user_sgpr_kernarg_segment_ptr 1", "  .amdhsa_system_sgpr_workgroup_id_x 1",
           "  .amdhsa_float_denorm_mode_32 3", ".end_amdhsa_kernel"]
    allb = body + bodyG
    ab_ = str(P.get("abl", ""))
    if ab_:
        gi = allb.index("L_G:"); ji = allb.index("L_join:")
        def sub(lo, hi, pat):
            for q_ in range(lo, hi):
                if re.search(pat, allb[q_]) and not allb[q_].rstrip().endswith(", 0"): allb[q_] = "    s_nop 0"
        ei = [q_ for q_ in range(ji, len(allb)) if allb[q_].strip() == "s_endpgm"][0]
        if "p" in ab_ or "q" in ab_:
            nb = []
            for q_, l_ in enumerate(allb):
                nb.append(l_)
                if "v_mfma_f32_32x32" in l_ and q_ > gi and (("p" in ab_ and (q_ < ji or q_ > ei)) or ("q" in ab_ and ji < q_ < ei)): nb.append(f"    s_nop {P.get('pn', 5)}")
            allb = nb
        if "c" in ab_: sub(0, gi, "v_mfma")
        if "h" in ab_:
            k_ = [q_ for q_ in range(gi) if "v_mfma" in allb[q_]]
            for q_ in k_[8::2]: allb[q_] = "    s_nop 0"
        if "t" in ab_: sub(ji, ei, "v_exp_f32|v_rcp_f32")
        if "g" in ab_: sub(ji, ji + 300, "v_exp_f32|v_rcp_f32|v_pk_")
        if "1" in ab_: sub(gi, ji, "v_mfma"); sub(ei, len(allb), "v_mfma")
        if "2" in ab_: sub(ji, ei, "v_mfma")
    if P.get("al", 1): allb = align_pass(hdr, allb, ftr)
    return "\n".join(hdr + allb + ftr) + "\n"

if __name__ == "__main__":
    kw = {}
    for a in sys.argv[2:]:
        if "=" in a:
            k, v = a.split("="); kw[k] = int(v) if v.lstrip("-").isdigit() else v
    open(sys.argv[1], "w").write(gen(stamps=("stamps" in sys.argv), **kw))
```
